```python
import torch

def _softmax(x, axis=-1):
    return torch.softmax(x, dim=axis)
def _gelu(x):
    return torch.nn.functional.gelu(x, approximate="tanh")
def _silu(x):
    return torch.nn.functional.silu(x)
def _sigmoid(x):
    return torch.sigmoid(x)
def _layernorm(x, axis=-1, eps=1e-5):
    m = x.mean(dim=axis, keepdim=True)
    v = x.var(dim=axis, keepdim=True, unbiased=False)
    return (x - m) / torch.sqrt(v + eps)
def _scatter_add(tgt, idx, src, axis=0):
    return tgt.clone().index_add_(axis, idx, src)
def _segment_sum(src, seg, n):
    out = torch.zeros((n,) + src.shape[1:], dtype=src.dtype)
    return out.index_add_(0, seg, src)
def _pad(x, pw):
    flat = tuple(v for pair in reversed(pw) for v in pair)
    return torch.nn.functional.pad(x, flat)

kernel_name = 'gated_mix__mha_block__dense_activation_relu__prompt'

def setup_inputs():

    _w = (lambda a: (lambda t: t.to(torch.bfloat16) if t.is_floating_point() else t)(torch.as_tensor(a)))
    def _A_setup():
        B, S, D, H = 1, 2048, 640, 32
        return {
            "x": _w((lambda *s: torch.randn(*s, dtype=torch.bfloat16) * 0.05)(B, S, D)),
            "wqkv": _w((lambda *s: torch.randn(*s, dtype=torch.bfloat16) * 0.8)(D, 3 * D)),
            "wo": _w((lambda *s: torch.randn(*s, dtype=torch.bfloat16) * 0.2)(D, D)),
        }
    _A_in = _A_setup()

    def _B_setup():
        B, S, D, Dff = 1, 2048, 640, 1536
        return {
            "x": _w((lambda *s: torch.randn(*s, dtype=torch.bfloat16) * 0.05)(B, S, D)),
            "w1": _w((lambda *s: torch.randn(*s, dtype=torch.bfloat16) * 0.05)(D, Dff)),
            "w2": _w((lambda *s: torch.randn(*s, dtype=torch.bfloat16) * 0.05)(Dff, D)),
        }
    _B_in = _B_setup()

    return {
        "A_x": _A_in["x"],
        "A_wqkv": _A_in["wqkv"],
        "A_wo": _A_in["wo"],
        "B_x": _B_in["x"],
        "B_w1": _B_in["w1"],
        "B_w2": _B_in["w2"],
        "gate_w": _w((lambda *s: torch.randn(*s, dtype=torch.bfloat16) * 0.05)(640) * 16.0),
    }

def reference(A_x, A_wqkv, A_wo, B_x, B_w1, B_w2, gate_w):
    def _A_ref(x, wqkv, wo):
        B, S, D = x.shape
        H = 32
        Dh = D // H
        qkv = (lambda x, *d: x.permute(*d))((x @ wqkv).reshape(B, S, 3, H, Dh), 2, 0, 3, 1, 4)
        q, k, v = qkv[0], qkv[1], qkv[2]
        scores = torch.einsum("bhqd,bhkd->bhqk", q, k) * (Dh ** -0.5)
        p = _softmax(scores, axis=-1)
        o = torch.einsum("bhqk,bhkd->bhqd", p, v)
        return (lambda x, *d: x.permute(*d))(o, 0, 2, 1, 3).reshape(B, S, D) @ wo

    def _B_ref(x, w1, w2):
        h = torch.einsum("bsd,df->bsf", x, w1)
        zero = torch.zeros_like(h)
        h = torch.maximum(h, zero)
        return torch.einsum("bsf,fd->bsd", h, w2)

    x = A_x
    g = _sigmoid((x * gate_w).sum(-1, keepdims=True))
    a = _A_ref(x, A_wqkv, A_wo)
    b = _B_ref(x, B_w1, B_w2)
    return g * a + (1 - g) * b
```

```python
import re

class Asm:
    def __init__(self):
        self.lines = []
    def __call__(self, s):
        for l in s.split("\n"):
            l = l.strip()
            if l:
                self.lines.append(l)
    def label(self, name):
        self.lines.append(name + ":")
    def comment(self, s):
        self.lines.append("; " + s)
    def text(self):
        out = []
        for l in self.lines:
            if l.endswith(":") or l.startswith(".") or l.startswith(";"):
                out.append(l)
            else:
                out.append("    " + l)
        return "\n".join(out) + "\n"

def vr(a, n=1):
    return f"v{a}" if n == 1 else f"v[{a}:{a+n-1}]"
def sr(a, n=1):
    return f"s{a}" if n == 1 else f"s[{a}:{a+n-1}]"

_reg = re.compile(r"\b([vsa])(?:(\d+)|\[(\d+):(\d+)\])")
def regs_of(tok):
    out = set()
    for m in _reg.finditer(tok):
        k = m.group(1)
        if m.group(2) is not None:
            out.add((k, int(m.group(2))))
        else:
            for i in range(int(m.group(3)), int(m.group(4)) + 1):
                out.add((k, i))
    if re.search(r"\bvcc\b", tok): out.add(("s", "vcc"))
    if re.search(r"\bexec\b", tok): out.add(("s", "exec"))
    if re.search(r"\bm0\b", tok): out.add(("s", "m0"))
    return out

TRANS = ("v_exp_f32", "v_log_f32", "v_rcp_f32", "v_rsq_f32", "v_sqrt_f32", "v_sin_f32", "v_cos_f32")

def parse(line):
    l = line.split(";")[0].strip()
    if not l or l.endswith(":") or l.startswith("."):
        return None
    p = l.split(None, 1)
    op = p[0]
    ops = [x.strip() for x in re.split(r",(?![^\[]*\])", p[1])] if len(p) > 1 else []
    d = dict(op=op, line=line, w=set(), r=set(), kind="other", srcC=set(), ab=set(), states=1)
    if op == "s_nop":
        d["states"] = int(ops[0], 0) + 1
    if op.startswith("v_mfma") or op.startswith("v_smfmac"):
        d["kind"] = "mfma"
        d["w"] = regs_of(ops[0])
        d["ab"] = regs_of(ops[1]) | regs_of(ops[2])
        if op.startswith("v_smfmac"):
            d["srcC"] = regs_of(ops[0]); d["ab"] |= regs_of(ops[3])
        else:
            d["srcC"] = regs_of(ops[3].split()[0])
        d["r"] = d["ab"] | d["srcC"]
        d["passes"] = 8 if "32x32" in op else 4
        d["dkey"] = ops[0]
    elif op.startswith("v_"):
        d["kind"] = "valu"
        if op.startswith("v_cmp"):
            d["w"] = regs_of(ops[0]); d["r"] = set().union(*[regs_of(x) for x in ops[1:]])
        elif op.startswith("v_permlane") and "swap" in op:
            d["w"] = regs_of(ops[0]) | regs_of(ops[1]); d["r"] = set(d["w"])
        elif op.startswith("v_readfirstlane") or op.startswith("v_readlane"):
            d["w"] = regs_of(ops[0]); d["r"] = set().union(*[regs_of(x) for x in ops[1:]])
        elif "_co_" in op:
            d["w"] = regs_of(ops[0]) | regs_of(ops[1]); d["r"] = set().union(*[regs_of(x) for x in ops[2:]])
        else:
            d["w"] = regs_of(ops[0]); d["r"] = set().union(*[regs_of(x) for x in ops[1:]]) if len(ops) > 1 else set()
            if op.startswith("v_fmac") or op.startswith("v_dot2c") or "UNUSED_PRESERVE" in l or op.startswith("v_writelane"):
                d["r"] |= d["w"]
        d["trans"] = op.split("_e32")[0].split("_e64")[0] in TRANS
    elif op.startswith("ds_"):
        d["kind"] = "ds"
        if op.startswith("ds_read") or op.startswith("ds_bpermute") or op.startswith("ds_permute") or op.startswith("ds_swizzle"):
            d["w"] = regs_of(ops[0]); d["r"] = set().union(*[regs_of(x) for x in ops[1:]])
        else:
            d["r"] = set().union(*[regs_of(x) for x in ops])
    elif op.startswith("buffer_") or op.startswith("global_"):
        d["kind"] = "vmem"
        allr = set().union(*[regs_of(x) for x in ops]) if ops else set()
        islds = bool(re.search(r"\blds\b", l)) or "load_lds" in op
        if "load" in op and not islds:
            d["w"] = regs_of(ops[0]); d["r"] = set().union(*[regs_of(x) for x in ops[1:]])
        elif "atomic" in op and re.search(r"\bsc0\b", l):
            d["w"] = regs_of(ops[0]); d["r"] = allr
        else:
            d["r"] = allr
        if islds:
            d["r"].add(("s", "m0")); d["lds"] = True
        if "store" in op and ("x3" in op or "x4" in op):
            d["widestore"] = regs_of(ops[0]) if op.startswith("buffer_") else regs_of(ops[1])
    elif op.startswith("s_"):
        d["kind"] = "salu"
        if op.startswith("s_cmp") or op.startswith("s_cbranch") or op in ("s_branch", "s_barrier", "s_waitcnt", "s_nop", "s_endpgm", "s_setprio", "s_sleep", "s_bitcmp1_b32", "s_bitcmp0_b32"):
            d["r"] = set().union(*[regs_of(x) for x in ops]) if ops else set()
        else:
            d["w"] = regs_of(ops[0]) if ops else set()
            d["r"] = set().union(*[regs_of(x) for x in ops[1:]]) if len(ops) > 1 else set()
            if "saveexec" in op: d["w"].add(("s", "exec"))
    return d

def need(p, c):
    n = 0
    vw = {x for x in p["w"] if x[0] in "va"}
    sw = {x for x in p["w"] if x[0] == "s"}
    if p["kind"] == "valu":
        if c["kind"] == "mfma" and vw & c["r"]: n = max(n, 2)
        if c["kind"] == "valu":
            if c["op"].startswith(("v_readfirstlane", "v_readlane")) and vw & c["r"]: n = max(n, 1)
            if c["op"].startswith("v_permlane") and vw & c["r"]: n = max(n, 2)
            if "dpp" in c["line"] and vw & c["r"]: n = max(n, 2)
            if p.get("trans") and not c.get("trans") and vw & c["r"]: n = max(n, 1)
            if sw & c["r"]: n = max(n, 2)
            if c["op"].startswith("v_cndmask") and ("s", "vcc") in sw and "vcc" in c["line"]: n = max(n, 2)
            if ("sdwa" in p["op"] or "op_sel" in p["line"]) and vw & (c["r"] | c["w"]): n = max(n, 1)
        if c["kind"] == "vmem" and sw & c["r"]: n = max(n, 5)
        if ("s", "exec") in sw and c["kind"] == "mfma": n = max(n, 4)
    if p["kind"] == "salu":
        if ("s", "m0") in sw and c.get("lds"): n = max(n, 1)
    if p["kind"] == "vmem" and p.get("widestore"):
        if c["kind"] == "valu" and p["widestore"] & c["w"]: n = max(n, 2)
        elif p["widestore"] & c["w"]: n = max(n, 1)
    if p["kind"] == "mfma":
        big = {8: 12, 4: 8}[p["passes"]]
        if c["kind"] == "mfma":
            if vw & c["ab"]: n = max(n, big)
            if vw & c["srcC"]:
                same = (c["srcC"] == vw and c["passes"] == p["passes"])
                if not same: n = max(n, {8: 10, 4: 6}[p["passes"]])
            elif vw & c["w"]:
                if c["passes"] != p["passes"]: n = max(n, big)
        elif c["kind"] in ("valu", "ds", "vmem"):
            if vw & (c["r"] | c["w"]): n = max(n, big)
        if c["kind"] == "valu" and p["srcC"] & c["w"]: n = max(n, {8: 7, 4: 3}[p["passes"]])
    return n

def check_linear(lines, window=24, verbose=True):
    ins = [d for d in (parse(l) for l in lines) if d]
    errs = 0
    for i, c in enumerate(ins):
        dist = 0
        for j in range(i - 1, max(-1, i - window), -1):
            p = ins[j]
            if p["op"] in ("s_branch", "s_endpgm", "s_setpc_b64"):
                break
            n = need(p, c)
            if n > dist:
                errs += 1
                if verbose:
                    print(f"HAZARD need {n} have {dist}:\n   {p['line']}\n   {c['line']}")
            dist += p["states"]
            if dist >= 20: break
    return errs
```

```python
import sys, math, struct
from dsl import *

NAME = "gated_mix__mha_block__dense_activation_relu__prompt"
WS_Q  = 0x0
WS_KV = 0x280000
WS_H  = 0x780000
WS_O  = 0xD80000
WS_G  = 0x1000000
WS_END = 0x1002000
OOB = 0x80000000
def f32bits(x): return struct.unpack("<I", struct.pack("<f", x))[0]
QSCALE = f32bits(math.log2(math.e) / math.sqrt(20.0))

SX, SW, SW1, SWS, SG = 4, 8, 12, 16, 20
S_WAVE = 24

def srd_tail(a, base, nbytes):
    a(f"s_mov_b32 s{base+2}, {nbytes}")
    a(f"s_mov_b32 s{base+3}, 0x00020000")

def phase12(a, cfg):
    ST = cfg.get("stflags", "")
    sRB, sCG, sK, sStrip, sM0, sT0, sT1, sT2, sSG, sRG = 25, 26, 27, 28, 30, 31, 32, 33, 34, 35
    sT3, sT4 = 36, 37
    X = 0
    ACC = 160
    WB = 192
    vXR = 208
    vWR = 212
    vWR2 = 214
    vXS = 216
    vWS = 218
    vW1S = 219
    vEP = 220
    vL = 228
    vT = 229
    vGR = 237
    a("v_and_b32 v228, 63, v0")
    a("v_lshrrev_b32 v229, 6, v0")
    a("s_and_b32 s31, s2, 7")
    a("v_readfirstlane_b32 s24, v229")
    a("s_lshr_b32 s32, s2, 3")
    a("s_and_b32 s33, s32, 7")
    a("s_lshr_b32 s32, s32, 3")
    a("s_and_b32 s25, s31, 1")
    a("s_lshl_b32 s25, s25, 3")
    a("s_add_u32 s25, s25, s33")
    a("s_lshr_b32 s26, s31, 1")
    a("s_lshl_b32 s26, s26, 2")
    a("s_add_u32 s26, s26, s32")
    a("s_mul_i32 s33, s33, 5")
    a("s_mul_i32 s32, s32, 10")
    a("s_add_u32 s27, s33, s32")
    a("s_lshr_b32 s27, s27, 2")
    a("s_cmp_ge_u32 s27, 10")
    a("s_cselect_b32 s31, 10, 0")
    a("s_sub_u32 s27, s27, s31")
    if cfg.get("norot"): a("s_mov_b32 s27, 0")
    a("s_lshl_b32 s31, s26, 2")
    a("s_mul_i32 s28, s26, 3")
    a("s_add_u32 s28, s28, 12")
    a("s_min_u32 s28, s28, s31")
    a("s_lshl_b32 s30, s24, 11")
    a("s_lshr_b32 s34, s24, 2")
    a("s_and_b32 s35, s24, 3")
    t0, t1, t2, t3 = vT, vT+1, vT+2, vT+3
    a(f"s_lshl_b32 s31, s25, 7")
    a(f"s_lshl_b32 s32, s24, 4")
    a(f"s_add_u32 s31, s31, s32")
    for i in range(2):
        a(f"v_lshrrev_b32 v{t0}, 3, v{vL}")
        a(f"v_lshrrev_b32 v{t1}, 4, v{vL}")
        a(f"v_add_u32 v{t1}, {4*i}, v{t1}")
        a(f"v_and_b32 v{t2}, 7, v{vL}")
        a(f"v_xor_b32 v{t2}, v{t2}, v{t1}")
        a(f"v_add_u32 v{t0}, s31, v{t0}")
        a(f"v_add_u32 v{t0}, {8*i}, v{t0}")
        a(f"v_mul_u32_u24 v{t0}, 1280, v{t0}")
        a(f"v_lshl_add_u32 v{vXS+i}, v{t2}, 4, v{t0}")
    a(f"v_lshrrev_b32 v{t0}, 4, v{vL}")
    a(f"v_bfe_u32 v{t1}, v{vL}, 2, 2")
    a(f"v_xor_b32 v{t1}, v{t1}, v{t0}")
    a(f"v_and_b32 v{t2}, 3, v{vL}")
    a(f"v_lshlrev_b32 v{t2}, 4, v{t2}")
    a(f"v_lshl_add_u32 v{t2}, v{t1}, 6, v{t2}")
    a(f"s_lshl_b32 s31, s24, 3")
    a(f"v_add_u32 v{t0}, s31, v{t0}")
    a(f"v_mul_u32_u24 v{t3}, 3840, v{t0}")
    a(f"s_lshl_b32 s31, s28, 6")
    a(f"v_add3_u32 v{vWS}, v{t3}, v{t2}, s31")
    a(f"v_mul_u32_u24 v{t3}, 3072, v{t0}")
    a(f"s_mul_i32 s31, s26, 192")
    a(f"v_add3_u32 v{vW1S}, v{t3}, v{t2}, s31")
    a(f"v_cmp_eq_u32 vcc, 3, v{t1}")
    a(f"v_mov_b32 v{t3}, 0x{OOB:x}")
    a(f"s_cmp_ge_u32 s26, 12")
    a(f"s_cselect_b64 s[36:37], vcc, 0")
    a(f"v_cndmask_b32 v{vW1S}, v{vW1S}, v{t3}, vcc")
    a(f"v_cndmask_b32 v{vWS}, v{vWS}, v{t3}, s[36:37]")
    a("s_waitcnt lgkmcnt(0)")
    srd_tail(a, SX, 2048*1280); srd_tail(a, SW, 640*3840); srd_tail(a, SW1, 640*3072)
    srd_tail(a, SWS, WS_END); srd_tail(a, SG, 1280)

    def adv_k():
        return [f"s_add_u32 s{sK}, s{sK}, 1", f"s_cmp_eq_u32 s{sK}, 10", f"s_cselect_b32 s{sK}, 0, s{sK}"]
    def dma_groups(t):
        slot = t % 4
        g = []
        if t < 10:
            g.append([f"s_lshl_b32 s{sT0}, s{sK}, 7", f"s_add_u32 m0, s{sM0}, {slot*16384}", f"s_mul_i32 s{sT1}, s{sK}, {64*3840}",
                      f"buffer_load_dwordx4 v{vXS}, s[{SX}:{SX+3}], s{sT0} offen lds"])
            g.append([f"s_add_u32 m0, s{sM0}, {slot*16384+1024}", f"s_add_u32 s{sT2}, s{sT1}, {4*3840}",
                      f"buffer_load_dwordx4 v{vXS+1}, s[{SX}:{SX+3}], s{sT0} offen lds"])
            g.append([f"s_add_u32 m0, s{sM0}, {65536+slot*16384}", adv_k()[0],
                      f"buffer_load_dwordx4 v{vWS}, s[{SW}:{SW+3}], s{sT1} offen lds"])
            g.append([f"s_add_u32 m0, s{sM0}, {65536+slot*16384+1024}"] + adv_k()[1:] + [
                      f"buffer_load_dwordx4 v{vWS}, s[{SW}:{SW+3}], s{sT2} offen lds"])
        elif t < 15:
            for half in range(2):
                base = (65536 if half == 0 else 0) + slot*16384
                g.append([f"s_mul_i32 s{sT1}, s{sK}, {64*3072}", f"s_add_u32 m0, s{sM0}, {base}", f"s_add_u32 s{sT2}, s{sT1}, {4*3072}",
                          f"buffer_load_dwordx4 v{vW1S}, s[{SW1}:{SW1+3}], s{sT1} offen lds"])
                g.append([f"s_add_u32 m0, s{sM0}, {base+1024}"] + adv_k() + [
                          f"buffer_load_dwordx4 v{vW1S}, s[{SW1}:{SW1+3}], s{sT2} offen lds"])
        return g
    a("s_cmp_ge_u32 s26, 12")
    a("s_cselect_b32 s31, 1, 0")
    a("s_and_b32 s38, s31, s34")
    a("s_cmp_eq_u32 s38, 0")
    a("s_cbranch_scc1 L_p1_nogate")
    a(f"s_lshl_b32 s31, s27, 3")
    for i in range(2):
        a(f"v_add_u32 v{t0}, {64*i}, v{vL}")
        a(f"v_add_u32 v{t1}, s31, v{t0}")
        a(f"v_subrev_u32 v{t2}, 80, v{t1}")
        a(f"v_cmp_le_u32 vcc, 80, v{t1}")
        a(f"s_lshl_b32 s32, s35, 11")
        a(f"s_add_u32 m0, s32, {131072 + 1024*i}")
        a(f"v_cndmask_b32 v{t1}, v{t1}, v{t2}, vcc")
        a(f"v_lshlrev_b32 v{t1}, 4, v{t1}")
        a(f"v_cmp_le_u32 vcc, 80, v{t0}")
        a(f"v_mov_b32 v{t2}, 0x{OOB:x}")
        a("s_nop 0")
        a(f"v_cndmask_b32 v{t1}, v{t1}, v{t2}, vcc")
        a(f"buffer_load_dwordx4 v{t1}, s[{SG}:{SG+3}], 0 offen lds")
    a.label("L_p1_nogate")
    for t in range(3):
        for g in dma_groups(t):
            for l in g: a(l)
    a(f"v_and_b32 v{t0}, 31, v{vL}")
    a(f"s_lshl_b32 s31, s35, 5")
    a(f"v_add_u32 v{t0}, s31, v{t0}")
    a(f"v_bfe_u32 v{t1}, v{t0}, 1, 3")
    a(f"v_lshrrev_b32 v{t2}, 5, v{vL}")
    a(f"v_xor_b32 v{t1}, v{t1}, v{t2}")
    a(f"v_lshlrev_b32 v{t1}, 4, v{t1}")
    a(f"v_lshl_add_u32 v{vXR}, v{t0}, 7, v{t1}")
    for ks in range(1, 4):
        a(f"v_xor_b32 v{vXR+ks}, {ks<<5}, v{vXR}")
    a(f"v_bfe_u32 v{t0}, v{vL}, 2, 2")
    a(f"v_lshl_add_u32 v{t1}, v{t2}, 3, v{t0}")
    a(f"v_lshlrev_b32 v{t1}, 8, v{t1}")
    a(f"v_bfe_u32 v{t3}, v{vL}, 4, 1")
    a(f"v_lshl_add_u32 v{t1}, v{t3}, 5, v{t1}")
    a(f"v_and_b32 v{t3}, 3, v{vL}")
    a(f"v_lshl_add_u32 v{t1}, v{t3}, 3, v{t1}")
    for e in range(2):
        a(f"s_lshl_b32 s31, s34, 1")
        a(f"s_add_u32 s31, s31, {e}")
        a(f"v_xor_b32 v{t3}, s31, v{t0}")
        a(f"v_lshl_add_u32 v{vWR2+e}, v{t3}, 6, v{t1}")
        a(f"v_add_u32 v{vWR+e}, 0x10000, v{vWR2+e}")
    a(f"s_lshl_b32 s31, s35, 11")
    a(f"s_add_u32 s31, s31, 131072")
    a(f"v_lshl_add_u32 v{vGR}, v{t2}, 4, s31")
    a("s_cmp_ge_u32 s26, 10")
    a("s_cbranch_scc1 L_p1_epv")
    a("s_cmp_ge_u32 s26, 5")
    a(f"s_cselect_b32 s31, 1, 0")
    a(f"s_lshl_b32 s39, 81920, s31")
    a(f"s_lshl_b32 s40, 5120, s31")
    a("s_cmp_ge_u32 s26, 5")
    a(f"s_cselect_b32 s41, {WS_KV}, {WS_Q}")
    a(f"s_cselect_b32 s42, 20, 0")
    a("s_mul_i32 s40, s40, s25")
    a("s_add_u32 s40, s40, s41")
    a("s_sub_u32 s42, s28, s42")
    a("s_lshl_b32 s31, s34, 1")
    a("s_add_u32 s42, s42, s31")
    a("s_lshl_b32 s42, s42, 3")
    a("s_lshl_b32 s41, s35, 10")
    a("s_lshr_b32 s31, s35, 1")
    a("s_lshl_b32 s31, s31, 9")
    a("s_and_b32 s32, s35, 1")
    a("s_lshl_b32 s32, s32, 3")
    a("s_add_u32 s43, s31, s32")
    a("s_add_u32 s43, s43, 4096")
    a(f"v_and_b32 v{t0}, 31, v{vL}")
    a(f"v_lshl_add_u32 v{t0}, v{t0}, 4, s40")
    a(f"v_add_u32 v{t2}, s42, v{t2}")
    t4, t5, t6 = vT+4, vT+5, vT+6
    a(f"v_mov_b32 v{t6}, s43")
    for i in range(8):
        a(f"v_add_u32 v{t1}, {2*i}, v{t2}")
        a(f"v_mul_u32_u24 v{t3}, 205, v{t1}")
        a(f"v_lshrrev_b32 v{t3}, 10, v{t3}")
        a(f"v_mul_u32_u24 v{t4}, 5, v{t3}")
        a(f"v_sub_u32 v{t1}, v{t1}, v{t4}")
        a(f"v_mul_lo_u32 v{t3}, v{t3}, s39")
        a(f"v_lshrrev_b32 v{t4}, 1, v{t1}")
        a(f"v_lshl_add_u32 v{t4}, v{t4}, 9, s41")
        a(f"v_and_b32 v{t5}, 1, v{t1}")
        a(f"v_cmp_eq_u32 vcc, 4, v{t1}")
        a(f"v_lshl_add_u32 v{t4}, v{t5}, 3, v{t4}")
        a("s_nop 0")
        a(f"v_cndmask_b32 v{t4}, v{t4}, v{t6}, vcc")
        a(f"v_add3_u32 v{vEP+i}, v{t0}, v{t3}, v{t4}")
    a("s_branch L_p1_epdone")
    a.label("L_p1_epv")
    a("s_sub_u32 s42, s28, 40")
    a("s_lshl_b32 s31, s34, 1")
    a("s_add_u32 s42, s42, s31")
    a("s_lshl_b32 s42, s42, 5")
    a("s_mul_i32 s40, s25, 10240")
    a("s_mul_i32 s31, s35, 1280")
    a("s_add_u32 s40, s40, s31")
    a(f"s_add_u32 s40, s40, {WS_KV + 5120}")
    a(f"s_mov_b32 s39, 163840")
    a(f"v_and_b32 v{t0}, 31, v{vL}")
    a(f"v_mul_u32_u24 v{t2}, 320, v{t2}")
    a(f"v_add_u32 v{t2}, s40, v{t2}")
    for e in range(2):
        a(f"v_add_u32 v{t1}, s42, v{t0}")
        if e: a(f"v_add_u32 v{t1}, 32, v{t1}")
        a(f"v_mul_u32_u24 v{t3}, 3277, v{t1}")
        a(f"v_lshrrev_b32 v{t3}, 16, v{t3}")
        a(f"v_mul_u32_u24 v{t4}, 20, v{t3}")
        a(f"v_sub_u32 v{t1}, v{t1}, v{t4}")
        a(f"v_mul_lo_u32 v{t3}, v{t3}, s39")
        a(f"v_lshl_add_u32 v{t1}, v{t1}, 4, v{t2}")
        a(f"v_add_u32 v{vEP+e}, v{t1}, v{t3}")
    for i in range(2, 8): a(f"v_mov_b32 v{vEP+i}, 0x{OOB:x}")
    a.label("L_p1_epdone")

    def p1_reads(variant, step):
        t, ks = divmod(step, 4)
        slot = t % 4; p = step % 2
        r = [f"ds_read_b128 {vr(X+4*step,4)}, v{vXR+ks} offset:{slot*16384}"]
        for e in range(2):
            if variant == "VG" and e == 1:
                r.append(f"ds_read_b128 {vr(WB+8*p+4,4)}, v{vGR} offset:{t*128+ks*32}")
            else:
                for u in range(2):
                    r.append(f"ds_read_b64_tr_b16 {vr(WB+8*p+4*e+2*u,2)}, v{vWR+e} offset:{slot*16384+ks*4096+u*1024}")
        return r
    def mf(acc, A, B, first):
        return f"v_mfma_f32_32x32x16_bf16 {vr(acc,16)}, {vr(A,4)}, {vr(B,4)}, " + ("0" if first else vr(acc,16))

    def p1_main(variant):
        nr = 4 if variant == "VG" else 5
        a(f"s_waitcnt vmcnt(8)")
        a("s_barrier")
        for l in p1_reads(variant, 0): a(l)
        pend = []
        for step in range(40):
            t, ks = divmod(step, 4); p = step % 2
            if ks == 3:
                a("s_waitcnt vmcnt(4)")
                a("s_barrier")
                pend = dma_groups(t+3)
            if step < 39:
                for l in p1_reads(variant, step+1): a(l)
                a(f"s_waitcnt lgkmcnt({nr})")
            else:
                a("s_waitcnt lgkmcnt(0)")
            for e in range(2):
                w = WB+8*p+4*e; x = X+4*step
                swap = (variant == "VV") or (variant == "VG" and e == 0)
                a(mf(ACC+16*e, x if swap else w, w if swap else x, step == 0))
                for _ in range(1 if step < 39 else 2):
                    if pend:
                        for l in pend.pop(0): a(l)
        assert not pend

    def wait_mfma():
        a("s_nop 7"); a("s_nop 3")

    def v_epilogue(e):
        for s in range(2):
            d = WB + 8*e + 4*s
            for c in range(4):
                r = ACC + 16*e + 8*s + 2*c
                a(f"v_cvt_pk_bf16_f32 v{d+c}, v{r}, v{r+1}")
            a("s_nop 1")
            a(f"v_permlane32_swap_b32 v{d}, v{d+2}")
            a(f"v_permlane32_swap_b32 v{d+1}, v{d+3}")
            a(f"buffer_store_dwordx4 {vr(d,4)}, v{vEP+e}, s[{SWS}:{SWS+3}], 0 offen offset:{640*s} {ST}")

    a("s_cmp_ge_u32 s26, 10")
    a("s_cbranch_scc1 L_p1_v")
    p1_main("QK")
    a("s_cmp_ge_u32 s26, 5")
    a(f"s_cselect_b32 s31, 1.0, 0x{QSCALE:x}")
    a("s_nop 7"); a("s_nop 1")
    for e in range(2):
        for j in range(4):
            r = ACC + 16*e + 4*j; d = WB + 8*e + 2*j
            for i in range(4): a(f"v_mul_f32 v{r+i}, s31, v{r+i}")
            a(f"v_cvt_pk_bf16_f32 v{d}, v{r}, v{r+1}")
            a(f"v_cvt_pk_bf16_f32 v{d+1}, v{r+2}, v{r+3}")
            a(f"buffer_store_dwordx2 {vr(d,2)}, v{vEP+4*e+j}, s[{SWS}:{SWS+3}], 0 offen {ST}")
    a("s_branch L_p2")
    a.label("L_p1_v")
    a("s_cmp_eq_u32 s38, 1")
    a("s_cbranch_scc1 L_p1_vg")
    p1_main("VV")
    wait_mfma()
    v_epilogue(0); v_epilogue(1)
    a("s_branch L_p2")
    a.label("L_p1_vg")
    p1_main("VG")
    wait_mfma()
    v_epilogue(0)
    z = ACC + 16
    a(f"v_cvt_pk_bf16_f32 v{z}, v{z}, v{z}")
    a(f"v_and_b32 v{z}, 0xffff0000, v{z}")
    a(f"v_mul_f32 v{z}, 0x{f32bits(-math.log2(math.e)):x}, v{z}")
    a(f"v_exp_f32 v{z}, v{z}")
    a("s_nop 0")
    a(f"v_add_f32 v{z}, 1.0, v{z}")
    a(f"v_rcp_f32 v{z}, v{z}")
    a(f"s_lshl_b32 s31, s25, 9")
    a(f"s_lshl_b32 s32, s35, 7")
    a(f"v_cvt_pk_bf16_f32 v{z}, v{z}, v{z}")
    a(f"v_and_b32 v{z}, 0xffff0000, v{z}")
    a(f"s_add_u32 s31, s31, s32")
    a(f"s_add_u32 s31, s31, {WS_G}")
    a(f"v_and_b32 v{z+1}, 31, v{vL}")
    a(f"v_lshlrev_b32 v{z+1}, 2, v{z+1}")
    a("s_cmp_eq_u32 s26, 15")
    a("s_cbranch_scc0 L_p2")
    a(f"buffer_store_dword v{z}, v{z+1}, s[{SWS}:{SWS+3}], s31 offen {ST}")
    a.label("L_p2")
    def p2_reads(ns, step):
        D, rem = divmod(step, 8); half, ks = divmod(rem, 4)
        slot = (10 + D) % 4; p = step % 2
        base = vWR if half == 0 else vWR2
        return [f"ds_read_b64_tr_b16 {vr(WB+8*p+4*e+2*u,2)}, v{base+e} offset:{slot*16384+ks*4096+u*1024}" for e in range(ns) for u in range(2)]
    def p2_main(ns):
        for l in p2_reads(ns, 0): a(l)
        pend = []
        for step in range(40):
            D, rem = divmod(step, 8); p = step % 2
            if rem == 7 and D < 4:
                a(f"s_waitcnt vmcnt({[6,6,4,0][D]})")
                a("s_barrier")
                if D == 2 and cfg.get("sig_qkv"): cfg["sig_qkv"](a)
                pend = dma_groups(10+D+3)
            if step < 39:
                for l in p2_reads(ns, step+1): a(l)
                a(f"s_waitcnt lgkmcnt({2*ns})")
            else:
                a("s_waitcnt lgkmcnt(0)")
            for e in range(ns):
                a(mf(ACC+16*e, WB+8*p+4*e, X+4*step, step == 0))
                if pend:
                    for l in pend.pop(0): a(l)
        assert not pend
        a(f"s_lshl_b32 s31, s25, 2")
        a(f"s_add_u32 s31, s31, s35")
        a(f"s_mul_i32 s31, s31, 98304")
        a(f"s_mul_i32 s32, s26, 3")
        a(f"s_lshl_b32 s33, s34, 1")
        a(f"s_add_u32 s32, s32, s33")
        a(f"s_lshl_b32 s32, s32, 11")
        a(f"s_add_u32 s31, s31, s32")
        a(f"s_add_u32 s31, s31, {WS_H}")
        a(f"v_lshlrev_b32 v{vT}, 4, v{vL}")
        a("s_nop 1")
        for e in range(ns):
            for s in range(2):
                d = WB + 8*e + 4*s
                for c in range(4):
                    r = ACC + 16*e + 8*s + 2*c
                    a(f"v_max_f32 v{r}, 0, v{r}")
                    a(f"v_max_f32 v{r+1}, 0, v{r+1}")
                    a(f"v_cvt_pk_bf16_f32 v{d+c}, v{r}, v{r+1}")
                a(f"buffer_store_dwordx4 {vr(d,4)}, v{vT}, s[{SWS}:{SWS+3}], s31 offen offset:{2048*e+1024*s} {ST}")
    a("s_cmp_eq_u32 s34, 0")
    a("s_cbranch_scc0 L_p2_1")
    p2_main(2)
    a("s_branch L_p2_done")
    a.label("L_p2_1")
    p2_main(1)
    a.label("L_p2_done")

def phase3(a, cfg):
    ST = cfg.get("stflags", ""); LDF = cfg.get("ldflags", "")
    sHead, sQB, sZ, sQG = 25, 26, 27, 28
    S = 0
    O = 64
    Q1 = 96
    QZ = 104
    K1 = 122
    K2 = 130
    V = 138
    vIDX = 154
    vKA, vVA = 155, 156
    vL = 157
    vT = 158
    vG = 170
    vD = 171
    t0, t1, t2, t3 = vT, vT+1, vT+2, vT+3
    if cfg.get("standalone"):
        a(f"v_and_b32 v{vL}, 63, v0")
        a(f"v_lshrrev_b32 v{t0}, 6, v0")
        a("s_nop 0")
        a(f"v_readfirstlane_b32 s24, v{t0}")
    a("s_and_b32 s31, s2, 7")
    a("s_lshr_b32 s32, s2, 3")
    a("s_lshr_b32 s33, s32, 3")
    a("s_lshl_b32 s25, s31, 2")
    a("s_add_u32 s25, s25, s33")
    a("s_and_b32 s26, s32, 7")
    a("s_lshr_b32 s27, s24, 2")
    a("s_and_b32 s28, s24, 3")
    if cfg.get("standalone"):
        a("s_waitcnt lgkmcnt(0)")
        srd_tail(a, SWS, WS_END)
    if cfg.get("wait_qkv"): cfg["wait_qkv"](a)
    a("s_mul_i32 s31, s25, 81920")
    a("s_lshl_b32 s32, s26, 1")
    a("s_lshr_b32 s33, s28, 1")
    a("s_add_u32 s32, s32, s33")
    a("s_mul_i32 s32, s32, 5120")
    a("s_add_u32 s31, s31, s32")
    a("s_and_b32 s33, s28, 1")
    a("s_lshl_b32 s32, s33, 11")
    a("s_add_u32 s32, s32, s31")
    a("s_lshl_b32 s33, s33, 9")
    a("s_add_u32 s33, s33, s31")
    a("s_add_u32 s33, s33, 4096")
    a(f"v_lshlrev_b32 v{vD}, 4, v{vL}")
    a(f"v_and_b32 v{t0}, 0x1ff, v{vD}")
    a(f"buffer_load_dwordx4 {vr(Q1,4)}, v{vD}, s[{SWS}:{SWS+3}], s32 offen {LDF}")
    a(f"buffer_load_dwordx4 {vr(Q1+4,4)}, v{vD}, s[{SWS}:{SWS+3}], s32 offen offset:1024 {LDF}")
    a(f"buffer_load_dwordx4 {vr(vT+4,4)}, v{t0}, s[{SWS}:{SWS+3}], s33 offen {LDF}")
    a("s_lshl_b32 s31, s26, 3")
    a("s_lshl_b32 s32, s28, 1")
    a("s_add_u32 s31, s31, s32")
    a("s_add_u32 s29, s31, s27")
    a("s_lshl_b32 s31, s29, 7")
    a(f"s_add_u32 s31, s31, {WS_G}")
    a(f"v_lshrrev_b32 v{t1}, 2, v{t0}")
    a(f"buffer_load_dword v{vG}, v{t1}, s[{SWS}:{SWS+3}], s31 offen {LDF}")
    a("s_mul_i32 s34, s25, 163840")
    a("s_mul_i32 s35, s27, 81920")
    a("s_mul_i32 s36, s28, 2560")
    a("s_add_u32 s35, s35, s36")
    a("s_add_u32 s34, s34, s35")
    a(f"s_add_u32 s34, s34, {WS_KV}")
    a("s_mov_b32 s36, s26")
    if cfg.get("norot"): a("s_mov_b32 s36, 0")
    for i in range(8):
        a("s_mul_i32 s37, s36, 10240")
        a(f"s_add_u32 m0, s35, {i*10240}")
        a("s_add_u32 s37, s37, s34")
        a(f"buffer_load_dwordx4 v{vD}, s[{SWS}:{SWS+3}], s37 offen lds {LDF}")
        a(f"buffer_load_dwordx4 v{vD}, s[{SWS}:{SWS+3}], s37 offen offset:1024 lds {LDF}")
        a("s_mov_b32 exec_hi, 0")
        a(f"buffer_load_dwordx4 v{vD}, s[{SWS}:{SWS+3}], s37 offen offset:2048 lds {LDF}")
        a("s_mov_b32 exec_hi, -1")
        a("s_add_u32 s36, s36, 1")
        a("s_and_b32 s36, s36, 7")
    a("s_mul_i32 s31, s27, 81920")
    a(f"v_add_u32 v{vKA}, s31, v{vD}")
    a(f"v_and_b32 v{t1}, 31, v{vL}")
    a(f"v_lshrrev_b32 v{t2}, 5, v{vL}")
    a(f"v_mul_u32_u24 v{t3}, 320, v{t2}")
    a(f"v_lshl_add_u32 v{t3}, v{t1}, 4, v{t3}")
    a(f"s_add_u32 s31, s31, 5120")
    a(f"v_add_u32 v{vVA}, s31, v{t3}")
    a(f"v_mov_b32 v{vIDX}, 0xdddddddd")
    for i in range(32): a(f"v_mov_b32 v{O+i}, 0")
    for i in range(16): a(f"v_mov_b32 v{S+48+i}, 0")
    for i in range(16): a(f"v_mov_b32 v{V+i}, 0x3f803f80")
    for i in range(18): a(f"v_mov_b32 v{QZ+i}, 0")
    a("s_mov_b32 s38, 0x000fffff")
    a("s_mov_b32 s39, 0x000fffff")
    a("s_waitcnt vmcnt(24)")
    a("s_mov_b32 exec_hi, 0")
    for qt in range(2):
        for c in range(2): a(f"v_mov_b32 v{QZ+2+8*qt+c}, v{vT+4+2*qt+c}")
    a("s_mov_b64 exec, -1")
    a("s_mov_b32 exec_lo, 0")
    for qt in range(2):
        for c in range(2): a(f"v_mov_b32 v{QZ+6+8*qt+c}, v{vT+4+2*qt+c}")
    a("s_mov_b64 exec, -1")
    def qz(qt, tt):
        return QZ + 8*qt + 4*(tt >> 1) + (2 if (tt & 1) == 0 else 0)
    bump = {"k": 0, "v": 0}
    def koff(g, off):
        return g*10240 + off - bump["k"]
    def rd_k1(T):
        g, tt = divmod(T, 4)
        return f"ds_read_b128 {vr(K1+4*(T%2),4)}, v{vKA} offset:{koff(g, tt*1024)}"
    def rd_k2(g):
        return f"ds_read_b128 {vr(K2+4*(g%2),4)}, v{vKA} offset:{koff(g, 4096)}"
    def rd_v(T, s):
        g, tt = divmod(T, 4)
        return f"ds_read_b128 {vr(V+8*(T%2)+4*s,4)}, v{vVA} offset:{koff(g, tt*1280+640*s)}"
    def qk(u):
        T, qt = divmod(u, 2); g, tt = divmod(T, 4); s = S + 16*(u % 4)
        return [f"v_mfma_f32_32x32x16_bf16 {vr(s,16)}, {vr(K1+4*(T%2),4)}, {vr(Q1+4*qt,4)}, 0",
                f"v_mfma_f32_32x32x16_bf16 {vr(s,16)}, {vr(K2+4*(g%2),4)}, {vr(qz(qt,tt),4)}, {vr(s,16)}"]
    def pv(u):
        T, qt = divmod(u, 2); s = S + 16*(u % 4)
        return [f"v_smfmac_f32_32x32x32_bf16 {vr(O+16*qt,16)}, {vr(V+8*(T%2)+4*h,4)}, {vr(s+8*h,8)}, v{vIDX}" for h in range(2)]
    a("s_waitcnt vmcnt(21)")
    a("s_barrier")
    a(rd_k1(0)); a(rd_k2(0))
    a("s_waitcnt lgkmcnt(0)")
    for l in qk(0): a(l)
    a("s_nop 7"); a("s_nop 1")
    syncs = {0: 15, 2: 0}
    for u in range(64):
        T, qt = divmod(u, 2); g, tt = divmod(T, 4)
        pre = []
        if qt == 0:
            if tt == 3 and g in syncs:
                pre += [f"s_waitcnt vmcnt({syncs[g]})", "s_barrier"]
            if T == 16:
                pre += [f"v_add_u32 v{vKA}, {4*10240}, v{vKA}", f"v_add_u32 v{vVA}, {4*10240}, v{vVA}"]
                bump["k"] = 4*10240
            if T < 31: pre.append(rd_k1(T+1))
            if tt == 3 and g < 7: pre.append(rd_k2(g+1))
            pre += ["s_mov_b64 exec, s[38:39]", rd_v(T, 0), rd_v(T, 1), "s_mov_b64 exec, -1"]
        else:
            pre.append("s_waitcnt lgkmcnt(0)")
        m = (qk(u+1) if u < 63 else [None, None]) + pv((u-1) % 64 if u > 0 else 63)
        s = S + 16*(u % 4)
        if qt == 1:
            for l in pre: a(l)
            pre = []
        for j in range(4):
            if m[j]: a(m[j])
            if j == 0:
                for l in pre: a(l)
            for i in range(4*j, 4*j+4): a(f"v_exp_f32 v{s+i}, v{s+i}")
    a("s_nop 1")
    for l in pv(63): a(l)
    a("s_mul_i32 s31, s27, 81920")
    a("s_mul_i32 s32, s28, 3072")
    a("s_add_u32 s31, s31, s32")
    a(f"v_add_u32 v{t0}, s31, v{vD}")
    a("s_cmp_eq_u32 s27, 0")
    a("s_cselect_b32 s33, 81920, 0")
    a("s_add_u32 s33, s33, s32")
    a(f"v_add_u32 v{t1}, s33, v{vD}")
    a("s_cmp_eq_u32 s27, 0")
    a("s_cbranch_scc0 L_at_z1")
    a("s_nop 3")
    for c in range(3): a(f"ds_write_b128 v{t0}, {vr(O+16+4*c,4)} offset:{1024*c}")
    a("s_branch L_at_zj")
    a.label("L_at_z1")
    a("s_nop 3")
    for c in range(3): a(f"ds_write_b128 v{t0}, {vr(O+4*c,4)} offset:{1024*c}")
    a("s_nop 0")
    for c in range(12): a(f"v_mov_b32 v{O+c}, v{O+16+c}")
    for c in range(4): a(f"v_mov_b32 v{Q1+c}, v{Q1+4+c}")
    for c in range(2): a(f"v_mov_b32 v{vT+4+c}, v{vT+6+c}")
    a.label("L_at_zj")
    a("s_waitcnt lgkmcnt(0)")
    a("s_barrier")
    for c in range(3): a(f"ds_read_b128 {vr(S+4*c,4)}, v{t1} offset:{1024*c}")
    a("s_waitcnt lgkmcnt(0)")
    for c in range(12): a(f"v_add_f32 v{O+c}, v{O+c}, v{S+c}")
    a.label("L_at_fin")
    a(f"v_mov_b32 v{t2}, v{O+8}")
    a(f"v_mov_b32 v{t3}, v{O+8}")
    a("s_nop 1")
    a(f"v_permlane32_swap_b32 v{t3}, v{t2}")
    a(f"v_add_f32 v{t3}, abs(v{O}), abs(v{O+1})")
    for c in range(2, 12): a(f"v_add_f32 v{t3}, v{t3}, abs(v{O+c})")
    a(f"v_rcp_f32 v{t1}, v{t2}")
    a(f"v_cmp_nle_f32 vcc, 0x{f32bits(2.0**-40):x}, v{t2}")
    a(f"s_mov_b64 s[40:41], vcc")
    a(f"v_cmp_nge_f32 vcc, 0x{f32bits(2.0**100):x}, v{t2}")
    a(f"s_or_b64 s[40:41], s[40:41], vcc")
    a(f"v_cmp_nge_f32 vcc, 0x{f32bits(2.0**126):x}, v{t3}")
    a(f"s_or_b64 s[40:41], s[40:41], vcc")
    if cfg.get("force_fallback"): a("s_mov_b64 s[40:41], -1")
    a("s_cmp_lg_u64 s[40:41], 0")
    a("s_cbranch_scc1 L_at_slow")
    a.label("L_at_store")
    a(f"v_mul_f32 v{t1}, v{t1}, v{vG}")
    a("s_mul_i32 s31, s29, 40960")
    a(f"s_add_u32 s31, s31, {WS_O}")
    a("s_lshl_b32 s32, s25, 10")
    a("s_add_u32 s32, s32, s31")
    a("s_lshr_b32 s33, s25, 2")
    a("s_lshl_b32 s33, s33, 10")
    a("s_add_u32 s33, s33, s31")
    a("s_bfe_u32 s34, s25, 0x10001")
    a("s_lshl_b32 s34, s34, 9")
    a("s_add_u32 s33, s33, s34")
    a("s_and_b32 s34, s25, 1")
    a("s_lshl_b32 s34, s34, 3")
    a("s_add_u32 s33, s33, s34")
    a("s_add_u32 s33, s33, 32768")
    for c in range(12): a(f"v_mul_f32 v{O+c}, v{O+c}, v{t1}")
    for c in range(6): a(f"v_cvt_pk_bf16_f32 v{S+c}, v{O+2*c}, v{O+2*c+1}")
    a(f"buffer_store_dwordx4 {vr(S,4)}, v{vD}, s[{SWS}:{SWS+3}], s32 offen {ST}")
    a("s_mov_b32 exec_hi, 0")
    a(f"buffer_store_dwordx2 {vr(S+4,2)}, v{vD}, s[{SWS}:{SWS+3}], s33 offen {ST}")
    a("s_mov_b64 exec, -1")

    def slow(a):
        a.label("L_at_slow")
        NM = 16
        for i in range(10): a(f"v_mov_b32 v{QZ+i}, 0")
        a("s_mov_b32 exec_hi, 0")
        for c in range(2): a(f"v_mov_b32 v{QZ+2+c}, v{vT+4+c}")
        a("s_mov_b64 exec, -1")
        a("s_mov_b32 exec_lo, 0")
        for c in range(2): a(f"v_mov_b32 v{QZ+6+c}, v{vT+4+c}")
        a("s_mov_b64 exec, -1")
        a(f"v_and_b32 v{t0}, 31, v{vL}")
        a(f"v_lshrrev_b32 v{t1}, 5, v{vL}")
        a(f"v_mul_u32_u24 v{t1}, 320, v{t1}")
        a(f"v_lshl_add_u32 v{vVA}, v{t0}, 4, v{t1}")
        a(f"v_mov_b32 v{t2}, 0xff7fffff")
        for i in range(16): a(f"v_mov_b32 v{NM+i}, 0")
        for i in range(16): a(f"v_mov_b32 v{O+i}, 0")
        for ps in range(2):
            a("s_mul_i32 s34, s25, 163840")
            a(f"s_add_u32 s34, s34, {WS_KV}")
            a("s_mov_b32 s35, 16")
            a.label(f"L_slow_loop{ps}")
            a(f"s_add_u32 s36, s34, 4096")
            a(f"buffer_load_dwordx4 {vr(K2,4)}, v{vD}, s[{SWS}:{SWS+3}], s36 offen {LDF}")
            for tt in range(4):
                a(f"buffer_load_dwordx4 {vr(K1,4)}, v{vD}, s[{SWS}:{SWS+3}], s34 offen offset:{1024*tt} {LDF}")
                if ps == 1:
                    a(f"s_add_u32 s36, s34, {5120+1280*tt}")
                    a("s_mov_b64 exec, s[38:39]")
                    a(f"buffer_load_dwordx4 {vr(V,4)}, v{vVA}, s[{SWS}:{SWS+3}], s36 offen {LDF}")
                    a(f"buffer_load_dwordx4 {vr(V+4,4)}, v{vVA}, s[{SWS}:{SWS+3}], s36 offen offset:640 {LDF}")
                    a("s_mov_b64 exec, -1")
                a("s_waitcnt vmcnt(0)")
                a(f"v_mfma_f32_32x32x16_bf16 {vr(S,16)}, {vr(K1,4)}, {vr(Q1,4)}, {vr(NM,16)}")
                a(f"v_mfma_f32_32x32x16_bf16 {vr(S,16)}, {vr(K2,4)}, {vr(qz(0,tt),4)}, {vr(S,16)}")
                a("s_nop 11")
                if ps == 0:
                    for i in range(0, 16, 2): a(f"v_max3_f32 v{t2}, v{t2}, v{S+i}, v{S+i+1}")
                else:
                    for i in range(16): a(f"v_exp_f32 v{S+i}, v{S+i}")
                    a("s_nop 1")
                    for h in range(2):
                        a(f"v_smfmac_f32_32x32x32_bf16 {vr(O,16)}, {vr(V+4*h,4)}, {vr(S+8*h,8)}, v{vIDX}")
                    a("s_nop 3")
            a("s_add_u32 s34, s34, 10240")
            a("s_sub_u32 s35, s35, 1")
            a("s_cmp_lg_u32 s35, 0")
            a(f"s_cbranch_scc1 L_slow_loop{ps}")
            if ps == 0:
                a(f"v_mov_b32 v{t3}, v{t2}")
                a(f"v_mov_b32 v{t1}, v{t2}")
                a("s_nop 1")
                a(f"v_permlane32_swap_b32 v{t3}, v{t1}")
                a("s_nop 1")
                a(f"v_max_f32 v{t2}, v{t3}, v{t1}")
                for i in range(16): a(f"v_sub_f32 v{NM+i}, 0, v{t2}")
        a("s_nop 11")
        a(f"v_mov_b32 v{t2}, v{O+8}")
        a(f"v_mov_b32 v{t3}, v{O+8}")
        a("s_nop 1")
        a(f"v_permlane32_swap_b32 v{t3}, v{t2}")
        a("s_nop 1")
        a(f"v_rcp_f32 v{t1}, v{t2}")
        a("s_nop 0")
        a("s_branch L_at_store")
    return slow

def phase45(a, cfg):
    LDF = cfg.get("ldflags", "")
    SW2, SWO, SOUT = SW, SW1, SG
    NSLOT = 6; SLOT = 24576
    ACC = 0
    ACT = 20
    WB = 68
    vWS = 108
    vWS2 = 111
    vWR = 114
    vA = 117
    vL = 118; vG = 119; vT = 120
    t0, t1, t2, t3, t4 = vT, vT+1, vT+2, vT+3, vT+4
    if cfg.get("standalone"):
        a(f"v_and_b32 v{vL}, 63, v0")
        a(f"v_lshrrev_b32 v{t0}, 6, v0")
        a("s_nop 0")
        a(f"v_readfirstlane_b32 s24, v{t0}")
    a("s_and_b32 s31, s2, 7")
    a("s_lshr_b32 s32, s2, 3")
    a("s_and_b32 s33, s32, 7")
    a("s_lshr_b32 s32, s32, 3")
    a("s_lshr_b32 s25, s31, 1")
    a("s_lshl_b32 s25, s25, 3")
    a("s_add_u32 s25, s25, s33")
    a("s_and_b32 s26, s31, 1")
    a("s_lshl_b32 s26, s26, 2")
    a("s_add_u32 s26, s26, s32")
    a("s_mul_i32 s33, s33, 3")
    a("s_lshr_b32 s33, s33, 1")
    a("s_mul_i32 s32, s32, 3")
    a("s_add_u32 s27, s32, s33")
    a("s_cmp_ge_u32 s27, 12")
    a("s_cselect_b32 s31, 12, 0")
    a("s_sub_u32 s27, s27, s31")
    if cfg.get("norot"): a("s_mov_b32 s27, 0")
    a("s_and_b32 s28, s24, 3")
    a("s_lshr_b32 s29, s24, 2")
    a("s_mul_i32 s30, s24, 3072")
    a("s_mul_i32 s31, s26, 160")
    for i in range(3):
        a(f"v_add_u32 v{t0}, {64*i}, v{vL}")
        a(f"v_mul_u32_u24 v{t1}, 205, v{t0}")
        a(f"v_lshrrev_b32 v{t1}, 11, v{t1}")
        a(f"v_mul_u32_u24 v{t2}, 10, v{t1}")
        a(f"v_sub_u32 v{t2}, v{t0}, v{t2}")
        a(f"v_lshl_add_u32 v{t2}, v{t2}, 4, s31")
        a(f"v_mul_u32_u24 v{t3}, 1280, v{t1}")
        a(f"v_add_u32 v{vWS+i}, v{t3}, v{t2}")
        a(f"v_bfe_u32 v{t3}, v{t1}, 2, 1")
        a(f"v_mul_u32_u24 v{t3}, 40, v{t3}")
        a(f"v_lshrrev_b32 v{t4}, 3, v{t1}")
        a(f"v_mul_u32_u24 v{t4}, 20, v{t4}")
        a(f"v_and_b32 v{t1}, 3, v{t1}")
        a(f"v_add3_u32 v{t3}, v{t3}, v{t4}, v{t1}")
        a(f"v_add_u32 v{t3}, 16, v{t3}")
        a(f"v_mul_u32_u24 v{t3}, 1280, v{t3}")
        a(f"v_add_u32 v{vWS2+i}, v{t3}, v{t2}")
        if i == 2:
            a(f"v_cmp_le_u32 vcc, 160, v{t0}")
            a(f"v_mov_b32 v{t3}, 0x{OOB:x}")
            a("s_nop 0")
            a(f"v_cndmask_b32 v{vWS+i}, v{vWS+i}, v{t3}, vcc")
            a(f"v_cndmask_b32 v{vWS2+i}, v{vWS2+i}, v{t3}, vcc")
    a(f"v_lshrrev_b32 v{t0}, 4, v{vL}")
    a(f"v_and_b32 v{t1}, 15, v{vL}")
    a(f"v_lshlrev_b32 v{t1}, 4, v{t1}")
    a(f"v_lshl_add_u32 v{vA}, v{t0}, 9, v{t1}")
    a("s_and_b32 s31, s28, 1")
    a("s_lshl_b32 s31, s31, 8")
    a(f"v_add_u32 v{vA}, s31, v{vA}")
    a("s_lshl_b32 s34, s25, 1")
    a("s_lshr_b32 s31, s28, 1")
    a("s_add_u32 s34, s34, s31")
    a("s_mul_i32 s35, s34, 40960")
    a("s_mul_i32 s34, s34, 98304")
    a("s_lshl_b32 s31, s29, 12")
    a("s_add_u32 s34, s34, s31")
    a(f"s_add_u32 s34, s34, {WS_H}")
    a("s_add_u32 s35, s35, s31")
    a(f"s_add_u32 s35, s35, {WS_O}")
    a("s_mul_i32 s36, s24, 20480")
    a("s_mul_i32 s37, s24, 25600")
    a("s_mul_i32 s38, s24, 102400")
    if cfg.get("standalone"):
        a("s_waitcnt lgkmcnt(0)")
        srd_tail(a, SWS, WS_END)
    srd_tail(a, SW2, 1536*1280); srd_tail(a, SWO, 640*1280); srd_tail(a, SOUT, 2048*1280)
    if cfg.get("wait_h"): cfg["wait_h"](a)
    NS = 17
    def w_dma(t):
        slot = t % NSLOT
        g = []
        if t < 12:
            pre = ["s_mul_i32 s31, s27, 163840", "s_add_u32 s31, s31, s36"]
            srd, src = SW2, vWS
        elif t < 16:
            pre = [f"s_add_u32 s31, s37, {(t-12)*8*25600}"]
            srd, src = SWO, vWS
        else:
            pre = ["s_mov_b32 s31, s38"]
            srd, src = SWO, vWS2
        for i in range(3):
            g.append((pre if i == 0 else []) + [f"s_add_u32 m0, s30, {slot*SLOT+1024*i}", "s_nop 0",
                     f"buffer_load_dwordx4 v{src+i}, s[{srd}:{srd+3}], s31 offen lds"])
        return g
    def act_ld(t):
        r = ACT + 8*(t % NSLOT)
        if t < 12:
            pre = ["s_lshl_b32 s32, s27, 13", "s_add_u32 s32, s32, s34"]
            post = ["s_add_u32 s27, s27, 1", "s_cmp_eq_u32 s27, 12", "s_cselect_b32 s27, 0, s27"]
        else:
            pre = [f"s_add_u32 s32, s35, {(t-12)*8192}"]; post = []
        return [pre + [f"buffer_load_dwordx4 {vr(r,4)}, v{vA}, s[{SWS}:{SWS+3}], s32 offen {LDF}"],
                [f"buffer_load_dwordx4 {vr(r+4,4)}, v{vA}, s[{SWS}:{SWS+3}], s32 offen offset:2048 {LDF}"] + post]
    def issue(t):
        if t >= NS: return []
        return w_dma(t) + act_ld(t)
    a("s_lshl_b32 s31, s25, 8")
    a("s_lshl_b32 s32, s28, 6")
    a("s_add_u32 s31, s31, s32")
    a(f"s_add_u32 s31, s31, {WS_G}")
    a(f"v_and_b32 v{t0}, 15, v{vL}")
    a(f"v_lshlrev_b32 v{t0}, 2, v{t0}")
    a(f"buffer_load_dword v{vG}, v{t0}, s[{SWS}:{SWS+3}], s31 offen {LDF}")
    for t in range(5):
        for g in issue(t):
            for l in g: a(l)
    a(f"v_lshrrev_b32 v{t0}, 5, v{vL}")
    a(f"v_mul_u32_u24 v{t0}, 3072, v{t0}")
    a(f"v_bfe_u32 v{t1}, v{vL}, 2, 3")
    a(f"v_mul_u32_u24 v{t1}, 160, v{t1}")
    a(f"v_and_b32 v{t2}, 3, v{vL}")
    a(f"v_lshl_add_u32 v{t1}, v{t2}, 3, v{t1}")
    a("s_mul_i32 s31, s29, 12288")
    a(f"v_add3_u32 v{vWR}, v{t0}, v{t1}, s31")
    a(f"v_add_u32 v{vWR+1}, {2*SLOT}, v{vWR}")
    a(f"v_add_u32 v{vWR+2}, {4*SLOT}, v{vWR}")
    def reads(step):
        t, j = divmod(step, 2); slot = t % NSLOT; p = step % 2
        return [f"ds_read_b64_tr_b16 {vr(WB+20*p+4*b+2*u,2)}, v{vWR+slot//2} offset:{(slot%2)*SLOT + j*6144 + u*1280 + b*32}"
                for b in range(5) for u in range(2)]
    a("s_waitcnt vmcnt(20)")
    a("s_barrier")
    for l in reads(0): a(l)
    pend = []
    nsteps = 2*NS
    for step in range(nsteps):
        t, j = divmod(step, 2); p = step % 2
        if j == 1 and t < NS-1:
            younger = min(t+4, NS-1) - (t+1)
            a(f"s_waitcnt vmcnt({5*younger})")
            a("s_barrier")
            pend = issue(t+5)
        if step < nsteps-1:
            for l in reads(step+1): a(l)
            a("s_waitcnt lgkmcnt(10)")
        else:
            a("s_waitcnt lgkmcnt(0)")
        if step == 24:
            a(f"v_sub_f32 v{t0}, 1.0, v{vG}")
            a(f"v_cvt_pk_bf16_f32 v{t0}, v{t0}, v{t0}")
            a(f"v_and_b32 v{t0}, 0xffff0000, v{t0}")
            a("s_nop 3")
            for i in range(20): a(f"v_mul_f32 v{ACC+i}, v{ACC+i}, v{t0}")
            a("s_nop 1")
        for b in range(5):
            a(f"v_mfma_f32_16x16x32_bf16 {vr(ACC+4*b,4)}, {vr(WB+20*p+4*b,4)}, {vr(ACT+8*(t%NSLOT)+4*j,4)}, " + ("0" if step == 0 else vr(ACC+4*b,4)))
            if pend:
                for l in pend.pop(0): a(l)
        assert not pend
    a("s_barrier")
    a("s_mul_i32 s31, s28, 5120")
    a(f"v_lshlrev_b32 v{t0}, 4, v{vL}")
    a(f"v_add_u32 v{t0}, s31, v{t0}")
    a("s_cmp_eq_u32 s29, 0")
    a("s_cbranch_scc1 L_p5_k0")
    a("s_nop 1")
    for b in range(5): a(f"ds_write_b128 v{t0}, {vr(ACC+4*b,4)} offset:{1024*b}")
    a("s_waitcnt lgkmcnt(0)")
    a("s_barrier")
    a("s_branch L_p5_end")
    a.label("L_p5_k0")
    a("s_lshl_b32 s31, s25, 2")
    a("s_add_u32 s31, s31, s28")
    a("s_mul_i32 s31, s31, 20480")
    a("s_mul_i32 s32, s26, 160")
    a("s_add_u32 s31, s31, s32")
    a(f"v_and_b32 v{t1}, 15, v{vL}")
    a(f"v_mul_u32_u24 v{t1}, 1280, v{t1}")
    a(f"v_lshrrev_b32 v{t2}, 4, v{vL}")
    a(f"v_lshl_add_u32 v{t1}, v{t2}, 3, v{t1}")
    a("s_barrier")
    for b in range(5): a(f"ds_read_b128 {vr(WB+4*b,4)}, v{t0} offset:{1024*b}")
    for b in range(5):
        a(f"s_waitcnt lgkmcnt({4-b})")
        for i in range(4): a(f"v_add_f32 v{ACC+4*b+i}, v{ACC+4*b+i}, v{WB+4*b+i}")
        a(f"v_cvt_pk_bf16_f32 v{ACC+4*b}, v{ACC+4*b}, v{ACC+4*b+1}")
        a(f"v_cvt_pk_bf16_f32 v{ACC+4*b+1}, v{ACC+4*b+2}, v{ACC+4*b+3}")
        a(f"buffer_store_dwordx2 {vr(ACC+4*b,2)}, v{t1}, s[{SOUT}:{SOUT+3}], s31 offen offset:{32*b}")
    a.label("L_p5_end")

HEADER = open("cdna_kernels/" + NAME + ".s.ref").read().split("; Override launch")[0]

def kd(name, vgpr, sgpr=96):
    return f""".section .rodata,"a"
.p2align 6
.amdhsa_kernel {name}
  .amdhsa_next_free_vgpr {vgpr}
  .amdhsa_next_free_sgpr {sgpr}
  .amdhsa_accum_offset {(vgpr+3)//4*4}
  .amdhsa_group_segment_fixed_size 0
  .amdhsa_kernarg_size 80
  .amdhsa_user_sgpr_count 2
  .amdhsa_user_sgpr_kernarg_segment_ptr 1
  .amdhsa_system_sgpr_workgroup_id_x 1
.end_amdhsa_kernel
"""
def kstart(a, name):
    a(".text"); a(f".globl {name}"); a(".p2align 8"); a(f".type {name},@function"); a.label(name)

def gen_multi(opts):
    a = Asm()
    kstart(a, "k1_kernel")
    a("s_cmp_ge_u32 s2, 256"); a("s_cbranch_scc1 L_k1_end")
    a(f"s_load_dwordx2 s[{SX}:{SX+1}], s[0:1], 0")
    a(f"s_load_dwordx2 s[{SW}:{SW+1}], s[0:1], 8")
    a(f"s_load_dwordx2 s[{SW1}:{SW1+1}], s[0:1], 32")
    a(f"s_load_dwordx2 s[{SWS}:{SWS+1}], s[0:1], 72")
    a(f"s_load_dwordx2 s[{SG}:{SG+1}], s[0:1], 48")
    phase12(a, dict(opts))
    a.label("L_k1_end"); a("s_endpgm")
    kstart(a, "k2_kernel")
    a("s_cmp_ge_u32 s2, 256"); a("s_cbranch_scc1 L_k2_end")
    a(f"s_load_dwordx2 s[{SWS}:{SWS+1}], s[0:1], 72")
    slow = phase3(a, dict(opts, standalone=True))
    a.label("L_k2_end"); a("s_endpgm")
    slow(a)
    kstart(a, "k3_kernel")
    a("s_cmp_ge_u32 s2, 256"); a("s_cbranch_scc1 L_k3_end")
    a(f"s_load_dwordx2 s[{SW}:{SW+1}], s[0:1], 40")
    a(f"s_load_dwordx2 s[{SW1}:{SW1+1}], s[0:1], 16")
    a(f"s_load_dwordx2 s[{SWS}:{SWS+1}], s[0:1], 72")
    a(f"s_load_dwordx2 s[{SG}:{SG+1}], s[0:1], 56")
    phase45(a, dict(opts, standalone=True))
    a.label("L_k3_end"); a("s_endpgm")
    errs = check_linear(a.lines)
    head = HEADER + ("; @launch kernel=k1_kernel grid=(256,1,1) block=(512,1,1) lds=139264\n"
                     "; @launch kernel=k2_kernel grid=(256,1,1) block=(512,1,1) lds=163840\n"
                     "; @launch kernel=k3_kernel grid=(256,1,1) block=(512,1,1) lds=147456\n"
                     '.amdgcn_target "amdgcn-amd-amdhsa--gfx950"\n')
    return head + a.text() + kd("k1_kernel", 240) + kd("k2_kernel", 176) + kd("k3_kernel", 128), errs

if __name__ == "__main__":
    out = sys.argv[1] if len(sys.argv) > 1 else "cdna_kernels/" + NAME + ".s"
    opts = {}
    for o in sys.argv[2:]:
        k, _, v = o.partition("=")
        opts[k] = v or True
    txt, errs = gen_multi(opts)
    open(out, "w").write(txt)
    print("written", out, "hazards:", errs, "bytes:", len(txt))
```

```python
import sys, math, struct
from dsl import *

NAME = "gated_mix__mha_block__dense_activation_relu__prompt"
WS_Q  = 0x0
WS_KV = 0x280000
WS_H  = 0x780000
WS_O  = 0xD80000
WS_G  = 0x1000000
FL1   = 0x1002000
FL2   = 0x1003000
FL3   = 0x1004000
WS_END = 0x1005000
OOB = 0x80000000
SPIN = 1 << 15
def f32bits(x): return struct.unpack("<I", struct.pack("<f", x))[0]
QSCALE = f32bits(math.log2(math.e) / math.sqrt(20.0))
ST = "sc1"; LDF = "sc1"

SX, SW, SW1, SWS, SG, SDBG = 4, 8, 12, 16, 20, 52
SW2, SWO, SOUT = SX, SW, SG
sF1, sHE, sNON = 42, 43, 44
sKW, sKH, sHB, sOB, sW2B, sWOB, sWOR, sOUTB, sG4, sM4, sF2, sF3 = range(56, 68)
vW4, vA4, vW4R, vR4, vOUT, vP2, vP3, vKA, vVA, vP1, vD = 240, 243, 244, 247, 249, 250, 251, 252, 253, 254, 255

def srd_tail(a, base, nbytes):
    a(f"s_mov_b32 s{base+2}, {nbytes}")
    a(f"s_mov_b32 s{base+3}, 0x00020000")

STAMP_BASE = 0x1100000
class Stamps:
    DEF = "start,p1_first,p1_end,p2_end,b1,at_first,at_loopend,o_stored,p4_b1,p4_b4,p4_b8,w3_done,p4_end,p5_end,end"
    def __init__(self, on):
        self.on = on; self.names = []
        self.sel = set((self.DEF if on is True else "start," + str(on)).split(","))
    def __call__(self, a, name):
        if not self.on or name not in self.sel: return
        if name in self.names: i = self.names.index(name)
        else:
            i = len(self.names); self.names.append(name)
        assert i < 16
        a(f"s_memrealtime s[{68+2*i}:{69+2*i}]")
    def flush(self, a):
        if not self.on: return
        a("s_waitcnt lgkmcnt(0)")
        a("s_lshl_b32 s31, s2, 3")
        a("s_add_u32 s31, s31, s24")
        a("s_lshl_b32 s31, s31, 6")
        a(f"s_add_u32 s31, s31, {STAMP_BASE}")
        a(f"s_mov_b32 s{SWS+2}, 0x2000000")
        a("v_mov_b32 v2, 0")
        for i in range(len(self.names)):
            a(f"v_mov_b32 v0, s{68+2*i}")
            a(f"buffer_store_dword v0, v2, s[{SWS}:{SWS+3}], s31 offen offset:{4*i}")
            a("s_nop 1")
        a("; stamps " + ",".join(self.names))

class VM:
    def __init__(self): self.q = []
    def add(self, tag, n=1): self.q += [tag]*n
    def after(self, *tags):
        last = max(i for i, t in enumerate(self.q) if t in tags)
        assert all(t in self.q for t in tags), tags
        n = len(self.q) - 1 - last
        assert n <= 63
        return n

def flag_store(sreg, tmp):
    return [f"v_mov_b32 v{tmp}, s{sNON}", f"v_mov_b32 v{tmp+1}, s{sNON+1}", f"v_mov_b32 v{tmp+2}, s{sreg}",
            "s_mov_b64 exec, 1",
            f"buffer_store_dwordx2 v[{tmp}:{tmp+1}], v{tmp+2}, s[{SWS}:{SWS+3}], 0 offen {ST}",
            "s_mov_b64 exec, -1"]

KVF = ["sc1"]
def kv_dma(i):
    LDF = KVF[0]
    return [["s_mul_i32 s37, s36, 10240", f"s_add_u32 m0, s35, {i*10240}", "s_add_u32 s37, s37, s34",
             f"buffer_load_dwordx4 v{vD}, s[{SWS}:{SWS+3}], s37 offen {LDF} lds"],
            [f"buffer_load_dwordx4 v{vD}, s[{SWS}:{SWS+3}], s37 offen offset:1024 {LDF} lds"],
            ["s_mov_b32 exec_hi, 0",
             f"buffer_load_dwordx4 v{vD}, s[{SWS}:{SWS+3}], s37 offen offset:2048 {LDF} lds",
             "s_mov_b32 exec_hi, -1", "s_add_u32 s36, s36, 1", "s_and_b32 s36, s36, 7"]]

aS, aO, aQ1, aQZ, aK1, aK2, aV = 0, 64, 96, 104, 122, 130, 138
aIDX, aG, aG4, HP = 154, 158, 159, 160
HPK = 192

SLOTP = [0, 1, 2, 3, 4, 7, 5, 6]
def w4_dma(t):
    slot = SLOTP[t % 8]
    post = []
    if t < 12:
        pre = [f"s_mul_i32 s40, s{sKW}, 163840", f"s_add_u32 m0, s{sM4}, {slot*10240}", f"s_add_u32 s40, s40, s{sW2B}"]
        post = [f"s_add_u32 s{sKW}, s{sKW}, 1", f"s_cmp_eq_u32 s{sKW}, 12", f"s_cselect_b32 s{sKW}, 0, s{sKW}"]
        srd, src = SW2, vW4
    elif t < 16:
        pre = [f"s_add_u32 m0, s{sM4}, {slot*10240}", f"s_add_u32 s40, s{sWOB}, {(t-12)*8*25600}"]
        srd, src = SWO, vW4
    else:
        pre = [f"s_add_u32 m0, s{sM4}, {slot*10240}", f"s_mov_b32 s40, s{sWOR}"]
        srd, src = SWO, vW4R
    return [pre + [f"buffer_load_dwordx4 v{src}, s[{srd}:{srd+3}], s40 offen lds"],
            [f"buffer_load_dwordx4 v{src+1}, s[{srd}:{srd+3}], s40 offen offset:1024 lds"],
            ["s_mov_b32 exec_hi, 0", f"buffer_load_dwordx4 v{src+2}, s[{srd}:{srd+3}], s40 offen offset:2048 lds", "s_mov_b32 exec_hi, -1"] + post]
def act_reg(t):
    return HP + 8*t if t < 10 else (16 + 8*(t-10))
def act_ld(t):
    r = act_reg(t)
    if t < 12:
        pre = [f"s_lshl_b32 s41, s{sKH}, 13", f"s_add_u32 s41, s41, s{sHB}"]
        post = [f"s_add_u32 s{sKH}, s{sKH}, 1", f"s_cmp_eq_u32 s{sKH}, 12", f"s_cselect_b32 s{sKH}, 0, s{sKH}"]
    else:
        pre = [f"s_add_u32 s41, s{sOB}, {(t-12)*8192}"]; post = []
    return [pre + [f"buffer_load_dwordx4 {vr(r,4)}, v{vA4}, s[{SWS}:{SWS+3}], s41 offen {LDF}"],
            [f"buffer_load_dwordx4 {vr(r+4,4)}, v{vA4}, s[{SWS}:{SWS+3}], s41 offen offset:2048 {LDF}"] + post]

def spin(a, name, addr, width, tmp, sc):
    a.label(name)
    a(f"s_mov_b32 s{sc}, {SPIN}")
    a.label(name + "_l")
    a(f"buffer_load_dwordx{width} {vr(tmp,width)}, v{addr}, s[{SWS}:{SWS+3}], 0 offen {LDF}")
    a(f"s_sub_u32 s{sc}, s{sc}, 1")
    a(f"s_cmp_eq_u32 s{sc}, 0")
    a(f"s_cbranch_scc1 {name}_ret")
    a("s_waitcnt vmcnt(0)")
    for l in flag_test(tmp, width): a(l)
    a(f"s_cbranch_vccnz {name}_l")
    a(f"s_branch {name}_ret")
def flag_test(tmp, width):
    r = [f"v_cmp_ne_u64 vcc, s[{sNON}:{sNON+1}], {vr(tmp,2)}"]
    if width == 4:
        r += [f"v_cmp_ne_u64 s[40:41], s[{sNON}:{sNON+1}], {vr(tmp+2,2)}", "s_nop 0", "s_or_b64 vcc, vcc, s[40:41]"]
    else:
        r += ["s_nop 0"]
    return r

def phase12(a, cfg, late):
    stamp = cfg["stamp"]
    sK, sM0, sT0, sT1, sT2 = 27, 30, 31, 32, 33
    X = 0; ACC = 160; WB = 192
    vXR = 208; vWR = 212; vWR2 = 214; vXS = 216; vWS = 218; vW1S = 219; vEP = 220
    vT = 228; vL = 236; vGR = 237; vNON = 238
    WBS = [192, 200, 228]
    PK = [224, 240, 244, 248]
    t0, t1, t2, t3, t4, t5, t6 = range(vT, vT+7)
    a(f"v_and_b32 v{vL}, 63, v0")
    a(f"v_lshrrev_b32 v{t0}, 6, v0")
    a("s_and_b32 s31, s2, 7")
    a(f"v_readfirstlane_b32 s24, v{t0}")
    a("s_lshr_b32 s32, s2, 3")
    a("s_and_b32 s33, s32, 7")
    a("s_lshr_b32 s32, s32, 3")
    a("s_and_b32 s25, s31, 1")
    a("s_lshl_b32 s25, s25, 3")
    a("s_add_u32 s25, s25, s33")
    a("s_lshr_b32 s26, s31, 1")
    a("s_lshl_b32 s26, s26, 2")
    a("s_add_u32 s26, s26, s32")
    if cfg.get("norot"): a("s_mov_b32 s27, 0")
    elif cfg.get("rot2"):
        a("s_add_u32 s27, s33, s32")
        a("s_and_b32 s27, s27, 1")
        a("s_mul_i32 s27, s27, 5")
    elif cfg.get("rot4"):
        a("s_add_u32 s27, s33, s32")
        a("s_and_b32 s27, s27, 3")
        a("s_mul_i32 s27, s27, 5")
        a("s_lshr_b32 s27, s27, 1")
    else:
        a("s_mul_i32 s33, s33, 5")
        a("s_mul_i32 s32, s32, 10")
        a("s_add_u32 s27, s33, s32")
        a("s_lshr_b32 s27, s27, 2")
        a("s_cmp_ge_u32 s27, 10")
        a("s_cselect_b32 s31, 10, 0")
        a("s_sub_u32 s27, s27, s31")
    a("s_lshl_b32 s31, s26, 2")
    a("s_mul_i32 s28, s26, 3")
    a("s_add_u32 s28, s28, 12")
    a("s_min_u32 s28, s28, s31")
    a("s_lshl_b32 s30, s24, 11")
    a(f"s_lshl_b32 s31, s25, 7")
    a(f"s_lshl_b32 s32, s24, 4")
    a(f"s_add_u32 s31, s31, s32")
    a(f"v_lshrrev_b32 v{t0}, 3, v{vL}")
    a(f"v_lshrrev_b32 v{t1}, 4, v{vL}")
    a(f"v_and_b32 v{t2}, 7, v{vL}")
    a(f"v_xor_b32 v{t2}, v{t2}, v{t1}")
    a(f"v_add_u32 v{t0}, s31, v{t0}")
    a(f"v_mul_u32_u24 v{t0}, 1280, v{t0}")
    a(f"v_lshl_add_u32 v{vXS}, v{t2}, 4, v{t0}")
    a(f"v_xor_b32 v{vXS+1}, 64, v{vXS}")
    a(f"v_add_u32 v{vXS+1}, {8*1280}, v{vXS+1}")
    a(f"v_bfe_u32 v{t4}, v{vL}, 2, 2")
    a(f"v_xor_b32 v{t4}, v{t4}, v{t1}")
    a(f"v_and_b32 v{t2}, 3, v{vL}")
    a(f"v_lshlrev_b32 v{t2}, 4, v{t2}")
    a(f"v_lshl_add_u32 v{t2}, v{t4}, 6, v{t2}")
    a(f"s_lshl_b32 s31, s24, 3")
    a(f"v_add_u32 v{t0}, s31, v{t1}")
    a(f"v_mul_u32_u24 v{t3}, 3840, v{t0}")
    a(f"s_lshl_b32 s31, s28, 6")
    a(f"v_add3_u32 v{vWS}, v{t3}, v{t2}, s31")
    a(f"v_cmp_eq_u32 vcc, 3, v{t4}")
    a(f"v_mov_b32 v{t5}, 0x{OOB:x}")
    a(f"s_cmp_ge_u32 s26, 12")
    a(f"s_cselect_b64 s[36:37], vcc, 0")
    a(f"s_lshr_b32 s34, s24, 2")
    a(f"v_cndmask_b32 v{vWS}, v{vWS}, v{t5}, s[36:37]")
    a("s_waitcnt lgkmcnt(0)")
    srd_tail(a, SX, 2048*1280); srd_tail(a, SW, 640*3840)

    def adv_k():
        return [f"s_add_u32 s{sK}, s{sK}, 1", f"s_cmp_eq_u32 s{sK}, 10", f"s_cselect_b32 s{sK}, 0, s{sK}"]
    def dma_groups(t):
        slot = t % 4
        g = []
        if t < 10:
            g.append([f"s_lshl_b32 s{sT0}, s{sK}, 7", f"s_add_u32 m0, s{sM0}, {slot*16384}", f"s_mul_i32 s{sT1}, s{sK}, {64*3840}",
                      f"buffer_load_dwordx4 v{vXS}, s[{SX}:{SX+3}], s{sT0} offen lds"])
            g.append([f"s_add_u32 m0, s{sM0}, {slot*16384+1024}", f"s_add_u32 s{sT2}, s{sT1}, {4*3840}",
                      f"buffer_load_dwordx4 v{vXS+1}, s[{SX}:{SX+3}], s{sT0} offen lds"])
            g.append([f"s_add_u32 m0, s{sM0}, {65536+slot*16384}", adv_k()[0],
                      f"buffer_load_dwordx4 v{vWS}, s[{SW}:{SW+3}], s{sT1} offen lds"])
            g.append([f"s_add_u32 m0, s{sM0}, {65536+slot*16384+1024}"] + adv_k()[1:] + [
                      f"buffer_load_dwordx4 v{vWS}, s[{SW}:{SW+3}], s{sT2} offen lds"])
        elif t < 15:
            for half in range(2):
                base = (65536 if half == 0 else 0) + slot*16384
                g.append([f"s_mul_i32 s{sT1}, s{sK}, {64*3072}", f"s_add_u32 m0, s{sM0}, {base}", f"s_add_u32 s{sT2}, s{sT1}, {4*3072}",
                          f"buffer_load_dwordx4 v{vW1S}, s[{SW1}:{SW1+3}], s{sT1} offen lds"])
                g.append([f"s_add_u32 m0, s{sM0}, {base+1024}"] + adv_k() + [
                          f"buffer_load_dwordx4 v{vW1S}, s[{SW1}:{SW1+3}], s{sT2} offen lds"])
        return g
    a("s_mov_b32 s29, s27")
    stamp(a, "karg")
    for g in dma_groups(0):
        for l in g: a(l)
    a("s_and_b32 s35, s24, 3")
    a("s_cmp_ge_u32 s26, 12")
    a("s_cselect_b32 s38, s34, 0")
    srd_tail(a, SG, 1280)
    a("s_cmp_eq_u32 s38, 1")
    a("s_cbranch_scc1 L_gate")
    a.label("L_gate_ret")
    def gate(a):
        u0, u1, u2 = vEP, vEP+1, vEP+2
        a.label("L_gate")
        a(f"s_lshl_b32 s31, s29, 3")
        for i in range(2):
            a(f"v_add_u32 v{u0}, {64*i}, v{vL}")
            a(f"v_add_u32 v{u1}, s31, v{u0}")
            a(f"v_subrev_u32 v{u2}, 80, v{u1}")
            a(f"v_cmp_le_u32 vcc, 80, v{u1}")
            a(f"s_lshl_b32 s32, s35, 11")
            a(f"s_add_u32 m0, s32, {131072 + 1024*i}")
            a(f"v_cndmask_b32 v{u1}, v{u1}, v{u2}, vcc")
            a(f"v_lshlrev_b32 v{u1}, 4, v{u1}")
            a(f"v_cmp_le_u32 vcc, 80, v{u0}")
            a("s_nop 1")
            a(f"v_cndmask_b32 v{u1}, v{u1}, v{t5}, vcc")
            a(f"buffer_load_dwordx4 v{u1}, s[{SG}:{SG+3}], 0 offen lds")
        a("s_branch L_gate_ret")
    late.append(gate)
    a("s_barrier")
    for g in dma_groups(1):
        for l in g: a(l)
    stamp(a, "dma1")
    srd_tail(a, SW1, 640*3072); srd_tail(a, SWS, WS_END); srd_tail(a, SDBG, 256)
    a("s_or_b32 s31, s2, s24")
    a("s_cmp_eq_u32 s31, 0")
    a("s_cbranch_scc1 L_tag")
    a.label("L_tag_ret")
    def tag(a):
        a.label("L_tag")
        a(f"s_memrealtime s[{sNON}:{sNON+1}]")
        a(f"v_mov_b32 v{vEP+2}, 0")
        a("s_waitcnt lgkmcnt(0)")
        a(f"s_or_b32 s31, s{sNON}, 1")
        a(f"v_mov_b32 v{vEP}, s31")
        a(f"v_mov_b32 v{vEP+1}, s{sNON+1}")
        a("s_mov_b64 exec, 1")
        a(f"buffer_store_dwordx2 v[{vEP}:{vEP+1}], v{vEP+2}, s[{SDBG}:{SDBG+3}], 0 offen {ST}")
        a("s_mov_b64 exec, -1")
        a("s_branch L_tag_ret")
    late.append(tag)
    a(f"v_mul_u32_u24 v{t3}, 3072, v{t0}")
    a(f"s_mul_i32 s31, s26, 192")
    a(f"v_add3_u32 v{vW1S}, v{t3}, v{t2}, s31")
    a(f"v_cmp_eq_u32 vcc, 3, v{t4}")
    a(f"v_and_b32 v{t0}, 31, v{vL}")
    a(f"s_lshl_b32 s31, s35, 5")
    a(f"v_cndmask_b32 v{vW1S}, v{vW1S}, v{t5}, vcc")
    a(f"v_add_u32 v{t0}, s31, v{t0}")
    a(f"v_bfe_u32 v{t1}, v{t0}, 1, 3")
    a(f"v_lshrrev_b32 v{t2}, 5, v{vL}")
    a(f"v_xor_b32 v{t1}, v{t1}, v{t2}")
    a(f"v_lshlrev_b32 v{t1}, 4, v{t1}")
    a(f"v_lshl_add_u32 v{vXR}, v{t0}, 7, v{t1}")
    for ks in range(1, 4):
        a(f"v_xor_b32 v{vXR+ks}, {ks<<5}, v{vXR}")
    a(f"v_bfe_u32 v{t0}, v{vL}, 2, 2")
    a(f"v_lshl_add_u32 v{t1}, v{t2}, 3, v{t0}")
    a(f"v_lshlrev_b32 v{t1}, 8, v{t1}")
    a(f"v_bfe_u32 v{t3}, v{vL}, 4, 1")
    a(f"v_lshl_add_u32 v{t1}, v{t3}, 5, v{t1}")
    a(f"v_and_b32 v{t3}, 3, v{vL}")
    a(f"v_lshl_add_u32 v{t1}, v{t3}, 3, v{t1}")
    for e in range(2):
        a(f"s_lshl_b32 s31, s34, 1")
        a(f"s_add_u32 s31, s31, {e}")
        a(f"v_xor_b32 v{t3}, s31, v{t0}")
        a(f"v_lshl_add_u32 v{vWR2+e}, v{t3}, 6, v{t1}")
        a(f"v_add_u32 v{vWR+e}, 0x10000, v{vWR2+e}")
    a(f"s_lshl_b32 s31, s35, 11")
    a(f"s_add_u32 s31, s31, 131072")
    a(f"v_lshl_add_u32 v{vGR}, v{t2}, 4, s31")
    a("s_cmp_ge_u32 s26, 10")
    a("s_cbranch_scc1 L_p1_v")
    a("s_cmp_ge_u32 s26, 5")
    a(f"s_cselect_b32 s31, 1, 0")
    a(f"s_lshl_b32 s39, 81920, s31")
    a(f"s_lshl_b32 s40, 5120, s31")
    a("s_cmp_ge_u32 s26, 5")
    a(f"s_cselect_b32 s41, {WS_KV}, {WS_Q}")
    a(f"s_cselect_b32 s42, 20, 0")
    a("s_mul_i32 s40, s40, s25")
    a("s_add_u32 s40, s40, s41")
    a("s_sub_u32 s42, s28, s42")
    a("s_lshl_b32 s31, s34, 1")
    a("s_add_u32 s42, s42, s31")
    a("s_lshl_b32 s42, s42, 2")
    a("s_and_b32 s31, s35, 1")
    a("s_lshl_b32 s31, s31, 8")
    a("s_add_u32 s40, s40, s31")
    a("s_lshr_b32 s31, s35, 1")
    a("s_lshl_b32 s41, s31, 11")
    a("s_lshl_b32 s31, s31, 9")
    a("s_add_u32 s33, s31, 4096")
    a(f"v_and_b32 v{t0}, 15, v{vL}")
    a(f"v_lshl_add_u32 v{t0}, v{t0}, 4, s40")
    a(f"v_add_u32 v{t2}, s42, v{t2}")
    a(f"v_bfe_u32 v{t5}, v{vL}, 4, 1")
    a(f"v_lshl_add_u32 v{t6}, v{t5}, 10, s41")
    a(f"v_mov_b32 v{vGR}, s33")
    QM = [36, 40, 42, 0]
    for i in range(4):
        u0 = vT+7
        a(f"v_add_u32 v{t1}, {2*i}, v{t2}")
        a(f"v_mul_u32_u24 v{t3}, 205, v{t1}")
        a(f"v_lshrrev_b32 v{t3}, 10, v{t3}")
        a(f"v_mul_u32_u24 v{t4}, 5, v{t3}")
        a(f"v_sub_u32 v{t1}, v{t1}, v{t4}")
        a(f"v_cmp_le_u32 vcc, 3, v{t1}")
        a(f"v_cmp_eq_u32 s[{QM[i]}:{QM[i]+1}], 2, v{t1}")
        a(f"v_subrev_u32 v{u0}, 3, v{t1}")
        a(f"v_cndmask_b32 v{t4}, 0, 1, vcc")
        a(f"v_cndmask_b32 v{t1}, v{t1}, v{u0}, vcc")
        a(f"v_cndmask_b32 v{t4}, v{t4}, v{t5}, s[{QM[i]}:{QM[i]+1}]")
        a(f"v_lshl_add_u32 v{t3}, v{t3}, 1, v{t4}")
        a(f"v_mul_lo_u32 v{t3}, v{t3}, s39")
        a(f"v_lshl_add_u32 v{t1}, v{t1}, 9, v{t6}")
        a(f"v_cndmask_b32 v{t1}, v{t1}, v{vGR}, s[{QM[i]}:{QM[i]+1}]")
        a(f"v_add3_u32 v{vEP+i}, v{t0}, v{t3}, v{t1}")
    a(f"v_lshrrev_b32 v{t1}, 1, v{vL}")
    a(f"v_xor_b32 v{t1}, v{t1}, v{vL}")
    a(f"v_and_b32 v{t1}, 1, v{t1}")
    a(f"v_mul_u32_u24 v{vGR}, 24, v{t1}")
    for e in range(2): a(f"v_xor_b32 v{vWR+e}, v{vWR+e}, v{vGR}")
    def ep_v():
        a("s_sub_u32 s42, s28, 40")
        a("s_lshl_b32 s31, s34, 1")
        a("s_add_u32 s42, s42, s31")
        a("s_lshl_b32 s42, s42, 5")
        a("s_mul_i32 s40, s25, 10240")
        a("s_lshr_b32 s31, s35, 1")
        a("s_mul_i32 s31, s31, 2560")
        a("s_add_u32 s40, s40, s31")
        a("s_and_b32 s31, s35, 1")
        a("s_mul_i32 s31, s31, 640")
        a("s_add_u32 s40, s40, s31")
        a(f"s_add_u32 s40, s40, {WS_KV + 5120}")
        a(f"s_mov_b32 s39, 163840")
        a(f"v_and_b32 v{t0}, 31, v{vL}")
        a(f"v_mul_u32_u24 v{t2}, 320, v{t2}")
        a(f"v_add_u32 v{t2}, s40, v{t2}")
        for e in range(2):
            a(f"v_add_u32 v{t1}, s42, v{t0}")
            if e: a(f"v_add_u32 v{t1}, 32, v{t1}")
            a(f"v_mul_u32_u24 v{t3}, 3277, v{t1}")
            a(f"v_lshrrev_b32 v{t3}, 16, v{t3}")
            a(f"v_mul_u32_u24 v{t4}, 20, v{t3}")
            a(f"v_sub_u32 v{t1}, v{t1}, v{t4}")
            a(f"v_mul_lo_u32 v{t3}, v{t3}, s39")
            a(f"v_lshl_add_u32 v{t1}, v{t1}, 4, v{t2}")
            a(f"v_add_u32 v{vEP+2*e}, v{t1}, v{t3}")
            a(f"v_add_u32 v{vEP+2*e+1}, 1280, v{vEP+2*e}")

    def p1_reads(variant, step):
        t, ks = divmod(step, 4)
        slot = t % 4; wb = WBS[step % 3]
        r = [f"ds_read_b128 {vr(X+4*step,4)}, v{vXR+ks} offset:{slot*16384}"]
        for e in range(2):
            if variant == "VG" and e == 1:
                r.append(f"ds_read_b128 {vr(wb+4,4)}, v{vGR} offset:{t*128+ks*32}")
            else:
                for u in range(2):
                    r.append(f"ds_read_b64_tr_b16 {vr(wb+4*e+2*u,2)}, v{vWR+e} offset:{slot*16384+ks*4096+u*1024}")
        return r
    def mf(acc, A, B, first):
        return f"v_mfma_f32_32x32x16_bf16 {vr(acc,16)}, {vr(A,4)}, {vr(B,4)}, " + ("0" if first else vr(acc,16))
    class LQ:
        def __init__(self): self.q = []
        def rd(self, lines, tag):
            for l in lines: a(l); self.q.append(tag)
        def wait(self, tag):
            n = len(self.q) - 1 - max(i for i, x in enumerate(self.q) if x == tag)
            a(f"s_waitcnt lgkmcnt({min(n, 15)})")
    uid = [0]
    def site(stage, sg, extra=None):
        uid[0] += 1
        a(f"s_cmp_eq_u32 s34, {sg}")
        a(f"s_cbranch_scc0 L_site{uid[0]}")
        for g in dma_groups(stage):
            for l in g: a(l)
        for l in extra or []: a(l)
        a.label(f"L_site{uid[0]}")
    TAGT = 5
    NOLG = cfg.get("nolg")
    def p1_main(variant):
        for g in dma_groups(2):
            for l in g: a(l)
        stamp(a, "p1_pre")
        a(f"s_waitcnt vmcnt(8)")
        a("s_barrier")
        stamp(a, "p1_first")
        lq = LQ()
        for st in range(2):
            rd = p1_reads(variant, st); lq.rd(rd[:3], (st, 0)); lq.rd(rd[3:], (st, 1))
        if variant != "VG": site(3, 0)
        tagld = [f"buffer_load_dwordx2 v[{vNON}:{vNON+1}], off, s[{SDBG}:{SDBG+3}], 0 {LDF}"]
        for step in range(40):
            t, ks = divmod(step, 4)
            rd = p1_reads(variant, step+2) if step < 38 else []
            for e in range(2):
                w = WBS[step % 3]+4*e; x = X+4*step
                swap = (variant == "VV") or (variant == "VG" and e == 0)
                lq.wait((step, e))
                a(mf(ACC+16*e, x if swap else w, w if swap else x, step == 0))
                if ks == 2 and e == 0:
                    site(t+3, 1, tagld if t == TAGT+1 else None)
                    stamp(a, f"p1_p{t}")
                    a(f"s_waitcnt vmcnt({9 if t in (TAGT+1, TAGT+2) else 8})" + ("" if NOLG else " lgkmcnt(0)"))
                    a("s_barrier")
                    stamp(a, f"p1_b{t}")
                lq.rd(rd[:3] if e == 0 else rd[3:], (step+2, e))
                if ks == 2 and e == 0 and variant != "VG":
                    site(t+4, 0, tagld if t == TAGT else None)
        site(13, 1)
        stamp(a, "p1_end")
    def v_epilogue(e):
        for s in range(2):
            d = PK[2*e+s]
            for c in range(4):
                r = ACC + 16*e + 8*s + 2*c
                a(f"v_cvt_pk_bf16_f32 v{d+c}, v{r}, v{r+1}")
            a("s_nop 1")
            a(f"v_permlane32_swap_b32 v{d}, v{d+2}")
            a(f"v_permlane32_swap_b32 v{d+1}, v{d+3}")

    p1_main("QK")
    a("s_cmp_ge_u32 s26, 5")
    a(f"s_cselect_b32 s31, 1.0, 0x{QSCALE:x}")
    for e in range(2): a(f"v_xor_b32 v{vWR+e}, v{vWR+e}, v{vGR}")
    a("s_nop 5")
    for i in range(4):
        r = ACC + 8*i; d = PK[i]
        for c in range(8): a(f"v_mul_f32 v{r+c}, s31, v{r+c}")
        for c in range(4): a(f"v_cvt_pk_bf16_f32 v{d+c}, v{r+2*c}, v{r+2*c+1}")
        a(f"s_mov_b64 exec, s[{QM[i]}:{QM[i]+1}]")
        a("s_nop 0")
        a(f"v_permlane16_swap_b32 v{d}, v{d+2}")
        a(f"v_permlane16_swap_b32 v{d+1}, v{d+3}")
        a("s_mov_b64 exec, -1")
    def vpart(a2):
        assert a2 is a
        a.label("L_p1_v")
        ep_v()
        a("s_cmp_eq_u32 s38, 1")
        a("s_cbranch_scc1 L_p1_vg")
        p1_main("VV")
        a("s_nop 7"); a("s_nop 1")
        v_epilogue(0); v_epilogue(1)
        a("s_branch L_p2")
        a.label("L_p1_vg")
        for i in (2, 3): a(f"v_mov_b32 v{vEP+i}, 0x{OOB:x}")
        p1_main("VG")
        a("s_nop 7"); a("s_nop 1")
        v_epilogue(0)
        z = ACC + 16
        a(f"v_cvt_pk_bf16_f32 v{z}, v{z}, v{z}")
        a(f"v_and_b32 v{z}, 0xffff0000, v{z}")
        a(f"v_mul_f32 v{z}, 0x{f32bits(-math.log2(math.e)):x}, v{z}")
        a(f"v_exp_f32 v{z}, v{z}")
        a("s_nop 0")
        a(f"v_add_f32 v{z}, 1.0, v{z}")
        a(f"v_rcp_f32 v{z}, v{z}")
        a(f"s_lshl_b32 s31, s25, 9")
        a(f"s_lshl_b32 s32, s35, 7")
        a(f"v_cvt_pk_bf16_f32 v{z}, v{z}, v{z}")
        a(f"v_and_b32 v{z}, 0xffff0000, v{z}")
        a(f"s_add_u32 s31, s31, s32")
        a(f"s_add_u32 s31, s31, {WS_G}")
        a(f"v_and_b32 v{z+1}, 31, v{vL}")
        a(f"v_lshlrev_b32 v{z+1}, 2, v{z+1}")
        a("s_cmp_eq_u32 s26, 15")
        a("s_cbranch_scc0 L_p2")
        a(f"buffer_store_dword v{z}, v{z+1}, s[{SWS}:{SWS+3}], s31 offen {ST}")
        a("s_branch L_p2")
    late.insert(0, vpart)
    a.label("L_p2")
    a(f"v_readfirstlane_b32 s{sNON}, v{vNON}")
    a(f"v_readfirstlane_b32 s{sNON+1}, v{vNON+1}")
    a("s_nop 0")
    a(f"s_cmp_eq_u32 s{sNON}, 0")
    a("s_cbranch_scc1 L_tagw")
    a.label("L_tagw_ret")
    def tagw(a):
        a.label("L_tagw")
        a(f"s_mov_b32 s31, {SPIN}")
        a.label("L_tagw_l")
        a(f"buffer_load_dwordx2 v[{vNON}:{vNON+1}], off, s[{SDBG}:{SDBG+3}], 0 {LDF}")
        a("s_sub_u32 s31, s31, 1")
        a("s_cmp_eq_u32 s31, 0")
        a("s_cbranch_scc1 L_tagw_ret")
        a("s_waitcnt vmcnt(0)")
        a(f"v_readfirstlane_b32 s{sNON}, v{vNON}")
        a(f"v_readfirstlane_b32 s{sNON+1}, v{vNON+1}")
        a("s_nop 0")
        a(f"s_cmp_eq_u32 s{sNON}, 0")
        a("s_cbranch_scc1 L_tagw_l")
        a("s_branch L_tagw_ret")
    late.append(tagw)
    def p2_reads(ns, step):
        D, rem = divmod(step, 8); half, ks = divmod(rem, 4)
        slot = (10 + D) % 4; wb = WBS[step % 3]
        base = vWR if half == 0 else vWR2
        return [f"ds_read_b64_tr_b16 {vr(wb+4*e+2*u,2)}, v{base+e} offset:{slot*16384+ks*4096+u*1024}" for e in range(ns) for u in range(2)]
    fillA, fillB = setup_later(cfg, vL)
    SIG = int(cfg.get("sig1", 34)); POLL1 = int(cfg.get("poll1", 39))
    STS = {2: [int(x) for x in cfg.get("sts", "8,11,14,17").split(",")], 1: [0, 1, 2, 3]}
    def p2_main(ns):
        stamp(a, "p2_start")
        vm = VM()
        for st in (11, 12, 13): vm.add(f"s{st}", 4)
        lq = LQ()
        for st in range(2):
            rd = p2_reads(ns, st)
            for e in range(ns): lq.rd(rd[2*e:2*e+2], (st, e))
        fa = list(fillA); fb = list(fillB)
        for step in range(40):
            D, rem = divmod(step, 8)
            rd = p2_reads(ns, step+2) if step < 38 else []
            for e in range(ns):
                lq.wait((step, e))
                a(mf(ACC+16*e, WBS[step % 3]+4*e, X+4*step, step == 0))
                bar = rem == 6 and D < 4
                if e == 0 and (bar or step == SIG):
                    need = ([f"s{11+D}"] if bar else []) + (["st"] if step == SIG else [])
                    stamp(a, f"p2_p{D}" if bar else "p2_ps")
                    a(f"s_waitcnt vmcnt({vm.after(*need)})" + (" lgkmcnt(0)" if (D == 0 and not NOLG) else ""))
                    a("s_barrier")
                    stamp(a, f"p2_b{D}" if bar else "p2_bs")
                lq.rd(rd[2*e:2*e+2], (step+2, e))
                if e == 0 and step == 6:
                    for g in dma_groups(14):
                        for l in g: a(l)
                    vm.add("s14", 4)
                if e == 0 and step == SIG and ns == 1:
                    for l in flag_store(sF1, 8): a(l)
                    vm.add("flag")
                if e == ns-1 and step in STS[ns]:
                    i = STS[ns].index(step)
                    a(f"buffer_store_dwordx4 {vr(PK[i],4)}, v{vEP+i}, s[{SWS}:{SWS+3}], 0 offen {ST}")
                    vm.add("st")
                if e == 0 and step == POLL1 and ns == 1:
                    a("s_cmp_eq_u32 s24, 4"); a(f"s_cbranch_scc0 L_p1s")
                    a(f"buffer_load_dwordx4 {vr(vEP,4)}, v{vP1}, s[{SWS}:{SWS+3}], 0 offen {LDF}")
                    a.label("L_p1s")
                if step >= 8:
                    for _ in range(8 // ns):
                        if fa: a(fa.pop(0))
                        elif fb and step > max(STS[2]): a(fb.pop(0))
        assert not fa and not fb, (fa, fb)
        stamp(a, "p2_end")
        a(f"v_bfe_u32 v{aS}, v{vD}, 4, 5")
        a(f"v_mov_b32 v{aS+1}, 0x3f803f80")
        a(f"v_cmp_eq_u32 vcc, 20, v{aS}")
        for i in range(32): a(f"v_mov_b32 v{aO+i}, 0")
        a(f"v_mov_b32 v{aIDX}, 0xdddddddd")
        for i in range(16): a(f"v_cndmask_b32 v{aV+i}, 0, v{aS+1}, vcc")
        for i in range(18): a(f"v_mov_b32 v{aQZ+i}, 0")
        for e in range(ns):
            for s in range(2):
                d = HPK + 8*e + 4*s
                for c in range(4):
                    r = ACC + 16*e + 8*s + 2*c
                    a(f"v_max_f32 v{r}, 0, v{r}")
                    a(f"v_max_f32 v{r+1}, 0, v{r+1}")
                    a(f"v_cvt_pk_bf16_f32 v{d+c}, v{r}, v{r+1}")
        a(f"v_mov_b32 v{HPK+16}, " + (f"v{vD}" if ns == 2 else f"0x{OOB:x}"))
        a(f"v_and_b32 v{t0}, 0x1ff, v{vD}")
        a(f"v_lshrrev_b32 v{t1}, 2, v{t0}")
        a(f"v_and_b32 v{t2}, 64, v{t1}")
        a(f"v_add_u32 v{t1}, v{t1}, v{t2}")
        stamp(a, "at_init")
        if ns == 1:
            a("s_cmp_eq_u32 s24, 4")
            a("s_cbranch_scc0 L_w1_ret")
            a("s_waitcnt vmcnt(0)")
            for l in flag_test(vEP, 4): a(l)
            a("s_cbranch_vccnz L_w1")
            a.label("L_w1_ret")
            late.append(lambda a: spin(a, "L_w1", vP1, 4, vEP, 31))
    a("s_cmp_eq_u32 s34, 0")
    a("s_cbranch_scc0 L_p2_1")
    p2_main(2)
    def p2one(a2):
        a.label("L_p2_1")
        p2_main(1)
        a("s_branch L_p2_done")
    late.insert(0, p2one)
    a.label("L_p2_done")
    a("s_barrier")
    stamp(a, "b1")
    a(f"buffer_load_dwordx4 {vr(aQ1,4)}, v{vD}, s[{SWS}:{SWS+3}], s32 offen {LDF}")
    a(f"buffer_load_dwordx4 {vr(aQ1+4,4)}, v{vD}, s[{SWS}:{SWS+3}], s32 offen offset:1024 {LDF}")
    a(f"buffer_load_dwordx4 {vr(aK1+2,4)}, v{t0}, s[{SWS}:{SWS+3}], s33 offen {LDF}")
    for g in kv_dma(0):
        for l in g: a(l)
    a(f"buffer_load_dword v{aG}, v{t1}, s[{SWS}:{SWS+3}], s30 offen {LDF}")
    stamp(a, "at_kv0")

def setup_later(cfg, vL):
    t0, t1, t2, t3, t4, t5, t6 = range(7)
    A = Asm(); B = Asm()
    a = A
    a(f"v_lshlrev_b32 v{vD}, 4, v{vL}")
    a("s_lshl_b32 s31, s25, 2"); a("s_add_u32 s31, s31, s35"); a("s_mul_i32 s31, s31, 98304"); a("s_mul_i32 s32, s26, 3")
    a("s_lshl_b32 s33, s34, 1"); a("s_add_u32 s32, s32, s33"); a("s_lshl_b32 s32, s32, 11"); a("s_add_u32 s31, s31, s32")
    a(f"s_add_u32 s{sHE}, s31, {WS_H}")
    a("s_lshl_b32 s39, s25, 7"); a("s_lshl_b32 s40, s26, 3"); a("s_add_u32 s39, s39, s40"); a(f"s_add_u32 s39, s39, {FL2}")
    a("s_cmp_eq_u32 s24, 0"); a(f"s_cselect_b32 s{sF2}, s39, 0x{OOB:x}")
    a("s_lshl_b32 s39, s26, 7"); a("s_lshl_b32 s40, s25, 3"); a("s_add_u32 s39, s39, s40"); a(f"s_add_u32 s39, s39, {FL1}")
    a("s_cmp_eq_u32 s24, 4"); a(f"s_cselect_b32 s{sF1}, s39, 0x{OOB:x}")
    a("s_mov_b32 s27, s34"); a("s_mov_b32 s28, s35")
    a("s_mul_i32 s0, s27, 81920"); a("s_mul_i32 s32, s28, 2560"); a(f"s_add_u32 s{sM4}, s0, s32")
    a("s_and_b32 s31, s2, 7"); a("s_lshr_b32 s33, s2, 6"); a("s_bfe_u32 s26, s2, 0x30003")
    a("s_lshl_b32 s25, s31, 2"); a("s_add_u32 s25, s25, s33")
    a("s_lshl_b32 s39, s26, 8"); a("s_lshl_b32 s40, s25, 3"); a("s_add_u32 s39, s39, s40"); a(f"s_add_u32 s39, s39, {FL3}")
    a("s_cmp_eq_u32 s24, 0"); a(f"s_cselect_b32 s{sF3}, s39, 0x{OOB:x}")
    a(f"v_lshrrev_b32 v{t0}, 4, v{vL}")
    a(f"v_add_u32 v{t0}, 1, v{t0}")
    a(f"v_mul_u32_u24 v{t1}, 640, v{t0}")
    a(f"v_cmp_eq_u32 vcc, 3, v{t0}")
    a(f"s_mul_i32 s39, s25, 20")
    a(f"v_bfe_u32 v{t3}, v{vL}, 3, 1")
    a(f"v_cndmask_b32 v{t1}, v{t1}, 0, vcc")
    a(f"v_mul_u32_u24 v{t3}, 19, v{t3}")
    a(f"v_add3_u32 v{t1}, v{t1}, v{t3}, s39")
    a(f"v_min_u32 v{t1}, 1919, v{t1}")
    a(f"v_lshrrev_b32 v{t1}, 5, v{t1}")
    a(f"v_lshrrev_b32 v{t3}, 2, v{t1}")
    a(f"v_subrev_u32 v{t4}, 12, v{t1}")
    a(f"v_mul_u32_u24 v{t4}, 43, v{t4}")
    a(f"v_lshrrev_b32 v{t4}, 7, v{t4}")
    a(f"v_cmp_le_u32 vcc, 48, v{t1}")
    a(f"v_and_b32 v{t0}, 7, v{vL}")
    a(f"v_lshlrev_b32 v{t0}, 4, v{t0}")
    a(f"v_cndmask_b32 v{t3}, v{t3}, v{t4}, vcc")
    a(f"v_lshl_add_u32 v{t3}, v{t3}, 7, v{t0}")
    a(f"v_add_u32 v{vP1}, {FL1}, v{t3}")
    a("s_lshr_b32 s39, s31, 1"); a("s_lshl_b32 s39, s39, 3"); a("s_add_u32 s39, s39, s26")
    a("s_and_b32 s40, s31, 1"); a("s_lshl_b32 s40, s40, 2"); a("s_add_u32 s40, s40, s33")
    a("s_mul_i32 s36, s26, 3"); a("s_lshr_b32 s36, s36, 1"); a("s_mul_i32 s33, s33, 3"); a("s_add_u32 s36, s36, s33")
    a("s_cmp_ge_u32 s36, 12"); a("s_cselect_b32 s33, 12, 0"); a(f"s_sub_u32 s{sKW}, s36, s33"); a(f"s_mov_b32 s{sKH}, s{sKW}")
    a("s_lshl_b32 s33, s39, 1"); a("s_lshr_b32 s31, s28, 1"); a("s_add_u32 s33, s33, s31")
    a("s_lshl_b32 s31, s27, 12")
    a(f"s_mul_i32 s{sHB}, s33, 98304"); a(f"s_add_u32 s{sHB}, s{sHB}, s31"); a(f"s_add_u32 s{sHB}, s{sHB}, {WS_H}")
    a(f"s_mul_i32 s{sOB}, s33, 40960"); a(f"s_add_u32 s{sOB}, s{sOB}, s31"); a(f"s_add_u32 s{sOB}, s{sOB}, {WS_O}")
    a(f"s_mul_i32 s{sW2B}, s24, 20480"); a(f"s_mul_i32 s{sWOB}, s24, 25600"); a(f"s_mul_i32 s{sWOR}, s24, 102400")
    a("s_lshl_b32 s31, s39, 2"); a("s_add_u32 s31, s31, s28")
    a(f"s_lshl_b32 s{sG4}, s31, 6"); a(f"s_add_u32 s{sG4}, s{sG4}, {WS_G}")
    a(f"s_mul_i32 s{sOUTB}, s31, 20480"); a("s_mul_i32 s1, s40, 160"); a(f"s_add_u32 s{sOUTB}, s{sOUTB}, s1")
    a("s_lshr_b32 s40, s39, 1"); a("s_lshl_b32 s40, s40, 7"); a(f"s_add_u32 s40, s40, {FL2}")
    a("s_lshr_b32 s41, s39, 2"); a("s_lshl_b32 s41, s41, 8"); a(f"s_add_u32 s41, s41, {FL3}")
    a("s_mul_i32 s31, s25, 81920"); a("s_lshl_b32 s32, s26, 1"); a("s_lshr_b32 s33, s28, 1"); a("s_add_u32 s32, s32, s33")
    a("s_mul_i32 s32, s32, 5120"); a("s_add_u32 s31, s31, s32"); a("s_and_b32 s33, s28, 1"); a("s_lshl_b32 s32, s33, 11")
    a("s_add_u32 s32, s32, s31")
    a("s_lshl_b32 s33, s33, 9"); a("s_add_u32 s33, s33, s31"); a("s_add_u32 s33, s33, 4096")
    a("s_lshl_b32 s31, s26, 3"); a("s_lshl_b32 s29, s28, 1"); a("s_add_u32 s29, s31, s29")
    a("s_lshl_b32 s30, s29, 7"); a("s_lshl_b32 s31, s27, 6"); a("s_add_u32 s30, s30, s31"); a(f"s_add_u32 s30, s30, {WS_G}")
    a(f"s_mov_b32 s35, s{sM4}"); a("s_mul_i32 s34, s25, 163840"); a("s_add_u32 s34, s34, s35"); a(f"s_add_u32 s34, s34, {WS_KV}")
    a("s_mov_b32 s36, s26"); a("s_mov_b32 s38, 0x000fffff"); a("s_mov_b32 s39, 0x000fffff")
    a(f"s_mov_b64 s[{SW2}:{SW2+1}], s[46:47]"); a(f"s_mov_b32 s{SW2+2}, {1536*1280}")
    a(f"s_mov_b64 s[{SWO}:{SWO+1}], s[48:49]"); a(f"s_mov_b32 s{SWO+2}, {640*1280}")
    a(f"s_mov_b64 s[{SOUT}:{SOUT+1}], s[50:51]"); a(f"s_mov_b32 s{SOUT+2}, {2048*1280}")
    a(f"v_lshrrev_b32 v{t2}, 5, v{vL}")
    a(f"v_add_u32 v{vKA}, s0, v{vD}")
    a(f"v_and_b32 v{t0}, 31, v{vL}")
    a(f"v_mul_u32_u24 v{t3}, 320, v{t2}")
    a(f"v_lshl_add_u32 v{t3}, v{t0}, 4, v{t3}")
    a(f"v_add_u32 v{t3}, 5120, v{t3}")
    a(f"v_add_u32 v{vVA}, s0, v{t3}")
    a = B
    a(f"v_lshl_add_u32 v{vP3}, v{t0}, 3, s41")
    a(f"v_mul_u32_u24 v{t3}, 2560, v{t2}")
    a(f"v_bfe_u32 v{t1}, v{vL}, 2, 3")
    a(f"v_mul_u32_u24 v{t1}, 160, v{t1}")
    a(f"v_and_b32 v{t4}, 3, v{vL}")
    a(f"v_lshl_add_u32 v{t1}, v{t4}, 3, v{t1}")
    a(f"v_add3_u32 v{vR4}, v{t3}, v{t1}, s0")
    a(f"v_add_u32 v{vR4+1}, 40960, v{vR4}")
    a(f"v_and_b32 v{t0}, 15, v{vL}")
    a(f"v_lshl_add_u32 v{vP2}, v{t0}, 3, s40")
    a(f"v_mul_u32_u24 v{t1}, 1280, v{t0}")
    a(f"v_lshrrev_b32 v{t3}, 4, v{vL}")
    a(f"v_lshl_add_u32 v{vOUT}, v{t3}, 3, v{t1}")
    a(f"v_lshlrev_b32 v{t0}, 4, v{t0}")
    a(f"v_lshl_add_u32 v{vA4}, v{t3}, 9, v{t0}")
    a("s_and_b32 s31, s28, 1")
    a("s_lshl_b32 s31, s31, 8")
    a(f"v_add_u32 v{vA4}, s31, v{vA4}")
    for i in range(3):
        a(f"v_add_u32 v{t0}, {64*i}, v{vL}")
        a(f"v_mul_u32_u24 v{t1}, 205, v{t0}")
        a(f"v_lshrrev_b32 v{t1}, 11, v{t1}")
        a(f"v_mul_u32_u24 v{t3}, 10, v{t1}")
        a(f"v_sub_u32 v{t3}, v{t0}, v{t3}")
        a(f"v_lshl_add_u32 v{t3}, v{t3}, 4, s1")
        if i: a(f"v_subrev_u32 v{t3}, {1024*i}, v{t3}")
        a(f"v_mul_u32_u24 v{t4}, 1280, v{t1}")
        a(f"v_add_u32 v{vW4+i}, v{t4}, v{t3}")
        a(f"v_bfe_u32 v{t4}, v{t1}, 2, 1")
        a(f"v_mul_u32_u24 v{t4}, 40, v{t4}")
        a(f"v_lshrrev_b32 v{t6}, 3, v{t1}")
        a(f"v_mul_u32_u24 v{t6}, 20, v{t6}")
        a(f"v_and_b32 v{t1}, 3, v{t1}")
        a(f"v_add3_u32 v{t4}, v{t4}, v{t6}, v{t1}")
        a(f"v_add_u32 v{t4}, 16, v{t4}")
        a(f"v_mul_u32_u24 v{t4}, 1280, v{t4}")
        a(f"v_add_u32 v{vW4R+i}, v{t4}, v{t3}")
    return A.lines, B.lines

def phase3(a, cfg, late):
    stamp = cfg["stamp"]
    S, O, Q1, QZ, K1, K2, V, vIDX, vG = aS, aO, aQ1, aQZ, aK1, aK2, aV, aIDX, aG
    Q2T = aK1 + 2
    for g in kv_dma(1):
        for l in g: a(l)
    stamp(a, "at_kv1")
    a("s_waitcnt vmcnt(7)")
    stamp(a, "at_q")
    a("s_mov_b32 exec_hi, 0")
    for qt in range(2):
        for c in range(2): a(f"v_mov_b32 v{QZ+2+8*qt+c}, v{Q2T+2*qt+c}")
    a("s_mov_b64 exec, -1")
    a("s_mov_b32 exec_lo, 0")
    for qt in range(2):
        for c in range(2): a(f"v_mov_b32 v{QZ+6+8*qt+c}, v{Q2T+2*qt+c}")
    a("s_mov_b64 exec, -1")
    def qz(qt, tt):
        return QZ + 8*qt + 4*(tt >> 1) + (2 if (tt & 1) == 0 else 0)
    bump = {"k": 0}
    def koff(g, off): return g*10240 + off - bump["k"]
    def rd_k1(T):
        g, tt = divmod(T, 4)
        return f"ds_read_b128 {vr(K1+4*(T%2),4)}, v{vKA} offset:{koff(g, tt*1024)}"
    def rd_k2(g):
        return f"ds_read_b128 {vr(K2+4*(g%2),4)}, v{vKA} offset:{koff(g, 4096)}"
    def rd_v(T, s):
        g, tt = divmod(T, 4)
        return f"ds_read_b128 {vr(V+8*(T%2)+4*s,4)}, v{vVA} offset:{koff(g, tt*1280+640*s)}"
    def qk(u):
        T, qt = divmod(u, 2); g, tt = divmod(T, 4); s = S + 16*(u % 4)
        return [f"v_mfma_f32_32x32x16_bf16 {vr(s,16)}, {vr(K1+4*(T%2),4)}, {vr(Q1+4*qt,4)}, 0",
                f"v_mfma_f32_32x32x16_bf16 {vr(s,16)}, {vr(K2+4*(g%2),4)}, {vr(qz(qt,tt),4)}, {vr(s,16)}"]
    def pv(u):
        T, qt = divmod(u, 2); s = S + 16*(u % 4)
        return [f"v_smfmac_f32_32x32x32_bf16 {vr(O+16*qt,16)}, {vr(V+8*(T%2)+4*h,4)}, {vr(s+8*h,8)}, v{vIDX}" for h in range(2)]
    a("s_waitcnt vmcnt(4)")
    stamp(a, "at_k0")
    a("s_barrier")
    stamp(a, "at_first")
    a(rd_k1(0)); a(rd_k2(0))
    a("s_waitcnt lgkmcnt(0)")
    for l in qk(0): a(l)
    a("s_nop 7"); a("s_nop 1")
    vm = VM(); cfg["vm"] = vm
    extra = {u: [] for u in range(64)}
    for i, g in enumerate(g for k in range(2, 8) for g in kv_dma(k)): extra[i//2].append(g)
    for i in range(4):
        extra[10+2*i].append([f"buffer_store_dwordx4 {vr(HPK+4*i,4)}, v{vD if i < 2 else HPK+16}, s[{SWS}:{SWS+3}], s{sHE} offen offset:{1024*i} {ST}"])
    sync = {6: ["s_waitcnt vmcnt(9)", "s_barrier"],
            22: ["s_waitcnt vmcnt(0)", "s_barrier"],
            34: ["s_waitcnt vmcnt(0)"] + flag_test(HP, 2) + ["s_cbranch_vccnz L_w2", "L_w2_ret:"],
            56: ["s_waitcnt vmcnt(0)", "s_barrier"]}
    late.append(lambda a: spin(a, "L_w2", vP2, 2, HP, 31))
    extra[22].append(flag_store(sF2, HP+4))
    u = 23
    for t in range(2):
        for g in w4_dma(t): extra[u].append(g); u += 1
    extra[31].append([f"buffer_load_dwordx2 {vr(HP,2)}, v{vP2}, s[{SWS}:{SWS+3}], 0 offen {LDF}"])
    extra[34].append([f"v_bfe_u32 v{aG4}, v{vD}, 4, 4", f"v_lshlrev_b32 v{aG4}, 2, v{aG4}",
                     f"buffer_load_dword v{aG4}, v{aG4}, s[{SWS}:{SWS+3}], s{sG4} offen {LDF}"])
    u = 34
    for t in range(10):
        for g in act_ld(t): extra[u].append(g); u += 1
    assert u <= 54
    seq = [g for t in (2, 3, 4) for g in w4_dma(t)]
    for i, g in enumerate(seq): extra[56 + (i*2)//3].append(g)
    for t in (2, 3, 4): vm.add(f"w{t}", 3)
    for u in range(64):
        T, qt = divmod(u, 2); g, tt = divmod(T, 4)
        pre = []
        stamp(a, f"u{u}")
        if qt == 0:
            pre += sync.get(u, [])
            if T == 16:
                pre += [f"v_add_u32 v{vKA}, {4*10240}, v{vKA}", f"v_add_u32 v{vVA}, {4*10240}, v{vVA}"]
                bump["k"] = 4*10240
            if T < 31: pre.append(rd_k1(T+1))
            if tt == 3 and g < 7: pre.append(rd_k2(g+1))
            pre += ["s_mov_b64 exec, s[38:39]", rd_v(T, 0), rd_v(T, 1), "s_mov_b64 exec, -1"]
        else:
            pre.append("s_waitcnt lgkmcnt(0)")
        m = (qk(u+1) if u < 63 else [None, None]) + (pv(u-1) if u > 0 else [None, None])
        s = S + 16*(u % 4)
        if qt == 1:
            for l in pre: a(l)
            pre = []
        ex = list(extra[u])
        for j in range(4):
            if m[j]: a(m[j])
            if j == 0:
                for l in pre: a(l)
            if j >= 2 and ex:
                for l in ex.pop(0): a(l)
            for i in range(4*j, 4*j+4): a(f"v_exp_f32 v{s+i}, v{s+i}")
        assert not ex
    a("s_nop 1")
    for l in pv(63): a(l)
    stamp(a, "at_loopend")
    t0, t1, t2, t3 = K1, K1+1, K1+2, K1+3
    vOA = K1 + 6
    a("s_mul_i32 s32, s28, 3072")
    a(f"s_add_u32 s32, s32, {5*10240 - 4*10240}")
    a(f"v_add_u32 v{t0}, s32, v{vKA}")
    a("s_mul_i32 s33, s27, 163840")
    a("s_sub_u32 s33, 81920, s33")
    a("s_cmp_eq_u32 s27, 0")
    a(f"v_add_u32 v{t1}, s33, v{t0}")
    a("s_cbranch_scc0 L_at_z1")
    a("s_nop 5")
    for c in range(3): a(f"ds_write_b128 v{t0}, {vr(O+16+4*c,4)} offset:{1024*c}")
    a.label("L_at_zj")
    def z1(a):
        a.label("L_at_z1")
        for c in range(3): a(f"ds_write_b128 v{t0}, {vr(O+4*c,4)} offset:{1024*c}")
        a("s_nop 3")
        for c in range(12): a(f"v_mov_b32 v{O+c}, v{O+16+c}")
        a("s_branch L_at_zj")
    late.insert(0, z1)
    a("s_waitcnt lgkmcnt(0)")
    a("s_barrier")
    for c in range(3): a(f"ds_read_b128 {vr(S+4*c,4)}, v{t1} offset:{1024*c}")
    for g in w4_dma(5):
        for l in g: a(l)
    vm.add("w5", 3)
    a("s_mul_i32 s31, s29, 40960")
    a(f"s_add_u32 s31, s31, {WS_O}")
    a("s_lshl_b32 s32, s27, 8")
    a("s_add_u32 s31, s31, s32")
    a("s_lshl_b32 s32, s25, 10")
    a(f"v_bfe_u32 v{t3}, v{vD}, 8, 1")
    a("s_add_u32 s32, s32, s31")
    a(f"v_mul_u32_u24 v{t3}, {40960-256}, v{t3}")
    a(f"v_add_u32 v{vOA}, v{t3}, v{vD}")
    a("s_lshr_b32 s33, s25, 2")
    a("s_lshl_b32 s33, s33, 10")
    a("s_add_u32 s33, s33, s31")
    a("s_bfe_u32 s34, s25, 0x10001")
    a("s_lshl_b32 s34, s34, 9")
    a("s_add_u32 s33, s33, s34")
    a("s_and_b32 s34, s25, 1")
    a("s_lshl_b32 s34, s34, 3")
    a("s_add_u32 s33, s33, s34")
    a("s_add_u32 s33, s33, 32768")
    a("s_waitcnt lgkmcnt(0)")
    for c in range(12): a(f"v_add_f32 v{O+c}, v{O+c}, v{S+c}")
    a(f"v_mov_b32 v{t2}, v{O+8}")
    a(f"v_mov_b32 v{t3}, v{O+8}")
    a(f"v_add_f32 v{t0}, abs(v{O}), abs(v{O+1})")
    a(f"v_add_f32 v{t0}, v{t0}, abs(v{O+2})")
    a(f"v_permlane32_swap_b32 v{t3}, v{t2}")
    for c in range(3, 12): a(f"v_add_f32 v{t0}, v{t0}, abs(v{O+c})")
    a(f"v_rcp_f32 v{t1}, v{t2}")
    a(f"v_cmp_nle_f32 vcc, 0x{f32bits(2.0**-40):x}, v{t2}")
    a(f"s_mov_b64 s[40:41], vcc")
    a(f"v_cmp_nge_f32 vcc, 0x{f32bits(2.0**100):x}, v{t2}")
    a(f"s_or_b64 s[40:41], s[40:41], vcc")
    a(f"v_cmp_nge_f32 vcc, 0x{f32bits(2.0**126):x}, v{t0}")
    a(f"s_or_b64 s[40:41], s[40:41], vcc")
    if cfg.get("force_fallback"): a("s_mov_b64 s[40:41], -1")
    a("s_cmp_lg_u64 s[40:41], 0")
    a("s_cbranch_scc1 L_at_slow")
    a.label("L_at_store")
    a(f"v_mul_f32 v{t1}, v{t1}, v{vG}")
    for c in range(12): a(f"v_mul_f32 v{O+c}, v{O+c}, v{t1}")
    for c in range(6): a(f"v_cvt_pk_bf16_f32 v{S+c}, v{O+2*c}, v{O+2*c+1}")
    a(f"buffer_store_dwordx4 {vr(S,4)}, v{vOA}, s[{SWS}:{SWS+3}], s32 offen {ST}")
    a("s_mov_b32 exec_hi, 0")
    a(f"buffer_store_dwordx2 {vr(S+4,2)}, v{vOA}, s[{SWS}:{SWS+3}], s33 offen {ST}")
    a("s_mov_b64 exec, -1")
    vm.add("ost", 2)
    stamp(a, "o_stored")

    def slow(a):
        a.label("L_at_slow")
        NM = 16
        KA = K2 + 4; vV2 = K1 + 4; mx = K1 + 5
        a("s_cmp_eq_u32 s27, 0")
        a("s_cbranch_scc1 L_slow_z0")
        for i in range(10): a(f"v_mov_b32 v{QZ+i}, v{QZ+8+i}")
        for c in range(4): a(f"v_mov_b32 v{Q1+c}, v{Q1+4+c}")
        a.label("L_slow_z0")
        a("s_mul_i32 s34, s27, 81920")
        a(f"s_add_u32 s34, s34, {4*10240 + 5120}")
        a(f"v_subrev_u32 v{vV2}, s34, v{vVA}")
        a(f"v_mov_b32 v{mx}, 0xff7fffff")
        for i in range(16): a(f"v_mov_b32 v{NM+i}, 0")
        for i in range(16): a(f"v_mov_b32 v{O+i}, 0")
        for ps in range(2):
            a("s_mul_i32 s34, s25, 163840")
            a(f"s_add_u32 s34, s34, {WS_KV}")
            a("s_mov_b32 s35, 16")
            a.label(f"L_slow_loop{ps}")
            a(f"s_add_u32 s36, s34, 4096")
            a(f"buffer_load_dwordx4 {vr(K2,4)}, v{vD}, s[{SWS}:{SWS+3}], s36 offen {LDF}")
            for tt in range(4):
                a(f"buffer_load_dwordx4 {vr(KA,4)}, v{vD}, s[{SWS}:{SWS+3}], s34 offen offset:{1024*tt} {LDF}")
                if ps == 1:
                    a(f"s_add_u32 s36, s34, {5120+1280*tt}")
                    a("s_mov_b64 exec, s[38:39]")
                    a(f"buffer_load_dwordx4 {vr(V,4)}, v{vV2}, s[{SWS}:{SWS+3}], s36 offen {LDF}")
                    a(f"buffer_load_dwordx4 {vr(V+4,4)}, v{vV2}, s[{SWS}:{SWS+3}], s36 offen offset:640 {LDF}")
                    a("s_mov_b64 exec, -1")
                a("s_waitcnt vmcnt(0)")
                a(f"v_mfma_f32_32x32x16_bf16 {vr(S,16)}, {vr(KA,4)}, {vr(Q1,4)}, {vr(NM,16)}")
                a(f"v_mfma_f32_32x32x16_bf16 {vr(S,16)}, {vr(K2,4)}, {vr(qz(0,tt),4)}, {vr(S,16)}")
                a("s_nop 11")
                if ps == 0:
                    for i in range(0, 16, 2): a(f"v_max3_f32 v{mx}, v{mx}, v{S+i}, v{S+i+1}")
                else:
                    for i in range(16): a(f"v_exp_f32 v{S+i}, v{S+i}")
                    a("s_nop 1")
                    for h in range(2):
                        a(f"v_smfmac_f32_32x32x32_bf16 {vr(O,16)}, {vr(V+4*h,4)}, {vr(S+8*h,8)}, v{vIDX}")
                    a("s_nop 3")
            a("s_add_u32 s34, s34, 10240")
            a("s_sub_u32 s35, s35, 1")
            a("s_cmp_lg_u32 s35, 0")
            a(f"s_cbranch_scc1 L_slow_loop{ps}")
            if ps == 0:
                a(f"v_mov_b32 v{t3}, v{mx}")
                a(f"v_mov_b32 v{t1}, v{mx}")
                a("s_nop 1")
                a(f"v_permlane32_swap_b32 v{t3}, v{t1}")
                a("s_nop 1")
                a(f"v_max_f32 v{mx}, v{t3}, v{t1}")
                for i in range(16): a(f"v_sub_f32 v{NM+i}, 0, v{mx}")
        a("s_nop 11")
        a(f"v_mov_b32 v{t2}, v{O+8}")
        a(f"v_mov_b32 v{t3}, v{O+8}")
        a("s_nop 1")
        a(f"v_permlane32_swap_b32 v{t3}, v{t2}")
        a("s_nop 1")
        a(f"v_rcp_f32 v{t1}, v{t2}")
        a("s_nop 0")
        a("s_branch L_at_store")
    late.append(slow)

def phase45(a, cfg, late):
    stamp = cfg["stamp"]; vm = cfg["vm"]
    ACC = 96; WB = 116; tmp = 72
    NS = 17
    SIG3 = int(cfg.get("sig3", 4)); POLL = int(cfg.get("poll3", 7)); CHK = int(cfg.get("chk3", 9))
    def reads(step):
        t, j = divmod(step, 2); slot = SLOTP[t % 8]; p = step % 2
        return [f"ds_read_b64_tr_b16 {vr(WB+20*p+4*b+2*u,2)}, v{vR4+slot//4} offset:{(slot%4)*10240 + j*5120 + u*1280 + b*32}"
                for b in range(5) for u in range(2)]
    for l in reads(0): a(l)
    pend = []
    nsteps = 2*NS
    def flush(k=99):
        for _ in range(k):
            if pend:
                g, tg = pend.pop(0)
                for l in g: a(l)
                vm.add(tg)
    for step in range(nsteps):
        t, j = divmod(step, 2); p = step % 2
        rd = reads(step+1) if step < nsteps-1 else []
        if j == 0 and t >= 10:
            flush()
            a(f"s_waitcnt vmcnt({vm.after(f'a{t}')})")
        if step == 24:
            a(f"v_sub_f32 v{tmp}, 1.0, v{aG4}")
            a(f"v_cvt_pk_bf16_f32 v{tmp}, v{tmp}, v{tmp}")
            a(f"v_and_b32 v{tmp}, 0xffff0000, v{tmp}")
            a("s_nop 3")
            for i in range(20): a(f"v_mul_f32 v{ACC+i}, v{ACC+i}, v{tmp}")
        for b in range(5):
            a(f"s_waitcnt lgkmcnt({8 if rd else 8-2*b})")
            a(f"v_mfma_f32_16x16x32_bf16 {vr(ACC+4*b,4)}, {vr(WB+20*p+4*b,4)}, {vr(act_reg(t)+4*j,4)}, " + ("0" if step == 0 else vr(ACC+4*b,4)))
            if b == 0 and j == 1 and t < NS-1:
                flush()
                stamp(a, f"p4_p{t}")
                need = []
                if t+1 >= 2: need.append(f"w{t+1}")
                if t == SIG3: need.append("ost")
                if need: a(f"s_waitcnt vmcnt({vm.after(*need)})")
                if t == CHK:
                    a("s_cmp_eq_u32 s24, 0")
                    a("s_cbranch_scc0 L_w3_ret")
                    a(f"s_waitcnt vmcnt({vm.after('poll')})")
                    for l in flag_test(tmp+4, 2): a(l)
                    a("s_cbranch_vccnz L_w3")
                    a.label("L_w3_ret")
                    late.append(lambda a: spin(a, "L_w3", vP3, 2, tmp+4, 31))
                a("s_barrier")
                if t == CHK: stamp(a, "w3_done")
                stamp(a, f"p4_b{t}")
                if t == SIG3: pend.append((flag_store(sF3, tmp), "flag"))
                if t == POLL:
                    pend.append(([f"buffer_load_dwordx2 {vr(tmp+4,2)}, v{vP3}, s[{SWS}:{SWS+3}], 0 offen {LDF}"], "poll"))
                if t == CHK:
                    for tt in range(12, 17): pend.extend((g, f"a{tt}") for g in act_ld(tt))
                for tt in {0: [6], 1: [7, 8]}.get(t, [t+7]):
                    if tt < NS: pend.extend((g, f"w{tt}") for g in w4_dma(tt))
                if t in (2, 3): pend.extend((g, f"a{t+8}") for g in act_ld(t+8))
            for l in rd[2*b:2*b+2]: a(l)
            flush(1)
        if step == 23: stamp(a, "p4_end")
    assert not pend
    stamp(a, "p5_end")
    t0 = tmp
    a("s_barrier")
    a("s_mul_i32 s31, s28, 5120")
    a(f"v_add_u32 v{t0}, s31, v{vD}")
    a("s_cmp_eq_u32 s27, 0")
    a("s_cbranch_scc1 L_p5_k0")
    a("s_nop 3")
    for b in range(5): a(f"ds_write_b128 v{t0}, {vr(ACC+4*b,4)} offset:{1024*b}")
    a("s_waitcnt lgkmcnt(0)")
    a("s_barrier")
    a("s_branch L_p5_end")
    a.label("L_p5_k0")
    a("s_barrier")
    for b in range(5): a(f"ds_read_b128 {vr(WB+4*b,4)}, v{t0} offset:{1024*b}")
    for b in range(5):
        a(f"s_waitcnt lgkmcnt({4-b})")
        for i in range(4): a(f"v_add_f32 v{ACC+4*b+i}, v{ACC+4*b+i}, v{WB+4*b+i}")
        a(f"v_cvt_pk_bf16_f32 v{ACC+4*b}, v{ACC+4*b}, v{ACC+4*b+1}")
        a(f"v_cvt_pk_bf16_f32 v{ACC+4*b+1}, v{ACC+4*b+2}, v{ACC+4*b+3}")
        a(f"buffer_store_dwordx2 {vr(ACC+4*b,2)}, v{vOUT}, s[{SOUT}:{SOUT+3}], s{sOUTB} offen offset:{32*b}")
    a.label("L_p5_end")

HEADER = open("cdna_kernels/" + NAME + ".s.ref").read().split("; Override launch")[0]

def kd(name, vgpr, sgpr=100):
    return f""".section .rodata,"a"
.p2align 6
.amdhsa_kernel {name}
  .amdhsa_next_free_vgpr {vgpr}
  .amdhsa_next_free_sgpr {sgpr}
  .amdhsa_accum_offset {(vgpr+3)//4*4}
  .amdhsa_group_segment_fixed_size 0
  .amdhsa_kernarg_size 80
  .amdhsa_user_sgpr_count 2
  .amdhsa_user_sgpr_kernarg_segment_ptr 1
  .amdhsa_system_sgpr_workgroup_id_x 1
.end_amdhsa_kernel
"""

def gen(opts):
    a = Asm()
    k = NAME + "_kernel"
    a(".text"); a(f".globl {k}"); a(".p2align 8"); a(f".type {k},@function"); a.label(k)
    a("s_cmp_ge_u32 s2, 256"); a("s_cbranch_scc1 L_end")
    a(f"s_load_dwordx2 s[{SX}:{SX+1}], s[0:1], 0")
    a(f"s_load_dwordx2 s[{SW}:{SW+1}], s[0:1], 8")
    a(f"s_load_dwordx2 s[{SW1}:{SW1+1}], s[0:1], 32")
    a(f"s_load_dwordx2 s[{SG}:{SG+1}], s[0:1], 48")
    a(f"s_load_dwordx2 s[{SWS}:{SWS+1}], s[0:1], 72")
    a(f"s_load_dwordx2 s[{SDBG}:{SDBG+1}], s[0:1], 64")
    a(f"s_load_dwordx2 s[46:47], s[0:1], 40")
    a(f"s_load_dwordx2 s[48:49], s[0:1], 16")
    a(f"s_load_dwordx2 s[50:51], s[0:1], 56")
    st = Stamps(opts.get("stamps")); st(a, "start")
    if opts.get("kvplain"): KVF[0] = ""
    cfg = dict(opts, stamp=st); late = []
    phase12(a, cfg, late)
    phase3(a, cfg, late)
    phase45(a, cfg, late)
    if st.on: a("s_waitcnt vmcnt(0)")
    st(a, "end"); st.flush(a)
    a.label("L_end"); a("s_endpgm")
    while late: late.pop(0)(a)
    errs = check_linear(a.lines)
    head = HEADER + ("; @launch grid=(256,1,1) block=(512,1,1) lds=163840\n"
                     '.amdgcn_target "amdgcn-amd-amdhsa--gfx950"\n')
    return head + a.text() + kd(k, 256), errs

if __name__ == "__main__":
    out = sys.argv[1] if len(sys.argv) > 1 else "cdna_kernels/" + NAME + ".s"
    opts = {}
    for o in sys.argv[2:]:
        k, _, v = o.partition("=")
        opts[k] = v or True
    txt, errs = gen(opts)
    open(out, "w").write(txt)
    print("written", out, "hazards:", errs, "bytes:", len(txt))
```

```python
import sys, math, struct
from dsl import *

NAME = "gated_mix__mha_block__dense_activation_relu__prompt"
WS_Q  = 0x0
WS_KV = 0x280000
WS_H  = 0x780000
WS_O  = 0xD80000
WS_G  = 0x1000000
FL1   = 0x1002000
FL2   = 0x1003000
FL3   = 0x1004000
WS_END = 0x1005000
OOB = 0x80000000
SPIN = 1 << 15
def f32bits(x): return struct.unpack("<I", struct.pack("<f", x))[0]
QSCALE = f32bits(math.log2(math.e) / math.sqrt(20.0))
ST = "sc1"; LDF = "sc1"

SX, SW, SW1, SWS, SG, SDBG = 4, 8, 12, 16, 20, 52
SW2, SWO, SOUT = SX, SW, SG
sF1, sHE, sNON = 42, 43, 44
sKW, sKH, sHB, sOB, sW2B, sWOB, sWOR, sOUTB, sG4, sM4, sF2, sF3 = range(56, 68)
vW4, vA4, vW4R, vR4, vOUT, vP2, vP3, vKA, vVA, vP1, vD = 240, 243, 244, 247, 249, 250, 251, 252, 253, 254, 255

def srd_tail(a, base, nbytes):
    a(f"s_mov_b32 s{base+2}, {nbytes}")
    a(f"s_mov_b32 s{base+3}, 0x00020000")

STAMP_BASE = 0x1100000
class Stamps:
    DEF = "start,p1_first,p1_end,p2_end,b1,at_first,at_loopend,o_stored,p4_b1,p4_b4,p4_b8,w3_done,p4_end,p5_end,end"
    def __init__(self, on):
        self.on = on; self.names = []
        self.sel = set((self.DEF if on is True else "start," + str(on)).split(","))
    def __call__(self, a, name):
        if not self.on or name not in self.sel: return
        if name in self.names: i = self.names.index(name)
        else:
            i = len(self.names); self.names.append(name)
        assert i < 16
        a(f"{'s_memtime' if self.cyc else 's_memrealtime'} s[{68+2*i}:{69+2*i}]")
    def flush(self, a):
        if not self.on: return
        a("s_waitcnt lgkmcnt(0)")
        if self.dbg is not None:
            n = len(self.names); assert n <= 13
            a("s_mov_b64 exec, 1")
            a(f"s_sub_u32 s31, s68, s{sNON}"); a("s_add_u32 s31, s31, 1000"); a("v_mov_b32 v0, s31")
            a(f"buffer_atomic_umax v0, off, s[{SDBG}:{SDBG+3}], 0 offset:56 sc1")
            a(f"s_sub_u32 s31, s{68+2*(n-1)}, s{sNON}"); a("v_mov_b32 v1, s31")
            a(f"buffer_atomic_umax v1, off, s[{SDBG}:{SDBG+3}], 0 offset:60 sc1")
            a(f"s_cmp_eq_u32 s2, {self.dbg}"); a("s_cbranch_scc0 L_end")
            a("s_cmp_eq_u32 s24, 0"); a("s_cbranch_scc0 L_end")
            for i in range(1, n):
                a(f"s_sub_u32 s31, s{68+2*i}, s{sNON}"); a(f"v_mov_b32 v{2+i}, s31")
                a(f"buffer_store_dword v{2+i}, off, s[{SDBG}:{SDBG+3}], 0 offset:{4+4*i} sc1")
            a("; stamps " + ",".join(self.names))
            return
        a("s_lshl_b32 s31, s2, 3")
        a("s_add_u32 s31, s31, s24")
        a("s_lshl_b32 s31, s31, 6")
        a(f"s_add_u32 s31, s31, {STAMP_BASE}")
        a(f"s_mov_b32 s{SWS+2}, 0x2000000")
        a("v_mov_b32 v2, 0")
        for i in range(len(self.names)):
            a(f"v_mov_b32 v0, s{68+2*i}")
            a(f"buffer_store_dword v0, v2, s[{SWS}:{SWS+3}], s31 offen offset:{4*i}")
            a("s_nop 1")
        a("; stamps " + ",".join(self.names))

class VM:
    def __init__(self): self.q = []
    def add(self, tag, n=1): self.q += [tag]*n
    def after(self, *tags):
        last = max(i for i, t in enumerate(self.q) if t in tags)
        assert all(t in self.q for t in tags), tags
        n = len(self.q) - 1 - last
        assert n <= 63
        return n

def flag_store(sreg, tmp):
    return [f"v_mov_b32 v{tmp}, s{sNON}", f"v_mov_b32 v{tmp+1}, s{sNON+1}", f"v_mov_b32 v{tmp+2}, s{sreg}",
            "s_mov_b64 exec, 1",
            f"buffer_store_dwordx2 v[{tmp}:{tmp+1}], v{tmp+2}, s[{SWS}:{SWS+3}], 0 offen {ST}",
            "s_mov_b64 exec, -1"]

KVF = ["sc1"]
def kv_dma(i):
    LDF = KVF[0]
    return [["s_mul_i32 s37, s36, 10240", f"s_add_u32 m0, s35, {i*10240}", "s_add_u32 s37, s37, s34",
             f"buffer_load_dwordx4 v{vD}, s[{SWS}:{SWS+3}], s37 offen {LDF} lds"],
            [f"buffer_load_dwordx4 v{vD}, s[{SWS}:{SWS+3}], s37 offen offset:1024 {LDF} lds"],
            ["s_mov_b32 exec_hi, 0",
             f"buffer_load_dwordx4 v{vD}, s[{SWS}:{SWS+3}], s37 offen offset:2048 {LDF} lds",
             "s_mov_b32 exec_hi, -1", "s_add_u32 s36, s36, 1", "s_and_b32 s36, s36, 7"]]

aS, aO, aQ1, aQZ, aK1, aK2, aV = 0, 64, 96, 104, 122, 130, 138
aIDX, aG, aG4, HP = 154, 158, 159, 160
HPK = 192

SLOTP = [0, 1, 2, 3, 4, 7, 5, 6]
def w4_dma(t):
    slot = SLOTP[t % 8]
    post = []
    if t < 12:
        pre = [f"s_mul_i32 s40, s{sKW}, 163840", f"s_add_u32 m0, s{sM4}, {slot*10240}", f"s_add_u32 s40, s40, s{sW2B}"]
        post = [f"s_add_u32 s{sKW}, s{sKW}, 1", f"s_cmp_eq_u32 s{sKW}, 12", f"s_cselect_b32 s{sKW}, 0, s{sKW}"]
        srd, src = SW2, vW4
    elif t < 16:
        pre = [f"s_add_u32 m0, s{sM4}, {slot*10240}", f"s_add_u32 s40, s{sWOB}, {(t-12)*8*25600}"]
        srd, src = SWO, vW4
    else:
        pre = [f"s_add_u32 m0, s{sM4}, {slot*10240}", f"s_mov_b32 s40, s{sWOR}"]
        srd, src = SWO, vW4R
    return [pre + [f"buffer_load_dwordx4 v{src}, s[{srd}:{srd+3}], s40 offen lds"],
            [f"buffer_load_dwordx4 v{src+1}, s[{srd}:{srd+3}], s40 offen offset:1024 lds"],
            ["s_mov_b32 exec_hi, 0", f"buffer_load_dwordx4 v{src+2}, s[{srd}:{srd+3}], s40 offen offset:2048 lds", "s_mov_b32 exec_hi, -1"] + post]
def act_reg(t):
    return HP + 8*t if t < 10 else (16 + 8*(t-10))
def act_ld(t):
    r = act_reg(t)
    if t < 12:
        pre = [f"s_lshl_b32 s41, s{sKH}, 13", f"s_add_u32 s41, s41, s{sHB}"]
        post = [f"s_add_u32 s{sKH}, s{sKH}, 1", f"s_cmp_eq_u32 s{sKH}, 12", f"s_cselect_b32 s{sKH}, 0, s{sKH}"]
    else:
        pre = [f"s_add_u32 s41, s{sOB}, {(t-12)*8192}"]; post = []
    return [pre + [f"buffer_load_dwordx4 {vr(r,4)}, v{vA4}, s[{SWS}:{SWS+3}], s41 offen {LDF}"],
            [f"buffer_load_dwordx4 {vr(r+4,4)}, v{vA4}, s[{SWS}:{SWS+3}], s41 offen offset:2048 {LDF}"] + post]

def spin(a, name, addr, width, tmp, sc):
    a.label(name)
    a(f"s_mov_b32 s{sc}, {SPIN}")
    a.label(name + "_l")
    a(f"buffer_load_dwordx{width} {vr(tmp,width)}, v{addr}, s[{SWS}:{SWS+3}], 0 offen {LDF}")
    a(f"s_sub_u32 s{sc}, s{sc}, 1")
    a(f"s_cmp_eq_u32 s{sc}, 0")
    a(f"s_cbranch_scc1 {name}_ret")
    a("s_waitcnt vmcnt(0)")
    for l in flag_test(tmp, width): a(l)
    a(f"s_cbranch_vccnz {name}_l")
    a(f"s_branch {name}_ret")
def flag_test(tmp, width):
    r = [f"v_cmp_ne_u64 vcc, s[{sNON}:{sNON+1}], {vr(tmp,2)}"]
    if width == 4:
        r += [f"v_cmp_ne_u64 s[40:41], s[{sNON}:{sNON+1}], {vr(tmp+2,2)}", "s_nop 0", "s_or_b64 vcc, vcc, s[40:41]"]
    else:
        r += ["s_nop 0"]
    return r

def phase12(a, cfg, late):
    stamp = cfg["stamp"]
    sK, sM0, sT0, sT1, sT2 = 27, 30, 31, 32, 33
    X = 0; ACC = 160; WB = 192
    vXR = 208; vWR = 212; vWR2 = 214; vXS = 216; vWS = 218; vW1S = 219; vEP = 220
    vT = 228; vL = 236; vGR = 237; vNON = 238
    WBS = [192, 200, 228]
    PK = [224, 240, 244, 248]
    t0, t1, t2, t3, t4, t5, t6 = range(vT, vT+7)
    a(f"v_and_b32 v{vL}, 63, v0")
    a(f"v_lshrrev_b32 v{t0}, 6, v0")
    a("s_and_b32 s31, s2, 7")
    a(f"v_readfirstlane_b32 s24, v{t0}")
    a("s_lshr_b32 s32, s2, 3")
    a("s_and_b32 s33, s32, 7")
    a("s_lshr_b32 s32, s32, 3")
    a("s_and_b32 s25, s31, 1")
    a("s_lshl_b32 s25, s25, 3")
    a("s_add_u32 s25, s25, s33")
    a("s_lshr_b32 s26, s31, 1")
    a("s_lshl_b32 s26, s26, 2")
    a("s_add_u32 s26, s26, s32")
    if cfg.get("norot"): a("s_mov_b32 s27, 0")
    elif cfg.get("rot2"):
        a("s_add_u32 s27, s33, s32")
        a("s_and_b32 s27, s27, 1")
        a("s_mul_i32 s27, s27, 5")
    elif cfg.get("rot4"):
        a("s_add_u32 s27, s33, s32")
        a("s_and_b32 s27, s27, 3")
        a("s_mul_i32 s27, s27, 5")
        a("s_lshr_b32 s27, s27, 1")
    else:
        a("s_mul_i32 s33, s33, 5")
        a("s_mul_i32 s32, s32, 10")
        a("s_add_u32 s27, s33, s32")
        a("s_lshr_b32 s27, s27, 2")
        a("s_cmp_ge_u32 s27, 10")
        a("s_cselect_b32 s31, 10, 0")
        a("s_sub_u32 s27, s27, s31")
    a("s_lshl_b32 s31, s26, 2")
    a("s_mul_i32 s28, s26, 3")
    a("s_add_u32 s28, s28, 12")
    a("s_min_u32 s28, s28, s31")
    a("s_lshl_b32 s30, s24, 11")
    a(f"s_lshl_b32 s31, s25, 7")
    a(f"s_lshl_b32 s32, s24, 4")
    a(f"s_add_u32 s31, s31, s32")
    a(f"v_lshrrev_b32 v{t0}, 3, v{vL}")
    a(f"v_lshrrev_b32 v{t1}, 4, v{vL}")
    a(f"v_and_b32 v{t2}, 7, v{vL}")
    a(f"v_xor_b32 v{t2}, v{t2}, v{t1}")
    a(f"v_add_u32 v{t0}, s31, v{t0}")
    a(f"v_mul_u32_u24 v{t0}, 1280, v{t0}")
    a(f"v_lshl_add_u32 v{vXS}, v{t2}, 4, v{t0}")
    a(f"v_xor_b32 v{vXS+1}, 64, v{vXS}")
    a(f"v_add_u32 v{vXS+1}, {8*1280}, v{vXS+1}")
    a(f"v_bfe_u32 v{t4}, v{vL}, 2, 2")
    a(f"v_xor_b32 v{t4}, v{t4}, v{t1}")
    a(f"v_and_b32 v{t2}, 3, v{vL}")
    a(f"v_lshlrev_b32 v{t2}, 4, v{t2}")
    a(f"v_lshl_add_u32 v{t2}, v{t4}, 6, v{t2}")
    a(f"s_lshl_b32 s31, s24, 3")
    a(f"v_add_u32 v{t0}, s31, v{t1}")
    a(f"v_mul_u32_u24 v{t3}, 3840, v{t0}")
    a(f"s_lshl_b32 s31, s28, 6")
    a(f"v_add3_u32 v{vWS}, v{t3}, v{t2}, s31")
    a(f"v_cmp_eq_u32 vcc, 3, v{t4}")
    a(f"v_mov_b32 v{t5}, 0x{OOB:x}")
    a(f"s_cmp_ge_u32 s26, 12")
    a(f"s_cselect_b64 s[36:37], vcc, 0")
    a(f"s_lshr_b32 s34, s24, 2")
    a(f"v_cndmask_b32 v{vWS}, v{vWS}, v{t5}, s[36:37]")
    a("s_waitcnt lgkmcnt(0)")
    srd_tail(a, SX, 2048*1280); srd_tail(a, SW, 640*3840)

    def adv_k():
        return [f"s_add_u32 s{sK}, s{sK}, 1", f"s_cmp_eq_u32 s{sK}, 10", f"s_cselect_b32 s{sK}, 0, s{sK}"]
    def dma_groups(t):
        slot = t % 4
        g = []
        if t < 10:
            g.append([f"s_lshl_b32 s{sT0}, s{sK}, 7", f"s_add_u32 m0, s{sM0}, {slot*16384}", f"s_mul_i32 s{sT1}, s{sK}, {64*3840}",
                      f"buffer_load_dwordx4 v{vXS}, s[{SX}:{SX+3}], s{sT0} offen lds"])
            g.append([f"s_add_u32 m0, s{sM0}, {slot*16384+1024}", f"s_add_u32 s{sT2}, s{sT1}, {4*3840}",
                      f"buffer_load_dwordx4 v{vXS+1}, s[{SX}:{SX+3}], s{sT0} offen lds"])
            g.append([f"s_add_u32 m0, s{sM0}, {65536+slot*16384}", adv_k()[0],
                      f"buffer_load_dwordx4 v{vWS}, s[{SW}:{SW+3}], s{sT1} offen lds"])
            g.append([f"s_add_u32 m0, s{sM0}, {65536+slot*16384+1024}"] + adv_k()[1:] + [
                      f"buffer_load_dwordx4 v{vWS}, s[{SW}:{SW+3}], s{sT2} offen lds"])
        elif t < 15:
            for half in range(2):
                base = (65536 if half == 0 else 0) + slot*16384
                g.append([f"s_mul_i32 s{sT1}, s{sK}, {64*3072}", f"s_add_u32 m0, s{sM0}, {base}", f"s_add_u32 s{sT2}, s{sT1}, {4*3072}",
                          f"buffer_load_dwordx4 v{vW1S}, s[{SW1}:{SW1+3}], s{sT1} offen lds"])
                g.append([f"s_add_u32 m0, s{sM0}, {base+1024}"] + adv_k() + [
                          f"buffer_load_dwordx4 v{vW1S}, s[{SW1}:{SW1+3}], s{sT2} offen lds"])
        return g
    a("s_mov_b32 s29, s27")
    stamp(a, "karg")
    for g in dma_groups(0):
        for l in g: a(l)
    a("s_and_b32 s35, s24, 3")
    a("s_cmp_ge_u32 s26, 12")
    a("s_cselect_b32 s38, s34, 0")
    srd_tail(a, SG, 1280)
    a("s_cmp_eq_u32 s38, 1")
    a("s_cbranch_scc1 L_gate")
    a.label("L_gate_ret")
    def gate(a):
        u0, u1, u2 = vEP, vEP+1, vEP+2
        a.label("L_gate")
        a(f"s_lshl_b32 s31, s29, 3")
        for i in range(2):
            a(f"v_add_u32 v{u0}, {64*i}, v{vL}")
            a(f"v_add_u32 v{u1}, s31, v{u0}")
            a(f"v_subrev_u32 v{u2}, 80, v{u1}")
            a(f"v_cmp_le_u32 vcc, 80, v{u1}")
            a(f"s_lshl_b32 s32, s35, 11")
            a(f"s_add_u32 m0, s32, {131072 + 1024*i}")
            a(f"v_cndmask_b32 v{u1}, v{u1}, v{u2}, vcc")
            a(f"v_lshlrev_b32 v{u1}, 4, v{u1}")
            a(f"v_cmp_le_u32 vcc, 80, v{u0}")
            a("s_nop 1")
            a(f"v_cndmask_b32 v{u1}, v{u1}, v{t5}, vcc")
            a(f"buffer_load_dwordx4 v{u1}, s[{SG}:{SG+3}], 0 offen lds")
        a("s_branch L_gate_ret")
    late.append(gate)
    a("s_barrier")
    for g in dma_groups(1):
        for l in g: a(l)
    stamp(a, "dma1")
    srd_tail(a, SW1, 640*3072); srd_tail(a, SWS, WS_END); srd_tail(a, SDBG, 256)
    a("s_or_b32 s31, s2, s24")
    a("s_cmp_eq_u32 s31, 0")
    a("s_cbranch_scc1 L_tag")
    a.label("L_tag_ret")
    def tag(a):
        a.label("L_tag")
        a(f"s_memrealtime s[{sNON}:{sNON+1}]")
        a(f"v_mov_b32 v{vEP+2}, 0")
        a("s_waitcnt lgkmcnt(0)")
        a(f"s_or_b32 s31, s{sNON}, 1")
        a(f"v_mov_b32 v{vEP}, s31")
        a(f"v_mov_b32 v{vEP+1}, s{sNON+1}")
        a("s_mov_b64 exec, 1")
        a(f"buffer_store_dwordx2 v[{vEP}:{vEP+1}], v{vEP+2}, s[{SDBG}:{SDBG+3}], 0 offen {ST}")
        a("s_mov_b64 exec, -1")
        a("s_branch L_tag_ret")
    late.append(tag)
    a(f"v_mul_u32_u24 v{t3}, 3072, v{t0}")
    a(f"s_mul_i32 s31, s26, 192")
    a(f"v_add3_u32 v{vW1S}, v{t3}, v{t2}, s31")
    a(f"v_cmp_eq_u32 vcc, 3, v{t4}")
    a(f"v_and_b32 v{t0}, 31, v{vL}")
    a(f"s_lshl_b32 s31, s35, 5")
    a(f"v_cndmask_b32 v{vW1S}, v{vW1S}, v{t5}, vcc")
    a(f"v_add_u32 v{t0}, s31, v{t0}")
    a(f"v_bfe_u32 v{t1}, v{t0}, 1, 3")
    a(f"v_lshrrev_b32 v{t2}, 5, v{vL}")
    a(f"v_xor_b32 v{t1}, v{t1}, v{t2}")
    a(f"v_lshlrev_b32 v{t1}, 4, v{t1}")
    a(f"v_lshl_add_u32 v{vXR}, v{t0}, 7, v{t1}")
    for ks in range(1, 4):
        a(f"v_xor_b32 v{vXR+ks}, {ks<<5}, v{vXR}")
    a(f"v_bfe_u32 v{t0}, v{vL}, 2, 2")
    a(f"v_lshl_add_u32 v{t1}, v{t2}, 3, v{t0}")
    a(f"v_lshlrev_b32 v{t1}, 8, v{t1}")
    a(f"v_bfe_u32 v{t3}, v{vL}, 4, 1")
    a(f"v_lshl_add_u32 v{t1}, v{t3}, 5, v{t1}")
    a(f"v_and_b32 v{t3}, 3, v{vL}")
    a(f"v_lshl_add_u32 v{t1}, v{t3}, 3, v{t1}")
    for e in range(2):
        a(f"s_lshl_b32 s31, s34, 1")
        a(f"s_add_u32 s31, s31, {e}")
        a(f"v_xor_b32 v{t3}, s31, v{t0}")
        a(f"v_lshl_add_u32 v{vWR2+e}, v{t3}, 6, v{t1}")
        a(f"v_add_u32 v{vWR+e}, 0x10000, v{vWR2+e}")
    a(f"s_lshl_b32 s31, s35, 11")
    a(f"s_add_u32 s31, s31, 131072")
    a(f"v_lshl_add_u32 v{vGR}, v{t2}, 4, s31")
    a("s_cmp_ge_u32 s26, 10")
    a("s_cbranch_scc1 L_p1_v")
    a("s_cmp_ge_u32 s26, 5")
    a(f"s_cselect_b32 s31, 1, 0")
    a(f"s_lshl_b32 s39, 81920, s31")
    a(f"s_lshl_b32 s40, 5120, s31")
    a("s_cmp_ge_u32 s26, 5")
    a(f"s_cselect_b32 s41, {WS_KV}, {WS_Q}")
    a(f"s_cselect_b32 s42, 20, 0")
    a("s_mul_i32 s40, s40, s25")
    a("s_add_u32 s40, s40, s41")
    a("s_sub_u32 s42, s28, s42")
    a("s_lshl_b32 s31, s34, 1")
    a("s_add_u32 s42, s42, s31")
    a("s_lshl_b32 s42, s42, 2")
    a("s_and_b32 s31, s35, 1")
    a("s_lshl_b32 s31, s31, 8")
    a("s_add_u32 s40, s40, s31")
    a("s_lshr_b32 s31, s35, 1")
    a("s_lshl_b32 s41, s31, 11")
    a("s_lshl_b32 s31, s31, 9")
    a("s_add_u32 s33, s31, 4096")
    a(f"v_and_b32 v{t0}, 15, v{vL}")
    a(f"v_lshl_add_u32 v{t0}, v{t0}, 4, s40")
    a(f"v_add_u32 v{t2}, s42, v{t2}")
    a(f"v_bfe_u32 v{t5}, v{vL}, 4, 1")
    a(f"v_lshl_add_u32 v{t6}, v{t5}, 10, s41")
    a(f"v_mov_b32 v{vGR}, s33")
    QM = [36, 40, 42, 0]
    for i in range(4):
        u0 = vT+7
        a(f"v_add_u32 v{t1}, {2*i}, v{t2}")
        a(f"v_mul_u32_u24 v{t3}, 205, v{t1}")
        a(f"v_lshrrev_b32 v{t3}, 10, v{t3}")
        a(f"v_mul_u32_u24 v{t4}, 5, v{t3}")
        a(f"v_sub_u32 v{t1}, v{t1}, v{t4}")
        a(f"v_cmp_le_u32 vcc, 3, v{t1}")
        a(f"v_cmp_eq_u32 s[{QM[i]}:{QM[i]+1}], 2, v{t1}")
        a(f"v_subrev_u32 v{u0}, 3, v{t1}")
        a(f"v_cndmask_b32 v{t4}, 0, 1, vcc")
        a(f"v_cndmask_b32 v{t1}, v{t1}, v{u0}, vcc")
        a(f"v_cndmask_b32 v{t4}, v{t4}, v{t5}, s[{QM[i]}:{QM[i]+1}]")
        a(f"v_lshl_add_u32 v{t3}, v{t3}, 1, v{t4}")
        a(f"v_mul_lo_u32 v{t3}, v{t3}, s39")
        a(f"v_lshl_add_u32 v{t1}, v{t1}, 9, v{t6}")
        a(f"v_cndmask_b32 v{t1}, v{t1}, v{vGR}, s[{QM[i]}:{QM[i]+1}]")
        a(f"v_add3_u32 v{vEP+i}, v{t0}, v{t3}, v{t1}")
    a(f"v_lshrrev_b32 v{t1}, 1, v{vL}")
    a(f"v_xor_b32 v{t1}, v{t1}, v{vL}")
    a(f"v_and_b32 v{t1}, 1, v{t1}")
    a(f"v_mul_u32_u24 v{vGR}, 24, v{t1}")
    for e in range(2): a(f"v_xor_b32 v{vWR+e}, v{vWR+e}, v{vGR}")
    def ep_v():
        a("s_sub_u32 s42, s28, 40")
        a("s_lshl_b32 s31, s34, 1")
        a("s_add_u32 s42, s42, s31")
        a("s_lshl_b32 s42, s42, 5")
        a("s_mul_i32 s40, s25, 10240")
        a("s_lshr_b32 s31, s35, 1")
        a("s_mul_i32 s31, s31, 2560")
        a("s_add_u32 s40, s40, s31")
        a("s_and_b32 s31, s35, 1")
        a("s_mul_i32 s31, s31, 640")
        a("s_add_u32 s40, s40, s31")
        a(f"s_add_u32 s40, s40, {WS_KV + 5120}")
        a(f"s_mov_b32 s39, 163840")
        a(f"v_and_b32 v{t0}, 31, v{vL}")
        a(f"v_mul_u32_u24 v{t2}, 320, v{t2}")
        a(f"v_add_u32 v{t2}, s40, v{t2}")
        for e in range(2):
            a(f"v_add_u32 v{t1}, s42, v{t0}")
            if e: a(f"v_add_u32 v{t1}, 32, v{t1}")
            a(f"v_mul_u32_u24 v{t3}, 3277, v{t1}")
            a(f"v_lshrrev_b32 v{t3}, 16, v{t3}")
            a(f"v_mul_u32_u24 v{t4}, 20, v{t3}")
            a(f"v_sub_u32 v{t1}, v{t1}, v{t4}")
            a(f"v_mul_lo_u32 v{t3}, v{t3}, s39")
            a(f"v_lshl_add_u32 v{t1}, v{t1}, 4, v{t2}")
            a(f"v_add_u32 v{vEP+2*e}, v{t1}, v{t3}")
            a(f"v_add_u32 v{vEP+2*e+1}, 1280, v{vEP+2*e}")

    def p1_reads(variant, step):
        t, ks = divmod(step, 4)
        slot = t % 4; wb = WBS[step % 3]
        r = [f"ds_read_b128 {vr(X+4*step,4)}, v{vXR+ks} offset:{slot*16384}"]
        for e in range(2):
            if variant == "VG" and e == 1:
                r.append(f"ds_read_b128 {vr(wb+4,4)}, v{vGR} offset:{t*128+ks*32}")
            else:
                for u in range(2):
                    r.append(f"ds_read_b64_tr_b16 {vr(wb+4*e+2*u,2)}, v{vWR+e} offset:{slot*16384+ks*4096+u*1024}")
        return r
    def mf(acc, A, B, first):
        return f"v_mfma_f32_32x32x16_bf16 {vr(acc,16)}, {vr(A,4)}, {vr(B,4)}, " + ("0" if first else vr(acc,16))
    class LQ:
        def __init__(self): self.q = []
        def rd(self, lines, tag):
            for l in lines: a(l); self.q.append(tag)
        def wait(self, tag):
            n = len(self.q) - 1 - max(i for i, x in enumerate(self.q) if x == tag)
            a(f"s_waitcnt lgkmcnt({min(n, 15)})")
    uid = [0]
    def site(stage, sg, extra=None):
        uid[0] += 1
        a(f"s_cmp_eq_u32 s34, {sg}")
        a(f"s_cbranch_scc0 L_site{uid[0]}")
        for g in dma_groups(stage):
            for l in g: a(l)
        for l in extra or []: a(l)
        a.label(f"L_site{uid[0]}")
    TAGT = 5
    NOLG = cfg.get("nolg")
    def p1_main(variant):
        for g in dma_groups(2):
            for l in g: a(l)
        stamp(a, "p1_pre")
        a(f"s_waitcnt vmcnt(8)")
        a("s_barrier")
        stamp(a, "p1_first")
        lq = LQ()
        for st in range(2):
            rd = p1_reads(variant, st); lq.rd(rd[:3], (st, 0)); lq.rd(rd[3:], (st, 1))
        if variant != "VG": site(3, 0)
        tagld = [f"buffer_load_dwordx2 v[{vNON}:{vNON+1}], off, s[{SDBG}:{SDBG+3}], 0 {LDF}"]
        for step in range(40):
            t, ks = divmod(step, 4)
            rd = p1_reads(variant, step+2) if step < 38 else []
            for e in range(2):
                w = WBS[step % 3]+4*e; x = X+4*step
                swap = (variant == "VV") or (variant == "VG" and e == 0)
                lq.wait((step, e))
                a(mf(ACC+16*e, x if swap else w, w if swap else x, step == 0))
                if ks == 2 and e == 0:
                    site(t+3, 1, tagld if t == TAGT+1 else None)
                    stamp(a, f"p1_p{t}")
                    a(f"s_waitcnt vmcnt({9 if t in (TAGT+1, TAGT+2) else 8})" + ("" if NOLG else " lgkmcnt(0)"))
                    a("s_barrier")
                    stamp(a, f"p1_b{t}")
                lq.rd(rd[:3] if e == 0 else rd[3:], (step+2, e))
                if ks == 2 and e == 0 and variant != "VG":
                    site(t+4, 0, tagld if t == TAGT else None)
        site(13, 1)
        stamp(a, "p1_end")
    def v_epilogue(e):
        for s in range(2):
            d = PK[2*e+s]
            for c in range(4):
                r = ACC + 16*e + 8*s + 2*c
                a(f"v_cvt_pk_bf16_f32 v{d+c}, v{r}, v{r+1}")
            a("s_nop 1")
            a(f"v_permlane32_swap_b32 v{d}, v{d+2}")
            a(f"v_permlane32_swap_b32 v{d+1}, v{d+3}")

    p1_main("QK")
    a("s_cmp_ge_u32 s26, 5")
    a(f"s_cselect_b32 s31, 1.0, 0x{QSCALE:x}")
    for e in range(2): a(f"v_xor_b32 v{vWR+e}, v{vWR+e}, v{vGR}")
    a("s_nop 5")
    for i in range(4):
        r = ACC + 8*i; d = PK[i]
        for c in range(8): a(f"v_mul_f32 v{r+c}, s31, v{r+c}")
        for c in range(4): a(f"v_cvt_pk_bf16_f32 v{d+c}, v{r+2*c}, v{r+2*c+1}")
        a(f"s_mov_b64 exec, s[{QM[i]}:{QM[i]+1}]")
        a("s_nop 0")
        a(f"v_permlane16_swap_b32 v{d}, v{d+2}")
        a(f"v_permlane16_swap_b32 v{d+1}, v{d+3}")
        a("s_mov_b64 exec, -1")
    def vpart(a2):
        assert a2 is a
        a.label("L_p1_v")
        ep_v()
        a("s_cmp_eq_u32 s38, 1")
        a("s_cbranch_scc1 L_p1_vg")
        p1_main("VV")
        a("s_nop 7"); a("s_nop 1")
        v_epilogue(0); v_epilogue(1)
        a("s_branch L_p2")
        a.label("L_p1_vg")
        for i in (2, 3): a(f"v_mov_b32 v{vEP+i}, 0x{OOB:x}")
        p1_main("VG")
        a("s_nop 7"); a("s_nop 1")
        v_epilogue(0)
        z = ACC + 16
        a(f"v_cvt_pk_bf16_f32 v{z}, v{z}, v{z}")
        a(f"v_and_b32 v{z}, 0xffff0000, v{z}")
        a(f"v_mul_f32 v{z}, 0x{f32bits(-math.log2(math.e)):x}, v{z}")
        a(f"v_exp_f32 v{z}, v{z}")
        a("s_nop 0")
        a(f"v_add_f32 v{z}, 1.0, v{z}")
        a(f"v_rcp_f32 v{z}, v{z}")
        a(f"s_lshl_b32 s31, s25, 9")
        a(f"s_lshl_b32 s32, s35, 7")
        a(f"v_cvt_pk_bf16_f32 v{z}, v{z}, v{z}")
        a(f"v_and_b32 v{z}, 0xffff0000, v{z}")
        a(f"s_add_u32 s31, s31, s32")
        a(f"s_add_u32 s31, s31, {WS_G}")
        a(f"v_and_b32 v{z+1}, 31, v{vL}")
        a(f"v_lshlrev_b32 v{z+1}, 2, v{z+1}")
        a("s_cmp_eq_u32 s26, 15")
        a("s_cbranch_scc0 L_p2")
        a(f"buffer_store_dword v{z}, v{z+1}, s[{SWS}:{SWS+3}], s31 offen {ST}")
        a("s_branch L_p2")
    late.insert(0, vpart)
    a.label("L_p2")
    a(f"v_readfirstlane_b32 s{sNON}, v{vNON}")
    a(f"v_readfirstlane_b32 s{sNON+1}, v{vNON+1}")
    a("s_nop 0")
    a(f"s_cmp_eq_u32 s{sNON}, 0")
    a("s_cbranch_scc1 L_tagw")
    a.label("L_tagw_ret")
    def tagw(a):
        a.label("L_tagw")
        a(f"s_mov_b32 s31, {SPIN}")
        a.label("L_tagw_l")
        a(f"buffer_load_dwordx2 v[{vNON}:{vNON+1}], off, s[{SDBG}:{SDBG+3}], 0 {LDF}")
        a("s_sub_u32 s31, s31, 1")
        a("s_cmp_eq_u32 s31, 0")
        a("s_cbranch_scc1 L_tagw_ret")
        a("s_waitcnt vmcnt(0)")
        a(f"v_readfirstlane_b32 s{sNON}, v{vNON}")
        a(f"v_readfirstlane_b32 s{sNON+1}, v{vNON+1}")
        a("s_nop 0")
        a(f"s_cmp_eq_u32 s{sNON}, 0")
        a("s_cbranch_scc1 L_tagw_l")
        a("s_branch L_tagw_ret")
    late.append(tagw)
    def p2_reads(ns, step):
        D, rem = divmod(step, 8); half, ks = divmod(rem, 4)
        slot = (10 + D) % 4; wb = WBS[step % 3]
        base = vWR if half == 0 else vWR2
        return [f"ds_read_b64_tr_b16 {vr(wb+4*e+2*u,2)}, v{base+e} offset:{slot*16384+ks*4096+u*1024}" for e in range(ns) for u in range(2)]
    fillA, fillB = setup_later(cfg, vL)
    SIG = int(cfg.get("sig1", 34)); POLL1 = int(cfg.get("poll1", 39))
    STS = {2: [int(x) for x in cfg.get("sts", "8,11,14,17").split(",")], 1: [0, 1, 2, 3]}
    def p2_main(ns):
        stamp(a, "p2_start")
        vm = VM()
        for st in (11, 12, 13): vm.add(f"s{st}", 4)
        lq = LQ()
        for st in range(2):
            rd = p2_reads(ns, st)
            for e in range(ns): lq.rd(rd[2*e:2*e+2], (st, e))
        fa = list(fillA); fb = list(fillB)
        for step in range(40):
            D, rem = divmod(step, 8)
            rd = p2_reads(ns, step+2) if step < 38 else []
            for e in range(ns):
                lq.wait((step, e))
                a(mf(ACC+16*e, WBS[step % 3]+4*e, X+4*step, step == 0))
                bar = rem == 6 and D < 4
                if e == 0 and (bar or step == SIG):
                    need = ([f"s{11+D}"] if bar else []) + (["st"] if step == SIG else [])
                    stamp(a, f"p2_p{D}" if bar else "p2_ps")
                    a(f"s_waitcnt vmcnt({vm.after(*need)})" + (" lgkmcnt(0)" if (D == 0 and not NOLG) else ""))
                    a("s_barrier")
                    stamp(a, f"p2_b{D}" if bar else "p2_bs")
                lq.rd(rd[2*e:2*e+2], (step+2, e))
                if e == 0 and step == 6:
                    for g in dma_groups(14):
                        for l in g: a(l)
                    vm.add("s14", 4)
                if e == 0 and step == SIG and ns == 1:
                    for l in flag_store(sF1, 8): a(l)
                    vm.add("flag")
                if e == ns-1 and step in STS[ns]:
                    i = STS[ns].index(step)
                    a(f"buffer_store_dwordx4 {vr(PK[i],4)}, v{vEP+i}, s[{SWS}:{SWS+3}], 0 offen {ST}")
                    vm.add("st")
                if e == 0 and step == POLL1 and ns == 1:
                    a("s_cmp_eq_u32 s24, 4"); a(f"s_cbranch_scc0 L_p1s")
                    a(f"buffer_load_dwordx4 {vr(vEP,4)}, v{vP1}, s[{SWS}:{SWS+3}], 0 offen {LDF}")
                    a.label("L_p1s")
                if step >= 8:
                    for _ in range(8 // ns):
                        if fa: a(fa.pop(0))
                        elif fb and step > max(STS[2]): a(fb.pop(0))
        assert not fa and not fb, (fa, fb)
        stamp(a, "p2_end")
        a(f"v_bfe_u32 v{aS}, v{vD}, 4, 5")
        a(f"v_mov_b32 v{aS+1}, 0x3f803f80")
        a(f"v_cmp_eq_u32 vcc, 20, v{aS}")
        for i in range(32): a(f"v_mov_b32 v{aO+i}, 0")
        a(f"v_mov_b32 v{aIDX}, 0xdddddddd")
        for i in range(16): a(f"v_cndmask_b32 v{aV+i}, 0, v{aS+1}, vcc")
        for i in range(18): a(f"v_mov_b32 v{aQZ+i}, 0")
        for e in range(ns):
            for s in range(2):
                d = HPK + 8*e + 4*s
                for c in range(4):
                    r = ACC + 16*e + 8*s + 2*c
                    a(f"v_max_f32 v{r}, 0, v{r}")
                    a(f"v_max_f32 v{r+1}, 0, v{r+1}")
                    a(f"v_cvt_pk_bf16_f32 v{d+c}, v{r}, v{r+1}")
        a(f"v_mov_b32 v{HPK+16}, " + (f"v{vD}" if ns == 2 else f"0x{OOB:x}"))
        a(f"v_and_b32 v{t0}, 0x1ff, v{vD}")
        a(f"v_lshrrev_b32 v{t1}, 2, v{t0}")
        a(f"v_and_b32 v{t2}, 64, v{t1}")
        a(f"v_add_u32 v{t1}, v{t1}, v{t2}")
        stamp(a, "at_init")
        if ns == 1:
            a("s_cmp_eq_u32 s24, 4")
            a("s_cbranch_scc0 L_w1_ret")
            a("s_waitcnt vmcnt(0)")
            for l in flag_test(vEP, 4): a(l)
            a("s_cbranch_vccnz L_w1")
            a.label("L_w1_ret")
            late.append(lambda a: spin(a, "L_w1", vP1, 4, vEP, 31))
    a("s_cmp_eq_u32 s34, 0")
    a("s_cbranch_scc0 L_p2_1")
    p2_main(2)
    def p2one(a2):
        a.label("L_p2_1")
        p2_main(1)
        a("s_branch L_p2_done")
    late.insert(0, p2one)
    a.label("L_p2_done")
    a("s_barrier")
    stamp(a, "b1")
    a(f"buffer_load_dwordx4 {vr(aQ1,4)}, v{vD}, s[{SWS}:{SWS+3}], s32 offen {LDF}")
    a(f"buffer_load_dwordx4 {vr(aQ1+4,4)}, v{vD}, s[{SWS}:{SWS+3}], s32 offen offset:1024 {LDF}")
    a(f"buffer_load_dwordx4 {vr(aK1+2,4)}, v{t0}, s[{SWS}:{SWS+3}], s33 offen {LDF}")
    for g in kv_dma(0):
        for l in g: a(l)
    a(f"buffer_load_dword v{aG}, v{t1}, s[{SWS}:{SWS+3}], s30 offen {LDF}")
    stamp(a, "at_kv0")

def setup_later(cfg, vL):
    t0, t1, t2, t3, t4, t5, t6 = range(7)
    A = Asm(); B = Asm()
    a = A
    a(f"v_lshlrev_b32 v{vD}, 4, v{vL}")
    a("s_lshl_b32 s31, s25, 2"); a("s_add_u32 s31, s31, s35"); a("s_mul_i32 s31, s31, 98304"); a("s_mul_i32 s32, s26, 3")
    a("s_lshl_b32 s33, s34, 1"); a("s_add_u32 s32, s32, s33"); a("s_lshl_b32 s32, s32, 11"); a("s_add_u32 s31, s31, s32")
    a(f"s_add_u32 s{sHE}, s31, {WS_H}")
    a("s_lshl_b32 s39, s25, 7"); a("s_lshl_b32 s40, s26, 3"); a("s_add_u32 s39, s39, s40"); a(f"s_add_u32 s39, s39, {FL2}")
    a("s_cmp_eq_u32 s24, 0"); a(f"s_cselect_b32 s{sF2}, s39, 0x{OOB:x}")
    a("s_lshl_b32 s39, s26, 7"); a("s_lshl_b32 s40, s25, 3"); a("s_add_u32 s39, s39, s40"); a(f"s_add_u32 s39, s39, {FL1}")
    a("s_cmp_eq_u32 s24, 4"); a(f"s_cselect_b32 s{sF1}, s39, 0x{OOB:x}")
    a("s_mov_b32 s27, s34"); a("s_mov_b32 s28, s35")
    a("s_mul_i32 s0, s27, 81920"); a("s_mul_i32 s32, s28, 2560"); a(f"s_add_u32 s{sM4}, s0, s32")
    a("s_and_b32 s31, s2, 7"); a("s_lshr_b32 s33, s2, 6"); a("s_bfe_u32 s26, s2, 0x30003")
    a("s_lshl_b32 s25, s31, 2"); a("s_add_u32 s25, s25, s33")
    a("s_lshl_b32 s39, s26, 8"); a("s_lshl_b32 s40, s25, 3"); a("s_add_u32 s39, s39, s40"); a(f"s_add_u32 s39, s39, {FL3}")
    a("s_cmp_eq_u32 s24, 0"); a(f"s_cselect_b32 s{sF3}, s39, 0x{OOB:x}")
    a(f"v_lshrrev_b32 v{t0}, 4, v{vL}")
    a(f"v_add_u32 v{t0}, 1, v{t0}")
    a(f"v_mul_u32_u24 v{t1}, 640, v{t0}")
    a(f"v_cmp_eq_u32 vcc, 3, v{t0}")
    a(f"s_mul_i32 s39, s25, 20")
    a(f"v_bfe_u32 v{t3}, v{vL}, 3, 1")
    a(f"v_cndmask_b32 v{t1}, v{t1}, 0, vcc")
    a(f"v_mul_u32_u24 v{t3}, 19, v{t3}")
    a(f"v_add3_u32 v{t1}, v{t1}, v{t3}, s39")
    a(f"v_min_u32 v{t1}, 1919, v{t1}")
    a(f"v_lshrrev_b32 v{t1}, 5, v{t1}")
    a(f"v_lshrrev_b32 v{t3}, 2, v{t1}")
    a(f"v_subrev_u32 v{t4}, 12, v{t1}")
    a(f"v_mul_u32_u24 v{t4}, 43, v{t4}")
    a(f"v_lshrrev_b32 v{t4}, 7, v{t4}")
    a(f"v_cmp_le_u32 vcc, 48, v{t1}")
    a(f"v_and_b32 v{t0}, 7, v{vL}")
    a(f"v_lshlrev_b32 v{t0}, 4, v{t0}")
    a(f"v_cndmask_b32 v{t3}, v{t3}, v{t4}, vcc")
    a(f"v_lshl_add_u32 v{t3}, v{t3}, 7, v{t0}")
    a(f"v_add_u32 v{vP1}, {FL1}, v{t3}")
    a("s_lshr_b32 s39, s31, 1"); a("s_lshl_b32 s39, s39, 3"); a("s_add_u32 s39, s39, s26")
    a("s_and_b32 s40, s31, 1"); a("s_lshl_b32 s40, s40, 2"); a("s_add_u32 s40, s40, s33")
    a("s_mul_i32 s36, s26, 3"); a("s_lshr_b32 s36, s36, 1"); a("s_mul_i32 s33, s33, 3"); a("s_add_u32 s36, s36, s33")
    a("s_cmp_ge_u32 s36, 12"); a("s_cselect_b32 s33, 12, 0"); a(f"s_sub_u32 s{sKW}, s36, s33"); a(f"s_mov_b32 s{sKH}, s{sKW}")
    a("s_lshl_b32 s33, s39, 1"); a("s_lshr_b32 s31, s28, 1"); a("s_add_u32 s33, s33, s31")
    a("s_lshl_b32 s31, s27, 12")
    a(f"s_mul_i32 s{sHB}, s33, 98304"); a(f"s_add_u32 s{sHB}, s{sHB}, s31"); a(f"s_add_u32 s{sHB}, s{sHB}, {WS_H}")
    a(f"s_mul_i32 s{sOB}, s33, 40960"); a(f"s_add_u32 s{sOB}, s{sOB}, s31"); a(f"s_add_u32 s{sOB}, s{sOB}, {WS_O}")
    a(f"s_mul_i32 s{sW2B}, s24, 20480"); a(f"s_mul_i32 s{sWOB}, s24, 25600"); a(f"s_mul_i32 s{sWOR}, s24, 102400")
    a("s_lshl_b32 s31, s39, 2"); a("s_add_u32 s31, s31, s28")
    a(f"s_lshl_b32 s{sG4}, s31, 6"); a(f"s_add_u32 s{sG4}, s{sG4}, {WS_G}")
    a(f"s_mul_i32 s{sOUTB}, s31, 20480"); a("s_mul_i32 s1, s40, 160"); a(f"s_add_u32 s{sOUTB}, s{sOUTB}, s1")
    a("s_lshr_b32 s40, s39, 1"); a("s_lshl_b32 s40, s40, 7"); a(f"s_add_u32 s40, s40, {FL2}")
    a("s_lshr_b32 s41, s39, 2"); a("s_lshl_b32 s41, s41, 8"); a(f"s_add_u32 s41, s41, {FL3}")
    a("s_mul_i32 s31, s25, 81920"); a("s_lshl_b32 s32, s26, 1"); a("s_lshr_b32 s33, s28, 1"); a("s_add_u32 s32, s32, s33")
    a("s_mul_i32 s32, s32, 5120"); a("s_add_u32 s31, s31, s32"); a("s_and_b32 s33, s28, 1"); a("s_lshl_b32 s32, s33, 11")
    a("s_add_u32 s32, s32, s31")
    a("s_lshl_b32 s33, s33, 9"); a("s_add_u32 s33, s33, s31"); a("s_add_u32 s33, s33, 4096")
    a("s_lshl_b32 s31, s26, 3"); a("s_lshl_b32 s29, s28, 1"); a("s_add_u32 s29, s31, s29")
    a("s_lshl_b32 s30, s29, 7"); a("s_lshl_b32 s31, s27, 6"); a("s_add_u32 s30, s30, s31"); a(f"s_add_u32 s30, s30, {WS_G}")
    a(f"s_mov_b32 s35, s{sM4}"); a("s_mul_i32 s34, s25, 163840"); a("s_add_u32 s34, s34, s35"); a(f"s_add_u32 s34, s34, {WS_KV}")
    a("s_mov_b32 s36, s26"); a("s_mov_b32 s38, 0x000fffff"); a("s_mov_b32 s39, 0x000fffff")
    a(f"s_mov_b64 s[{SW2}:{SW2+1}], s[46:47]"); a(f"s_mov_b32 s{SW2+2}, {1536*1280}")
    a(f"s_mov_b64 s[{SWO}:{SWO+1}], s[48:49]"); a(f"s_mov_b32 s{SWO+2}, {640*1280}")
    a(f"s_mov_b64 s[{SOUT}:{SOUT+1}], s[50:51]"); a(f"s_mov_b32 s{SOUT+2}, {2048*1280}")
    a(f"v_lshrrev_b32 v{t2}, 5, v{vL}")
    a(f"v_add_u32 v{vKA}, s0, v{vD}")
    a(f"v_and_b32 v{t0}, 31, v{vL}")
    a(f"v_mul_u32_u24 v{t3}, 320, v{t2}")
    a(f"v_lshl_add_u32 v{t3}, v{t0}, 4, v{t3}")
    a(f"v_add_u32 v{t3}, 5120, v{t3}")
    a(f"v_add_u32 v{vVA}, s0, v{t3}")
    a = B
    a(f"v_lshl_add_u32 v{vP3}, v{t0}, 3, s41")
    a(f"v_mul_u32_u24 v{t3}, 2560, v{t2}")
    a(f"v_bfe_u32 v{t1}, v{vL}, 2, 3")
    a(f"v_mul_u32_u24 v{t1}, 160, v{t1}")
    a(f"v_and_b32 v{t4}, 3, v{vL}")
    a(f"v_lshl_add_u32 v{t1}, v{t4}, 3, v{t1}")
    a(f"v_add3_u32 v{vR4}, v{t3}, v{t1}, s0")
    a(f"v_add_u32 v{vR4+1}, 40960, v{vR4}")
    a(f"v_and_b32 v{t0}, 15, v{vL}")
    a(f"v_lshl_add_u32 v{vP2}, v{t0}, 3, s40")
    a(f"v_mul_u32_u24 v{t1}, 1280, v{t0}")
    a(f"v_lshrrev_b32 v{t3}, 4, v{vL}")
    a(f"v_lshl_add_u32 v{vOUT}, v{t3}, 3, v{t1}")
    a(f"v_lshlrev_b32 v{t0}, 4, v{t0}")
    a(f"v_lshl_add_u32 v{vA4}, v{t3}, 9, v{t0}")
    a("s_and_b32 s31, s28, 1")
    a("s_lshl_b32 s31, s31, 8")
    a(f"v_add_u32 v{vA4}, s31, v{vA4}")
    for i in range(3):
        a(f"v_add_u32 v{t0}, {64*i}, v{vL}")
        a(f"v_mul_u32_u24 v{t1}, 205, v{t0}")
        a(f"v_lshrrev_b32 v{t1}, 11, v{t1}")
        a(f"v_mul_u32_u24 v{t3}, 10, v{t1}")
        a(f"v_sub_u32 v{t3}, v{t0}, v{t3}")
        a(f"v_lshl_add_u32 v{t3}, v{t3}, 4, s1")
        if i: a(f"v_subrev_u32 v{t3}, {1024*i}, v{t3}")
        a(f"v_mul_u32_u24 v{t4}, 1280, v{t1}")
        a(f"v_add_u32 v{vW4+i}, v{t4}, v{t3}")
        a(f"v_bfe_u32 v{t4}, v{t1}, 2, 1")
        a(f"v_mul_u32_u24 v{t4}, 40, v{t4}")
        a(f"v_lshrrev_b32 v{t6}, 3, v{t1}")
        a(f"v_mul_u32_u24 v{t6}, 20, v{t6}")
        a(f"v_and_b32 v{t1}, 3, v{t1}")
        a(f"v_add3_u32 v{t4}, v{t4}, v{t6}, v{t1}")
        a(f"v_add_u32 v{t4}, 16, v{t4}")
        a(f"v_mul_u32_u24 v{t4}, 1280, v{t4}")
        a(f"v_add_u32 v{vW4R+i}, v{t4}, v{t3}")
    return A.lines, B.lines

def phase3(a, cfg, late):
    stamp = cfg["stamp"]
    S, O, Q1, QZ, K1, K2, V, vIDX, vG = aS, aO, aQ1, aQZ, aK1, aK2, aV, aIDX, aG
    Q2T = aK1 + 2
    for g in kv_dma(1):
        for l in g: a(l)
    stamp(a, "at_kv1")
    a("s_waitcnt vmcnt(7)")
    stamp(a, "at_q")
    a("s_mov_b32 exec_hi, 0")
    for qt in range(2):
        for c in range(2): a(f"v_mov_b32 v{QZ+2+8*qt+c}, v{Q2T+2*qt+c}")
    a("s_mov_b64 exec, -1")
    a("s_mov_b32 exec_lo, 0")
    for qt in range(2):
        for c in range(2): a(f"v_mov_b32 v{QZ+6+8*qt+c}, v{Q2T+2*qt+c}")
    a("s_mov_b64 exec, -1")
    def qz(qt, tt):
        return QZ + 8*qt + 4*(tt >> 1) + (2 if (tt & 1) == 0 else 0)
    bump = {"k": 0}
    def koff(g, off): return g*10240 + off - bump["k"]
    def rd_k1(T):
        g, tt = divmod(T, 4)
        return f"ds_read_b128 {vr(K1+4*(T%2),4)}, v{vKA} offset:{koff(g, tt*1024)}"
    def rd_k2(g):
        return f"ds_read_b128 {vr(K2+4*(g%2),4)}, v{vKA} offset:{koff(g, 4096)}"
    def rd_v(T, s):
        g, tt = divmod(T, 4)
        return f"ds_read_b128 {vr(V+8*(T%2)+4*s,4)}, v{vVA} offset:{koff(g, tt*1280+640*s)}"
    def qk(u):
        T, qt = divmod(u, 2); g, tt = divmod(T, 4); s = S + 16*(u % 4)
        return [f"v_mfma_f32_32x32x16_bf16 {vr(s,16)}, {vr(K1+4*(T%2),4)}, {vr(Q1+4*qt,4)}, 0",
                f"v_mfma_f32_32x32x16_bf16 {vr(s,16)}, {vr(K2+4*(g%2),4)}, {vr(qz(qt,tt),4)}, {vr(s,16)}"]
    def pv(u):
        T, qt = divmod(u, 2); s = S + 16*(u % 4)
        return [f"v_smfmac_f32_32x32x32_bf16 {vr(O+16*qt,16)}, {vr(V+8*(T%2)+4*h,4)}, {vr(s+8*h,8)}, v{vIDX}" for h in range(2)]
    a("s_waitcnt vmcnt(4)")
    stamp(a, "at_k0")
    a("s_barrier")
    stamp(a, "at_first")
    a(rd_k1(0)); a(rd_k2(0))
    a("s_waitcnt lgkmcnt(0)")
    for l in qk(0): a(l)
    a("s_nop 7"); a("s_nop 1")
    vm = VM(); cfg["vm"] = vm
    extra = {u: [] for u in range(64)}
    for i, g in enumerate(g for k in range(2, 8) for g in kv_dma(k)): extra[i//2].append(g)
    for i in range(4):
        extra[10+2*i].append([f"buffer_store_dwordx4 {vr(HPK+4*i,4)}, v{vD if i < 2 else HPK+16}, s[{SWS}:{SWS+3}], s{sHE} offen offset:{1024*i} {ST}"])
    sync = {6: ["s_waitcnt vmcnt(9)", "s_barrier"],
            22: ["s_waitcnt vmcnt(0)", "s_barrier"],
            34: ["s_waitcnt vmcnt(0)"] + flag_test(HP, 2) + ["s_cbranch_vccnz L_w2", "L_w2_ret:"],
            56: ["s_waitcnt vmcnt(0)", "s_barrier"]}
    late.append(lambda a: spin(a, "L_w2", vP2, 2, HP, 31))
    extra[22].append(flag_store(sF2, HP+4))
    u = 23
    for t in range(2):
        for g in w4_dma(t): extra[u].append(g); u += 1
    extra[31].append([f"buffer_load_dwordx2 {vr(HP,2)}, v{vP2}, s[{SWS}:{SWS+3}], 0 offen {LDF}"])
    extra[34].append([f"v_bfe_u32 v{aG4}, v{vD}, 4, 4", f"v_lshlrev_b32 v{aG4}, 2, v{aG4}",
                     f"buffer_load_dword v{aG4}, v{aG4}, s[{SWS}:{SWS+3}], s{sG4} offen {LDF}"])
    u = 34
    for t in range(10):
        for g in act_ld(t): extra[u].append(g); u += 1
    assert u <= 54
    seq = [g for t in (2, 3, 4) for g in w4_dma(t)]
    for i, g in enumerate(seq): extra[56 + (i*2)//3].append(g)
    for t in (2, 3, 4): vm.add(f"w{t}", 3)
    for u in range(64):
        T, qt = divmod(u, 2); g, tt = divmod(T, 4)
        pre = []
        stamp(a, f"u{u}")
        if qt == 0:
            pre += sync.get(u, [])
            if T == 16:
                pre += [f"v_add_u32 v{vKA}, {4*10240}, v{vKA}", f"v_add_u32 v{vVA}, {4*10240}, v{vVA}"]
                bump["k"] = 4*10240
            if T < 31: pre.append(rd_k1(T+1))
            if tt == 3 and g < 7: pre.append(rd_k2(g+1))
            pre += ["s_mov_b64 exec, s[38:39]", rd_v(T, 0), rd_v(T, 1), "s_mov_b64 exec, -1"]
        else:
            pre.append("s_waitcnt lgkmcnt(0)")
        m = (qk(u+1) if u < 63 else [None, None]) + (pv(u-1) if u > 0 else [None, None])
        s = S + 16*(u % 4)
        if qt == 1:
            for l in pre: a(l)
            pre = []
        ex = list(extra[u])
        for j in range(4):
            if m[j]: a(m[j])
            if j == 0:
                for l in pre: a(l)
            if j >= 2 and ex:
                for l in ex.pop(0): a(l)
            for i in range(4*j, 4*j+4): a(f"v_exp_f32 v{s+i}, v{s+i}")
        assert not ex
    a("s_nop 1")
    for l in pv(63): a(l)
    stamp(a, "at_loopend")
    t0, t1, t2, t3 = K1, K1+1, K1+2, K1+3
    vOA = K1 + 6
    a("s_mul_i32 s32, s28, 3072")
    a(f"s_add_u32 s32, s32, {5*10240 - 4*10240}")
    a(f"v_add_u32 v{t0}, s32, v{vKA}")
    a("s_mul_i32 s33, s27, 163840")
    a("s_sub_u32 s33, 81920, s33")
    a("s_cmp_eq_u32 s27, 0")
    a(f"v_add_u32 v{t1}, s33, v{t0}")
    a("s_cbranch_scc0 L_at_z1")
    a("s_nop 5")
    for c in range(3): a(f"ds_write_b128 v{t0}, {vr(O+16+4*c,4)} offset:{1024*c}")
    a.label("L_at_zj")
    def z1(a):
        a.label("L_at_z1")
        for c in range(3): a(f"ds_write_b128 v{t0}, {vr(O+4*c,4)} offset:{1024*c}")
        a("s_nop 3")
        for c in range(12): a(f"v_mov_b32 v{O+c}, v{O+16+c}")
        a("s_branch L_at_zj")
    late.insert(0, z1)
    a("s_waitcnt lgkmcnt(0)")
    a("s_barrier")
    for c in range(3): a(f"ds_read_b128 {vr(S+4*c,4)}, v{t1} offset:{1024*c}")
    for g in w4_dma(5):
        for l in g: a(l)
    vm.add("w5", 3)
    a("s_mul_i32 s31, s29, 40960")
    a(f"s_add_u32 s31, s31, {WS_O}")
    a("s_lshl_b32 s32, s27, 8")
    a("s_add_u32 s31, s31, s32")
    a("s_lshl_b32 s32, s25, 10")
    a(f"v_bfe_u32 v{t3}, v{vD}, 8, 1")
    a("s_add_u32 s32, s32, s31")
    a(f"v_mul_u32_u24 v{t3}, {40960-256}, v{t3}")
    a(f"v_add_u32 v{vOA}, v{t3}, v{vD}")
    a("s_lshr_b32 s33, s25, 2")
    a("s_lshl_b32 s33, s33, 10")
    a("s_add_u32 s33, s33, s31")
    a("s_bfe_u32 s34, s25, 0x10001")
    a("s_lshl_b32 s34, s34, 9")
    a("s_add_u32 s33, s33, s34")
    a("s_and_b32 s34, s25, 1")
    a("s_lshl_b32 s34, s34, 3")
    a("s_add_u32 s33, s33, s34")
    a("s_add_u32 s33, s33, 32768")
    a("s_waitcnt lgkmcnt(0)")
    for c in range(12): a(f"v_add_f32 v{O+c}, v{O+c}, v{S+c}")
    a(f"v_mov_b32 v{t2}, v{O+8}")
    a(f"v_mov_b32 v{t3}, v{O+8}")
    a(f"v_add_f32 v{t0}, abs(v{O}), abs(v{O+1})")
    a(f"v_add_f32 v{t0}, v{t0}, abs(v{O+2})")
    a(f"v_permlane32_swap_b32 v{t3}, v{t2}")
    for c in range(3, 12): a(f"v_add_f32 v{t0}, v{t0}, abs(v{O+c})")
    a(f"v_rcp_f32 v{t1}, v{t2}")
    a(f"v_cmp_nle_f32 vcc, 0x{f32bits(2.0**-40):x}, v{t2}")
    a(f"s_mov_b64 s[40:41], vcc")
    a(f"v_cmp_nge_f32 vcc, 0x{f32bits(2.0**100):x}, v{t2}")
    a(f"s_or_b64 s[40:41], s[40:41], vcc")
    a(f"v_cmp_nge_f32 vcc, 0x{f32bits(2.0**126):x}, v{t0}")
    a(f"s_or_b64 s[40:41], s[40:41], vcc")
    if cfg.get("force_fallback"): a("s_mov_b64 s[40:41], -1")
    a("s_cmp_lg_u64 s[40:41], 0")
    a("s_cbranch_scc1 L_at_slow")
    a.label("L_at_store")
    a(f"v_mul_f32 v{t1}, v{t1}, v{vG}")
    for c in range(12): a(f"v_mul_f32 v{O+c}, v{O+c}, v{t1}")
    for c in range(6): a(f"v_cvt_pk_bf16_f32 v{S+c}, v{O+2*c}, v{O+2*c+1}")
    a(f"buffer_store_dwordx4 {vr(S,4)}, v{vOA}, s[{SWS}:{SWS+3}], s32 offen {ST}")
    a("s_mov_b32 exec_hi, 0")
    a(f"buffer_store_dwordx2 {vr(S+4,2)}, v{vOA}, s[{SWS}:{SWS+3}], s33 offen {ST}")
    a("s_mov_b64 exec, -1")
    vm.add("ost", 2)
    stamp(a, "o_stored")

    def slow(a):
        a.label("L_at_slow")
        NM = 16
        KA = K2 + 4; vV2 = K1 + 4; mx = K1 + 5
        a("s_cmp_eq_u32 s27, 0")
        a("s_cbranch_scc1 L_slow_z0")
        for i in range(10): a(f"v_mov_b32 v{QZ+i}, v{QZ+8+i}")
        for c in range(4): a(f"v_mov_b32 v{Q1+c}, v{Q1+4+c}")
        a.label("L_slow_z0")
        a("s_mul_i32 s34, s27, 81920")
        a(f"s_add_u32 s34, s34, {4*10240 + 5120}")
        a(f"v_subrev_u32 v{vV2}, s34, v{vVA}")
        a(f"v_mov_b32 v{mx}, 0xff7fffff")
        for i in range(16): a(f"v_mov_b32 v{NM+i}, 0")
        for i in range(16): a(f"v_mov_b32 v{O+i}, 0")
        for ps in range(2):
            a("s_mul_i32 s34, s25, 163840")
            a(f"s_add_u32 s34, s34, {WS_KV}")
            a("s_mov_b32 s35, 16")
            a.label(f"L_slow_loop{ps}")
            a(f"s_add_u32 s36, s34, 4096")
            a(f"buffer_load_dwordx4 {vr(K2,4)}, v{vD}, s[{SWS}:{SWS+3}], s36 offen {LDF}")
            for tt in range(4):
                a(f"buffer_load_dwordx4 {vr(KA,4)}, v{vD}, s[{SWS}:{SWS+3}], s34 offen offset:{1024*tt} {LDF}")
                if ps == 1:
                    a(f"s_add_u32 s36, s34, {5120+1280*tt}")
                    a("s_mov_b64 exec, s[38:39]")
                    a(f"buffer_load_dwordx4 {vr(V,4)}, v{vV2}, s[{SWS}:{SWS+3}], s36 offen {LDF}")
                    a(f"buffer_load_dwordx4 {vr(V+4,4)}, v{vV2}, s[{SWS}:{SWS+3}], s36 offen offset:640 {LDF}")
                    a("s_mov_b64 exec, -1")
                a("s_waitcnt vmcnt(0)")
                a(f"v_mfma_f32_32x32x16_bf16 {vr(S,16)}, {vr(KA,4)}, {vr(Q1,4)}, {vr(NM,16)}")
                a(f"v_mfma_f32_32x32x16_bf16 {vr(S,16)}, {vr(K2,4)}, {vr(qz(0,tt),4)}, {vr(S,16)}")
                a("s_nop 11")
                if ps == 0:
                    for i in range(0, 16, 2): a(f"v_max3_f32 v{mx}, v{mx}, v{S+i}, v{S+i+1}")
                else:
                    for i in range(16): a(f"v_exp_f32 v{S+i}, v{S+i}")
                    a("s_nop 1")
                    for h in range(2):
                        a(f"v_smfmac_f32_32x32x32_bf16 {vr(O,16)}, {vr(V+4*h,4)}, {vr(S+8*h,8)}, v{vIDX}")
                    a("s_nop 3")
            a("s_add_u32 s34, s34, 10240")
            a("s_sub_u32 s35, s35, 1")
            a("s_cmp_lg_u32 s35, 0")
            a(f"s_cbranch_scc1 L_slow_loop{ps}")
            if ps == 0:
                a(f"v_mov_b32 v{t3}, v{mx}")
                a(f"v_mov_b32 v{t1}, v{mx}")
                a("s_nop 1")
                a(f"v_permlane32_swap_b32 v{t3}, v{t1}")
                a("s_nop 1")
                a(f"v_max_f32 v{mx}, v{t3}, v{t1}")
                for i in range(16): a(f"v_sub_f32 v{NM+i}, 0, v{mx}")
        a("s_nop 11")
        a(f"v_mov_b32 v{t2}, v{O+8}")
        a(f"v_mov_b32 v{t3}, v{O+8}")
        a("s_nop 1")
        a(f"v_permlane32_swap_b32 v{t3}, v{t2}")
        a("s_nop 1")
        a(f"v_rcp_f32 v{t1}, v{t2}")
        a("s_nop 0")
        a("s_branch L_at_store")
    late.append(slow)

def phase45(a, cfg, late):
    stamp = cfg["stamp"]; vm = cfg["vm"]
    ACC = 96; WB = 116; tmp = 72
    NS = 17
    SIG3 = int(cfg.get("sig3", 4)); POLL = int(cfg.get("poll3", 7)); CHK = int(cfg.get("chk3", 9))
    def reads(step):
        t, j = divmod(step, 2); slot = SLOTP[t % 8]; p = step % 2
        return [f"ds_read_b64_tr_b16 {vr(WB+20*p+4*b+2*u,2)}, v{vR4+slot//4} offset:{(slot%4)*10240 + j*5120 + u*1280 + b*32}"
                for b in range(5) for u in range(2)]
    for l in reads(0): a(l)
    pend = []
    nsteps = 2*NS
    def flush(k=99):
        for _ in range(k):
            if pend:
                g, tg = pend.pop(0)
                for l in g: a(l)
                vm.add(tg)
    for step in range(nsteps):
        t, j = divmod(step, 2); p = step % 2
        rd = reads(step+1) if step < nsteps-1 else []
        if j == 0 and t >= 10:
            flush()
            a(f"s_waitcnt vmcnt({vm.after(f'a{t}')})")
        if step == 24:
            a(f"v_sub_f32 v{tmp}, 1.0, v{aG4}")
            a(f"v_cvt_pk_bf16_f32 v{tmp}, v{tmp}, v{tmp}")
            a(f"v_and_b32 v{tmp}, 0xffff0000, v{tmp}")
            a("s_nop 3")
            for i in range(20): a(f"v_mul_f32 v{ACC+i}, v{ACC+i}, v{tmp}")
        for b in range(5):
            a(f"s_waitcnt lgkmcnt({8 if rd else 8-2*b})")
            a(f"v_mfma_f32_16x16x32_bf16 {vr(ACC+4*b,4)}, {vr(WB+20*p+4*b,4)}, {vr(act_reg(t)+4*j,4)}, " + ("0" if step == 0 else vr(ACC+4*b,4)))
            if b == 0 and j == 1 and t < NS-1:
                flush()
                stamp(a, f"p4_p{t}")
                need = []
                if t+1 >= 2: need.append(f"w{t+1}")
                if t == SIG3: need.append("ost")
                if need: a(f"s_waitcnt vmcnt({vm.after(*need)})")
                if t == CHK:
                    a("s_cmp_eq_u32 s24, 0")
                    a("s_cbranch_scc0 L_w3_ret")
                    a(f"s_waitcnt vmcnt({vm.after('poll')})")
                    for l in flag_test(tmp+4, 2): a(l)
                    a("s_cbranch_vccnz L_w3")
                    a.label("L_w3_ret")
                    late.append(lambda a: spin(a, "L_w3", vP3, 2, tmp+4, 31))
                a("s_barrier")
                if t == CHK: stamp(a, "w3_done")
                stamp(a, f"p4_b{t}")
                if t == SIG3: pend.append((flag_store(sF3, tmp), "flag"))
                if t == POLL:
                    pend.append(([f"buffer_load_dwordx2 {vr(tmp+4,2)}, v{vP3}, s[{SWS}:{SWS+3}], 0 offen {LDF}"], "poll"))
                if t == CHK:
                    for tt in range(12, 17): pend.extend((g, f"a{tt}") for g in act_ld(tt))
                for tt in {0: [6], 1: [7, 8]}.get(t, [t+7]):
                    if tt < NS: pend.extend((g, f"w{tt}") for g in w4_dma(tt))
                if t in (2, 3): pend.extend((g, f"a{t+8}") for g in act_ld(t+8))
            for l in rd[2*b:2*b+2]: a(l)
            flush(1)
        if step == 23: stamp(a, "p4_end")
    assert not pend
    stamp(a, "p5_end")
    t0 = tmp
    a("s_barrier")
    a("s_mul_i32 s31, s28, 5120")
    a(f"v_add_u32 v{t0}, s31, v{vD}")
    a("s_cmp_eq_u32 s27, 0")
    a("s_cbranch_scc1 L_p5_k0")
    a("s_nop 3")
    for b in range(5): a(f"ds_write_b128 v{t0}, {vr(ACC+4*b,4)} offset:{1024*b}")
    a("s_waitcnt lgkmcnt(0)")
    a("s_barrier")
    a("s_branch L_p5_end")
    a.label("L_p5_k0")
    a("s_barrier")
    for b in range(5): a(f"ds_read_b128 {vr(WB+4*b,4)}, v{t0} offset:{1024*b}")
    for b in range(5):
        a(f"s_waitcnt lgkmcnt({4-b})")
        for i in range(4): a(f"v_add_f32 v{ACC+4*b+i}, v{ACC+4*b+i}, v{WB+4*b+i}")
        a(f"v_cvt_pk_bf16_f32 v{ACC+4*b}, v{ACC+4*b}, v{ACC+4*b+1}")
        a(f"v_cvt_pk_bf16_f32 v{ACC+4*b+1}, v{ACC+4*b+2}, v{ACC+4*b+3}")
        a(f"buffer_store_dwordx2 {vr(ACC+4*b,2)}, v{vOUT}, s[{SOUT}:{SOUT+3}], s{sOUTB} offen offset:{32*b}")
    a.label("L_p5_end")

HEADER = open("cdna_kernels/" + NAME + ".s.ref").read().split("; Override launch")[0]

def kd(name, vgpr, sgpr=100):
    return f""".section .rodata,"a"
.p2align 6
.amdhsa_kernel {name}
  .amdhsa_next_free_vgpr {vgpr}
  .amdhsa_next_free_sgpr {sgpr}
  .amdhsa_accum_offset {(vgpr+3)//4*4}
  .amdhsa_group_segment_fixed_size 0
  .amdhsa_kernarg_size 80
  .amdhsa_user_sgpr_count 2
  .amdhsa_user_sgpr_kernarg_segment_ptr 1
  .amdhsa_system_sgpr_workgroup_id_x 1
.end_amdhsa_kernel
"""

def gen(opts):
    a = Asm()
    k = NAME + "_kernel"
    a(".text"); a(f".globl {k}"); a(".p2align 8"); a(f".type {k},@function"); a.label(k)
    a("s_cmp_ge_u32 s2, 256"); a("s_cbranch_scc1 L_end")
    a(f"s_load_dwordx2 s[{SX}:{SX+1}], s[0:1], 0")
    a(f"s_load_dwordx2 s[{SW}:{SW+1}], s[0:1], 8")
    a(f"s_load_dwordx2 s[{SW1}:{SW1+1}], s[0:1], 32")
    a(f"s_load_dwordx2 s[{SG}:{SG+1}], s[0:1], 48")
    a(f"s_load_dwordx2 s[{SWS}:{SWS+1}], s[0:1], 72")
    a(f"s_load_dwordx2 s[{SDBG}:{SDBG+1}], s[0:1], 64")
    a(f"s_load_dwordx2 s[46:47], s[0:1], 40")
    a(f"s_load_dwordx2 s[48:49], s[0:1], 16")
    a(f"s_load_dwordx2 s[50:51], s[0:1], 56")
    st = Stamps(opts.get("stamps")); st.cyc = opts.get("cyc"); st.dbg = opts.get("dbg"); st(a, "start")
    if opts.get("kvplain"): KVF[0] = ""
    cfg = dict(opts, stamp=st); late = []
    phase12(a, cfg, late)
    phase3(a, cfg, late)
    phase45(a, cfg, late)
    if st.on: a("s_waitcnt vmcnt(0)")
    st(a, "end"); st.flush(a)
    a.label("L_end"); a("s_endpgm")
    while late: late.pop(0)(a)
    errs = check_linear(a.lines)
    head = HEADER + ("; @launch grid=(256,1,1) block=(512,1,1) lds=163840\n"
                     '.amdgcn_target "amdgcn-amd-amdhsa--gfx950"\n')
    return head + a.text() + kd(k, 256), errs

if __name__ == "__main__":
    out = sys.argv[1] if len(sys.argv) > 1 else "cdna_kernels/" + NAME + ".s"
    opts = {}
    for o in sys.argv[2:]:
        k, _, v = o.partition("=")
        opts[k] = v or True
    txt, errs = gen(opts)
    open(out, "w").write(txt)
    print("written", out, "hazards:", errs, "bytes:", len(txt))
```

```python
import re

class Asm:
    def __init__(self):
        self.lines = []
    def __call__(self, s):
        for l in s.split("\n"):
            l = l.strip()
            if l:
                self.lines.append(l)
    def label(self, name):
        self.lines.append(name + ":")
    def comment(self, s):
        self.lines.append("; " + s)
    def text(self):
        out = []
        for l in self.lines:
            if l.endswith(":") or l.startswith(".") or l.startswith(";"):
                out.append(l)
            else:
                out.append("    " + l)
        return "\n".join(out) + "\n"

def vr(a, n=1):
    return f"v{a}" if n == 1 else f"v[{a}:{a+n-1}]"
def sr(a, n=1):
    return f"s{a}" if n == 1 else f"s[{a}:{a+n-1}]"

_reg = re.compile(r"\b([vsa])(?:(\d+)|\[(\d+):(\d+)\])")
def regs_of(tok):
    out = set()
    for m in _reg.finditer(tok):
        k = m.group(1)
        if m.group(2) is not None:
            out.add((k, int(m.group(2))))
        else:
            for i in range(int(m.group(3)), int(m.group(4)) + 1):
                out.add((k, i))
    if re.search(r"\bvcc\b", tok): out.add(("s", "vcc"))
    if re.search(r"\bexec\b", tok): out.add(("s", "exec"))
    if re.search(r"\bm0\b", tok): out.add(("s", "m0"))
    return out

TRANS = ("v_exp_f32", "v_log_f32", "v_rcp_f32", "v_rsq_f32", "v_sqrt_f32", "v_sin_f32", "v_cos_f32")

def parse(line):
    l = line.split(";")[0].strip()
    if not l or l.endswith(":") or l.startswith("."):
        return None
    p = l.split(None, 1)
    op = p[0]
    ops = [x.strip() for x in re.split(r",(?![^\[]*\])", p[1])] if len(p) > 1 else []
    d = dict(op=op, line=line, w=set(), r=set(), kind="other", srcC=set(), ab=set(), states=1)
    if op == "s_nop":
        d["states"] = int(ops[0], 0) + 1
    if op.startswith("v_mfma") or op.startswith("v_smfmac"):
        d["kind"] = "mfma"
        d["w"] = regs_of(ops[0])
        d["ab"] = regs_of(ops[1]) | regs_of(ops[2])
        if op.startswith("v_smfmac"):
            d["srcC"] = regs_of(ops[0]); d["ab"] |= regs_of(ops[3])
        else:
            d["srcC"] = regs_of(ops[3].split()[0])
        d["r"] = d["ab"] | d["srcC"]
        d["passes"] = 16 if "_2b_" in op else 8 if "32x32" in op else 4
        d["dkey"] = ops[0]
    elif op.startswith("v_"):
        d["kind"] = "valu"
        if op.startswith("v_cmp"):
            d["w"] = regs_of(ops[0]); d["r"] = set().union(*[regs_of(x) for x in ops[1:]])
        elif (op.startswith("v_permlane") and "swap" in op) or op.startswith("v_swap"):
            d["w"] = regs_of(ops[0]) | regs_of(ops[1]); d["r"] = set(d["w"])
        elif op.startswith("v_readfirstlane") or op.startswith("v_readlane"):
            d["w"] = regs_of(ops[0]); d["r"] = set().union(*[regs_of(x) for x in ops[1:]])
        elif "_co_" in op:
            d["w"] = regs_of(ops[0]) | regs_of(ops[1]); d["r"] = set().union(*[regs_of(x) for x in ops[2:]])
        else:
            d["w"] = regs_of(ops[0]); d["r"] = set().union(*[regs_of(x) for x in ops[1:]]) if len(ops) > 1 else set()
            if op.startswith("v_fmac") or op.startswith("v_dot2c") or "UNUSED_PRESERVE" in l or op.startswith("v_writelane"):
                d["r"] |= d["w"]
        d["trans"] = op.split("_e32")[0].split("_e64")[0] in TRANS
    elif op.startswith("ds_"):
        d["kind"] = "ds"
        if op.startswith("ds_read") or op.startswith("ds_bpermute") or op.startswith("ds_permute") or op.startswith("ds_swizzle"):
            d["w"] = regs_of(ops[0]); d["r"] = set().union(*[regs_of(x) for x in ops[1:]])
        else:
            d["r"] = set().union(*[regs_of(x) for x in ops])
    elif op.startswith("buffer_") or op.startswith("global_"):
        d["kind"] = "vmem"
        allr = set().union(*[regs_of(x) for x in ops]) if ops else set()
        islds = bool(re.search(r"\blds\b", l)) or "load_lds" in op
        if "load" in op and not islds:
            d["w"] = regs_of(ops[0]); d["r"] = set().union(*[regs_of(x) for x in ops[1:]])
        elif "atomic" in op and re.search(r"\bsc0\b", l):
            d["w"] = regs_of(ops[0]); d["r"] = allr
        else:
            d["r"] = allr
        if islds:
            d["r"].add(("s", "m0")); d["lds"] = True
        if "store" in op and ("x3" in op or "x4" in op):
            d["widestore"] = regs_of(ops[0]) if op.startswith("buffer_") else regs_of(ops[1])
    elif op.startswith("s_"):
        d["kind"] = "salu"
        if op.startswith("s_cmp") or op.startswith("s_cbranch") or op in ("s_branch", "s_barrier", "s_waitcnt", "s_nop", "s_endpgm", "s_setprio", "s_sleep", "s_bitcmp1_b32", "s_bitcmp0_b32"):
            d["r"] = set().union(*[regs_of(x) for x in ops]) if ops else set()
        else:
            d["w"] = regs_of(ops[0]) if ops else set()
            d["r"] = set().union(*[regs_of(x) for x in ops[1:]]) if len(ops) > 1 else set()
            if "saveexec" in op: d["w"].add(("s", "exec"))
    return d

def need(p, c):
    n = 0
    vw = {x for x in p["w"] if x[0] in "va"}
    sw = {x for x in p["w"] if x[0] == "s"}
    if p["kind"] == "valu":
        if c["kind"] == "mfma" and vw & c["r"]: n = max(n, 2)
        if c["kind"] == "valu":
            if c["op"].startswith(("v_readfirstlane", "v_readlane")) and vw & c["r"]: n = max(n, 1)
            if c["op"].startswith("v_permlane") and vw & c["r"]: n = max(n, 2)
            if "dpp" in c["line"] and vw & c["r"]: n = max(n, 2)
            if p.get("trans") and not c.get("trans") and vw & c["r"]: n = max(n, 1)
            if sw & c["r"]: n = max(n, 2)
            if c["op"].startswith("v_cndmask") and ("s", "vcc") in sw and "vcc" in c["line"]: n = max(n, 2)
            if ("sdwa" in p["op"] or "op_sel" in p["line"]) and vw & (c["r"] | c["w"]): n = max(n, 1)
        if c["kind"] == "vmem" and sw & c["r"]: n = max(n, 5)
        if ("s", "exec") in sw and c["kind"] == "mfma": n = max(n, 4)
    if p["kind"] == "salu":
        if ("s", "m0") in sw and c.get("lds"): n = max(n, 1)
    if p["kind"] == "vmem" and p.get("widestore"):
        if c["kind"] == "valu" and p["widestore"] & c["w"]: n = max(n, 2)
        elif p["widestore"] & c["w"]: n = max(n, 1)
    if p["kind"] == "mfma":
        big = {16: 20, 8: 12, 4: 8}[p["passes"]]
        if c["kind"] == "mfma":
            if vw & c["ab"]: n = max(n, big)
            if vw & c["srcC"]:
                same = (c["srcC"] == vw and c["passes"] == p["passes"])
                if not same: n = max(n, {16: 18, 8: 10, 4: 6}[p["passes"]])
            elif vw & c["w"]:
                if c["passes"] != p["passes"]: n = max(n, big)
        elif c["kind"] in ("valu", "ds", "vmem"):
            if vw & (c["r"] | c["w"]): n = max(n, big)
        if c["kind"] == "valu" and p["srcC"] & c["w"]: n = max(n, {16: 15, 8: 7, 4: 3}[p["passes"]])
    return n

def check_linear(lines, window=24, verbose=True):
    ins = [d for d in (parse(l) for l in lines) if d]
    errs = 0
    for i, c in enumerate(ins):
        dist = 0
        for j in range(i - 1, max(-1, i - window), -1):
            p = ins[j]
            if p["op"] in ("s_branch", "s_endpgm", "s_setpc_b64"):
                break
            n = need(p, c)
            if n > dist:
                errs += 1
                if verbose:
                    print(f"HAZARD need {n} have {dist}:\n   {p['line']}\n   {c['line']}")
            dist += p["states"]
            if dist >= 20: break
    return errs
```

```python
import sys, math, struct
from dsl import *

NAME = "gated_mix__mha_block__dense_activation_relu__prompt"
WS_Q  = 0x0
WS_KV = 0x280000
WS_H  = 0x780000
WS_O  = 0xD80000
WS_OR = 0xF80000
WS_G  = 0x1000000
FS = int([o for o in sys.argv if o.startswith("fs=")][0][3:]) if [o for o in sys.argv if o.startswith("fs=")] else 3
FL1   = 0x1002000
FL2   = 0x100A000
FL3   = 0x1012000
WS_END = 0x101A000
OOB = 0x80000000
SPIN = 1 << 15
def f32bits(x): return struct.unpack("<I", struct.pack("<f", x))[0]
QSCALE = f32bits(math.log2(math.e) / math.sqrt(20.0))
ST = "sc1"; LDF = "sc1"

SX, SW, SW1, SWS, SG, SDBG = 4, 8, 12, 16, 20, 52
SW2, SWO, SOUT = SX, SW, SG
sF1, sHE, sNON = 42, 43, 44
sKW, sKH, sHB, sOB, sW2B, sWOB, sWOR, sOUTB, sG4, sM4, sF2, sF3 = range(56, 68)
vW4, vWM, vW4R, vA4, vR4, vP2, vKA, vVA, vP1, vD = 240, 243, 246, 249, 250, 251, 252, 253, 254, 255
vRA, vRA7, vWARM, vSENT = 224, 229, 234, 236
sOR = 15

def srd_tail(a, base, nbytes):
    a(f"s_mov_b32 s{base+2}, {nbytes}")
    a(f"s_mov_b32 s{base+3}, 0x00020000")

STAMP_BASE = 0x1100000
class Stamps:
    DEF = "start,p1_first,p1_end,p2_end,at_first,at_loopend,o_stored,p4_b1,p4_b4,p4_b8,p4_ok11,p4_ok13,p5_end,end"
    def __init__(self, on):
        self.on = on; self.names = []
        self.sel = set((self.DEF if on is True else "start," + str(on)).split(","))
    def __call__(self, a, name):
        if not self.on or name not in self.sel: return
        if name in self.names: i = self.names.index(name)
        else:
            i = len(self.names); self.names.append(name)
        assert i < 16
        a(f"{'s_memtime' if self.cyc else 's_memrealtime'} s[{68+2*i}:{69+2*i}]")
    def flush(self, a):
        if not self.on: return
        a("s_waitcnt lgkmcnt(0)")
        if self.dbg is not None:
            n = len(self.names); assert n <= 13
            a("s_mov_b64 exec, 1")
            a(f"s_sub_u32 s31, s68, s{sNON}"); a("s_add_u32 s31, s31, 1000"); a("v_mov_b32 v0, s31")
            a(f"buffer_atomic_umax v0, off, s[{SDBG}:{SDBG+3}], 0 offset:56 sc1")
            a(f"s_sub_u32 s31, s{68+2*(n-1)}, s{sNON}"); a("v_mov_b32 v1, s31")
            a(f"buffer_atomic_umax v1, off, s[{SDBG}:{SDBG+3}], 0 offset:60 sc1")
            a(f"s_cmp_eq_u32 s2, {self.dbg}"); a("s_cbranch_scc0 L_end")
            a("s_cmp_eq_u32 s24, 0"); a("s_cbranch_scc0 L_end")
            for i in range(1, n):
                a(f"s_sub_u32 s31, s{68+2*i}, s{sNON}"); a(f"v_mov_b32 v{2+i}, s31")
                a(f"buffer_store_dword v{2+i}, off, s[{SDBG}:{SDBG+3}], 0 offset:{4+4*i} sc1")
            a("; stamps " + ",".join(self.names))
            return
        a("s_lshl_b32 s31, s2, 3")
        a("s_add_u32 s31, s31, s24")
        a("s_lshl_b32 s31, s31, 6")
        a(f"s_add_u32 s31, s31, {STAMP_BASE}")
        a(f"s_mov_b32 s{SWS+2}, 0x2000000")
        a("v_mov_b32 v2, 0")
        for i in range(len(self.names)):
            a(f"v_mov_b32 v0, s{68+2*i}")
            a(f"buffer_store_dword v0, v2, s[{SWS}:{SWS+3}], s31 offen offset:{4*i}")
            a("s_nop 1")
        a("; stamps " + ",".join(self.names))

class VM:
    def __init__(self): self.q = []
    def add(self, tag, n=1): self.q += [tag]*n
    def after(self, *tags):
        last = max(i for i, t in enumerate(self.q) if t in tags)
        assert all(t in self.q for t in tags), tags
        n = len(self.q) - 1 - last
        assert n <= 63
        return n

def flag_store(sreg, tmp, sreg2=None):
    return [f"v_mov_b32 v{tmp+2}, s{sreg}", f"v_mov_b32 v{tmp}, s{sNON}", f"v_mov_b32 v{tmp+1}, s{sNON+1}"] + \
           ([f"v_writelane_b32 v{tmp+2}, s{sreg2}, 1"] if sreg2 else []) + [
            f"s_mov_b64 exec, {3 if sreg2 else 1}",
            f"buffer_store_dwordx2 v[{tmp}:{tmp+1}], v{tmp+2}, s[{SWS}:{SWS+3}], 0 offen {ST}",
            "s_mov_b64 exec, -1"]

KVF = ["sc1"]
def kv_dma(i):
    LDF = KVF[0]
    return [["s_mul_i32 s37, s36, 10240", f"s_add_u32 m0, s35, {i*10240}", "s_add_u32 s37, s37, s34",
             f"buffer_load_dwordx4 v{vD}, s[{SWS}:{SWS+3}], s37 offen {LDF} lds"],
            [f"buffer_load_dwordx4 v{vD}, s[{SWS}:{SWS+3}], s37 offen offset:1024 {LDF} lds"],
            ["s_mov_b32 exec_hi, 0",
             f"buffer_load_dwordx4 v{vD}, s[{SWS}:{SWS+3}], s37 offen offset:2048 {LDF} lds",
             "s_mov_b32 exec_hi, -1", "s_add_u32 s36, s36, 1", "s_and_b32 s36, s36, 7"]]

aS, aO, aQ1, aK1, aK2, aV, aQ2 = 0, 64, 96, 104, 108, 112, 120
aIDX, aG, aG4, aOA, HP = 122, 123, 124, 126, 128
HPK = 192

SLOTP = [0, 1, 2, 3, 4, 5, 7, 6]
UID = [0]
def w4_dma(t, z=None):
    slot = SLOTP[t % 8]
    post = []
    if t < 12:
        pre = [f"s_mul_i32 s40, s{sKW}, 163840", f"s_add_u32 m0, s{sM4}, {slot*10240}", f"s_add_u32 s40, s40, s{sW2B}"]
        post = [f"s_add_u32 s{sKW}, s{sKW}, 1", f"s_cmp_eq_u32 s{sKW}, 12", f"s_cselect_b32 s{sKW}, 0, s{sKW}"]
        srd, src = SW2, vW4
    elif t < 16:
        pre = [f"s_add_u32 m0, s{sM4}, {slot*10240}", f"s_add_u32 s40, s{sWOB}, {(t-12)*8*25600}"]
        srd, src = SWO, vWM
    else:
        pre = [f"s_add_u32 m0, s{sM4}, {slot*10240}", f"s_mov_b32 s40, s{sWOR}"]
        srd, src = SWO, vW4R
    UID[0] += 1
    if z is not None:
        return pre + [f"buffer_load_dwordx4 v{src+i}, s[{srd}:{srd+3}], s40 offen offset:{1024*i} lds" for i in range(3-z)] + post
    return [pre + [f"buffer_load_dwordx4 v{src}, s[{srd}:{srd+3}], s40 offen lds"],
            [f"buffer_load_dwordx4 v{src+1}, s[{srd}:{srd+3}], s40 offen offset:1024 lds"] + post,
            ["s_cmp_eq_u32 s27, 0", f"s_cbranch_scc0 L_wd{UID[0]}",
             f"buffer_load_dwordx4 v{src+2}, s[{srd}:{srd+3}], s40 offen offset:2048 lds", f"L_wd{UID[0]}:"]]
W4N = [1, 1, 0]
def act_reg(t):
    return HP + 8*t if t < 12 else 8*(t-12)
def act_ld(t, vrem=None):
    r = act_reg(t)
    if t < 12:
        pre = [f"s_lshl_b32 s41, s{sKH}, 13", f"s_add_u32 s41, s41, s{sHB}"]
        mid = ["s_add_u32 s41, s41, 98304"]
        post = [f"s_add_u32 s{sKH}, s{sKH}, 1", f"s_cmp_eq_u32 s{sKH}, 12", f"s_cselect_b32 s{sKH}, 0, s{sKH}"]
    elif t < 16:
        pre = [f"s_add_u32 s41, s{sOB}, {(t-12)*8192}"]; mid = ["s_add_u32 s41, s41, 32768"]; post = []
    else:
        return [[f"buffer_load_dwordx4 {vr(r,4)}, v{vrem}, s[{SWS}:{SWS+3}], s{sOR} offen {LDF}"],
                [f"buffer_load_dwordx4 {vr(r+4,4)}, v{vrem}, s[{SWS}:{SWS+3}], s{sOR} offen offset:512 {LDF}"]]
    return [pre + [f"buffer_load_dwordx4 {vr(r,4)}, v{vA4}, s[{SWS}:{SWS+3}], s41 offen {LDF}"],
            mid + [f"buffer_load_dwordx4 {vr(r+4,4)}, v{vA4}, s[{SWS}:{SWS+3}], s41 offen {LDF}"] + post]

def poll_ld(addr, width, tmp):
    if FS == 3: return [f"buffer_load_dwordx{width} {vr(tmp,width)}, v{addr}, s[{SWS}:{SWS+3}], 0 offen {LDF}"]
    return [f"buffer_load_dwordx2 {vr(tmp+2*i,2)}, v{addr}, s[{SWS}:{SWS+3}], 0 offen offset:{i << FS} {LDF}" for i in range(width//2)]
def spin(a, name, addr, width, tmp, sc, sp=40):
    a.label(name)
    a(f"s_mov_b32 s{sc}, {SPIN}")
    a.label(name + "_l")
    for l in poll_ld(addr, width, tmp): a(l)
    a(f"s_sub_u32 s{sc}, s{sc}, 1")
    a(f"s_cmp_eq_u32 s{sc}, 0")
    a(f"s_cbranch_scc1 {name}_ret")
    a("s_waitcnt vmcnt(0)")
    for l in flag_test(tmp, width, sp): a(l)
    a(f"s_cbranch_vccnz {name}_l")
    a(f"s_branch {name}_ret")
def flag_test(tmp, width, sp=40):
    r = [f"v_cmp_ne_u64 vcc, s[{sNON}:{sNON+1}], {vr(tmp,2)}"]
    if width == 4:
        r += [f"v_cmp_ne_u64 s[{sp}:{sp+1}], s[{sNON}:{sNON+1}], {vr(tmp+2,2)}", "s_nop 0", f"s_or_b64 vcc, vcc, s[{sp}:{sp+1}]"]
    else:
        r += ["s_nop 0"]
    return r

def phase12(a, cfg, late):
    stamp = cfg["stamp"]
    sK, sM0, sT0, sT1, sT2 = 27, 30, 31, 32, 33
    X = 0; ACC = 160; WB = 192
    vXR = 208; vWR = 212; vWR2 = 214; vXS = 216; vWS = 218; vW1S = 219; vEP = 220
    vT = 228; vL = 236; vGR = 237; vNON = 238
    WBS = [192, 200, 228]
    PK = [224, 240, 244, 248]
    t0, t1, t2, t3, t4, t5, t6 = range(vT, vT+7)
    a(f"v_and_b32 v{vL}, 63, v0")
    a(f"v_lshrrev_b32 v{t0}, 6, v0")
    a("s_and_b32 s31, s2, 7")
    a(f"v_readfirstlane_b32 s24, v{t0}")
    a("s_lshr_b32 s32, s2, 3")
    a("s_and_b32 s33, s32, 7")
    a("s_lshr_b32 s32, s32, 3")
    a("s_and_b32 s25, s31, 1")
    a("s_lshl_b32 s25, s25, 3")
    a("s_add_u32 s25, s25, s33")
    a("s_lshr_b32 s26, s31, 1")
    a("s_lshl_b32 s26, s26, 2")
    a("s_add_u32 s26, s26, s32")
    if cfg.get("norot"): a("s_mov_b32 s27, 0")
    elif cfg.get("rot2"):
        a("s_add_u32 s27, s33, s32")
        a("s_and_b32 s27, s27, 1")
        a("s_mul_i32 s27, s27, 5")
    elif cfg.get("rot4"):
        a("s_add_u32 s27, s33, s32")
        a("s_and_b32 s27, s27, 3")
        a("s_mul_i32 s27, s27, 5")
        a("s_lshr_b32 s27, s27, 1")
    else:
        a("s_mul_i32 s33, s33, 5")
        a("s_mul_i32 s32, s32, 10")
        a("s_add_u32 s27, s33, s32")
        a("s_lshr_b32 s27, s27, 2")
        a("s_cmp_ge_u32 s27, 10")
        a("s_cselect_b32 s31, 10, 0")
        a("s_sub_u32 s27, s27, s31")
    a("s_lshl_b32 s31, s26, 2")
    a("s_mul_i32 s28, s26, 3")
    a("s_add_u32 s28, s28, 12")
    a("s_min_u32 s28, s28, s31")
    a("s_lshl_b32 s30, s24, 11")
    a(f"s_lshl_b32 s31, s25, 7")
    a(f"s_lshl_b32 s32, s24, 4")
    a(f"s_add_u32 s31, s31, s32")
    a(f"v_lshrrev_b32 v{t0}, 3, v{vL}")
    a(f"v_lshrrev_b32 v{t1}, 4, v{vL}")
    a(f"v_and_b32 v{t2}, 7, v{vL}")
    a(f"v_xor_b32 v{t2}, v{t2}, v{t1}")
    a(f"v_add_u32 v{t0}, s31, v{t0}")
    a(f"v_mul_u32_u24 v{t0}, 1280, v{t0}")
    a(f"v_lshl_add_u32 v{vXS}, v{t2}, 4, v{t0}")
    a(f"v_xor_b32 v{vXS+1}, 64, v{vXS}")
    a(f"v_add_u32 v{vXS+1}, {8*1280}, v{vXS+1}")
    a(f"v_bfe_u32 v{t4}, v{vL}, 2, 2")
    a(f"v_xor_b32 v{t4}, v{t4}, v{t1}")
    a(f"v_and_b32 v{t2}, 3, v{vL}")
    a(f"v_lshlrev_b32 v{t2}, 4, v{t2}")
    a(f"v_lshl_add_u32 v{t2}, v{t4}, 6, v{t2}")
    a(f"s_lshl_b32 s31, s24, 3")
    a(f"v_add_u32 v{t0}, s31, v{t1}")
    a(f"v_mul_u32_u24 v{t3}, 3840, v{t0}")
    a(f"s_lshl_b32 s31, s28, 6")
    a(f"v_add3_u32 v{vWS}, v{t3}, v{t2}, s31")
    a(f"v_cmp_eq_u32 vcc, 3, v{t4}")
    a(f"v_mov_b32 v{t5}, 0x{OOB:x}")
    a(f"s_cmp_ge_u32 s26, 12")
    a(f"s_cselect_b64 s[36:37], vcc, 0")
    a(f"s_lshr_b32 s34, s24, 2")
    a(f"v_cndmask_b32 v{vWS}, v{vWS}, v{t5}, s[36:37]")
    a("s_waitcnt lgkmcnt(0)")
    srd_tail(a, SX, 2048*1280); srd_tail(a, SW, 640*3840)

    def adv_k():
        return [f"s_add_u32 s{sK}, s{sK}, 1", f"s_cmp_eq_u32 s{sK}, 10", f"s_cselect_b32 s{sK}, 0, s{sK}"]
    def dma_groups(t):
        slot = t % 4
        g = []
        if t < 10:
            g.append([f"s_lshl_b32 s{sT0}, s{sK}, 7", f"s_add_u32 m0, s{sM0}, {slot*16384}", f"s_mul_i32 s{sT1}, s{sK}, {64*3840}",
                      f"buffer_load_dwordx4 v{vXS}, s[{SX}:{SX+3}], s{sT0} offen lds"])
            g.append([f"s_add_u32 m0, s{sM0}, {slot*16384+1024}", f"s_add_u32 s{sT2}, s{sT1}, {4*3840}",
                      f"buffer_load_dwordx4 v{vXS+1}, s[{SX}:{SX+3}], s{sT0} offen lds"])
            g.append([f"s_add_u32 m0, s{sM0}, {65536+slot*16384}", adv_k()[0],
                      f"buffer_load_dwordx4 v{vWS}, s[{SW}:{SW+3}], s{sT1} offen lds"])
            g.append([f"s_add_u32 m0, s{sM0}, {65536+slot*16384+1024}"] + adv_k()[1:] + [
                      f"buffer_load_dwordx4 v{vWS}, s[{SW}:{SW+3}], s{sT2} offen lds"])
        elif t < 15:
            for half in range(2):
                base = (65536 if half == 0 else 0) + slot*16384
                g.append([f"s_mul_i32 s{sT1}, s{sK}, {64*3072}", f"s_add_u32 m0, s{sM0}, {base}", f"s_add_u32 s{sT2}, s{sT1}, {4*3072}",
                          f"buffer_load_dwordx4 v{vW1S}, s[{SW1}:{SW1+3}], s{sT1} offen lds"])
                g.append([f"s_add_u32 m0, s{sM0}, {base+1024}"] + adv_k() + [
                          f"buffer_load_dwordx4 v{vW1S}, s[{SW1}:{SW1+3}], s{sT2} offen lds"])
        return g
    a("s_mov_b32 s29, s27")
    stamp(a, "karg")
    for g in dma_groups(0):
        for l in g: a(l)
    a("s_and_b32 s35, s24, 3")
    a("s_cmp_ge_u32 s26, 12")
    a("s_cselect_b32 s38, s34, 0")
    srd_tail(a, SG, 1280)
    a("s_cmp_eq_u32 s38, 1")
    a("s_cbranch_scc1 L_gate")
    a.label("L_gate_ret")
    def gate(a):
        u0, u1, u2 = vEP, vEP+1, vEP+2
        a.label("L_gate")
        a(f"s_lshl_b32 s31, s29, 3")
        for i in range(2):
            a(f"v_add_u32 v{u0}, {64*i}, v{vL}")
            a(f"v_add_u32 v{u1}, s31, v{u0}")
            a(f"v_subrev_u32 v{u2}, 80, v{u1}")
            a(f"v_cmp_le_u32 vcc, 80, v{u1}")
            a(f"s_lshl_b32 s32, s35, 11")
            a(f"s_add_u32 m0, s32, {131072 + 1024*i}")
            a(f"v_cndmask_b32 v{u1}, v{u1}, v{u2}, vcc")
            a(f"v_lshlrev_b32 v{u1}, 4, v{u1}")
            a(f"v_cmp_le_u32 vcc, 80, v{u0}")
            a("s_nop 1")
            a(f"v_cndmask_b32 v{u1}, v{u1}, v{t5}, vcc")
            a(f"buffer_load_dwordx4 v{u1}, s[{SG}:{SG+3}], 0 offen lds")
        a("s_branch L_gate_ret")
    late.append(gate)
    a("s_barrier")
    for g in dma_groups(1):
        for l in g: a(l)
    stamp(a, "dma1")
    srd_tail(a, SW1, 640*3072); srd_tail(a, SWS, WS_END); srd_tail(a, SDBG, 256)
    a("s_or_b32 s31, s2, s24")
    a("s_cmp_eq_u32 s31, 0")
    a("s_cbranch_scc1 L_tag")
    a.label("L_tag_ret")
    def tag(a):
        a.label("L_tag")
        a(f"s_memrealtime s[{sNON}:{sNON+1}]")
        a(f"v_mov_b32 v{vEP+2}, 0")
        a("s_waitcnt lgkmcnt(0)")
        a(f"s_or_b32 s31, s{sNON}, 1")
        a(f"v_mov_b32 v{vEP}, s31")
        a(f"v_mov_b32 v{vEP+1}, s{sNON+1}")
        a("s_mov_b64 exec, 1")
        a(f"buffer_store_dwordx2 v[{vEP}:{vEP+1}], v{vEP+2}, s[{SDBG}:{SDBG+3}], 0 offen {ST}")
        a("s_mov_b64 exec, -1")
        a("s_branch L_tag_ret")
    late.append(tag)
    a(f"v_mul_u32_u24 v{t3}, 3072, v{t0}")
    a(f"s_mul_i32 s31, s26, 192")
    a(f"v_add3_u32 v{vW1S}, v{t3}, v{t2}, s31")
    a(f"v_cmp_eq_u32 vcc, 3, v{t4}")
    a(f"v_and_b32 v{t0}, 31, v{vL}")
    a(f"s_lshl_b32 s31, s35, 5")
    a(f"v_cndmask_b32 v{vW1S}, v{vW1S}, v{t5}, vcc")
    a(f"v_mul_u32_u24 v{t1}, 43, v0")
    a(f"v_lshrrev_b32 v{t1}, 8, v{t1}")
    a(f"v_mul_u32_u24 v{t2}, {3072-6*128}, v{t1}")
    a(f"v_lshl_add_u32 v{t2}, v0, 7, v{t2}")
    a("s_lshr_b32 s32, s2, 3"); a(f"s_mul_i32 s32, s32, {20*3072}")
    a("s_bfe_u32 s33, s2, 0x20001"); a("s_mul_i32 s33, s33, 768"); a("s_add_u32 s32, s32, s33")
    a(f"v_cmp_gt_u32 vcc, 120, v0")
    a(f"v_add_u32 v{t2}, s32, v{t2}")
    a("s_nop 0")
    a(f"v_cndmask_b32 v{vNON+1}, v{t5}, v{t2}, vcc")
    a(f"v_add_u32 v{t0}, s31, v{t0}")
    a(f"v_bfe_u32 v{t1}, v{t0}, 1, 3")
    a(f"v_lshrrev_b32 v{t2}, 5, v{vL}")
    a(f"v_xor_b32 v{t1}, v{t1}, v{t2}")
    a(f"v_lshlrev_b32 v{t1}, 4, v{t1}")
    a(f"v_lshl_add_u32 v{vXR}, v{t0}, 7, v{t1}")
    for ks in range(1, 4):
        a(f"v_xor_b32 v{vXR+ks}, {ks<<5}, v{vXR}")
    a(f"v_bfe_u32 v{t0}, v{vL}, 2, 2")
    a(f"v_lshl_add_u32 v{t1}, v{t2}, 3, v{t0}")
    a(f"v_lshlrev_b32 v{t1}, 8, v{t1}")
    a(f"v_bfe_u32 v{t3}, v{vL}, 4, 1")
    a(f"v_lshl_add_u32 v{t1}, v{t3}, 5, v{t1}")
    a(f"v_and_b32 v{t3}, 3, v{vL}")
    a(f"v_lshl_add_u32 v{t1}, v{t3}, 3, v{t1}")
    for e in range(2):
        a(f"s_lshl_b32 s31, s34, 1")
        a(f"s_add_u32 s31, s31, {e}")
        a(f"v_xor_b32 v{t3}, s31, v{t0}")
        a(f"v_lshl_add_u32 v{vWR2+e}, v{t3}, 6, v{t1}")
        a(f"v_add_u32 v{vWR+e}, 0x10000, v{vWR2+e}")
    a(f"s_lshl_b32 s31, s35, 11")
    a(f"s_add_u32 s31, s31, 131072")
    a(f"v_lshl_add_u32 v{vGR}, v{t2}, 4, s31")
    a("s_cmp_ge_u32 s26, 10")
    a("s_cbranch_scc1 L_p1_v")
    a("s_cmp_ge_u32 s26, 5")
    a(f"s_cselect_b32 s31, 1, 0")
    a(f"s_lshl_b32 s39, 81920, s31")
    a(f"s_lshl_b32 s40, 5120, s31")
    a("s_cmp_ge_u32 s26, 5")
    a(f"s_cselect_b32 s41, {WS_KV}, {WS_Q}")
    a(f"s_cselect_b32 s42, 20, 0")
    a("s_mul_i32 s40, s40, s25")
    a("s_add_u32 s40, s40, s41")
    a("s_sub_u32 s42, s28, s42")
    a("s_lshl_b32 s31, s34, 1")
    a("s_add_u32 s42, s42, s31")
    a("s_lshl_b32 s42, s42, 2")
    a("s_and_b32 s31, s35, 1")
    a("s_lshl_b32 s31, s31, 8")
    a("s_add_u32 s40, s40, s31")
    a("s_lshr_b32 s31, s35, 1")
    a("s_lshl_b32 s41, s31, 11")
    a("s_lshl_b32 s31, s31, 9")
    a("s_add_u32 s33, s31, 4096")
    a(f"v_and_b32 v{t0}, 15, v{vL}")
    a(f"v_lshl_add_u32 v{t0}, v{t0}, 4, s40")
    a(f"v_add_u32 v{t2}, s42, v{t2}")
    a(f"v_bfe_u32 v{t5}, v{vL}, 4, 1")
    a(f"v_lshl_add_u32 v{t6}, v{t5}, 10, s41")
    a(f"v_mov_b32 v{vGR}, s33")
    QM = [36, 40, 42, 0]
    for i in range(4):
        u0 = vT+7
        a(f"v_add_u32 v{t1}, {2*i}, v{t2}")
        a(f"v_mul_u32_u24 v{t3}, 205, v{t1}")
        a(f"v_lshrrev_b32 v{t3}, 10, v{t3}")
        a(f"v_mul_u32_u24 v{t4}, 5, v{t3}")
        a(f"v_sub_u32 v{t1}, v{t1}, v{t4}")
        a(f"v_cmp_le_u32 vcc, 3, v{t1}")
        a(f"v_cmp_eq_u32 s[{QM[i]}:{QM[i]+1}], 2, v{t1}")
        a(f"v_subrev_u32 v{u0}, 3, v{t1}")
        a(f"v_cndmask_b32 v{t4}, 0, 1, vcc")
        a(f"v_cndmask_b32 v{t1}, v{t1}, v{u0}, vcc")
        a(f"v_cndmask_b32 v{t4}, v{t4}, v{t5}, s[{QM[i]}:{QM[i]+1}]")
        a(f"v_lshl_add_u32 v{t3}, v{t3}, 1, v{t4}")
        a(f"v_mul_lo_u32 v{t3}, v{t3}, s39")
        a(f"v_lshl_add_u32 v{t1}, v{t1}, 9, v{t6}")
        a(f"v_cndmask_b32 v{t1}, v{t1}, v{vGR}, s[{QM[i]}:{QM[i]+1}]")
        a(f"v_add3_u32 v{vEP+i}, v{t0}, v{t3}, v{t1}")
    a(f"v_lshrrev_b32 v{t1}, 1, v{vL}")
    a(f"v_xor_b32 v{t1}, v{t1}, v{vL}")
    a(f"v_and_b32 v{t1}, 1, v{t1}")
    a(f"v_mul_u32_u24 v{vGR}, 24, v{t1}")
    for e in range(2): a(f"v_xor_b32 v{vWR+e}, v{vWR+e}, v{vGR}")
    def ep_v():
        a("s_sub_u32 s42, s28, 40")
        a("s_lshl_b32 s31, s34, 1")
        a("s_add_u32 s42, s42, s31")
        a("s_lshl_b32 s42, s42, 5")
        a("s_mul_i32 s40, s25, 10240")
        a("s_lshr_b32 s31, s35, 1")
        a("s_mul_i32 s31, s31, 2560")
        a("s_add_u32 s40, s40, s31")
        a("s_and_b32 s31, s35, 1")
        a("s_mul_i32 s31, s31, 640")
        a("s_add_u32 s40, s40, s31")
        a(f"s_add_u32 s40, s40, {WS_KV + 5120}")
        a(f"s_mov_b32 s39, 163840")
        a(f"v_and_b32 v{t0}, 31, v{vL}")
        a(f"v_mul_u32_u24 v{t2}, 320, v{t2}")
        a(f"v_add_u32 v{t2}, s40, v{t2}")
        for e in range(2):
            a(f"v_add_u32 v{t1}, s42, v{t0}")
            if e: a(f"v_add_u32 v{t1}, 32, v{t1}")
            a(f"v_mul_u32_u24 v{t3}, 3277, v{t1}")
            a(f"v_lshrrev_b32 v{t3}, 16, v{t3}")
            a(f"v_mul_u32_u24 v{t4}, 20, v{t3}")
            a(f"v_sub_u32 v{t1}, v{t1}, v{t4}")
            a(f"v_mul_lo_u32 v{t3}, v{t3}, s39")
            a(f"v_lshl_add_u32 v{t1}, v{t1}, 4, v{t2}")
            a(f"v_add_u32 v{vEP+2*e}, v{t1}, v{t3}")
            a(f"v_add_u32 v{vEP+2*e+1}, 1280, v{vEP+2*e}")

    def p1_reads(variant, step):
        t, ks = divmod(step, 4)
        slot = t % 4; wb = WBS[step % 3]
        r = [f"ds_read_b128 {vr(X+4*step,4)}, v{vXR+ks} offset:{slot*16384}"]
        for e in range(2):
            if variant == "VG" and e == 1:
                r.append(f"ds_read_b128 {vr(wb+4,4)}, v{vGR} offset:{t*128+ks*32}")
            else:
                for u in range(2):
                    r.append(f"ds_read_b64_tr_b16 {vr(wb+4*e+2*u,2)}, v{vWR+e} offset:{slot*16384+ks*4096+u*1024}")
        return r
    def mf(acc, A, B, first):
        return f"v_mfma_f32_32x32x16_bf16 {vr(acc,16)}, {vr(A,4)}, {vr(B,4)}, " + ("0" if first else vr(acc,16))
    class LQ:
        def __init__(self, p1=False): self.q = []; self.p1 = p1
        def rd(self, lines, tag):
            for l in lines:
                if cfg.get("x_nox") and "b128" in l: l = "s_nop 0"
                elif cfg.get("x_now") and "_tr_" in l and "offset" in l and self.p1: l = "s_nop 0"
                else: self.q.append(tag)
                a(l)
        def wait(self, tag):
            if tag not in self.q: return
            n = len(self.q) - 1 - max(i for i, x in enumerate(self.q) if x == tag)
            a(f"s_waitcnt lgkmcnt({min(n, 15)})")
    uid = [0]
    def site(stage, sg, extra=None):
        uid[0] += 1
        a(f"s_cmp_eq_u32 s34, {sg}")
        a(f"s_cbranch_scc0 L_site{uid[0]}")
        for g in dma_groups(stage):
            for l in g:
                if cfg.get("x_nodma") and stage < 10 and l.startswith("buffer_load"): l = l.replace(f"v{vXS},", f"v{vNON},").replace(f"v{vXS+1},", f"v{vNON},").replace(f"v{vWS},", f"v{vNON},")
                if cfg.get("x_skipdma") and stage < 10 and l.startswith("buffer_load"): continue
                a(l)
        for l in extra or []: a(l)
        a.label(f"L_site{uid[0]}")
    TAGT = 5
    NOLG = cfg.get("nolg")
    def p1_main(variant):
        for g in dma_groups(2):
            for l in g: a(l)
        WT = int(cfg.get("wt", 1)); assert WT+3 < TAGT+1
        warm = [] if not cfg.get("warm") else [f"buffer_load_dword v{vNON}, v{vNON+1}, s[{SW1}:{SW1+3}], 0 offen"]
        stamp(a, "p1_pre")
        a(f"s_waitcnt vmcnt(8)")
        a("s_barrier")
        stamp(a, "p1_first")
        if cfg.get("x_nodma"): a(f"v_mov_b32 v{vNON}, 0x{OOB:x}")
        lq = LQ(True)
        for st in range(2):
            rd = p1_reads(variant, st); lq.rd(rd[:3], (st, 0)); lq.rd(rd[3:], (st, 1))
        if variant != "VG": site(3, 0)
        tagld = [f"buffer_load_dwordx2 v[{vNON}:{vNON+1}], off, s[{SDBG}:{SDBG+3}], 0 {LDF}"]
        for step in range(40):
            t, ks = divmod(step, 4)
            rd = p1_reads(variant, step+2) if step < 38 else []
            for e in range(2):
                w = WBS[step % 3]+4*e; x = X+4*step
                swap = (variant == "VV") or (variant == "VG" and e == 0)
                lq.wait((step, e))
                a(mf(ACC+16*e, x if swap else w, w if swap else x, step == 0))
                if ks == 2 and e == 0:
                    site(t+3, 1, tagld if t == TAGT+1 else warm if t == WT+1 else None)
                    stamp(a, f"p1_p{t}")
                    a(f"s_waitcnt vmcnt({9 if t in (TAGT+1, TAGT+2) or (warm and t in (WT+1, WT+2, WT+3)) else 8})" + ("" if NOLG else " lgkmcnt(0)"))
                    a("s_barrier")
                    stamp(a, f"p1_b{t}")
                lq.rd(rd[:3] if e == 0 else rd[3:], (step+2, e))
                if ks == 2 and e == 0 and variant != "VG":
                    site(t+4, 0, tagld if t == TAGT else warm if t == WT else None)
        site(13, 1)
        stamp(a, "p1_end")
    def v_epilogue(e):
        for s in range(2):
            d = PK[2*e+s]
            for c in range(4):
                r = ACC + 16*e + 8*s + 2*c
                a(f"v_cvt_pk_bf16_f32 v{d+c}, v{r}, v{r+1}")
            a("s_nop 1")
            a(f"v_permlane32_swap_b32 v{d}, v{d+2}")
            a(f"v_permlane32_swap_b32 v{d+1}, v{d+3}")

    p1_main("QK")
    a("s_cmp_ge_u32 s26, 5")
    a(f"s_cselect_b32 s31, 1.0, 0x{QSCALE:x}")
    for e in range(2): a(f"v_xor_b32 v{vWR+e}, v{vWR+e}, v{vGR}")
    a("s_nop 5")
    for i in range(4):
        r = ACC + 8*i; d = PK[i]
        for c in range(8): a(f"v_mul_f32 v{r+c}, s31, v{r+c}")
        for c in range(4): a(f"v_cvt_pk_bf16_f32 v{d+c}, v{r+2*c}, v{r+2*c+1}")
        a(f"s_mov_b64 exec, s[{QM[i]}:{QM[i]+1}]")
        a("s_nop 0")
        a(f"v_permlane16_swap_b32 v{d}, v{d+2}")
        a(f"v_permlane16_swap_b32 v{d+1}, v{d+3}")
        a("s_mov_b64 exec, -1")
    def vpart(a2):
        assert a2 is a
        a.label("L_p1_v")
        ep_v()
        a("s_cmp_eq_u32 s38, 1")
        a("s_cbranch_scc1 L_p1_vg")
        p1_main("VV")
        a("s_nop 7"); a("s_nop 1")
        v_epilogue(0); v_epilogue(1)
        a("s_branch L_p2")
        a.label("L_p1_vg")
        for i in (2, 3): a(f"v_mov_b32 v{vEP+i}, 0x{OOB:x}")
        p1_main("VG")
        a("s_nop 7"); a("s_nop 1")
        v_epilogue(0)
        z = ACC + 16
        a(f"v_cvt_pk_bf16_f32 v{z}, v{z}, v{z}")
        a(f"v_and_b32 v{z}, 0xffff0000, v{z}")
        a(f"v_mul_f32 v{z}, 0x{f32bits(-math.log2(math.e)):x}, v{z}")
        a(f"v_exp_f32 v{z}, v{z}")
        a("s_nop 0")
        a(f"v_add_f32 v{z}, 1.0, v{z}")
        a(f"v_rcp_f32 v{z}, v{z}")
        a(f"s_lshl_b32 s31, s25, 9")
        a(f"s_lshl_b32 s32, s35, 7")
        a(f"v_cvt_pk_bf16_f32 v{z}, v{z}, v{z}")
        a(f"v_and_b32 v{z}, 0xffff0000, v{z}")
        a(f"s_add_u32 s31, s31, s32")
        a(f"s_add_u32 s31, s31, {WS_G}")
        a(f"v_and_b32 v{z+1}, 31, v{vL}")
        a(f"v_lshlrev_b32 v{z+1}, 2, v{z+1}")
        a("s_cmp_eq_u32 s26, 15")
        a("s_cbranch_scc0 L_p2")
        a(f"buffer_store_dword v{z}, v{z+1}, s[{SWS}:{SWS+3}], s31 offen {ST}")
        a("s_branch L_p2")
    late.insert(0, vpart)
    a.label("L_p2")
    a(f"v_readfirstlane_b32 s{sNON}, v{vNON}")
    a(f"v_readfirstlane_b32 s{sNON+1}, v{vNON+1}")
    a("s_nop 0")
    a(f"s_cmp_eq_u32 s{sNON}, 0")
    a("s_cbranch_scc1 L_tagw")
    a.label("L_tagw_ret")
    def tagw(a):
        a.label("L_tagw")
        a(f"s_mov_b32 s31, {SPIN}")
        a.label("L_tagw_l")
        a(f"buffer_load_dwordx2 v[{vNON}:{vNON+1}], off, s[{SDBG}:{SDBG+3}], 0 {LDF}")
        a("s_sub_u32 s31, s31, 1")
        a("s_cmp_eq_u32 s31, 0")
        a("s_cbranch_scc1 L_tagw_ret")
        a("s_waitcnt vmcnt(0)")
        a(f"v_readfirstlane_b32 s{sNON}, v{vNON}")
        a(f"v_readfirstlane_b32 s{sNON+1}, v{vNON+1}")
        a("s_nop 0")
        a(f"s_cmp_eq_u32 s{sNON}, 0")
        a("s_cbranch_scc1 L_tagw_l")
        a("s_branch L_tagw_ret")
    late.append(tagw)
    def p2_reads(ns, step):
        D, rem = divmod(step, 8); half, ks = divmod(rem, 4)
        slot = (10 + D) % 4; wb = WBS[step % 3]
        base = vWR if half == 0 else vWR2
        return [f"ds_read_b64_tr_b16 {vr(wb+4*e+2*u,2)}, v{base+e} offset:{slot*16384+ks*4096+u*1024}" for e in range(ns) for u in range(2)]
    fillA, fillB = setup_later(cfg, vL)
    SIG = int(cfg.get("sig1", 14)); POLL1 = int(cfg.get("poll1", 31)); CHK1 = int(cfg.get("chk1", 37))
    STS = {2: [int(x) for x in cfg.get("sts", "0,1,2,3").split(",")], 1: [0, 1, 2, 3]}
    def first_loads(ns):
        r = [f"buffer_load_dwordx4 {vr(aQ1,4)}, v{vD}, s[{SWS}:{SWS+3}], s32 offen {LDF}",
             f"buffer_load_dwordx4 {vr(aQ1+4,4)}, v{vD}, s[{SWS}:{SWS+3}], s32 offen offset:1024 {LDF}",
             f"buffer_load_dwordx4 {vr(aK2,4)}, v12, s[{SWS}:{SWS+3}], s33 offen {LDF}"]
        if ns == 1:
            g = kv_dma(0)
            r = g[0] + g[1] + g[2][:3] + ["s_sub_u32 m0, s35, 81920", "s_sub_u32 s37, s37, 81920"] + g[0][3:] + g[1] + g[2][:3] + r
        return r + ["s_add_u32 s36, s36, 1", "s_and_b32 s36, s36, 7"]
    def p2_main(ns):
        stamp(a, "p2_start")
        vm = VM()
        for st in (11, 12, 13): vm.add(f"s{st}", 4)
        lq = LQ()
        for st in range(2):
            rd = p2_reads(ns, st)
            for e in range(ns): lq.rd(rd[2*e:2*e+2], (st, e))
        fa = list(fillA); fb = list(fillB)
        for step in range(40):
            D, rem = divmod(step, 8)
            rd = p2_reads(ns, step+2) if step < 38 else []
            for e in range(ns):
                lq.wait((step, e))
                a(mf(ACC+16*e, WBS[step % 3]+4*e, X+4*step, step == 0))
                bar = rem == 6 and D < 4
                if e == 0 and (bar or step == SIG):
                    need = ([f"s{11+D}"] if bar else []) + (["st"] if step == SIG else [])
                    stamp(a, f"p2_p{D}" if bar else "p2_ps")
                    a(f"s_waitcnt vmcnt({vm.after(*need)})" + (" lgkmcnt(0)" if (D == 0 and not NOLG) else ""))
                    a("s_barrier")
                    stamp(a, f"p2_b{D}" if bar else "p2_bs")
                lq.rd(rd[2*e:2*e+2], (step+2, e))
                if e == 0 and step == 6:
                    for g in dma_groups(14):
                        for l in g: a(l)
                    vm.add("s14", 4)
                if e == 0 and step == SIG and ns == 1:
                    for l in flag_store(sF1, 8): a(l)
                    vm.add("flag")
                if e == ns-1 and step in STS[ns]:
                    i = STS[ns].index(step)
                    a(f"buffer_store_dwordx4 {vr(PK[i],4)}, v{vEP+i}, s[{SWS}:{SWS+3}], 0 offen {ST}")
                    vm.add("st")
                poll = "\n".join(poll_ld(vP1, 4, vEP))
                if e == 0 and step == POLL1 and ns == 1:
                    a("s_cmp_eq_u32 s24, 4"); a("s_cbranch_scc0 L_p1s")
                    for i in (0, 2): a(f"v_mov_b32 v{vEP+i}, 0")
                    a(poll)
                    a.label("L_p1s")
                if e == 0 and step == CHK1:
                    assert not fa and CHK1 >= 31
                    a(f"v_mov_b32 v14, {139264}")
                    if ns == 1:
                        a("s_cmp_eq_u32 s24, 4"); a("s_cbranch_scc0 L_c1s")
                        if cfg.get("blk"): a("s_waitcnt vmcnt(0)")
                        for l in flag_test(vEP, 4, 46): a(l)
                        a("s_or_b32 s14, vcc_lo, vcc_hi")
                        a("v_mov_b32 v13, s14")
                        a("s_mov_b64 exec, 1")
                        a("ds_write_b32 v14, v13")
                        a("s_mov_b64 exec, -1")
                        a(poll)
                        a("s_waitcnt lgkmcnt(0)")
                        a.label("L_c1s")
                    a("s_barrier")
                    lq.rd(["ds_read_b32 v13, v14"], "chk")
                if e == 0 and step == CHK1+1:
                    lq.wait("chk")
                    a("v_readfirstlane_b32 s14, v13")
                    a("s_cmp_eq_u32 s14, 0")
                    a(f"s_cbranch_scc0 L_early{ns}")
                    for l in first_loads(ns): a(l)
                    a.label(f"L_early{ns}")
                if step >= 7:
                    for _ in range(8 // ns):
                        if fa: a(fa.pop(0))
                        elif fb and step > max(STS[2]): a(fb.pop(0))
        assert not fa and not fb, (fa, fb)
        stamp(a, "p2_end")
        a(f"v_bfe_u32 v{aS}, v{vD}, 4, 5")
        a(f"v_mov_b32 v{aS+1}, 0x3f803f80")
        a(f"v_cmp_eq_u32 vcc, 20, v{aS}")
        for i in range(32): a(f"v_mov_b32 v{aO+i}, 0")
        a(f"v_mov_b32 v{aIDX}, 0xdddddddd")
        for i in range(8): a(f"v_cndmask_b32 v{aV+i}, 0, v{aS+1}, vcc")
        for e in range(ns):
            for s in range(2):
                d = HPK + 8*e + 4*s
                for c in range(4):
                    r = ACC + 16*e + 8*s + 2*c
                    a(f"v_max_f32 v{r}, 0, v{r}")
                    a(f"v_max_f32 v{r+1}, 0, v{r+1}")
                    a(f"v_cvt_pk_bf16_f32 v{d+c}, v{r}, v{r+1}")
        a(f"v_mov_b32 v{HPK+16}, " + (f"v{vD}" if ns == 2 else f"0x{OOB:x}"))
        a(f"v_lshrrev_b32 v2, 2, v12")
        a(f"v_and_b32 v3, 64, v2")
        a(f"v_add_u32 v{aG}, v2, v3")
        a(f"v_bfe_u32 v2, v{vD}, 8, 1")
        a(f"v_mul_u32_u24 v2, {32768-256}, v2")
        a(f"v_add_u32 v{aOA}, v2, v{vD}")
        a("s_lshr_b32 s31, s24, 1")
        for j in range(5):
            if j < 4: a(f"s_xor_b32 s13, s31, {j}"); a("s_lshl_b32 s13, s13, 5")
            a(f"v_add_u32 v{vRA+j}, {'s13' if j < 4 else 128}, v{vR4}")
            a(f"v_add_u32 v{vRA7+j}, {7*10240}, v{vRA+j}")
        a("s_lshl_b32 s31, s24, 6")
        a(f"v_lshrrev_b32 v2, 4, v{vD}")
        a(f"v_add_u32 v2, s31, v2")
        a(f"v_mul_u32_u24 v3, 205, v2")
        a(f"v_lshrrev_b32 v3, 10, v3")
        a(f"v_mul_u32_u24 v3, {1280-5*128}, v3")
        a(f"v_lshl_add_u32 v3, v2, 7, v3")
        a("s_lshr_b32 s31, s2, 3"); a(f"s_mul_i32 s31, s31, {20*1280}")
        a("s_and_b32 s13, s2, 1"); a("s_mul_i32 s13, s13, 640"); a("s_add_u32 s31, s31, s13")
        a(f"v_cmp_gt_u32 vcc, 100, v2")
        a(f"v_add_u32 v3, s31, v3")
        a(f"v_mov_b32 v2, 0x{OOB:x}")
        for i in range(4): a(f"v_mov_b32 v{vSENT+i}, -1")
        a(f"v_cndmask_b32 v{vWARM}, v2, v3, vcc")
        stamp(a, "at_init")
        a("s_cmp_eq_u32 s14, 0")
        a(f"s_cbranch_scc0 L_late{ns}")
        a.label(f"L_late{ns}_ret")
        def lateload(a):
            a.label(f"L_late{ns}")
            if ns == 1:
                a("s_cmp_eq_u32 s24, 4")
                a("s_cbranch_scc0 L_w1_ret")
                a("s_waitcnt vmcnt(0)")
                for l in flag_test(vEP, 4, 46): a(l)
                a("s_cbranch_vccnz L_w1")
                a.label("L_w1_ret")
            a("s_barrier")
            for l in first_loads(ns): a(l)
            a(f"s_branch L_late{ns}_ret")
            if ns == 1: spin(a, "L_w1", vP1, 4, vEP, 31, 46)
        late.append(lateload)
    a("s_cmp_eq_u32 s34, 0")
    a("s_cbranch_scc0 L_p2_1")
    p2_main(2)
    def p2one(a2):
        a.label("L_p2_1")
        p2_main(1)
        a("s_branch L_p2_done")
    late.insert(0, p2one)
    a.label("L_p2_done")

def setup_later(cfg, vL):
    t0, t1, t2, t3, t4, t5, t6 = range(7)
    A = Asm(); B = Asm()
    a = A
    a(f"v_lshlrev_b32 v{vD}, 4, v{vL}")
    a(f"v_and_b32 v12, 0x1ff, v{vD}")
    a("s_lshl_b32 s31, s25, 2"); a("s_add_u32 s31, s31, s35"); a("s_mul_i32 s31, s31, 98304"); a("s_mul_i32 s32, s26, 3")
    a("s_lshl_b32 s33, s34, 1"); a("s_add_u32 s32, s32, s33"); a("s_lshl_b32 s32, s32, 11"); a("s_add_u32 s31, s31, s32")
    a(f"s_add_u32 s{sHE}, s31, {WS_H}")
    a(f"s_lshl_b32 s39, s25, {FS+4}"); a(f"s_lshl_b32 s40, s26, {FS}"); a("s_add_u32 s39, s39, s40"); a(f"s_add_u32 s39, s39, {FL2}")
    a("s_cmp_eq_u32 s24, 0"); a(f"s_cselect_b32 s{sF2}, s39, 0x{OOB:x}")
    a(f"s_lshl_b32 s39, s26, {FS+4}"); a(f"s_lshl_b32 s40, s25, {FS}"); a("s_add_u32 s39, s39, s40"); a(f"s_add_u32 s39, s39, {FL1}")
    a("s_cmp_eq_u32 s24, 4"); a(f"s_cselect_b32 s{sF1}, s39, 0x{OOB:x}")
    a("s_mov_b32 s27, s34"); a("s_mov_b32 s28, s35")
    a("s_mul_i32 s0, s27, 81920"); a("s_mul_i32 s32, s28, 2560"); a(f"s_add_u32 s35, s0, s32")
    a("s_and_b32 s3, s24, 1"); a("s_sub_u32 s32, 3, s27"); a("s_mul_i32 s32, s32, s3"); a("s_mul_i32 s33, s27, 6"); a("s_add_u32 s12, s32, s33")
    a("s_bfe_u32 s13, s24, 0x10001"); a("s_mul_i32 s32, s13, 81920"); a("s_lshl_b32 s33, s12, 10"); a(f"s_add_u32 s{sM4}, s32, s33")
    a(f"s_mul_i32 s{sW2B}, s13, {64*1280}"); a(f"s_mul_i32 s{sWOB}, s13, {4*25600}"); a(f"s_mul_i32 s{sWOR}, s13, {4*102400}")
    a("s_lshl_b32 s12, s12, 6")
    a("s_and_b32 s31, s2, 7"); a("s_lshr_b32 s33, s2, 6"); a("s_bfe_u32 s26, s2, 0x30003")
    a("s_lshl_b32 s25, s31, 2"); a("s_add_u32 s25, s25, s33")
    a(f"s_lshl_b32 s39, s26, {FS+5}"); a(f"s_lshl_b32 s40, s25, {FS}"); a("s_add_u32 s39, s39, s40"); a(f"s_add_u32 s39, s39, {FL3}")
    a("s_cmp_eq_u32 s24, 0"); a(f"s_cselect_b32 s{sF3}, s39, 0x{OOB:x}")
    a(f"v_lshrrev_b32 v{t0}, 4, v{vL}")
    a(f"v_add_u32 v{t0}, 1, v{t0}")
    a(f"v_mul_u32_u24 v{t1}, 640, v{t0}")
    a(f"v_cmp_eq_u32 vcc, 3, v{t0}")
    a(f"s_mul_i32 s39, s25, 20")
    a(f"v_bfe_u32 v{t3}, v{vL}, 3, 1")
    a(f"v_cndmask_b32 v{t1}, v{t1}, 0, vcc")
    a(f"v_mul_u32_u24 v{t3}, 19, v{t3}")
    a(f"v_add3_u32 v{t1}, v{t1}, v{t3}, s39")
    a(f"v_min_u32 v{t1}, 1919, v{t1}")
    a(f"v_lshrrev_b32 v{t1}, 5, v{t1}")
    a(f"v_lshrrev_b32 v{t3}, 2, v{t1}")
    a(f"v_subrev_u32 v{t4}, 12, v{t1}")
    a(f"v_mul_u32_u24 v{t4}, 43, v{t4}")
    a(f"v_lshrrev_b32 v{t4}, 7, v{t4}")
    a(f"v_cmp_le_u32 vcc, 48, v{t1}")
    a(f"v_and_b32 v{t0}, 7, v{vL}")
    a(f"v_lshlrev_b32 v{t0}, {FS+1}, v{t0}")
    a(f"v_cndmask_b32 v{t3}, v{t3}, v{t4}, vcc")
    a(f"v_lshl_add_u32 v{t3}, v{t3}, {FS+4}, v{t0}")
    a(f"v_add_u32 v{vP1}, {FL1}, v{t3}")
    a("s_lshr_b32 s39, s31, 1"); a("s_lshl_b32 s39, s39, 3"); a("s_add_u32 s39, s39, s26")
    a("s_and_b32 s40, s31, 1"); a("s_lshl_b32 s40, s40, 2"); a("s_add_u32 s40, s40, s33")
    a("s_mul_i32 s36, s26, 3"); a("s_lshr_b32 s36, s36, 1"); a("s_mul_i32 s33, s33, 3"); a("s_add_u32 s36, s36, s33")
    a("s_cmp_ge_u32 s36, 12"); a("s_cselect_b32 s33, 12, 0"); a(f"s_sub_u32 s{sKW}, s36, s33"); a(f"s_mov_b32 s{sKH}, s{sKW}")
    a("s_lshr_b32 s33, s24, 1"); a("s_lshl_b32 s31, s33, 11")
    a(f"s_mul_i32 s{sHB}, s39, {2*98304}"); a(f"s_add_u32 s{sHB}, s{sHB}, s31"); a(f"s_add_u32 s{sHB}, s{sHB}, {WS_H}")
    a(f"s_lshl_b32 s{sOB}, s39, 16"); a(f"s_add_u32 s{sOB}, s{sOB}, s31"); a(f"s_add_u32 s{sOB}, s{sOB}, {WS_O}")
    a(f"s_lshl_b32 s{sOR}, s39, 2"); a(f"s_add_u32 s{sOR}, s{sOR}, s33"); a(f"s_lshl_b32 s{sOR}, s{sOR}, 12"); a(f"s_add_u32 s{sOR}, s{sOR}, {WS_OR}")
    a("s_lshl_b32 s31, s39, 2"); a("s_add_u32 s31, s31, s3")
    a(f"s_lshl_b32 s{sG4}, s31, 6"); a(f"s_add_u32 s{sG4}, s{sG4}, {WS_G}")
    a(f"s_mul_i32 s{sOUTB}, s31, 20480"); a("s_mul_i32 s1, s40, 160"); a(f"s_add_u32 s{sOUTB}, s{sOUTB}, s1")
    a("s_lshr_b32 s40, s39, 1"); a(f"s_lshl_b32 s40, s40, {FS+4}"); a(f"s_add_u32 s40, s40, {FL2}")
    a("s_lshr_b32 s41, s39, 2"); a(f"s_lshl_b32 s41, s41, {FS+5}"); a(f"s_add_u32 s41, s41, {FL3}")
    a("s_mul_i32 s31, s25, 81920"); a("s_lshl_b32 s32, s26, 1"); a("s_lshr_b32 s33, s28, 1"); a("s_add_u32 s32, s32, s33")
    a("s_mul_i32 s32, s32, 5120"); a("s_add_u32 s31, s31, s32"); a("s_and_b32 s33, s28, 1"); a("s_lshl_b32 s32, s33, 11")
    a("s_add_u32 s32, s32, s31")
    a("s_lshl_b32 s33, s33, 9"); a("s_add_u32 s33, s33, s31"); a("s_add_u32 s33, s33, 4096")
    a("s_lshl_b32 s31, s26, 3"); a("s_lshl_b32 s29, s28, 1"); a("s_add_u32 s29, s31, s29")
    a("s_lshl_b32 s30, s29, 7"); a("s_lshl_b32 s31, s27, 6"); a("s_add_u32 s30, s30, s31"); a(f"s_add_u32 s30, s30, {WS_G}")
    a("s_mul_i32 s34, s25, 163840"); a("s_add_u32 s34, s34, s35"); a(f"s_add_u32 s34, s34, {WS_KV}")
    a(f"s_and_b32 s36, s26, {int(cfg.get('rot3', 0))}"); a("s_mov_b32 s38, 0x000fffff"); a("s_mov_b32 s39, 0x000fffff")
    a(f"s_mov_b64 s[{SW2}:{SW2+1}], s[46:47]"); a(f"s_mov_b32 s{SW2+2}, {1536*1280}")
    a(f"s_mov_b64 s[{SWO}:{SWO+1}], s[48:49]"); a(f"s_mov_b32 s{SWO+2}, {640*1280}")
    a(f"s_mov_b64 s[{SOUT}:{SOUT+1}], s[50:51]"); a(f"s_mov_b32 s{SOUT+2}, {2048*1280}")
    a(f"v_lshrrev_b32 v{t2}, 5, v{vL}")
    a(f"v_add_u32 v{vKA}, s0, v{vD}")
    a(f"v_and_b32 v{t0}, 31, v{vL}")
    a(f"v_mul_u32_u24 v{t3}, 320, v{t2}")
    a(f"v_lshl_add_u32 v{t3}, v{t0}, 4, v{t3}")
    a(f"v_add_u32 v{t3}, 5120, v{t3}")
    a(f"v_add_u32 v{vVA}, s0, v{t3}")
    a = B
    a(f"v_lshl_add_u32 v{t4}, v{t0}, {FS}, s41")
    a(f"v_and_b32 v{t0}, 15, v{vL}")
    a(f"v_lshl_add_u32 v{t5}, v{t0}, {FS}, s40")
    a(f"v_sub_u32 v{t5}, v{t5}, v{t4}")
    a(f"v_mul_lo_u32 v{t5}, v{t5}, v{t2}")
    a(f"v_add_u32 v{vP2}, v{t4}, v{t5}")
    a("s_mul_i32 s31, s13, 5120")
    a("s_add_u32 s31, s31, s0")
    a(f"v_mul_u32_u24 v{t3}, 2560, v{t2}")
    a(f"v_bfe_u32 v{t1}, v{vL}, 2, 3")
    a(f"v_mul_u32_u24 v{t1}, 160, v{t1}")
    a(f"v_and_b32 v{t4}, 3, v{vL}")
    a(f"v_lshl_add_u32 v{t1}, v{t4}, 3, v{t1}")
    a(f"v_add3_u32 v{vR4}, v{t3}, v{t1}, s31")
    a(f"v_lshrrev_b32 v{t3}, 4, v{vL}")
    a(f"v_lshlrev_b32 v{t0}, 4, v{t0}")
    a(f"v_lshl_add_u32 v{vA4}, v{t3}, 9, v{t0}")
    a("s_lshl_b32 s31, s3, 8")
    a(f"v_add_u32 v{vA4}, s31, v{vA4}")
    for i in range(3):
        a(f"v_add_u32 v{t0}, s12, v{vL}")
        if i < 2: a("s_add_u32 s12, s12, 64")
        a(f"v_mul_u32_u24 v{t1}, 205, v{t0}")
        a(f"v_lshrrev_b32 v{t1}, 11, v{t1}")
        a(f"v_mul_u32_u24 v{t3}, 10, v{t1}")
        a(f"v_sub_u32 v{t3}, v{t0}, v{t3}")
        a(f"v_lshl_add_u32 v{t3}, v{t3}, 4, s1")
        if i: a(f"v_subrev_u32 v{t3}, {1024*i}, v{t3}")
        a(f"v_mul_u32_u24 v{t4}, 1280, v{t1}")
        a(f"v_add_u32 v{vW4+i}, v{t4}, v{t3}")
        a(f"v_lshrrev_b32 v{t5}, 4, v{t1}")
        a(f"v_mul_u32_u24 v{t4}, 5120, v{t5}")
        a(f"v_add_u32 v{vWM+i}, v{t4}, v{vW4+i}")
        a(f"v_bfe_u32 v{t4}, v{t1}, 2, 1")
        a(f"v_lshl_add_u32 v{t4}, v{t5}, 1, v{t4}")
        a(f"v_bfe_u32 v{t6}, v{t1}, 3, 1")
        a(f"v_lshl_add_u32 v{t4}, v{t4}, 1, v{t6}")
        a(f"v_mul_u32_u24 v{t4}, 20, v{t4}")
        a(f"v_and_b32 v{t1}, 3, v{t1}")
        a(f"v_add3_u32 v{t4}, v{t4}, 16, v{t1}")
        a(f"v_mul_u32_u24 v{t4}, 1280, v{t4}")
        a(f"v_add_u32 v{vW4R+i}, v{t4}, v{t3}")
    return A.lines, B.lines

def phase3(a, cfg, late):
    stamp = cfg["stamp"]
    S, O, Q1, Q2, K1, K2, V, vIDX, vG = aS, aO, aQ1, aQ2, aK1, aK2, aV, aIDX, aG
    a("s_waitcnt vmcnt(0)")
    stamp(a, "at_q")
    for c in range(2): a(f"v_mov_b32 v{Q2+c}, v{K2+c}")
    a("s_mov_b32 exec_lo, 0")
    for c in range(2): a(f"v_mov_b32 v{Q2+c}, v{K2+2+c}")
    a("s_mov_b64 exec, -1")
    bump = {"k": 0}
    def koff(g, off): return g*10240 + off - bump["k"]
    def rd_k1(T):
        g, tt = divmod(T, 4)
        return f"ds_read_b128 {vr(K1,4)}, v{vKA} offset:{koff(g, tt*1024)}"
    def rd_k2(g):
        return f"ds_read_b128 {vr(K2,4)}, v{vKA} offset:{koff(g, 4096)}"
    def rd_v(T, s):
        g, tt = divmod(T, 4)
        return f"ds_read_b128 {vr(V+4*s,4)}, v{vVA} offset:{koff(g, tt*1280+640*s)}"
    def sreg(T, q): return S + 32*(T % 2) + 16*q
    def b2(T):
        tt = T % 4
        return f"v_mfma_f32_32x32x4_2b_bf16 {vr(sreg(T,0),32)}, {vr(K2+2*(tt&1),2)}, {vr(Q2,2)}, 0 cbsz:1 abid:{tt>>1}"
    def qk(T, q):
        return f"v_mfma_f32_32x32x16_bf16 {vr(sreg(T,q),16)}, {vr(K1,4)}, {vr(Q1+4*q,4)}, {vr(sreg(T,q),16)}"
    def pv(T, q, h):
        return f"v_smfmac_f32_32x32x32_bf16 {vr(O+16*q,16)}, {vr(V+4*h,4)}, {vr(sreg(T,q)+8*h,8)}, v{vIDX}"
    a("s_barrier")
    stamp(a, "at_first")
    a(rd_k2(0)); a(rd_k1(0))
    a("s_lshl_b32 s31, s29, 15"); a("s_lshl_b32 s32, s25, 10"); a("s_add_u32 s32, s32, s31")
    a("s_lshl_b32 s13, s27, 8"); a(f"s_add_u32 s31, s13, {WS_O}"); a("s_add_u32 s32, s32, s31")
    a("s_lshl_b32 s31, s29, 13"); a("s_lshl_b32 s33, s25, 9"); a("s_add_u32 s33, s33, s31")
    a(f"s_add_u32 s31, s13, {WS_OR}"); a("s_add_u32 s33, s33, s31")
    a("s_waitcnt lgkmcnt(1)")
    a(b2(0))
    for g in kv_dma(1):
        for l in g: a(l)
    a("s_waitcnt lgkmcnt(0)")
    a("s_nop 6")
    a(qk(0, 0)); a(qk(0, 1))
    a("s_nop 7")
    vm = VM(); cfg["vm"] = vm
    extra = {u: [] for u in range(64)}
    for i, g in enumerate(g for k in range(2, 8) for g in kv_dma(k)): extra[i//2].append(g)
    extra[9].append([f"buffer_load_dword v{aG}, v{aG}, s[{SWS}:{SWS+3}], s30 offen {LDF}"])
    for i in range(4):
        extra[10+i].append([f"buffer_store_dwordx4 {vr(HPK+4*i,4)}, v{vD if i < 2 else HPK+16}, s[{SWS}:{SWS+3}], s{sHE} offen offset:{1024*i} {ST}"])
    extra[14].append([f"buffer_store_dwordx4 {vr(vSENT,4)}, v{aOA}, s[{SWS}:{SWS+3}], s32 offen {ST}"])
    extra[15].append(["s_mov_b64 exec, 0xffff", f"buffer_store_dwordx4 {vr(vSENT,4)}, v{vD}, s[{SWS}:{SWS+3}], s33 offen {ST}", "s_mov_b64 exec, -1"])
    sync = {6: ["s_waitcnt vmcnt(12)", "s_barrier"],
            14: ["s_waitcnt vmcnt(20)", "s_barrier"],
            22: ["s_waitcnt vmcnt(0)", "s_barrier"],
            34: ["s_waitcnt vmcnt(0)"] + flag_test(HP, 2) + ["s_cbranch_vccnz L_w2", "L_w2_ret:"],
            56: ["s_waitcnt vmcnt(0)", "s_barrier"]}
    late.append(lambda a: spin(a, "L_w2", vP2, 2, HP, 31))
    extra[22].append(flag_store(sF2, HP+4, sF3))
    u = 23
    for t in range(2):
        for g in w4_dma(t): extra[u].append(g); u += 1
    extra[29].append([f"buffer_load_dword v{vWARM}, v{vWARM}, s[{SWO}:{SWO+3}], 0 offen"])
    extra[31].append([f"buffer_load_dwordx2 {vr(HP,2)}, v{vP2}, s[{SWS}:{SWS+3}], 0 offen {LDF}"])
    extra[34].append([f"v_bfe_u32 v{aG4}, v{vD}, 4, 4", f"v_lshlrev_b32 v{aG4}, 2, v{aG4}",
                     f"buffer_load_dword v{aG4+1}, v{aG4}, s[{SWS}:{SWS+3}], s{sG4} offen offset:128 {LDF}",
                     f"buffer_load_dword v{aG4}, v{aG4}, s[{SWS}:{SWS+3}], s{sG4} offen {LDF}"])
    seq = [g for t in range(12) for g in act_ld(t)]
    for i, g in enumerate(seq): extra[35 + (i*3)//4].append(g)
    for i, g in enumerate(g for t in (2, 3, 4, 5) for g in w4_dma(t)): extra[56 + i//2].append(g)
    for t in (2, 3, 4, 5): vm.add(f"w{t}", 2)
    if cfg.get("x_noextra"):
        keep = cfg["x_noextra"]
        for k in extra:
            if keep == "lo" and k < 23: continue
            if keep == "hi" and k >= 23: continue
            extra[k] = []
        sync[34] = ["L_w2_ret:"]
        if cfg.get("x_nobar"): sync = {34: sync[34]}
    def E(s, i, j):
        for k in range(i, j): a(f"v_exp_f32 v{s+k}, v{s+k}")
    for T in range(32):
        g, tt = divmod(T, 4); u = 2*T
        s0, s1 = sreg(T, 0), sreg(T, 1)
        ex0 = list(extra[u]); ex1 = list(extra[u+1])
        def side(ex):
            if ex:
                for l in ex.pop(0): a(l)
        stamp(a, f"u{u}")
        if T > 0: a(pv(T-1, 1, 0))
        for l in sync.get(u, []): a(l)
        if T == 16:
            a(f"v_add_u32 v{vKA}, {4*10240}, v{vKA}"); a(f"v_add_u32 v{vVA}, {4*10240}, v{vVA}")
            bump["k"] = 4*10240
        if tt == 3 and g < 7: a(rd_k2(g+1))
        if T < 31: a(rd_k1(T+1))
        side(ex0)
        E(s0, 0, 4)
        if T > 0: a(pv(T-1, 1, 1))
        side(ex0)
        E(s0, 4, 8)
        if T < 31:
            if tt == 3: a("s_waitcnt lgkmcnt(1)")
            a(b2(T+1))
        for l in ["s_mov_b64 exec, s[38:39]", rd_v(T, 0), rd_v(T, 1), "s_mov_b64 exec, -1"]: a(l)
        E(s0, 8, 16)
        a("s_waitcnt lgkmcnt(0)")
        a(pv(T, 0, 0))
        E(s1, 0, 4)
        if T < 31: a(qk(T+1, 0))
        side(ex1)
        E(s1, 4, 8)
        a(pv(T, 0, 1))
        side(ex1)
        E(s1, 8, 12)
        if T < 31: a(qk(T+1, 1))
        E(s1, 12, 16)
        assert not ex0 and not ex1
    a(pv(31, 1, 0)); a("s_nop 0"); a(pv(31, 1, 1))
    stamp(a, "at_loopend")
    t0, t1, t2, t3 = K1, K1+1, K1+2, K1+3
    a("s_mul_i32 s31, s28, 2560")
    a(f"s_add_u32 s31, s31, {6*10240 - 4*10240}")
    a(f"v_add_u32 v{t0}, s31, v{vKA}")
    a("s_and_b32 s13, s28, 1"); a("s_lshl_b32 s13, s13, 9"); a("s_lshr_b32 s12, s28, 1"); a("s_lshl_b32 s12, s12, 12")
    a("s_add_u32 s13, s13, s12"); a(f"s_add_u32 s13, s13, {3*10240 - 512}")
    a(f"v_add_u32 v{t2}, 2048, v{t0}")
    a("s_mov_b32 exec_lo, 0")
    a(f"v_add_u32 v{t2}, s13, v{vKA}")
    a("s_mov_b64 exec, -1")
    a("s_mul_i32 s31, s27, 163840")
    a("s_sub_u32 s31, 81920, s31")
    a("s_cmp_eq_u32 s27, 0")
    a(f"v_add_u32 v{t1}, s31, v{t0}")
    a(f"v_add_u32 v{t3}, s31, v{t2}")
    a("s_cbranch_scc0 L_at_z1")
    for c in range(3): a(f"ds_write_b128 v{t0 if c < 2 else t2}, {vr(O+16+4*c,4)} offset:{1024*c if c < 2 else 0}")
    a.label("L_at_zj")
    def z1(a):
        a.label("L_at_z1")
        for c in range(3): a(f"ds_write_b128 v{t0 if c < 2 else t2}, {vr(O+4*c,4)} offset:{1024*c if c < 2 else 0}")
        for c in range(12): a(f"v_mov_b32 v{O+c}, v{O+16+c}")
        a("s_branch L_at_zj")
    late.insert(0, z1)
    a("s_waitcnt lgkmcnt(0)")
    a("s_barrier")
    for c in range(3): a(f"ds_read_b128 {vr(S+4*c,4)}, v{t1 if c < 2 else t3} offset:{1024*c if c < 2 else 0}")
    a("s_waitcnt lgkmcnt(0)")
    for c in range(12): a(f"v_add_f32 v{O+c}, v{O+c}, v{S+c}")
    a(f"v_mov_b32 v{t2}, v{O+8}")
    a(f"v_mov_b32 v{t3}, v{O+8}")
    a(f"v_add_f32 v{t0}, abs(v{O}), abs(v{O+1})")
    a(f"v_add_f32 v{t0}, v{t0}, abs(v{O+2})")
    a(f"v_permlane32_swap_b32 v{t3}, v{t2}")
    for c in range(3, 12): a(f"v_add_f32 v{t0}, v{t0}, abs(v{O+c})")
    a(f"v_rcp_f32 v{t1}, v{t2}")
    a(f"v_cmp_nle_f32 vcc, 0x{f32bits(2.0**-40):x}, v{t2}")
    a(f"s_mov_b64 s[40:41], vcc")
    a(f"v_cmp_nge_f32 vcc, 0x{f32bits(2.0**100):x}, v{t2}")
    a(f"s_or_b64 s[40:41], s[40:41], vcc")
    a(f"v_cmp_nge_f32 vcc, 0x{f32bits(2.0**126):x}, v{t0}")
    a(f"s_or_b64 s[40:41], s[40:41], vcc")
    if cfg.get("force_fallback"): a("s_mov_b64 s[40:41], -1")
    a("s_cmp_lg_u64 s[40:41], 0")
    a("s_cbranch_scc1 L_at_slow")
    a.label("L_at_store")
    a(f"v_mul_f32 v{t1}, v{t1}, v{vG}")
    for c in range(12): a(f"v_mul_f32 v{O+c}, v{O+c}, v{t1}")
    for c in (4, 5, 0, 1, 2, 3): a(f"v_cvt_pk_bf16_f32 v{S+c}, v{O+2*c}, v{O+2*c+1}")
    for c in (4, 5, 0, 1, 2, 3): a(f"v_min_u32 v{S+c}, -2, v{S+c}")
    a(f"v_permlane16_swap_b32 v{S+4}, v{S+6}")
    a(f"v_permlane16_swap_b32 v{S+5}, v{S+7}")
    a(f"buffer_store_dwordx4 {vr(S,4)}, v{aOA}, s[{SWS}:{SWS+3}], s32 offen {ST}")
    a("s_mov_b64 exec, 0xffff")
    a(f"buffer_store_dwordx4 {vr(S+4,4)}, v{vD}, s[{SWS}:{SWS+3}], s33 offen {ST}")
    a("s_mov_b64 exec, -1")
    vm.add("ost", 2)
    stamp(a, "o_stored")

    def slow(a):
        a.label("L_at_slow")
        NM = 16; QZ = 32
        KA = 44; vV2 = 52; mx = 53
        def qz(qt, tt): return QZ + 4*(tt >> 1) + (2 if (tt & 1) == 0 else 0)
        for c in range(2): a(f"v_mov_b32 v{KA+c}, v{Q2+c}")
        for i in range(10): a(f"v_mov_b32 v{QZ+i}, 0")
        for c in range(2): a(f"v_permlane32_swap_b32 v{Q2+c}, v{KA+c}")
        a("s_cmp_eq_u32 s27, 0")
        a("s_cbranch_scc1 L_slow_z0")
        a("s_nop 0")
        for c in range(2): a(f"v_mov_b32 v{Q2+c}, v{KA+c}")
        for c in range(4): a(f"v_mov_b32 v{Q1+c}, v{Q1+4+c}")
        a.label("L_slow_z0")
        a("s_mov_b32 exec_hi, 0")
        for c in range(2): a(f"v_mov_b32 v{QZ+2+c}, v{Q2+c}")
        a("s_mov_b64 exec, -1")
        a("s_mov_b32 exec_lo, 0")
        for c in range(2): a(f"v_mov_b32 v{QZ+6+c}, v{Q2+c}")
        a("s_mov_b64 exec, -1")
        a("s_mul_i32 s34, s27, 81920")
        a(f"s_add_u32 s34, s34, {4*10240 + 5120}")
        a(f"v_subrev_u32 v{vV2}, s34, v{vVA}")
        a(f"v_mov_b32 v{mx}, 0xff7fffff")
        for i in range(16): a(f"v_mov_b32 v{NM+i}, 0")
        for i in range(16): a(f"v_mov_b32 v{O+i}, 0")
        for ps in range(2):
            a("s_mul_i32 s34, s25, 163840")
            a(f"s_add_u32 s34, s34, {WS_KV}")
            a("s_mov_b32 s35, 16")
            a.label(f"L_slow_loop{ps}")
            a(f"s_add_u32 s36, s34, 4096")
            a(f"buffer_load_dwordx4 {vr(K2,4)}, v{vD}, s[{SWS}:{SWS+3}], s36 offen {LDF}")
            for tt in range(4):
                a(f"buffer_load_dwordx4 {vr(KA,4)}, v{vD}, s[{SWS}:{SWS+3}], s34 offen offset:{1024*tt} {LDF}")
                if ps == 1:
                    a(f"s_add_u32 s36, s34, {5120+1280*tt}")
                    a("s_mov_b64 exec, s[38:39]")
                    a(f"buffer_load_dwordx4 {vr(V,4)}, v{vV2}, s[{SWS}:{SWS+3}], s36 offen {LDF}")
                    a(f"buffer_load_dwordx4 {vr(V+4,4)}, v{vV2}, s[{SWS}:{SWS+3}], s36 offen offset:640 {LDF}")
                    a("s_mov_b64 exec, -1")
                a("s_waitcnt vmcnt(0)")
                a(f"v_mfma_f32_32x32x16_bf16 {vr(S,16)}, {vr(KA,4)}, {vr(Q1,4)}, {vr(NM,16)}")
                a(f"v_mfma_f32_32x32x16_bf16 {vr(S,16)}, {vr(K2,4)}, {vr(qz(0,tt),4)}, {vr(S,16)}")
                a("s_nop 11")
                if ps == 0:
                    for i in range(0, 16, 2): a(f"v_max3_f32 v{mx}, v{mx}, v{S+i}, v{S+i+1}")
                else:
                    for i in range(16): a(f"v_exp_f32 v{S+i}, v{S+i}")
                    a("s_nop 1")
                    for h in range(2):
                        a(f"v_smfmac_f32_32x32x32_bf16 {vr(O,16)}, {vr(V+4*h,4)}, {vr(S+8*h,8)}, v{vIDX}")
                    a("s_nop 3")
            a("s_add_u32 s34, s34, 10240")
            a("s_sub_u32 s35, s35, 1")
            a("s_cmp_lg_u32 s35, 0")
            a(f"s_cbranch_scc1 L_slow_loop{ps}")
            if ps == 0:
                a(f"v_mov_b32 v{t3}, v{mx}")
                a(f"v_mov_b32 v{t1}, v{mx}")
                a("s_nop 1")
                a(f"v_permlane32_swap_b32 v{t3}, v{t1}")
                a("s_nop 1")
                a(f"v_max_f32 v{mx}, v{t3}, v{t1}")
                for i in range(16): a(f"v_sub_f32 v{NM+i}, 0, v{mx}")
        a("s_nop 11")
        a(f"v_mov_b32 v{t2}, v{O+8}")
        a(f"v_mov_b32 v{t3}, v{O+8}")
        a("s_nop 1")
        a(f"v_permlane32_swap_b32 v{t3}, v{t2}")
        a("s_nop 1")
        a(f"v_rcp_f32 v{t1}, v{t2}")
        a("s_nop 0")
        a("s_branch L_at_store")
    late.append(slow)

def phase45(a, cfg, late):
    stamp = cfg["stamp"]; vm = cfg["vm"]
    OA = 0; ACC = 40; WB = 80; NB = 10
    vREM, vMX, vG1, vOUT, vOUT2, vRD = 120, 121, 122, 126, 127, 234
    NS = 17; MG = int(cfg.get("mg", 14))
    OS = dict(zip(range(12, 17), [int(x) for x in cfg.get("os", "7,8,9,10,10").split(",")]))
    KB = int(cfg.get("kb", 7))
    F = [(t, j) for t in range(MG) for j in range(5)] + [(t, j) for j in (1, 2, 3, 4, 0) for t in range(MG, NS)]
    def reads(i):
        t, j = F[i]; slot = SLOTP[t % 8]
        return [(f"ds_read_b64_tr_b16 {vr(WB+4*(i%NB)+2*u,2)}, v{(vRA7 if slot == 7 else vRA)+j} offset:{(0 if slot == 7 else slot*10240) + u*1280}", i)
                for u in range(2)]
    lq = []
    def rd(x): a(x[0]); lq.append(x[1])
    def lwait(tag):
        n = len(lq) - 1 - max(i for i, x in enumerate(lq) if x == tag)
        a(f"s_waitcnt lgkmcnt({min(n, 15)})")
    rq = [x for i in range(len(F)) for x in reads(i)]
    for _ in range(10): rd(rq.pop(0))
    def oloads(t0): return [l for tt in range(t0, 17) for g in act_ld(tt, vREM) for l in g]
    def check(t0, t1):
        r = list(range(act_reg(t0), act_reg(t1-1)+8))
        return [f"v_max3_u32 v{vMX}, v{r[0]}, v{r[1]}, v{r[2]}"] + [f"v_max3_u32 v{vMX}, v{vMX}, v{r[i]}, v{r[min(i+1,len(r)-1)]}" for i in range(3, len(r), 2)]
    CKS = {11: (12, MG), MG-1: (MG, 17)}
    fill = {t: [] for t in range(NS)}
    fill[0] = [f"v_and_b32 v{vREM}, 0x600, v{vA4}", f"v_add_u32 v{vREM}, v{vREM}, v{vA4}",
               f"v_bfe_u32 v{vMX}, v{vD}, 4, 4", f"v_mul_u32_u24 v{vMX}, 1280, v{vMX}",
               f"v_bfe_u32 v{vOUT}, v{vD}, 8, 1", f"v_mul_u32_u24 v{vOUT}, {32*1280}, v{vOUT}", f"v_lshrrev_b32 v{vOUT2}, 9, v{vD}",
               f"v_lshl_add_u32 v{vOUT}, v{vOUT2}, 4, v{vOUT}", f"v_add_u32 v{vOUT}, v{vOUT}, v{vMX}",
               f"v_lshrrev_b32 v{vOUT2}, 8, v{vD}", f"v_lshl_add_u32 v{vOUT2}, v{vOUT2}, 3, v{vMX}"]
    fill[1] = [l for w in range(2) for l in (f"v_sub_f32 v{vG1+w}, 1.0, v{aG4+w}", f"v_cvt_pk_bf16_f32 v{vG1+w}, v{vG1+w}, v{vG1+w}",
                                            f"v_and_b32 v{vG1+w}, 0xffff0000, v{vG1+w}")]
    fill[2] = ["s_lshr_b32 s12, s24, 1", "s_mul_i32 s13, s3, 81920", "s_add_u32 s13, s13, 10240", f"v_add_u32 v{vRD}, s13, v{vD}",
               "s_lshl_b32 s31, s12, 10", f"s_add_u32 s31, s31, {24*1024}", f"v_add_u32 v{vRD+4}, s31, v{vRD}"]
    for j in (1, 2, 3):
        fill[3] += [f"s_xor_b32 s31, s12, {j}", "s_mul_i32 s31, s31, 6144", f"v_add_u32 v{vRD+j}, s31, v{vRD}"]
    fill[3] += ["s_mul_i32 s31, s12, 6144", f"v_add_u32 v{vRD+5}, s31, v{vRD}"]
    def scale(j, w): return [f"v_mul_f32 v{ACC+20*w+4*j+i}, v{ACC+20*w+4*j+i}, v{vG1+w}" for i in range(4)]
    def site(t, z):
        ws = [tt for tt in ({0: [6, 7]}.get(t, [t+7])) if tt < NS]
        os_ = [tt for tt in OS if OS[tt] == t]
        if not ws and not os_: return
        a(f"s_cmp_eq_u32 s27, {z}")
        a(f"s_cbranch_scc0 L_s4_{t}_{z}")
        for tt in os_:
            for g in act_ld(tt, vREM):
                for l in g: a(l)
        for tt in ws:
            for l in w4_dma(tt, z): a(l)
        a.label(f"L_s4_{t}_{z}")
        if z == 1:
            for tt in os_: vm.add(f"o{tt}", 2)
            for tt in ws: vm.add(f"w{tt}", 2)
    wr = []
    fl = []
    for i, (t, j) in enumerate(F):
        plain = t < MG
        if plain and j == 0: fl = list(fill[t])
        for w in range(2):
            k = 2*j + w
            acc = ACC + 20*w + 4*j
            if t == 12:
                if k == 0:
                    for l in scale(0, 0): a(l)
                if k < 9:
                    for l in scale(*divmod(k+1, 2)): a(l)
            if w == 0: lwait(i)
            a(f"v_mfma_f32_16x16x32_bf16 {vr(acc,4)}, {vr(WB+4*(i%NB),4)}, {vr(act_reg(t)+4*w,4)}, " + ("0" if t == 0 else vr(acc,4)))
            if plain and k == 0:
                stamp(a, f"p4_p{t}")
                need = [f"w{tt}" for tt in (range(MG, NS) if t == MG-1 else [t+1]) if tt >= 2]
                if need: a(f"s_waitcnt vmcnt({vm.after(*need)})")
                a("s_barrier")
                stamp(a, f"p4_b{t}")
            for _ in range(2 if (plain and k == 0) else 0 if (plain and k == 9) else 1):
                if rq: rd(rq.pop(0))
            if plain and k == 0: site(t, 0)
            if plain and k == KB: site(t, 1)
            if plain and t in CKS and k == 2:
                a(f"s_waitcnt vmcnt({vm.after(*[f'o{tt}' for tt in range(*CKS[t])])})")
                stamp(a, f"p4_og{t}")
                fl += check(*CKS[t])
            if plain:
                for _ in range(-(-len(fl) // (10-k))): a(fl.pop(0))
            else:
                are = [x for x in wr if x[1] <= 2*i + w]
                if are: a(are[0][0]); wr.remove(are[0])
                if t == NS-1 and j:
                    wr.append((f"ds_write_b128 v{vRD+j}, {vr(acc,4)} offset:{(3*w + j-1)*1024 if j < 4 else 4096*w}", 2*i + w + (4 if j < 4 else 6)))
        if plain and j == 4 and t in CKS:
            a(f"v_cmp_eq_u32 vcc, -1, v{vMX}")
            a("s_nop 0")
            a(f"s_cbranch_vccnz L_or{t}")
            a.label(f"L_or{t}_ret")
            stamp(a, f"p4_ok{t}")
            if t == MG-1:
                a(f"v_swap_b32 v{OA+34}, v{OA+36}"); a(f"v_swap_b32 v{OA+35}, v{OA+37}")
        if t == 11 and j == 4: stamp(a, "p4_end")
    def retry(a):
        for t in CKS:
            a.label(f"L_or{t}")
            a(f"s_mov_b32 s31, {SPIN}")
            a(f"v_bfe_u32 v{vW4}, v{vD}, 4, 5")
            a(f"v_lshlrev_b32 v{vW4}, 9, v{vW4}")
            a("s_lshl_b32 s13, s3, 8")
            a(f"s_and_b32 s41, s{sOR}, 0xffffc000")
            a("s_add_u32 s13, s13, s41")
            a.label(f"L_or{t}_l")
            a("s_sub_u32 s31, s31, 1")
            a("s_cmp_eq_u32 s31, 0")
            a(f"s_cbranch_scc1 L_or{t}_ret")
            a(f"buffer_load_dword v{vMX}, v{vW4}, s[{SWS}:{SWS+3}], s13 offen {LDF}")
            a("s_waitcnt vmcnt(0)")
            a(f"v_cmp_eq_u32 vcc, -1, v{vMX}")
            a("s_nop 0")
            a(f"s_cbranch_vccnz L_or{t}_l")
            for l in oloads(CKS[t][0]): a(l)
            a("s_waitcnt vmcnt(0)")
            for l in check(*CKS[t]): a(l)
            a(f"v_cmp_eq_u32 vcc, -1, v{vMX}")
            a("s_nop 0")
            a(f"s_cbranch_vccnz L_or{t}_l")
            a(f"s_branch L_or{t}_ret")
    late.append(retry)
    for l, _ in wr: a(l)
    stamp(a, "p5_end")
    R = 128
    a("s_lshl_b32 s31, s12, 5")
    a(f"s_add_u32 s31, s31, s{sOUTB}")
    a("s_waitcnt lgkmcnt(0)")
    a("s_barrier")
    for w in range(2):
        for i in range(3): a(f"ds_read_b128 {vr(R+12*w+4*i,4)}, v{vRD+5} offset:{(3*w+i)*1024}")
    a("s_cmp_lt_u32 s12, 2")
    a("s_cbranch_scc0 L_p5_a")
    a("s_lshl_b32 s13, s12, 12")
    a(f"v_add_u32 v{vRD}, s13, v{vRD}")
    a(f"s_mul_i32 s13, s12, {32*1280}")
    a(f"s_add_u32 s13, s13, s{sOUTB}")
    for i in range(4): a(f"ds_read_b128 {vr(R+24+4*i,4)}, v{vRD} offset:{(24+i)*1024}")
    a.label("L_p5_a")
    for w in range(2):
        acc = ACC + 20*w
        a(f"s_waitcnt lgkmcnt({3-3*w})")
        for i in range(4): a(f"v_add_f32 v{R+12*w+i}, v{R+12*w+i}, v{R+12*w+4+i}")
        for i in range(4): a(f"v_add_f32 v{acc+i}, v{acc+i}, v{R+12*w+8+i}")
        for i in range(4): a(f"v_add_f32 v{acc+i}, v{acc+i}, v{R+12*w+i}")
        a(f"v_cvt_pk_bf16_f32 v{OA+2*w}, v{acc}, v{acc+1}")
        a(f"v_cvt_pk_bf16_f32 v{OA+2*w+1}, v{acc+2}, v{acc+3}")
    a("s_nop 1")
    a(f"v_permlane16_swap_b32 v{OA}, v{OA+2}")
    a(f"v_permlane16_swap_b32 v{OA+1}, v{OA+3}")
    a(f"buffer_store_dwordx4 {vr(OA,4)}, v{vOUT}, s[{SOUT}:{SOUT+3}], s31 offen")
    a("s_cmp_lt_u32 s12, 2")
    a("s_cbranch_scc0 L_p5_end")
    for i in range(4): a(f"v_add_f32 v{R+24+i}, v{R+24+i}, v{R+28+i}")
    for i in range(4): a(f"v_add_f32 v{R+32+i}, v{R+32+i}, v{R+36+i}")
    for i in range(4): a(f"v_add_f32 v{R+24+i}, v{R+24+i}, v{R+32+i}")
    a(f"v_cvt_pk_bf16_f32 v{R+24}, v{R+24}, v{R+25}")
    a(f"v_cvt_pk_bf16_f32 v{R+25}, v{R+26}, v{R+27}")
    a(f"buffer_store_dwordx2 {vr(R+24,2)}, v{vOUT2}, s[{SOUT}:{SOUT+3}], s13 offen offset:128")
    a.label("L_p5_end")

HEADER = open("cdna_kernels/" + NAME + ".s.ref").read().split("; Override launch")[0]

def kd(name, vgpr, sgpr=100):
    return f""".section .rodata,"a"
.p2align 6
.amdhsa_kernel {name}
  .amdhsa_next_free_vgpr {vgpr}
  .amdhsa_next_free_sgpr {sgpr}
  .amdhsa_accum_offset {(vgpr+3)//4*4}
  .amdhsa_group_segment_fixed_size 0
  .amdhsa_kernarg_size 80
  .amdhsa_user_sgpr_count 2
  .amdhsa_user_sgpr_kernarg_segment_ptr 1
  .amdhsa_system_sgpr_workgroup_id_x 1
.end_amdhsa_kernel
"""

def gen(opts):
    a = Asm()
    k = NAME + "_kernel"
    a(".text"); a(f".globl {k}"); a(".p2align 8"); a(f".type {k},@function"); a.label(k)
    a("s_cmp_ge_u32 s2, 256"); a("s_cbranch_scc1 L_end")
    a(f"s_load_dwordx2 s[{SX}:{SX+1}], s[0:1], 0")
    a(f"s_load_dwordx2 s[{SW}:{SW+1}], s[0:1], 8")
    a(f"s_load_dwordx2 s[{SW1}:{SW1+1}], s[0:1], 32")
    a(f"s_load_dwordx2 s[{SG}:{SG+1}], s[0:1], 48")
    a(f"s_load_dwordx2 s[{SWS}:{SWS+1}], s[0:1], 72")
    a(f"s_load_dwordx2 s[{SDBG}:{SDBG+1}], s[0:1], 64")
    a(f"s_load_dwordx2 s[46:47], s[0:1], 40")
    a(f"s_load_dwordx2 s[48:49], s[0:1], 16")
    a(f"s_load_dwordx2 s[50:51], s[0:1], 56")
    st = Stamps(opts.get("stamps")); st.cyc = opts.get("cyc"); st.dbg = opts.get("dbg"); st(a, "start")
    if opts.get("kvplain"): KVF[0] = ""
    cfg = dict(opts, stamp=st); late = []
    phase12(a, cfg, late)
    phase3(a, cfg, late)
    phase45(a, cfg, late)
    if st.on: a("s_waitcnt vmcnt(0)")
    st(a, "end"); st.flush(a)
    a.label("L_end"); a("s_endpgm")
    while late: late.pop(0)(a)
    errs = check_linear(a.lines)
    head = HEADER + ("; @launch grid=(256,1,1) block=(512,1,1) lds=163840\n"
                     '.amdgcn_target "amdgcn-amd-amdhsa--gfx950"\n')
    return head + a.text() + kd(k, 256), errs

if __name__ == "__main__":
    out = sys.argv[1] if len(sys.argv) > 1 else "cdna_kernels/" + NAME + ".s"
    opts = {}
    for o in sys.argv[2:]:
        k, _, v = o.partition("=")
        opts[k] = v or True
    txt, errs = gen(opts)
    open(out, "w").write(txt)
    print("written", out, "hazards:", errs, "bytes:", len(txt))
```

```python
import sys, math, struct
from dsl import *

NAME = "gated_mix__mha_block__dense_activation_relu__prompt"
WS_Q  = 0x0
WS_KV = 0x280000
WS_H  = 0x780000
WS_O  = 0xD80000
WS_OR = 0xF80000
WS_G  = 0x1000000
FS = 3
FL1   = 0x1002000
FL2   = 0x100A000
FL3   = 0x1012000
FL4   = 0x101A000
WS_WP = 0x1200000
WS_END = WS_WP + 8*348160
OOB = 0x80000000
SPIN = 1 << 15
def f32bits(x): return struct.unpack("<I", struct.pack("<f", x))[0]
QSCALE = f32bits(math.log2(math.e) / math.sqrt(20.0))
ST = "sc1"; LDF = "sc1"

SX, SW, SW1, SWS, SG, SDBG = 4, 8, 12, 16, 20, 52
SW2, SWO, SOUT = SX, SW, SG
sF1, sHE, sNON = 42, 43, 44
sKW, sKH, sHB, sOB, sW2B, sWOB, sHL, sOUTB, sG4, sM4, sF2, sF3 = range(56, 68)
sF4 = 100
PKW = (216, 244)
vPS, vPD, vA4B, vA4, vR4, vP2, vKA, vVA, vP1, vD = 240, 242, 248, 249, 250, 251, 252, 253, 254, 255
vRA, vRA7, vWARM, vSENT = 224, 229, 234, 236
sOR = 15

def srd_tail(a, base, nbytes):
    a(f"s_mov_b32 s{base+2}, {nbytes}")
    a(f"s_mov_b32 s{base+3}, 0x00020000")

STAMP_BASE = 0x1100000
class Stamps:
    DEF = "start,p1_first,p1_end,p2_end,at_first,at_loopend,o_stored,p4_b1,p4_b4,p4_b8,p4_ok11,p4_ok13,p5_end,end"
    def __init__(self, on):
        self.on = on; self.names = []
        self.sel = set((self.DEF if on is True else "start," + str(on)).split(","))
    def __call__(self, a, name):
        if not self.on or name not in self.sel: return
        if name in self.names: i = self.names.index(name)
        else:
            i = len(self.names); self.names.append(name)
        assert i < 16
        a(f"{'s_memtime' if self.cyc else 's_memrealtime'} s[{68+2*i}:{69+2*i}]")
    def flush(self, a):
        if not self.on: return
        a("s_waitcnt lgkmcnt(0)")
        if self.dbg is not None:
            n = len(self.names); assert n <= 13
            a("s_mov_b64 exec, 1")
            a(f"s_sub_u32 s31, s68, s{sNON}"); a("s_add_u32 s31, s31, 1000"); a("v_mov_b32 v0, s31")
            a(f"buffer_atomic_umax v0, off, s[{SDBG}:{SDBG+3}], 0 offset:56 sc1")
            a(f"s_sub_u32 s31, s{68+2*(n-1)}, s{sNON}"); a("v_mov_b32 v1, s31")
            a(f"buffer_atomic_umax v1, off, s[{SDBG}:{SDBG+3}], 0 offset:60 sc1")
            a(f"s_cmp_eq_u32 s2, {self.dbg}"); a("s_cbranch_scc0 L_end")
            a("s_cmp_eq_u32 s24, 0"); a("s_cbranch_scc0 L_end")
            for i in range(1, n):
                a(f"s_sub_u32 s31, s{68+2*i}, s{sNON}"); a(f"v_mov_b32 v{2+i}, s31")
                a(f"buffer_store_dword v{2+i}, off, s[{SDBG}:{SDBG+3}], 0 offset:{4+4*i} sc1")
            a("; stamps " + ",".join(self.names))
            return
        a("s_lshl_b32 s31, s2, 3")
        a("s_add_u32 s31, s31, s24")
        a("s_lshl_b32 s31, s31, 6")
        a(f"s_add_u32 s31, s31, {STAMP_BASE}")
        a(f"s_mov_b32 s{SWS+2}, 0x2000000")
        a("v_mov_b32 v2, 0")
        for i in range(len(self.names)):
            a(f"v_mov_b32 v0, s{68+2*i}")
            a(f"buffer_store_dword v0, v2, s[{SWS}:{SWS+3}], s31 offen offset:{4*i}")
            a("s_nop 1")
        a("; stamps " + ",".join(self.names))

class VM:
    def __init__(self): self.q = []
    def add(self, tag, n=1): self.q += [tag]*n
    def after(self, *tags):
        last = max(i for i, t in enumerate(self.q) if t in tags)
        assert all(t in self.q for t in tags), tags
        n = len(self.q) - 1 - last
        assert n <= 63
        return n

def flag_store(sregs, tmp):
    return [f"v_mov_b32 v{tmp+2}, s{sregs[0]}", f"v_mov_b32 v{tmp}, s{sNON}", f"v_mov_b32 v{tmp+1}, s{sNON+1}"] + \
           [f"v_writelane_b32 v{tmp+2}, s{r}, {i+1}" for i, r in enumerate(sregs[1:])] + [
            f"s_mov_b64 exec, {(1 << len(sregs)) - 1}",
            f"buffer_store_dwordx2 v[{tmp}:{tmp+1}], v{tmp+2}, s[{SWS}:{SWS+3}], 0 offen {ST}",
            "s_mov_b64 exec, -1"]

UID = [0]
def pieces(soff, pre, post, z):
    ld = [f"buffer_load_dwordx4 v{vD}, s[{SWS}:{SWS+3}], {soff} offen offset:{1024*i} {LDF} lds" for i in range(3)]
    if z is not None: return pre + ld[:3-z] + post
    UID[0] += 1
    return [pre + ld[:1], ld[1:2], [f"s_cbranch_vccnz L_pc{UID[0]}", ld[2], f"L_pc{UID[0]}:"] + post]
SETZ = ["s_cmp_eq_u32 s27, 0", "s_cselect_b64 vcc, 0, -1"]
def kv_dma(i):
    return pieces("s34", [f"s_add_u32 m0, s{sM4}, {i*10240}", "s_add_u32 s34, s34, 10240"], [], None)

aS, aO, aQ1, aK1, aK2, aV, aQ2 = 0, 64, 96, 104, 108, 112, 120
aIDX, aG, aG4, aOA, HP = 122, 123, 124, 126, 128
HPK = 192

SLOTP = [0, 1, 2, 3, 4, 5, 7, 6]
def w4_dma(t, z=None):
    m0 = f"s_add_u32 m0, s{sM4}, {SLOTP[t % 8]*10240}"
    if t < 12:
        return pieces(f"s{sKW}", [m0, "s_nop 0"], [f"s_add_u32 s{sKW}, s{sKW}, 20480", f"s_cmp_eq_u32 s{sKW}, s{sWOB}", f"s_cselect_b32 s{sKW}, s{sW2B}, s{sKW}"], z)
    return pieces("s40", [m0, f"s_add_u32 s40, s{sWOB}, {(t-12)*20480}"], [], z)
def pk_ld(): return [f"buffer_load_dwordx4 {vr(PKW[0],4)}, v{vPS}, s[{SW2}:{SW2+3}], 0 offen", f"buffer_load_dwordx4 {vr(PKW[1],4)}, v{vPS+1}, s[{SWO}:{SWO+3}], 0 offen"]
def act_reg(t):
    return HP + 8*t if t < 12 else 8*(t-12)
def act_ld(t, vrem=None, vo2=None):
    r = act_reg(t)
    ld = lambda r, v, so, off=0: f"buffer_load_dwordx4 {vr(r,4)}, v{v}, s[{SWS}:{SWS+3}], {so} offen offset:{off} {LDF}"
    if t < 12:
        return [[ld(r, vA4, f"s{sKH}")],
                [ld(r+4, vA4B, f"s{sKH}"), f"s_add_u32 s{sKH}, s{sKH}, 8192", f"s_cmp_eq_u32 s{sKH}, s{sHL}", f"s_cselect_b32 s{sKH}, s{sHB}, s{sKH}"]]
    if t < 16:
        return [[f"s_add_u32 s41, s{sOB}, {(t-12)*8192}", ld(r, vA4, "s41")], [ld(r+4, vo2, "s41")]]
    return [[ld(r, vrem, f"s{sOR}")], [ld(r+4, vrem, f"s{sOR}", 512)]]

def poll_ld(addr, width, tmp):
    if FS == 3: return [f"buffer_load_dwordx{width} {vr(tmp,width)}, v{addr}, s[{SWS}:{SWS+3}], 0 offen {LDF}"]
    return [f"buffer_load_dwordx2 {vr(tmp+2*i,2)}, v{addr}, s[{SWS}:{SWS+3}], 0 offen offset:{i << FS} {LDF}" for i in range(width//2)]
def spin(a, name, addr, width, tmp, sc, sp=40):
    a.label(name)
    a(f"s_mov_b32 s{sc}, {SPIN}")
    a.label(name + "_l")
    for l in poll_ld(addr, width, tmp): a(l)
    a(f"s_sub_u32 s{sc}, s{sc}, 1")
    a(f"s_cmp_eq_u32 s{sc}, 0")
    a(f"s_cbranch_scc1 {name}_ret")
    a("s_waitcnt vmcnt(0)")
    for l in flag_test(tmp, width, sp): a(l)
    a(f"s_cbranch_vccnz {name}_l")
    a(f"s_branch {name}_ret")
def flag_test(tmp, width, sp=40):
    r = [f"v_cmp_ne_u64 vcc, s[{sNON}:{sNON+1}], {vr(tmp,2)}"]
    if width == 4:
        r += [f"v_cmp_ne_u64 s[{sp}:{sp+1}], s[{sNON}:{sNON+1}], {vr(tmp+2,2)}", "s_nop 0", f"s_or_b64 vcc, vcc, s[{sp}:{sp+1}]"]
    else:
        r += ["s_nop 0"]
    return r

def phase12(a, cfg, late):
    stamp = cfg["stamp"]
    sK, sM0, sT0, sT1, sT2 = 27, 30, 31, 32, 33
    X = 0; ACC = 160; WB = 192
    vXR = 208; vWR = 212; vWR2 = 214; vXS = 216; vWS = 218; vW1S = 219; vEP = 220
    vT = 228; vL = 236; vGR = 237; vNON = 238
    WBS = [192, 200, 228]
    PK = [224, 240, 244, 248]
    t0, t1, t2, t3, t4, t5, t6 = range(vT, vT+7)
    a(f"v_and_b32 v{vL}, 63, v0")
    a(f"v_lshrrev_b32 v{t0}, 6, v0")
    a("s_and_b32 s31, s2, 7")
    a(f"v_readfirstlane_b32 s24, v{t0}")
    a("s_lshr_b32 s32, s2, 3")
    a("s_and_b32 s33, s32, 7")
    a("s_lshr_b32 s32, s32, 3")
    a("s_and_b32 s25, s31, 1")
    a("s_lshl_b32 s25, s25, 3")
    a("s_add_u32 s25, s25, s33")
    a("s_lshr_b32 s26, s31, 1")
    a("s_lshl_b32 s26, s26, 2")
    a("s_add_u32 s26, s26, s32")
    if cfg.get("norot"): a("s_mov_b32 s27, 0")
    elif cfg.get("rot2"):
        a("s_add_u32 s27, s33, s32")
        a("s_and_b32 s27, s27, 1")
        a("s_mul_i32 s27, s27, 5")
    elif cfg.get("rot4"):
        a("s_add_u32 s27, s33, s32")
        a("s_and_b32 s27, s27, 3")
        a("s_mul_i32 s27, s27, 5")
        a("s_lshr_b32 s27, s27, 1")
    else:
        a("s_mul_i32 s33, s33, 5")
        a("s_mul_i32 s32, s32, 10")
        a("s_add_u32 s27, s33, s32")
        a("s_lshr_b32 s27, s27, 2")
        a("s_cmp_ge_u32 s27, 10")
        a("s_cselect_b32 s31, 10, 0")
        a("s_sub_u32 s27, s27, s31")
    a("s_lshl_b32 s31, s26, 2")
    a("s_mul_i32 s28, s26, 3")
    a("s_add_u32 s28, s28, 12")
    a("s_min_u32 s28, s28, s31")
    a("s_lshl_b32 s30, s24, 11")
    a(f"s_lshl_b32 s31, s25, 7")
    a(f"s_lshl_b32 s32, s24, 4")
    a(f"s_add_u32 s31, s31, s32")
    a(f"v_lshrrev_b32 v{t0}, 3, v{vL}")
    a(f"v_lshrrev_b32 v{t1}, 4, v{vL}")
    a(f"v_and_b32 v{t2}, 7, v{vL}")
    a(f"v_xor_b32 v{t2}, v{t2}, v{t1}")
    a(f"v_add_u32 v{t0}, s31, v{t0}")
    a(f"v_mul_u32_u24 v{t0}, 1280, v{t0}")
    a(f"v_lshl_add_u32 v{vXS}, v{t2}, 4, v{t0}")
    a(f"v_xor_b32 v{vXS+1}, 64, v{vXS}")
    a(f"v_add_u32 v{vXS+1}, {8*1280}, v{vXS+1}")
    a(f"v_bfe_u32 v{t4}, v{vL}, 2, 2")
    a(f"v_xor_b32 v{t4}, v{t4}, v{t1}")
    a(f"v_and_b32 v{t2}, 3, v{vL}")
    a(f"v_lshlrev_b32 v{t2}, 4, v{t2}")
    a(f"v_lshl_add_u32 v{t2}, v{t4}, 6, v{t2}")
    a(f"s_lshl_b32 s31, s24, 3")
    a(f"v_add_u32 v{t0}, s31, v{t1}")
    a(f"v_mul_u32_u24 v{t3}, 3840, v{t0}")
    a(f"s_lshl_b32 s31, s28, 6")
    a(f"v_add3_u32 v{vWS}, v{t3}, v{t2}, s31")
    a(f"v_cmp_eq_u32 vcc, 3, v{t4}")
    a(f"v_mov_b32 v{t5}, 0x{OOB:x}")
    a(f"s_cmp_ge_u32 s26, 12")
    a(f"s_cselect_b64 s[36:37], vcc, 0")
    a(f"s_lshr_b32 s34, s24, 2")
    a(f"v_cndmask_b32 v{vWS}, v{vWS}, v{t5}, s[36:37]")
    a("s_waitcnt lgkmcnt(0)")
    srd_tail(a, SX, 2048*1280); srd_tail(a, SW, 640*3840)

    def adv_k():
        return [f"s_add_u32 s{sK}, s{sK}, 1", f"s_cmp_eq_u32 s{sK}, 10", f"s_cselect_b32 s{sK}, 0, s{sK}"]
    def dma_groups(t):
        slot = t % 4
        g = []
        if t < 10:
            g.append([f"s_lshl_b32 s{sT0}, s{sK}, 7", f"s_add_u32 m0, s{sM0}, {slot*16384}", f"s_mul_i32 s{sT1}, s{sK}, {64*3840}",
                      f"buffer_load_dwordx4 v{vXS}, s[{SX}:{SX+3}], s{sT0} offen lds"])
            g.append([f"s_add_u32 m0, s{sM0}, {slot*16384+1024}", f"s_add_u32 s{sT2}, s{sT1}, {4*3840}",
                      f"buffer_load_dwordx4 v{vXS+1}, s[{SX}:{SX+3}], s{sT0} offen lds"])
            g.append([f"s_add_u32 m0, s{sM0}, {65536+slot*16384}", adv_k()[0],
                      f"buffer_load_dwordx4 v{vWS}, s[{SW}:{SW+3}], s{sT1} offen lds"])
            g.append([f"s_add_u32 m0, s{sM0}, {65536+slot*16384+1024}"] + adv_k()[1:] + [
                      f"buffer_load_dwordx4 v{vWS}, s[{SW}:{SW+3}], s{sT2} offen lds"])
        elif t < 15:
            for half in range(2):
                base = (65536 if half == 0 else 0) + slot*16384
                g.append([f"s_mul_i32 s{sT1}, s{sK}, {64*3072}", f"s_add_u32 m0, s{sM0}, {base}", f"s_add_u32 s{sT2}, s{sT1}, {4*3072}",
                          f"buffer_load_dwordx4 v{vW1S}, s[{SW1}:{SW1+3}], s{sT1} offen lds"])
                g.append([f"s_add_u32 m0, s{sM0}, {base+1024}"] + adv_k() + [
                          f"buffer_load_dwordx4 v{vW1S}, s[{SW1}:{SW1+3}], s{sT2} offen lds"])
        return g
    a("s_mov_b32 s29, s27")
    stamp(a, "karg")
    for g in dma_groups(0):
        for l in g: a(l)
    a("s_and_b32 s35, s24, 3")
    a("s_cmp_ge_u32 s26, 12")
    a("s_cselect_b32 s38, s34, 0")
    srd_tail(a, SG, 1280)
    a("s_cmp_eq_u32 s38, 1")
    a("s_cbranch_scc1 L_gate")
    a.label("L_gate_ret")
    def gate(a):
        u0, u1, u2 = vEP, vEP+1, vEP+2
        a.label("L_gate")
        a(f"s_lshl_b32 s31, s29, 3")
        for i in range(2):
            a(f"v_add_u32 v{u0}, {64*i}, v{vL}")
            a(f"v_add_u32 v{u1}, s31, v{u0}")
            a(f"v_subrev_u32 v{u2}, 80, v{u1}")
            a(f"v_cmp_le_u32 vcc, 80, v{u1}")
            a(f"s_lshl_b32 s32, s35, 11")
            a(f"s_add_u32 m0, s32, {131072 + 1024*i}")
            a(f"v_cndmask_b32 v{u1}, v{u1}, v{u2}, vcc")
            a(f"v_lshlrev_b32 v{u1}, 4, v{u1}")
            a(f"v_cmp_le_u32 vcc, 80, v{u0}")
            a("s_nop 1")
            a(f"v_cndmask_b32 v{u1}, v{u1}, v{t5}, vcc")
            a(f"buffer_load_dwordx4 v{u1}, s[{SG}:{SG+3}], 0 offen lds")
        a("s_branch L_gate_ret")
    late.append(gate)
    a("s_barrier")
    for g in dma_groups(1):
        for l in g: a(l)
    stamp(a, "dma1")
    srd_tail(a, SW1, 640*3072); srd_tail(a, SWS, WS_END); srd_tail(a, SDBG, 256)
    a("s_or_b32 s31, s2, s24")
    a("s_cmp_eq_u32 s31, 0")
    a("s_cbranch_scc1 L_tag")
    a.label("L_tag_ret")
    def tag(a):
        a.label("L_tag")
        a(f"s_memrealtime s[{sNON}:{sNON+1}]")
        a(f"v_mov_b32 v{vEP+2}, 0")
        a("s_waitcnt lgkmcnt(0)")
        a(f"s_or_b32 s31, s{sNON}, 1")
        a(f"v_mov_b32 v{vEP}, s31")
        a(f"v_mov_b32 v{vEP+1}, s{sNON+1}")
        a("s_mov_b64 exec, 1")
        a(f"buffer_store_dwordx2 v[{vEP}:{vEP+1}], v{vEP+2}, s[{SDBG}:{SDBG+3}], 0 offen {ST}")
        a("s_mov_b64 exec, -1")
        a("s_branch L_tag_ret")
    late.append(tag)
    a(f"v_mul_u32_u24 v{t3}, 3072, v{t0}")
    a(f"s_mul_i32 s31, s26, 192")
    a(f"v_add3_u32 v{vW1S}, v{t3}, v{t2}, s31")
    a(f"v_cmp_eq_u32 vcc, 3, v{t4}")
    a(f"v_and_b32 v{t0}, 31, v{vL}")
    a(f"s_lshl_b32 s31, s35, 5")
    a(f"v_cndmask_b32 v{vW1S}, v{vW1S}, v{t5}, vcc")
    a(f"v_mul_u32_u24 v{t1}, 43, v0")
    a(f"v_lshrrev_b32 v{t1}, 8, v{t1}")
    a(f"v_mul_u32_u24 v{t2}, {3072-6*128}, v{t1}")
    a(f"v_lshl_add_u32 v{t2}, v0, 7, v{t2}")
    a("s_lshr_b32 s32, s2, 3"); a(f"s_mul_i32 s32, s32, {20*3072}")
    a("s_bfe_u32 s33, s2, 0x20001"); a("s_mul_i32 s33, s33, 768"); a("s_add_u32 s32, s32, s33")
    a(f"v_cmp_gt_u32 vcc, 120, v0")
    a(f"v_add_u32 v{t2}, s32, v{t2}")
    a("s_nop 0")
    a(f"v_cndmask_b32 v{vNON+1}, v{t5}, v{t2}, vcc")
    if cfg.get("tlb"):
        a(f"v_and_b32 v{t1}, 31, v{vL}")
        a(f"v_min_u32 v{t1}, 24, v{t1}")
        a(f"v_lshlrev_b32 v{t1}, 15, v{t1}")
        a(f"v_min_u32 v{t2}, 29, v{vL}")
        a(f"v_lshlrev_b32 v{t2}, 16, v{t2}")
        a(f"v_cmp_gt_u32 vcc, 32, v{vL}")
        a(f"v_mov_b32 v{t3}, s48"); a(f"v_mov_b32 v{t4}, s46")
        a(f"v_cndmask_b32 v{t1}, v{t1}, v{t2}, vcc")
        a(f"v_cndmask_b32 v{t3}, v{t3}, v{t4}, vcc")
        a(f"v_mov_b32 v{t2}, s49"); a(f"v_mov_b32 v{t4}, s47")
        a(f"v_cndmask_b32 v{t2}, v{t2}, v{t4}, vcc")
        a(f"v_add_co_u32 v{vNON}, vcc, v{t1}, v{t3}")
        a("s_nop 1")
        a(f"v_addc_co_u32 v{vNON+1}, vcc, 0, v{t2}, vcc")
    a(f"v_add_u32 v{t0}, s31, v{t0}")
    a(f"v_bfe_u32 v{t1}, v{t0}, 1, 3")
    a(f"v_lshrrev_b32 v{t2}, 5, v{vL}")
    a(f"v_xor_b32 v{t1}, v{t1}, v{t2}")
    a(f"v_lshlrev_b32 v{t1}, 4, v{t1}")
    a(f"v_lshl_add_u32 v{vXR}, v{t0}, 7, v{t1}")
    for ks in range(1, 4):
        a(f"v_xor_b32 v{vXR+ks}, {ks<<5}, v{vXR}")
    a(f"v_bfe_u32 v{t0}, v{vL}, 2, 2")
    a(f"v_lshl_add_u32 v{t1}, v{t2}, 3, v{t0}")
    a(f"v_lshlrev_b32 v{t1}, 8, v{t1}")
    a(f"v_bfe_u32 v{t3}, v{vL}, 4, 1")
    a(f"v_lshl_add_u32 v{t1}, v{t3}, 5, v{t1}")
    a(f"v_and_b32 v{t3}, 3, v{vL}")
    a(f"v_lshl_add_u32 v{t1}, v{t3}, 3, v{t1}")
    for e in range(2):
        a(f"s_lshl_b32 s31, s34, 1")
        a(f"s_add_u32 s31, s31, {e}")
        a(f"v_xor_b32 v{t3}, s31, v{t0}")
        a(f"v_lshl_add_u32 v{vWR2+e}, v{t3}, 6, v{t1}")
        a(f"v_add_u32 v{vWR+e}, 0x10000, v{vWR2+e}")
    a(f"s_lshl_b32 s31, s35, 11")
    a(f"s_add_u32 s31, s31, 131072")
    a(f"v_lshl_add_u32 v{vGR}, v{t2}, 4, s31")
    a("s_cmp_ge_u32 s26, 10")
    a("s_cbranch_scc1 L_p1_v")
    a("s_cmp_ge_u32 s26, 5")
    a(f"s_cselect_b32 s31, 1, 0")
    a(f"s_lshl_b32 s39, 81920, s31")
    a(f"s_lshl_b32 s40, 5120, s31")
    a("s_cmp_ge_u32 s26, 5")
    a(f"s_cselect_b32 s41, {WS_KV}, {WS_Q}")
    a(f"s_cselect_b32 s42, 20, 0")
    a("s_mul_i32 s40, s40, s25")
    a("s_add_u32 s40, s40, s41")
    a("s_sub_u32 s42, s28, s42")
    a("s_lshl_b32 s31, s34, 1")
    a("s_add_u32 s42, s42, s31")
    a("s_lshl_b32 s42, s42, 2")
    a("s_and_b32 s31, s35, 1")
    a("s_lshl_b32 s31, s31, 8")
    a("s_add_u32 s40, s40, s31")
    a("s_lshr_b32 s31, s35, 1")
    a("s_lshl_b32 s41, s31, 11")
    a("s_lshl_b32 s31, s31, 9")
    a("s_add_u32 s33, s31, 4096")
    a(f"v_and_b32 v{t0}, 15, v{vL}")
    a(f"v_lshl_add_u32 v{t0}, v{t0}, 4, s40")
    a(f"v_add_u32 v{t2}, s42, v{t2}")
    a(f"v_bfe_u32 v{t5}, v{vL}, 4, 1")
    a(f"v_lshl_add_u32 v{t6}, v{t5}, 10, s41")
    a(f"v_mov_b32 v{vGR}, s33")
    QM = [36, 40, 42, 0]
    for i in range(4):
        u0 = vT+7
        a(f"v_add_u32 v{t1}, {2*i}, v{t2}")
        a(f"v_mul_u32_u24 v{t3}, 205, v{t1}")
        a(f"v_lshrrev_b32 v{t3}, 10, v{t3}")
        a(f"v_mul_u32_u24 v{t4}, 5, v{t3}")
        a(f"v_sub_u32 v{t1}, v{t1}, v{t4}")
        a(f"v_cmp_le_u32 vcc, 3, v{t1}")
        a(f"v_cmp_eq_u32 s[{QM[i]}:{QM[i]+1}], 2, v{t1}")
        a(f"v_subrev_u32 v{u0}, 3, v{t1}")
        a(f"v_cndmask_b32 v{t4}, 0, 1, vcc")
        a(f"v_cndmask_b32 v{t1}, v{t1}, v{u0}, vcc")
        a(f"v_cndmask_b32 v{t4}, v{t4}, v{t5}, s[{QM[i]}:{QM[i]+1}]")
        a(f"v_lshl_add_u32 v{t3}, v{t3}, 1, v{t4}")
        a(f"v_mul_lo_u32 v{t3}, v{t3}, s39")
        a(f"v_lshl_add_u32 v{t1}, v{t1}, 9, v{t6}")
        a(f"v_cndmask_b32 v{t1}, v{t1}, v{vGR}, s[{QM[i]}:{QM[i]+1}]")
        a(f"v_add3_u32 v{vEP+i}, v{t0}, v{t3}, v{t1}")
    a(f"v_lshrrev_b32 v{t1}, 1, v{vL}")
    a(f"v_xor_b32 v{t1}, v{t1}, v{vL}")
    a(f"v_and_b32 v{t1}, 1, v{t1}")
    a(f"v_mul_u32_u24 v{vGR}, 24, v{t1}")
    for e in range(2): a(f"v_xor_b32 v{vWR+e}, v{vWR+e}, v{vGR}")
    def ep_v():
        a("s_sub_u32 s42, s28, 40")
        a("s_lshl_b32 s31, s34, 1")
        a("s_add_u32 s42, s42, s31")
        a("s_lshl_b32 s42, s42, 5")
        a("s_mul_i32 s40, s25, 10240")
        a("s_lshr_b32 s31, s35, 1")
        a("s_mul_i32 s31, s31, 2560")
        a("s_add_u32 s40, s40, s31")
        a("s_and_b32 s31, s35, 1")
        a("s_mul_i32 s31, s31, 640")
        a("s_add_u32 s40, s40, s31")
        a(f"s_add_u32 s40, s40, {WS_KV + 5120}")
        a(f"s_mov_b32 s39, 163840")
        a(f"v_and_b32 v{t0}, 31, v{vL}")
        a(f"v_mul_u32_u24 v{t2}, 320, v{t2}")
        a(f"v_add_u32 v{t2}, s40, v{t2}")
        for e in range(2):
            a(f"v_add_u32 v{t1}, s42, v{t0}")
            if e: a(f"v_add_u32 v{t1}, 32, v{t1}")
            a(f"v_mul_u32_u24 v{t3}, 3277, v{t1}")
            a(f"v_lshrrev_b32 v{t3}, 16, v{t3}")
            a(f"v_mul_u32_u24 v{t4}, 20, v{t3}")
            a(f"v_sub_u32 v{t1}, v{t1}, v{t4}")
            a(f"v_mul_lo_u32 v{t3}, v{t3}, s39")
            a(f"v_lshl_add_u32 v{t1}, v{t1}, 4, v{t2}")
            a(f"v_add_u32 v{vEP+2*e}, v{t1}, v{t3}")
            a(f"v_add_u32 v{vEP+2*e+1}, 1280, v{vEP+2*e}")

    def p1_reads(variant, step):
        t, ks = divmod(step, 4)
        slot = t % 4; wb = WBS[step % 3]
        r = [f"ds_read_b128 {vr(X+4*step,4)}, v{vXR+ks} offset:{slot*16384}"]
        for e in range(2):
            if variant == "VG" and e == 1:
                r.append(f"ds_read_b128 {vr(wb+4,4)}, v{vGR} offset:{t*128+ks*32}")
            else:
                for u in range(2):
                    r.append(f"ds_read_b64_tr_b16 {vr(wb+4*e+2*u,2)}, v{vWR+e} offset:{slot*16384+ks*4096+u*1024}")
        return r
    def mf(acc, A, B, first):
        return f"v_mfma_f32_32x32x16_bf16 {vr(acc,16)}, {vr(A,4)}, {vr(B,4)}, " + ("0" if first else vr(acc,16))
    class LQ:
        def __init__(self, p1=False): self.q = []; self.p1 = p1
        def rd(self, lines, tag):
            for l in lines:
                if cfg.get("x_nox") and "b128" in l: l = "s_nop 0"
                elif cfg.get("x_now") and "_tr_" in l and "offset" in l and self.p1: l = "s_nop 0"
                else: self.q.append(tag)
                a(l)
        def wait(self, tag):
            if tag not in self.q: return
            n = len(self.q) - 1 - max(i for i, x in enumerate(self.q) if x == tag)
            a(f"s_waitcnt lgkmcnt({min(n, 15)})")
    uid = [0]
    def site(stage, sg, extra=None):
        uid[0] += 1
        a(f"s_cmp_eq_u32 s34, {sg}")
        a(f"s_cbranch_scc0 L_site{uid[0]}")
        for g in dma_groups(stage):
            for l in g:
                if cfg.get("x_nodma") and stage < 10 and l.startswith("buffer_load"): l = l.replace(f"v{vXS},", f"v{vNON},").replace(f"v{vXS+1},", f"v{vNON},").replace(f"v{vWS},", f"v{vNON},")
                if cfg.get("x_skipdma") and stage < 10 and l.startswith("buffer_load"): continue
                a(l)
        for l in extra or []: a(l)
        a.label(f"L_site{uid[0]}")
    TAGT = int(cfg.get("tagt", 5)); assert TAGT <= 6
    NOLG = cfg.get("nolg")
    def p1_main(variant):
        for g in dma_groups(2):
            for l in g: a(l)
        WT = int(cfg.get("wt", 1)); assert WT < TAGT
        warm = [] if not cfg.get("warm") else [f"buffer_load_dword v{vNON}, v{vNON+1}, s[{SW1}:{SW1+3}], 0 offen"]
        if cfg.get("tlb"): warm = [f"global_load_dword v{vNON}, v[{vNON}:{vNON+1}], off"]
        stamp(a, "p1_pre")
        a(f"s_waitcnt vmcnt(8)")
        a("s_barrier")
        stamp(a, "p1_first")
        if cfg.get("x_nodma"): a(f"v_mov_b32 v{vNON}, 0x{OOB:x}")
        lq = LQ(True)
        for st in range(2):
            rd = p1_reads(variant, st); lq.rd(rd[:3], (st, 0)); lq.rd(rd[3:], (st, 1))
        if variant != "VG": site(3, 0)
        tagld = [f"buffer_load_dwordx2 v[{vNON}:{vNON+1}], off, s[{SDBG}:{SDBG+3}], 0" + (f" {LDF}" if cfg.get("tagsc") else "")]
        for step in range(40):
            t, ks = divmod(step, 4)
            rd = p1_reads(variant, step+2) if step < 38 else []
            for e in range(2):
                w = WBS[step % 3]+4*e; x = X+4*step
                swap = (variant == "VV") or (variant == "VG" and e == 0)
                lq.wait((step, e))
                a(mf(ACC+16*e, x if swap else w, w if swap else x, step == 0))
                if ks == 2 and e == 0:
                    site(t+3, 1, tagld if t == TAGT+1 else warm if t == WT+1 else None)
                    stamp(a, f"p1_p{t}")
                    a(f"s_waitcnt vmcnt({8 + (t in (TAGT+1, TAGT+2)) + (bool(warm) and t in (WT+1, WT+2, WT+3))})" + ("" if NOLG else " lgkmcnt(0)"))
                    a("s_barrier")
                    stamp(a, f"p1_b{t}")
                lq.rd(rd[:3] if e == 0 else rd[3:], (step+2, e))
                if ks == 2 and e == 0 and variant != "VG":
                    site(t+4, 0, tagld if t == TAGT else warm if t == WT else None)
        site(13, 1)
        stamp(a, "p1_end")
    def v_epilogue(e):
        for s in range(2):
            d = PK[2*e+s]
            for c in range(4):
                r = ACC + 16*e + 8*s + 2*c
                a(f"v_cvt_pk_bf16_f32 v{d+c}, v{r}, v{r+1}")
            a("s_nop 1")
            a(f"v_permlane32_swap_b32 v{d}, v{d+2}")
            a(f"v_permlane32_swap_b32 v{d+1}, v{d+3}")

    p1_main("QK")
    a("s_cmp_ge_u32 s26, 5")
    a(f"s_cselect_b32 s31, 1.0, 0x{QSCALE:x}")
    for e in range(2): a(f"v_xor_b32 v{vWR+e}, v{vWR+e}, v{vGR}")
    a("s_nop 5")
    for i in range(4):
        r = ACC + 8*i; d = PK[i]
        for c in range(8): a(f"v_mul_f32 v{r+c}, s31, v{r+c}")
        for c in range(4): a(f"v_cvt_pk_bf16_f32 v{d+c}, v{r+2*c}, v{r+2*c+1}")
        a(f"s_mov_b64 exec, s[{QM[i]}:{QM[i]+1}]")
        a("s_nop 0")
        a(f"v_permlane16_swap_b32 v{d}, v{d+2}")
        a(f"v_permlane16_swap_b32 v{d+1}, v{d+3}")
        a("s_mov_b64 exec, -1")
    def vpart(a2):
        assert a2 is a
        a.label("L_p1_v")
        ep_v()
        a("s_cmp_eq_u32 s38, 1")
        a("s_cbranch_scc1 L_p1_vg")
        p1_main("VV")
        a("s_nop 7"); a("s_nop 1")
        v_epilogue(0); v_epilogue(1)
        a("s_branch L_p2")
        a.label("L_p1_vg")
        for i in (2, 3): a(f"v_mov_b32 v{vEP+i}, 0x{OOB:x}")
        p1_main("VG")
        a("s_nop 7"); a("s_nop 1")
        v_epilogue(0)
        z = ACC + 16
        a(f"v_cvt_pk_bf16_f32 v{z}, v{z}, v{z}")
        a(f"v_and_b32 v{z}, 0xffff0000, v{z}")
        a(f"v_mul_f32 v{z}, 0x{f32bits(-math.log2(math.e)):x}, v{z}")
        a(f"v_exp_f32 v{z}, v{z}")
        a("s_nop 0")
        a(f"v_add_f32 v{z}, 1.0, v{z}")
        a(f"v_rcp_f32 v{z}, v{z}")
        a(f"s_lshl_b32 s31, s25, 9")
        a(f"s_lshl_b32 s32, s35, 7")
        a(f"v_cvt_pk_bf16_f32 v{z}, v{z}, v{z}")
        a(f"v_and_b32 v{z}, 0xffff0000, v{z}")
        a(f"s_add_u32 s31, s31, s32")
        a(f"s_add_u32 s31, s31, {WS_G}")
        a(f"v_and_b32 v{z+1}, 31, v{vL}")
        a(f"v_lshlrev_b32 v{z+1}, 2, v{z+1}")
        a("s_cmp_eq_u32 s26, 15")
        a("s_cbranch_scc0 L_p2")
        a(f"buffer_store_dword v{z}, v{z+1}, s[{SWS}:{SWS+3}], s31 offen {ST}")
        a("s_branch L_p2")
    late.insert(0, vpart)
    a.label("L_p2")
    a(f"v_readfirstlane_b32 s{sNON}, v{vNON}")
    a(f"v_readfirstlane_b32 s{sNON+1}, v{vNON+1}")
    a("s_nop 0")
    a(f"s_cmp_eq_u32 s{sNON}, 0")
    a("s_cbranch_scc1 L_tagw")
    a.label("L_tagw_ret")
    def tagw(a):
        a.label("L_tagw")
        a(f"s_mov_b32 s31, {SPIN}")
        a.label("L_tagw_l")
        a(f"buffer_load_dwordx2 v[{vNON}:{vNON+1}], off, s[{SDBG}:{SDBG+3}], 0 {LDF}")
        a("s_sub_u32 s31, s31, 1")
        a("s_cmp_eq_u32 s31, 0")
        a("s_cbranch_scc1 L_tagw_ret")
        a("s_waitcnt vmcnt(0)")
        a(f"v_readfirstlane_b32 s{sNON}, v{vNON}")
        a(f"v_readfirstlane_b32 s{sNON+1}, v{vNON+1}")
        a("s_nop 0")
        a(f"s_cmp_eq_u32 s{sNON}, 0")
        a("s_cbranch_scc1 L_tagw_l")
        a("s_branch L_tagw_ret")
    late.append(tagw)
    def p2_reads(ns, step):
        D, rem = divmod(step, 8); half, ks = divmod(rem, 4)
        slot = (10 + D) % 4; wb = WBS[step % 3]
        base = vWR if half == 0 else vWR2
        return [f"ds_read_b64_tr_b16 {vr(wb+4*e+2*u,2)}, v{base+e} offset:{slot*16384+ks*4096+u*1024}" for e in range(ns) for u in range(2)]
    fillA, fillB = setup_later(cfg, vL)
    SIG = int(cfg.get("sig1", 14)); POLL1 = int(cfg.get("poll1", 31)); CHK1 = int(cfg.get("chk1", 37))
    STS = {2: [int(x) for x in cfg.get("sts", "0,1,2,3").split(",")], 1: [0, 1, 2, 3]}
    def first_loads(ns):
        r = [f"buffer_load_dwordx4 {vr(aQ1,4)}, v{vD}, s[{SWS}:{SWS+3}], s32 offen {LDF}",
             f"buffer_load_dwordx4 {vr(aQ1+4,4)}, v{vD}, s[{SWS}:{SWS+3}], s32 offen offset:1024 {LDF}",
             f"buffer_load_dwordx4 {vr(aK2,4)}, v12, s[{SWS}:{SWS+3}], s33 offen {LDF}"]
        if ns == 1:
            ld = lambda i: f"buffer_load_dwordx4 v{vD}, s[{SWS}:{SWS+3}], s37 offen offset:{1024*i} {LDF} lds"
            r = ["s_mov_b32 m0, s35", "s_add_u32 s37, s35, s36"] + [ld(i) for i in range(4)] + ["s_add_u32 m0, s35, 4096", "s_add_u32 s37, s37, 4096", ld(0)] + r
        return r
    def p2_main(ns):
        stamp(a, "p2_start")
        vm = VM()
        for st in (11, 12, 13): vm.add(f"s{st}", 4)
        lq = LQ()
        for st in range(2):
            rd = p2_reads(ns, st)
            for e in range(ns): lq.rd(rd[2*e:2*e+2], (st, e))
        fa = list(fillA); fb = list(fillB); pkl = []; PKS = int(cfg.get("pks", 23))
        for step in range(40):
            D, rem = divmod(step, 8)
            rd = p2_reads(ns, step+2) if step < 38 else []
            for e in range(ns):
                lq.wait((step, e))
                a(mf(ACC+16*e, WBS[step % 3]+4*e, X+4*step, step == 0))
                bar = rem == 6 and D < 4
                if e == 0 and (bar or step == SIG):
                    need = ([f"s{11+D}"] if bar else []) + (["st"] if step == SIG else [])
                    stamp(a, f"p2_p{D}" if bar else "p2_ps")
                    a(f"s_waitcnt vmcnt({vm.after(*need)})" + (" lgkmcnt(0)" if (D == 0 and not NOLG) else ""))
                    a("s_barrier")
                    stamp(a, f"p2_b{D}" if bar else "p2_bs")
                lq.rd(rd[2*e:2*e+2], (step+2, e))
                if e == 0 and step == 6:
                    for g in dma_groups(14):
                        for l in g: a(l)
                    vm.add("s14", 4)
                if e == 0 and step == SIG and ns == 1:
                    assert not any(f"s{sF1}," in l for l in fa)
                    for l in flag_store([sF1], 8): a(l)
                    vm.add("flag")
                if e == ns-1 and step in STS[ns]:
                    i = STS[ns].index(step)
                    a(f"buffer_store_dwordx4 {vr(PK[i],4)}, v{vEP+i}, s[{SWS}:{SWS+3}], 0 offen {ST}")
                    vm.add("st")
                poll = "\n".join(poll_ld(vP1, 4, vEP))
                if e == 0 and step == POLL1 and ns == 1:
                    a("s_cmp_eq_u32 s24, 4"); a("s_cbranch_scc0 L_p1s")
                    for i in (0, 2): a(f"v_mov_b32 v{vEP+i}, 0")
                    a(poll)
                    a.label("L_p1s")
                if e == 0 and step == CHK1:
                    assert not fa and CHK1 >= 31
                    a(f"v_mov_b32 v14, {139264}")
                    if ns == 1:
                        a("s_cmp_eq_u32 s24, 4"); a("s_cbranch_scc0 L_c1s")
                        if cfg.get("blk"): a("s_waitcnt vmcnt(0)")
                        for l in flag_test(vEP, 4, 46): a(l)
                        a("s_or_b32 s14, vcc_lo, vcc_hi")
                        a("v_mov_b32 v13, s14")
                        a("s_mov_b64 exec, 1")
                        a("ds_write_b32 v14, v13")
                        a("s_mov_b64 exec, -1")
                        a(poll)
                        a("s_waitcnt lgkmcnt(0)")
                        a.label("L_c1s")
                    a("s_barrier")
                    lq.rd(["ds_read_b32 v13, v14"], "chk")
                if e == 0 and step == CHK1+1:
                    lq.wait("chk")
                    a("v_readfirstlane_b32 s14, v13")
                    a("s_cmp_eq_u32 s14, 0")
                    a(f"s_cbranch_scc0 L_early{ns}")
                    for l in first_loads(ns): a(l)
                    a.label(f"L_early{ns}")
                if e == 0 and pkl and step >= PKS:
                    if cfg.get("v"): print("pack load at step", step, "ns", ns)
                    a(pkl.pop(0)); vm.add("pk")
                if step >= 7:
                    for _ in range(8 // ns):
                        while fa and fa[0].lstrip().startswith("buffer_load"): pkl.append(fa.pop(0))
                        if fa: a(fa.pop(0))
                        elif fb and step > max(STS[2]): a(fb.pop(0))
        assert not fa and not fb and not pkl, (fa, fb)
        stamp(a, "p2_end")
        a(f"v_bfe_u32 v{aS}, v{vD}, 4, 5")
        a(f"v_mov_b32 v{aS+1}, 0x3f803f80")
        a(f"v_cmp_eq_u32 vcc, 20, v{aS}")
        for i in range(32): a(f"v_mov_b32 v{aO+i}, 0")
        a(f"v_mov_b32 v{aIDX}, 0xdddddddd")
        for i in range(8): a(f"v_cndmask_b32 v{aV+i}, 0, v{aS+1}, vcc")
        for e in range(ns):
            for s in range(2):
                d = HPK + 8*e + 4*s
                for c in range(4):
                    r = ACC + 16*e + 8*s + 2*c
                    a(f"v_max_f32 v{r}, 0, v{r}")
                    a(f"v_max_f32 v{r+1}, 0, v{r+1}")
                    a(f"v_cvt_pk_bf16_f32 v{d+c}, v{r}, v{r+1}")
        a(f"v_mov_b32 v{HPK+16}, " + (f"v{vD}" if ns == 2 else f"0x{OOB:x}"))
        a(f"v_lshrrev_b32 v2, 2, v12")
        a(f"v_and_b32 v3, 64, v2")
        a(f"v_add_u32 v{aG}, v2, v3")
        a(f"v_bfe_u32 v2, v{vD}, 8, 1")
        a(f"v_mul_u32_u24 v2, {32768-256}, v2")
        a(f"v_add_u32 v{aOA}, v2, v{vD}")
        a("s_lshr_b32 s31, s24, 1")
        for j in range(5):
            if j < 4: a(f"s_xor_b32 s13, s31, {j}"); a("s_lshl_b32 s13, s13, 5")
            a(f"v_add_u32 v{vRA+j}, {'s13' if j < 4 else 128}, v{vR4}")
            a(f"v_add_u32 v{vRA7+j}, {7*10240}, v{vRA+j}")
        a("s_lshl_b32 s31, s24, 6")
        a(f"v_lshrrev_b32 v2, 4, v{vD}")
        a(f"v_add_u32 v2, s31, v2")
        a(f"v_lshlrev_b32 v3, 7, v2")
        a(f"s_mul_i32 s31, s26, {100*128}"); a(f"s_add_u32 s31, s31, s1")
        a(f"v_cmp_gt_u32 vcc, 100, v2")
        a(f"v_add_u32 v3, s31, v3")
        a(f"v_mov_b32 v2, 0x{OOB:x}")
        for i in range(4): a(f"v_mov_b32 v{vSENT+i}, -1")
        a(f"v_cndmask_b32 v{vWARM}, v2, v3, vcc")
        stamp(a, "at_init")
        a("s_cmp_eq_u32 s14, 0")
        a(f"s_cbranch_scc0 L_late{ns}")
        a.label(f"L_late{ns}_ret")
        def lateload(a):
            a.label(f"L_late{ns}")
            if ns == 1:
                a("s_cmp_eq_u32 s24, 4")
                a("s_cbranch_scc0 L_w1_ret")
                a("s_waitcnt vmcnt(0)")
                for l in flag_test(vEP, 4, 46): a(l)
                a("s_cbranch_vccnz L_w1")
                a.label("L_w1_ret")
            a("s_barrier")
            for l in first_loads(ns): a(l)
            a(f"s_branch L_late{ns}_ret")
            if ns == 1: spin(a, "L_w1", vP1, 4, vEP, 31, 46)
        late.append(lateload)
    a("s_cmp_eq_u32 s34, 0")
    a("s_cbranch_scc0 L_p2_1")
    p2_main(2)
    def p2one(a2):
        a.label("L_p2_1")
        p2_main(1)
        a("s_branch L_p2_done")
    late.insert(0, p2one)
    a.label("L_p2_done")

def setup_later(cfg, vL):
    t0, t1, t2, t3, t4, t5, t6 = range(7)
    A = Asm(); B = Asm()
    a = A
    a(f"v_lshlrev_b32 v{vD}, 4, v{vL}")
    a(f"v_and_b32 v12, 0x1ff, v{vD}")
    a("s_lshl_b32 s31, s25, 2"); a("s_add_u32 s31, s31, s35"); a("s_mul_i32 s31, s31, 98304"); a("s_mul_i32 s32, s26, 3")
    a("s_lshl_b32 s33, s34, 1"); a("s_add_u32 s32, s32, s33"); a("s_lshl_b32 s32, s32, 11"); a("s_add_u32 s31, s31, s32")
    a(f"s_add_u32 s{sHE}, s31, {WS_H}")
    a(f"s_lshl_b32 s39, s25, {FS+4}"); a(f"s_lshl_b32 s40, s26, {FS}"); a("s_add_u32 s39, s39, s40"); a(f"s_add_u32 s39, s39, {FL2}")
    a("s_cmp_eq_u32 s24, 0"); a(f"s_cselect_b32 s{sF2}, s39, 0x{OOB:x}")
    a(f"s_lshl_b32 s39, s26, {FS+4}"); a(f"s_lshl_b32 s40, s25, {FS}"); a("s_add_u32 s39, s39, s40"); a(f"s_add_u32 s39, s39, {FL1}")
    a("s_cmp_eq_u32 s24, 4"); a(f"s_cselect_b32 s{sF1}, s39, 0x{OOB:x}")
    a("s_and_b32 s31, s2, 7"); a("s_lshr_b32 s33, s2, 6"); a("s_bfe_u32 s36, s2, 0x30003")
    a("s_lshr_b32 s39, s31, 1"); a("s_lshl_b32 s39, s39, 3"); a("s_add_u32 s39, s39, s36")
    a("s_and_b32 s40, s31, 1"); a("s_lshl_b32 s40, s40, 2"); a("s_add_u32 s40, s40, s33")
    a("s_mul_i32 s41, s40, 160"); a("s_mul_i32 s1, s40, 348160"); a(f"s_add_u32 s1, s1, {WS_WP}")
    xw = cfg.get("x_pkw")
    a(f"s_mov_b64 s[{SW2}:{SW2+1}], s[{'12:13' if xw else '46:47'}]"); a(f"s_mov_b32 s{SW2+2}, {1536*1280}")
    a(f"s_mov_b64 s[{SWO}:{SWO+1}], s[{'12:13' if xw else '48:49'}]"); a(f"s_mov_b32 s{SWO+2}, {640*1280}")
    a("s_lshl_b32 s31, s24, 6")
    a(f"v_add_u32 v{t0}, s31, v{vL}")
    a(f"v_mul_u32_u24 v{t1}, 205, v{t0}")
    a(f"v_lshrrev_b32 v{t1}, 11, v{t1}")
    a(f"v_mul_u32_u24 v{t1}, {1280-160}, v{t1}")
    a(f"v_lshl_add_u32 v{t1}, v{t0}, 4, v{t1}")
    a(f"v_mov_b32 v{t5}, 0x{OOB:x}")
    a(f"s_mul_i32 s31, s39, {48*1280}"); a("s_add_u32 s31, s31, s41"); a(f"s_mul_i32 s32, s39, {48*160}"); a("s_add_u32 s32, s32, s1")
    a(f"v_cmp_gt_u32 vcc, 480, v{t0}")
    a(f"v_add_u32 v{t3}, s31, v{t1}")
    a(f"v_lshl_add_u32 v{t4}, v{t0}, 4, s32")
    a(f"v_cndmask_b32 v{vPS}, v{t5}, v{t3}, vcc")
    a(f"v_cndmask_b32 v{vPD}, v{t5}, v{t4}, vcc")
    a(f"s_mul_i32 s31, s39, {20*1280}"); a("s_add_u32 s31, s31, s41")
    a(f"s_mul_i32 s32, s39, {16*160}"); a(f"s_add_u32 s1, s1, {1536*160}"); a("s_add_u32 s32, s32, s1")
    a("s_and_b32 s33, s39, 28"); a("s_bfe_u32 s36, s39, 0x10001"); a("s_add_u32 s33, s33, s36"); a("s_and_b32 s36, s39, 1"); a("s_lshl_b32 s36, s36, 1")
    a("s_add_u32 s33, s33, s36"); a("s_mul_i32 s33, s33, 640"); a(f"s_add_u32 s33, s33, {(512-16)*160}"); a("s_add_u32 s33, s33, s1")
    a(f"v_mov_b32 v{t3}, s32")
    a(f"v_mov_b32 v{t4}, s33")
    a(f"v_cmp_gt_u32 vcc, 160, v{t0}")
    a(f"v_add_u32 v{t1}, s31, v{t1}")
    a("s_nop 0")
    a(f"v_cndmask_b32 v{t3}, v{t4}, v{t3}, vcc")
    a(f"v_cmp_gt_u32 vcc, 200, v{t0}")
    a(f"v_lshl_add_u32 v{t3}, v{t0}, 4, v{t3}")
    a("s_nop 0")
    a(f"v_cndmask_b32 v{vPS+1}, v{t5}, v{t1}, vcc")
    a(f"v_cndmask_b32 v{vPD+1}, v{t5}, v{t3}, vcc")
    if cfg.get("pke", "2") == "2":
        for l in pk_ld(): a(l)
    a("s_mov_b32 s27, s34"); a("s_mov_b32 s28, s35")
    a("s_mul_i32 s0, s27, 81920")
    a("s_and_b32 s3, s24, 1"); a("s_sub_u32 s32, 3, s27"); a("s_mul_i32 s32, s32, s3"); a("s_mul_i32 s33, s27, 6"); a("s_add_u32 s12, s32, s33")
    a("s_bfe_u32 s13, s24, 0x10001"); a("s_mul_i32 s32, s13, 81920"); a("s_lshl_b32 s12, s12, 10"); a(f"s_add_u32 s{sM4}, s32, s12")
    a("s_mul_i32 s35, s3, 5120"); a("s_add_u32 s35, s35, s32")
    a("s_mul_i32 s32, s13, 10240"); a("s_add_u32 s12, s12, s32")
    a("s_and_b32 s31, s2, 7"); a("s_lshr_b32 s33, s2, 6"); a("s_bfe_u32 s26, s2, 0x30003")
    a("s_lshl_b32 s25, s31, 2"); a("s_add_u32 s25, s25, s33")
    a(f"s_lshl_b32 s39, s26, {FS+5}"); a(f"s_lshl_b32 s40, s25, {FS}"); a("s_add_u32 s39, s39, s40"); a(f"s_add_u32 s39, s39, {FL3}")
    a("s_cmp_eq_u32 s24, 0"); a(f"s_cselect_b32 s{sF3}, s39, 0x{OOB:x}")
    a(f"v_lshrrev_b32 v{t0}, 4, v{vL}")
    a(f"v_add_u32 v{t0}, 1, v{t0}")
    a(f"v_mul_u32_u24 v{t1}, 640, v{t0}")
    a(f"v_cmp_eq_u32 vcc, 3, v{t0}")
    a(f"s_mul_i32 s39, s25, 20")
    a(f"v_bfe_u32 v{t3}, v{vL}, 3, 1")
    a(f"v_cndmask_b32 v{t1}, v{t1}, 0, vcc")
    a(f"v_mul_u32_u24 v{t3}, 19, v{t3}")
    a(f"v_add3_u32 v{t1}, v{t1}, v{t3}, s39")
    a(f"v_min_u32 v{t1}, 1919, v{t1}")
    a(f"v_lshrrev_b32 v{t1}, 5, v{t1}")
    a(f"v_lshrrev_b32 v{t3}, 2, v{t1}")
    a(f"v_subrev_u32 v{t4}, 12, v{t1}")
    a(f"v_mul_u32_u24 v{t4}, 43, v{t4}")
    a(f"v_lshrrev_b32 v{t4}, 7, v{t4}")
    a(f"v_cmp_le_u32 vcc, 48, v{t1}")
    a(f"v_and_b32 v{t0}, 7, v{vL}")
    a(f"v_lshlrev_b32 v{t0}, {FS+1}, v{t0}")
    a(f"v_cndmask_b32 v{t3}, v{t3}, v{t4}, vcc")
    a(f"v_lshl_add_u32 v{t3}, v{t3}, {FS+4}, v{t0}")
    a(f"v_add_u32 v{vP1}, {FL1}, v{t3}")
    a("s_lshr_b32 s39, s31, 1"); a("s_lshl_b32 s39, s39, 3"); a("s_add_u32 s39, s39, s26")
    a("s_and_b32 s40, s31, 1"); a("s_lshl_b32 s40, s40, 2"); a("s_add_u32 s40, s40, s33")
    a("s_mul_i32 s36, s26, 3"); a("s_lshr_b32 s36, s36, 1"); a("s_mul_i32 s33, s33, 3"); a("s_add_u32 s36, s36, s33")
    a("s_cmp_ge_u32 s36, 12"); a("s_cselect_b32 s33, 12, 0"); a("s_sub_u32 s36, s36, s33")
    a("s_lshr_b32 s33, s24, 1"); a("s_lshl_b32 s31, s33, 11")
    a(f"s_mul_i32 s{sHB}, s39, {2*98304}"); a(f"s_add_u32 s{sHB}, s{sHB}, s31"); a(f"s_add_u32 s{sHB}, s{sHB}, {WS_H}")
    a(f"s_add_u32 s{sHL}, s{sHB}, 98304"); a(f"s_lshl_b32 s{sKH}, s36, 13"); a(f"s_add_u32 s{sKH}, s{sKH}, s{sHB}")
    a(f"s_lshl_b32 s{sOB}, s39, 16"); a(f"s_add_u32 s{sOB}, s{sOB}, s31"); a(f"s_add_u32 s{sOB}, s{sOB}, {WS_O}")
    a(f"s_lshl_b32 s{sOR}, s39, 2"); a(f"s_add_u32 s{sOR}, s{sOR}, s33"); a(f"s_lshl_b32 s{sOR}, s{sOR}, 12"); a(f"s_add_u32 s{sOR}, s{sOR}, {WS_OR}")
    a("s_lshl_b32 s31, s39, 2"); a("s_add_u32 s31, s31, s3")
    a(f"s_lshl_b32 s{sG4}, s31, 6"); a(f"s_add_u32 s{sG4}, s{sG4}, {WS_G}")
    a(f"s_mul_i32 s{sOUTB}, s31, 20480"); a("s_mul_i32 s41, s40, 160"); a(f"s_add_u32 s{sOUTB}, s{sOUTB}, s41")
    a("s_mul_i32 s1, s40, 348160"); a(f"s_add_u32 s1, s1, {WS_WP}")
    a(f"s_add_u32 s{sW2B}, s1, s12"); a(f"s_add_u32 s{sWOB}, s{sW2B}, {12*20480}")
    a(f"s_mul_i32 s{sKW}, s36, 20480"); a(f"s_add_u32 s{sKW}, s{sKW}, s{sW2B}")
    a(f"s_add_u32 s1, s1, {1536*160}")
    a("s_lshl_b32 s31, s40, 8"); a(f"s_add_u32 s31, s31, {FL4}"); a("s_lshl_b32 s32, s39, 3"); a("s_add_u32 s32, s32, s31")
    a("s_cmp_eq_u32 s24, 0"); a(f"s_cselect_b32 s{sF4}, s32, 0x{OOB:x}")
    a("s_lshr_b32 s32, s39, 1"); a("s_lshl_b32 s32, s32, 7"); a(f"s_add_u32 s32, s32, {FL2}")
    a("s_lshr_b32 s33, s39, 2"); a("s_lshl_b32 s33, s33, 8"); a(f"s_add_u32 s33, s33, {FL3}")
    a(f"v_and_b32 v{t0}, 15, v{vL}")
    a(f"v_and_b32 v{t1}, 7, v{vL}")
    a(f"v_lshl_add_u32 v{t3}, v{t0}, 4, s33")
    a(f"v_lshl_add_u32 v{t4}, v{t1}, 4, s32")
    a(f"v_cmp_gt_u32 vcc, 16, v{vL}")
    a(f"v_lshl_add_u32 v{t0}, v{t0}, 4, s31")
    a("s_nop 0")
    a(f"v_cndmask_b32 v{t3}, v{t4}, v{t3}, vcc")
    a(f"v_cmp_gt_u32 vcc, 32, v{vL}")
    a("s_nop 1")
    a(f"v_cndmask_b32 v{vP2}, v{t0}, v{t3}, vcc")
    a("s_mul_i32 s31, s25, 81920"); a("s_lshl_b32 s32, s26, 1"); a("s_lshr_b32 s33, s28, 1"); a("s_add_u32 s32, s32, s33")
    a("s_mul_i32 s32, s32, 5120"); a("s_add_u32 s31, s31, s32"); a("s_and_b32 s33, s28, 1"); a("s_lshl_b32 s32, s33, 11")
    a("s_add_u32 s32, s32, s31")
    a("s_lshl_b32 s33, s33, 9"); a("s_add_u32 s33, s33, s31"); a("s_add_u32 s33, s33, 4096")
    a("s_lshl_b32 s31, s26, 3"); a("s_lshl_b32 s29, s28, 1"); a("s_add_u32 s29, s31, s29")
    a("s_lshl_b32 s30, s29, 7"); a("s_lshl_b32 s31, s27, 6"); a("s_add_u32 s30, s30, s31"); a(f"s_add_u32 s30, s30, {WS_G}")
    a("s_mul_i32 s36, s25, 163840"); a(f"s_add_u32 s36, s36, {WS_KV}"); a(f"s_add_u32 s34, s36, s{sM4}")
    a("s_mov_b32 s38, 0x000fffff"); a("s_mov_b32 s39, 0x000fffff")
    a(f"s_mov_b64 s[{SOUT}:{SOUT+1}], s[50:51]"); a(f"s_mov_b32 s{SOUT+2}, {2048*1280}")
    a(f"v_lshrrev_b32 v{t2}, 5, v{vL}")
    a(f"v_add_u32 v{vKA}, s0, v{vD}")
    a(f"v_and_b32 v{t0}, 31, v{vL}")
    a(f"v_mul_u32_u24 v{t3}, 320, v{t2}")
    a(f"v_lshl_add_u32 v{t3}, v{t0}, 4, v{t3}")
    a(f"v_add_u32 v{t3}, 5120, v{t3}")
    a(f"v_add_u32 v{vVA}, s0, v{t3}")
    a = B
    a(f"v_and_b32 v{t0}, 15, v{vL}")
    a("s_mul_i32 s31, s13, 5120")
    a("s_add_u32 s31, s31, s0")
    a(f"v_mul_u32_u24 v{t3}, 2560, v{t2}")
    a(f"v_bfe_u32 v{t1}, v{vL}, 2, 3")
    a(f"v_mul_u32_u24 v{t1}, 160, v{t1}")
    a(f"v_and_b32 v{t4}, 3, v{vL}")
    a(f"v_lshl_add_u32 v{t1}, v{t4}, 3, v{t1}")
    a(f"v_add3_u32 v{vR4}, v{t3}, v{t1}, s31")
    a(f"v_lshrrev_b32 v{t3}, 4, v{vL}")
    a(f"v_lshlrev_b32 v{t0}, 4, v{t0}")
    a(f"v_lshl_add_u32 v{vA4}, v{t3}, 9, v{t0}")
    a("s_lshl_b32 s31, s3, 8")
    a(f"v_add_u32 v{vA4}, s31, v{vA4}")
    a(f"v_add_u32 v{vA4B}, 98304, v{vA4}")
    return A.lines, B.lines

def phase3(a, cfg, late):
    stamp = cfg["stamp"]
    S, O, Q1, Q2, K1, K2, V, vIDX, vG = aS, aO, aQ1, aQ2, aK1, aK2, aV, aIDX, aG
    PKE = int(cfg.get("pke", "2"))
    pk_st = [f"buffer_store_dwordx4 {vr(PKW[i],4)}, v{vPD+i}, s[{SWS}:{SWS+3}], 0 offen {ST}" for i in range(2)]
    if PKE == 1:
        for l in pk_ld(): a(l)
    a(f"s_waitcnt vmcnt({2 if PKE == 1 else 0})")
    stamp(a, "at_q")
    for c in range(2): a(f"v_mov_b32 v{Q2+c}, v{K2+c}")
    a("s_mov_b32 exec_lo, 0")
    for c in range(2): a(f"v_mov_b32 v{Q2+c}, v{K2+2+c}")
    a("s_mov_b64 exec, -1")
    bump = {"k": 0}
    def koff(g, off): return g*10240 + off - bump["k"]
    def rd_k1(T):
        g, tt = divmod(T, 4)
        return f"ds_read_b128 {vr(K1,4)}, v{vKA} offset:{koff(g, tt*1024)}"
    def rd_k2(g):
        return f"ds_read_b128 {vr(K2,4)}, v{vKA} offset:{koff(g, 4096)}"
    def rd_v(T, s):
        g, tt = divmod(T, 4)
        return f"ds_read_b128 {vr(V+4*s,4)}, v{vVA} offset:{koff(g, tt*1280+640*s)}"
    def sreg(T, q): return S + 32*(T % 2) + 16*q
    def b2(T):
        tt = T % 4
        return f"v_mfma_f32_32x32x4_2b_bf16 {vr(sreg(T,0),32)}, {vr(K2+2*(tt&1),2)}, {vr(Q2,2)}, 0 cbsz:1 abid:{tt>>1}"
    def qk(T, q):
        return f"v_mfma_f32_32x32x16_bf16 {vr(sreg(T,q),16)}, {vr(K1,4)}, {vr(Q1+4*q,4)}, {vr(sreg(T,q),16)}"
    def pv(T, q, h):
        return f"v_smfmac_f32_32x32x32_bf16 {vr(O+16*q,16)}, {vr(V+4*h,4)}, {vr(sreg(T,q)+8*h,8)}, v{vIDX}"
    a("s_barrier")
    stamp(a, "at_first")
    a(rd_k2(0)); a(rd_k1(0))
    a("s_lshl_b32 s31, s29, 15"); a("s_lshl_b32 s32, s25, 10"); a("s_add_u32 s32, s32, s31")
    a("s_lshl_b32 s13, s27, 8"); a(f"s_add_u32 s31, s13, {WS_O}"); a("s_add_u32 s32, s32, s31")
    a("s_lshl_b32 s31, s29, 13"); a("s_lshl_b32 s33, s25, 9"); a("s_add_u32 s33, s33, s31")
    a(f"s_add_u32 s31, s13, {WS_OR}"); a("s_add_u32 s33, s33, s31")
    a("s_waitcnt lgkmcnt(1)")
    a(b2(0))
    for l in SETZ: a(l)
    for g in kv_dma(1):
        for l in g: a(l)
    a("s_waitcnt lgkmcnt(0)")
    a("s_nop 7"); a("s_nop 2")
    a(qk(0, 0)); a(qk(0, 1))
    a("s_nop 7")
    vm = VM(); cfg["vm"] = vm
    extra = {u: [] for u in range(64)}
    for i, g in enumerate(g for k in range(2, 8) for g in kv_dma(k)): extra[i//2].append(g)
    pk = pk_st if PKE in (1, 2) else pk_ld()
    extra[9].append([f"buffer_load_dword v{aG}, v{aG}, s[{SWS}:{SWS+3}], s30 offen {LDF}", pk[0]])
    extra[9].append([pk[1]])
    for i in range(4):
        extra[10+i].append([f"buffer_store_dwordx4 {vr(HPK+4*i,4)}, v{vD if i < 2 else HPK+16}, s[{SWS}:{SWS+3}], s{sHE} offen offset:{1024*i} {ST}"])
    extra[14].append([f"buffer_store_dwordx4 {vr(vSENT,4)}, v{aOA}, s[{SWS}:{SWS+3}], s32 offen {ST}"])
    extra[15].append(["s_mov_b64 exec, 0xffff", f"buffer_store_dwordx4 {vr(vSENT,4)}, v{vD}, s[{SWS}:{SWS+3}], s33 offen {ST}", "s_mov_b64 exec, -1"])
    if not PKE:
        extra[17].append(["s_waitcnt vmcnt(6)", pk_st[0]])
        extra[17].append([pk_st[1]])
    sync = {6: ["s_waitcnt vmcnt(8)", "s_barrier"],
            14: ["s_waitcnt vmcnt(17)", "s_barrier"],
            22: ["s_waitcnt vmcnt(0)", "s_barrier"],
            34: ["s_waitcnt vmcnt(0)"] + flag_test(HP, 4) + ["s_cbranch_vccnz L_w2", "L_w2_ret:"] + SETZ,
            56: ["s_waitcnt vmcnt(0)", "s_barrier"]}
    g4 = [f"v_bfe_u32 v{aG4}, v{vD}, 4, 4", f"v_lshlrev_b32 v{aG4}, 2, v{aG4}",
          f"buffer_load_dword v{aG4+1}, v{aG4}, s[{SWS}:{SWS+3}], s{sG4} offen offset:128 {LDF}",
          f"buffer_load_dword v{aG4}, v{aG4}, s[{SWS}:{SWS+3}], s{sG4} offen {LDF}"]
    wrm = [f"buffer_load_dword v{vWARM}, v{vWARM}, s[{SWS}:{SWS+3}], 0 offen {LDF}"]
    extra[34].append(g4)
    if PKE < 3:
        late.append(lambda a: spin(a, "L_w2", vP2, 4, HP, 31))
        extra[22].append(flag_store([sF2, sF3, sF4], HP+4))
        extra[31].append(poll_ld(vP2, 4, HP))
        seq = [g for t in range(2) for g in w4_dma(t)] + [wrm]
        seq += [g for t in range(12) for g in act_ld(t)]
        for i, g in enumerate(seq): extra[35 + (i*5)//9].append(g)
        for i, g in enumerate(g for t in (2, 3, 4, 5) for g in w4_dma(t)): extra[56 + i//2].append(g)
        for t in (2, 3, 4, 5): vm.add(f"w{t}", 2)
    else:
        lo = lambda ls: ["s_mov_b32 exec_hi, 0"] + ls + ["s_mov_b32 exec_hi, -1"]
        hi = lambda ls: ["s_mov_b32 exec_lo, 0"] + ls + ["s_mov_b32 exec_lo, -1"]
        PT = PKW[1]; P4U = int(cfg.get("p4u", 47)); C4U = int(cfg.get("c4u", 50))
        late.append(lambda a: (spin(a, "L_w2", vP2, 4, HP, 31), spin(a, "L_w4", vP2, 4, PT, 31)))
        extra[22].append(flag_store([sF2, sF3], HP+4))
        for i in range(2): extra[23].append([pk_st[i]])
        extra[31].append(lo(poll_ld(vP2, 4, HP)))
        sync[34] = ["s_waitcnt vmcnt(0)", "s_mov_b32 exec_hi, 0"] + flag_test(HP, 4) + ["s_cbranch_vccnz L_w2", "L_w2_ret:", "s_mov_b32 exec_hi, -1", "s_barrier"]
        extra[34].append(flag_store([sF4], PKW[0]))
        seq = [g for t in range(12) for g in act_ld(t)]
        n = 0
        for u in range(35, 64):
            if u == P4U: extra[u].append(hi(poll_ld(vP2, 4, PT)))
            while seq and len(extra[u]) < 2:
                extra[u].append(seq.pop(0))
                if P4U <= u < C4U: n += 1
                assert u < C4U
        sync[C4U] = [f"s_waitcnt vmcnt({n})", "s_mov_b32 exec_lo, 0"] + flag_test(PT, 4) + ["s_cbranch_vccnz L_w4", "L_w4_ret:", "s_mov_b32 exec_lo, -1"] + SETZ
        sync[56] = ["s_barrier"]
        seq = [wrm] + [g for t in range(4) for g in w4_dma(t)]
        for i, g in enumerate(seq): extra[C4U + i//2].append(g)
        u = max(56, C4U + (len(seq)+1)//2)
        for i, g in enumerate(g for t in (4, 5) for g in w4_dma(t)): extra[u + i//2].append(g)
        for t in range(6): vm.add(f"w{t}", 2)
    if cfg.get("x_noextra"):
        keep = cfg["x_noextra"]
        for k in extra:
            if keep == "lo" and k < 23: continue
            if keep == "hi" and k >= 23: continue
            extra[k] = []
        sync[34] = ["L_w2_ret:"]
        if cfg.get("x_nobar"): sync = {34: sync[34]}
    def E(s, i, j):
        for k in range(i, j): a(f"v_exp_f32 v{s+k}, v{s+k}")
    XF = [int(x) for x in cfg.get("x_ffn", "0,0,0,1").split(",")]
    XP = cfg.get("x_pos", "a")
    pend = []
    def sm(n=1):
        for _ in range(n):
            if pend: a(pend.pop(0))
    for T in range(32):
        g, tt = divmod(T, 4); u = 2*T
        s0, s1 = sreg(T, 0), sreg(T, 1)
        ex0 = list(extra[u]); ex1 = list(extra[u+1])
        def side(ex):
            if ex:
                for l in ex.pop(0): a(l)
        stamp(a, f"u{u}")
        if T > 0: a(pv(T-1, 1, 0))
        for l in sync.get(u, []): a(l)
        if T == 16:
            a(f"v_add_u32 v{vKA}, {4*10240}, v{vKA}"); a(f"v_add_u32 v{vVA}, {4*10240}, v{vVA}")
            bump["k"] = 4*10240
        if tt == 3 and g < 7: a(rd_k2(g+1))
        if T < 31: a(rd_k1(T+1))
        side(ex0)
        E(s0, 0, 4)
        if XP == "a": sm()
        if T > 0: a(pv(T-1, 1, 1))
        side(ex0)
        E(s0, 4, 8)
        sm(9)
        if T < 31:
            if tt == 3: a("s_waitcnt lgkmcnt(1)")
            a(b2(T+1))
        for l in ["s_mov_b64 exec, s[38:39]", rd_v(T, 0), rd_v(T, 1), "s_mov_b64 exec, -1"]: a(l)
        nf = ((T-XF[0]+1)*XF[2])//XF[3] - ((T-XF[0])*XF[2])//XF[3] if XF[0] <= T < XF[1] else 0
        for f in range(nf):
            for uu in range(2): a(f"ds_read_b64_tr_b16 {vr(236+4*f+2*uu,2)}, v{vRA+f} offset:{10240*6 + 1280*uu}")
        E(s0, 8, 16)
        a(f"s_waitcnt lgkmcnt({2*nf})")
        a(pv(T, 0, 0))
        E(s1, 0, 4)
        if nf:
            pend += [f"v_mfma_f32_16x16x32_bf16 {vr(244,4)}, {vr(236+4*(f%2),4)}, {vr(Q1+4*w,4)}, {vr(244,4)}" for f in range(nf) for w in range(2)]
            a("s_waitcnt lgkmcnt(0)")
        if XP == "a": sm()
        if T < 31: a(qk(T+1, 0))
        if XP == "b": sm()
        side(ex1)
        E(s1, 4, 8)
        if XP == "a": sm()
        a(pv(T, 0, 1))
        if XP == "b": sm()
        side(ex1)
        E(s1, 8, 12)
        if XP == "a": sm()
        if T < 31: a(qk(T+1, 1))
        if XP == "b": sm()
        E(s1, 12, 16)
        if XP == "a": sm()
        assert not ex0 and not ex1
    sm(9)
    a(pv(31, 1, 0)); a("s_nop 0"); a(pv(31, 1, 1))
    stamp(a, "at_loopend")
    t0, t1, t2, t3 = K1, K1+1, K1+2, K1+3
    a("s_mul_i32 s31, s28, 2560")
    a(f"s_add_u32 s31, s31, {6*10240 - 4*10240}")
    a(f"v_add_u32 v{t0}, s31, v{vKA}")
    a("s_and_b32 s13, s28, 1"); a("s_lshl_b32 s13, s13, 9"); a("s_lshr_b32 s12, s28, 1"); a("s_lshl_b32 s12, s12, 12")
    a("s_add_u32 s13, s13, s12"); a(f"s_add_u32 s13, s13, {3*10240 - 512}")
    a(f"v_add_u32 v{t2}, 2048, v{t0}")
    a("s_mov_b32 exec_lo, 0")
    a(f"v_add_u32 v{t2}, s13, v{vKA}")
    a("s_mov_b64 exec, -1")
    a("s_mul_i32 s31, s27, 163840")
    a("s_sub_u32 s31, 81920, s31")
    a("s_cmp_eq_u32 s27, 0")
    a(f"v_add_u32 v{t1}, s31, v{t0}")
    a(f"v_add_u32 v{t3}, s31, v{t2}")
    a("s_cbranch_scc0 L_at_z1")
    for c in range(3): a(f"ds_write_b128 v{t0 if c < 2 else t2}, {vr(O+16+4*c,4)} offset:{1024*c if c < 2 else 0}")
    a.label("L_at_zj")
    def z1(a):
        a.label("L_at_z1")
        for c in range(3): a(f"ds_write_b128 v{t0 if c < 2 else t2}, {vr(O+4*c,4)} offset:{1024*c if c < 2 else 0}")
        for c in range(12): a(f"v_mov_b32 v{O+c}, v{O+16+c}")
        a("s_branch L_at_zj")
    late.insert(0, z1)
    a((f"s_waitcnt vmcnt({vm.after('w0')}) " if PKE == 3 else "s_waitcnt ") + "lgkmcnt(0)")
    a("s_barrier")
    for c in range(3): a(f"ds_read_b128 {vr(S+4*c,4)}, v{t1 if c < 2 else t3} offset:{1024*c if c < 2 else 0}")
    a("s_waitcnt lgkmcnt(0)")
    for c in range(12): a(f"v_add_f32 v{O+c}, v{O+c}, v{S+c}")
    a(f"v_mov_b32 v{t2}, v{O+8}")
    a(f"v_mov_b32 v{t3}, v{O+8}")
    a(f"v_add_f32 v{t0}, abs(v{O}), abs(v{O+1})")
    a(f"v_add_f32 v{t0}, v{t0}, abs(v{O+2})")
    a(f"v_permlane32_swap_b32 v{t3}, v{t2}")
    for c in range(3, 12): a(f"v_add_f32 v{t0}, v{t0}, abs(v{O+c})")
    a(f"v_rcp_f32 v{t1}, v{t2}")
    a(f"v_cmp_nle_f32 vcc, 0x{f32bits(2.0**-40):x}, v{t2}")
    a(f"s_mov_b64 s[40:41], vcc")
    a(f"v_cmp_nge_f32 vcc, 0x{f32bits(2.0**100):x}, v{t2}")
    a(f"s_or_b64 s[40:41], s[40:41], vcc")
    a(f"v_cmp_nge_f32 vcc, 0x{f32bits(2.0**126):x}, v{t0}")
    a(f"s_or_b64 s[40:41], s[40:41], vcc")
    if cfg.get("force_fallback"): a("s_mov_b64 s[40:41], -1")
    a("s_cmp_lg_u64 s[40:41], 0")
    a("s_cbranch_scc1 L_at_slow")
    a.label("L_at_store")
    a(f"v_mul_f32 v{t1}, v{t1}, v{vG}")
    for c in range(12): a(f"v_mul_f32 v{O+c}, v{O+c}, v{t1}")
    for c in (4, 5, 0, 1, 2, 3): a(f"v_cvt_pk_bf16_f32 v{S+c}, v{O+2*c}, v{O+2*c+1}")
    for c in (4, 5, 0, 1, 2, 3): a(f"v_min_u32 v{S+c}, -2, v{S+c}")
    a(f"v_permlane16_swap_b32 v{S+4}, v{S+6}")
    a(f"v_permlane16_swap_b32 v{S+5}, v{S+7}")
    a(f"buffer_store_dwordx4 {vr(S,4)}, v{aOA}, s[{SWS}:{SWS+3}], s32 offen {ST}")
    a("s_mov_b64 exec, 0xffff")
    a(f"buffer_store_dwordx4 {vr(S+4,4)}, v{vD}, s[{SWS}:{SWS+3}], s33 offen {ST}")
    a("s_mov_b64 exec, -1")
    vm.add("ost", 2)
    stamp(a, "o_stored")

    def slow(a):
        a.label("L_at_slow")
        NM = 16; QZ = 32
        KA = 44; vV2 = 52; mx = 53
        def qz(qt, tt): return QZ + 4*(tt >> 1) + (2 if (tt & 1) == 0 else 0)
        for c in range(2): a(f"v_mov_b32 v{KA+c}, v{Q2+c}")
        for i in range(10): a(f"v_mov_b32 v{QZ+i}, 0")
        for c in range(2): a(f"v_permlane32_swap_b32 v{Q2+c}, v{KA+c}")
        a("s_cmp_eq_u32 s27, 0")
        a("s_cbranch_scc1 L_slow_z0")
        a("s_nop 0")
        for c in range(2): a(f"v_mov_b32 v{Q2+c}, v{KA+c}")
        for c in range(4): a(f"v_mov_b32 v{Q1+c}, v{Q1+4+c}")
        a.label("L_slow_z0")
        a("s_mov_b32 exec_hi, 0")
        for c in range(2): a(f"v_mov_b32 v{QZ+2+c}, v{Q2+c}")
        a("s_mov_b64 exec, -1")
        a("s_mov_b32 exec_lo, 0")
        for c in range(2): a(f"v_mov_b32 v{QZ+6+c}, v{Q2+c}")
        a("s_mov_b64 exec, -1")
        a("s_mul_i32 s34, s27, 81920")
        a(f"s_add_u32 s34, s34, {4*10240 + 5120}")
        a(f"v_subrev_u32 v{vV2}, s34, v{vVA}")
        a(f"v_mov_b32 v{mx}, 0xff7fffff")
        for i in range(16): a(f"v_mov_b32 v{NM+i}, 0")
        for i in range(16): a(f"v_mov_b32 v{O+i}, 0")
        for ps in range(2):
            a("s_mul_i32 s34, s25, 163840")
            a(f"s_add_u32 s34, s34, {WS_KV}")
            a("s_mov_b32 s35, 16")
            a.label(f"L_slow_loop{ps}")
            a(f"s_add_u32 s36, s34, 4096")
            a(f"buffer_load_dwordx4 {vr(K2,4)}, v{vD}, s[{SWS}:{SWS+3}], s36 offen {LDF}")
            for tt in range(4):
                a(f"buffer_load_dwordx4 {vr(KA,4)}, v{vD}, s[{SWS}:{SWS+3}], s34 offen offset:{1024*tt} {LDF}")
                if ps == 1:
                    a(f"s_add_u32 s36, s34, {5120+1280*tt}")
                    a("s_mov_b64 exec, s[38:39]")
                    a(f"buffer_load_dwordx4 {vr(V,4)}, v{vV2}, s[{SWS}:{SWS+3}], s36 offen {LDF}")
                    a(f"buffer_load_dwordx4 {vr(V+4,4)}, v{vV2}, s[{SWS}:{SWS+3}], s36 offen offset:640 {LDF}")
                    a("s_mov_b64 exec, -1")
                a("s_waitcnt vmcnt(0)")
                a(f"v_mfma_f32_32x32x16_bf16 {vr(S,16)}, {vr(KA,4)}, {vr(Q1,4)}, {vr(NM,16)}")
                a(f"v_mfma_f32_32x32x16_bf16 {vr(S,16)}, {vr(K2,4)}, {vr(qz(0,tt),4)}, {vr(S,16)}")
                a("s_nop 11")
                if ps == 0:
                    for i in range(0, 16, 2): a(f"v_max3_f32 v{mx}, v{mx}, v{S+i}, v{S+i+1}")
                else:
                    for i in range(16): a(f"v_exp_f32 v{S+i}, v{S+i}")
                    a("s_nop 1")
                    for h in range(2):
                        a(f"v_smfmac_f32_32x32x32_bf16 {vr(O,16)}, {vr(V+4*h,4)}, {vr(S+8*h,8)}, v{vIDX}")
                    a("s_nop 3")
            a("s_add_u32 s34, s34, 10240")
            a("s_sub_u32 s35, s35, 1")
            a("s_cmp_lg_u32 s35, 0")
            a(f"s_cbranch_scc1 L_slow_loop{ps}")
            if ps == 0:
                a(f"v_mov_b32 v{t3}, v{mx}")
                a(f"v_mov_b32 v{t1}, v{mx}")
                a("s_nop 1")
                a(f"v_permlane32_swap_b32 v{t3}, v{t1}")
                a("s_nop 1")
                a(f"v_max_f32 v{mx}, v{t3}, v{t1}")
                for i in range(16): a(f"v_sub_f32 v{NM+i}, 0, v{mx}")
        a("s_nop 11")
        a(f"v_mov_b32 v{t2}, v{O+8}")
        a(f"v_mov_b32 v{t3}, v{O+8}")
        a("s_nop 1")
        a(f"v_permlane32_swap_b32 v{t3}, v{t2}")
        a("s_nop 1")
        a(f"v_rcp_f32 v{t1}, v{t2}")
        a("s_nop 0")
        a("s_branch L_at_store")
    late.append(slow)

def phase45(a, cfg, late):
    stamp = cfg["stamp"]; vm = cfg["vm"]
    OA = 0; ACC = 40; WB = 80; NB = 10
    vREM, vMX, vG1, vOUT, vOUT2, vRD, vO2, vPR = 120, 121, 122, 126, 127, 234, 240, 241
    NS = 17; MG = int(cfg.get("mg", 14))
    OS = dict(zip(range(12, 17), [int(x) for x in cfg.get("os", "7,8,9,10,10").split(",")]))
    KB = int(cfg.get("kb", 7))
    F = [(t, j) for t in range(MG) for j in range(5)] + [(t, j) for j in (1, 2, 3, 4, 0) for t in range(MG, NS)]
    def reads(i):
        t, j = F[i]; slot = SLOTP[t % 8]
        return [(f"ds_read_b64_tr_b16 {vr(WB+4*(i%NB)+2*u,2)}, v{(vRA7 if slot == 7 else vRA)+j} offset:{(0 if slot == 7 else slot*10240) + u*1280}", i)
                for u in range(2)]
    lq = []
    def rd(x): a(x[0]); lq.append(x[1])
    def lwait(tag):
        n = len(lq) - 1 - max(i for i, x in enumerate(lq) if x == tag)
        a(f"s_waitcnt lgkmcnt({min(n, 15)})")
    rq = [x for i in range(len(F)) for x in reads(i)]
    for _ in range(10): rd(rq.pop(0))
    def oloads(t0): return [l for tt in range(t0, 17) for g in act_ld(tt, vREM, vO2) for l in g]
    def check(t0, t1):
        r = list(range(act_reg(t0), act_reg(t1-1)+8))
        return [f"v_max3_u32 v{vMX}, v{r[0]}, v{r[1]}, v{r[2]}"] + [f"v_max3_u32 v{vMX}, v{vMX}, v{r[i]}, v{r[min(i+1,len(r)-1)]}" for i in range(3, len(r), 2)]
    CKS = {11: (12, MG), MG-1: (MG, 17)}
    fill = {t: [] for t in range(NS)}
    fill[0] = [f"v_add_u32 v{vO2}, 32768, v{vA4}", f"v_and_b32 v{vREM}, 0x600, v{vA4}", f"v_add_u32 v{vREM}, v{vREM}, v{vA4}",
               f"v_bfe_u32 v{vMX}, v{vD}, 4, 4", f"v_mul_u32_u24 v{vMX}, 1280, v{vMX}",
               f"v_bfe_u32 v{vOUT}, v{vD}, 8, 1", f"v_mul_u32_u24 v{vOUT}, {32*1280}, v{vOUT}", f"v_lshrrev_b32 v{vOUT2}, 9, v{vD}",
               f"v_lshl_add_u32 v{vOUT}, v{vOUT2}, 4, v{vOUT}", f"v_add_u32 v{vOUT}, v{vOUT}, v{vMX}",
               f"v_lshrrev_b32 v{vOUT2}, 8, v{vD}", f"v_lshl_add_u32 v{vOUT2}, v{vOUT2}, 3, v{vMX}"]
    fill[1] = [l for w in range(2) for l in (f"v_sub_f32 v{vG1+w}, 1.0, v{aG4+w}", f"v_cvt_pk_bf16_f32 v{vG1+w}, v{vG1+w}, v{vG1+w}",
                                            f"v_and_b32 v{vG1+w}, 0xffff0000, v{vG1+w}")]
    fill[2] = ["s_lshr_b32 s12, s24, 1", "s_mul_i32 s13, s3, 81920", "s_add_u32 s13, s13, 10240", f"v_add_u32 v{vRD}, s13, v{vD}",
               "s_lshl_b32 s31, s12, 10", f"s_add_u32 s31, s31, {24*1024}", f"v_add_u32 v{vRD+4}, s31, v{vRD}"]
    for j in (1, 2, 3):
        fill[3] += [f"s_xor_b32 s31, s12, {j}", "s_mul_i32 s31, s31, 6144", f"v_add_u32 v{vRD+j}, s31, v{vRD}"]
    fill[3] += ["s_mul_i32 s31, s12, 6144", f"v_add_u32 v{vRD+5}, s31, v{vRD}"]
    def scale(j, w): return [f"v_mul_f32 v{ACC+20*w+4*j+i}, v{ACC+20*w+4*j+i}, v{vG1+w}" for i in range(4)]
    def site(t, z):
        ws = [tt for tt in ({0: [6, 7]}.get(t, [t+7])) if tt < NS]
        os_ = [tt for tt in OS if OS[tt] == t]
        if not ws and not os_: return
        a(f"s_cmp_eq_u32 s27, {z}")
        a(f"s_cbranch_scc0 L_s4_{t}_{z}")
        for tt in os_:
            for g in act_ld(tt, vREM, vO2):
                for l in g: a(l)
        for tt in ws:
            for l in w4_dma(tt, z): a(l)
        a.label(f"L_s4_{t}_{z}")
        if z == 1:
            for tt in os_: vm.add(f"o{tt}", 2)
            for tt in ws: vm.add(f"w{tt}", 2)
    wr = []
    fl = []
    for i, (t, j) in enumerate(F):
        plain = t < MG
        if plain and j == 0: fl = list(fill[t])
        for w in range(2):
            k = 2*j + w
            acc = ACC + 20*w + 4*j
            if t == 12:
                if k == 0:
                    for l in scale(0, 0): a(l)
                if k < 9:
                    for l in scale(*divmod(k+1, 2)): a(l)
            if w == 0: lwait(i)
            a(f"v_mfma_f32_16x16x32_bf16 {vr(acc,4)}, {vr(WB+4*(i%NB),4)}, {vr(act_reg(t)+4*w,4)}, " + ("0" if t == 0 else vr(acc,4)))
            if plain and k == 0:
                stamp(a, f"p4_p{t}")
                need = [f"w{tt}" for tt in (range(MG, NS) if t == MG-1 else [t+1]) if f"w{tt}" in vm.q]
                if need: a(f"s_waitcnt vmcnt({vm.after(*need)})")
                a("s_barrier")
                stamp(a, f"p4_b{t}")
            for _ in range(2 if (plain and k == 0) else 0 if (plain and k == 9) else 1):
                if rq: rd(rq.pop(0))
            if plain and k == 0: site(t, 0)
            if plain and k == KB: site(t, 1)
            if plain and t in CKS and k == 2:
                a(f"s_waitcnt vmcnt({vm.after(*[f'o{tt}' for tt in range(*CKS[t])])})")
                stamp(a, f"p4_og{t}")
                fl += check(*CKS[t])
            if plain:
                for _ in range(-(-len(fl) // (10-k))): a(fl.pop(0))
            else:
                are = [x for x in wr if x[1] <= 2*i + w]
                if are: a(are[0][0]); wr.remove(are[0])
                if t == NS-1 and j:
                    wr.append((f"ds_write_b128 v{vRD+j}, {vr(acc,4)} offset:{(3*w + j-1)*1024 if j < 4 else 4096*w}", 2*i + w + (4 if j < 4 else 6)))
        if plain and j == 4 and t in CKS:
            a(f"v_cmp_eq_u32 vcc, -1, v{vMX}")
            a("s_nop 0")
            a(f"s_cbranch_vccnz L_or{t}")
            a.label(f"L_or{t}_ret")
            stamp(a, f"p4_ok{t}")
            if t == MG-1:
                a(f"v_swap_b32 v{OA+34}, v{OA+36}"); a(f"v_swap_b32 v{OA+35}, v{OA+37}")
        if t == 11 and j == 4: stamp(a, "p4_end")
    def retry(a):
        for t in CKS:
            a.label(f"L_or{t}")
            a(f"s_mov_b32 s31, {SPIN}")
            a(f"v_bfe_u32 v{vPR}, v{vD}, 4, 5")
            a(f"v_lshlrev_b32 v{vPR}, 9, v{vPR}")
            a("s_lshl_b32 s13, s3, 8")
            a(f"s_and_b32 s41, s{sOR}, 0xffffc000")
            a("s_add_u32 s13, s13, s41")
            a.label(f"L_or{t}_l")
            a("s_sub_u32 s31, s31, 1")
            a("s_cmp_eq_u32 s31, 0")
            a(f"s_cbranch_scc1 L_or{t}_ret")
            a(f"buffer_load_dword v{vMX}, v{vPR}, s[{SWS}:{SWS+3}], s13 offen {LDF}")
            a("s_waitcnt vmcnt(0)")
            a(f"v_cmp_eq_u32 vcc, -1, v{vMX}")
            a("s_nop 0")
            a(f"s_cbranch_vccnz L_or{t}_l")
            for l in oloads(CKS[t][0]): a(l)
            a("s_waitcnt vmcnt(0)")
            for l in check(*CKS[t]): a(l)
            a(f"v_cmp_eq_u32 vcc, -1, v{vMX}")
            a("s_nop 0")
            a(f"s_cbranch_vccnz L_or{t}_l")
            a(f"s_branch L_or{t}_ret")
    late.append(retry)
    for l, _ in wr: a(l)
    stamp(a, "p5_end")
    R = 128
    OF = "".join(" " + x for x in cfg.get("of", "").split(",") if x)
    a("s_lshl_b32 s31, s12, 5")
    a(f"s_add_u32 s31, s31, s{sOUTB}")
    a("s_waitcnt lgkmcnt(0)")
    a("s_barrier")
    for w in range(2):
        for i in range(3): a(f"ds_read_b128 {vr(R+12*w+4*i,4)}, v{vRD+5} offset:{(3*w+i)*1024}")
    a("s_cmp_lt_u32 s12, 2")
    a("s_cbranch_scc0 L_p5_a")
    a("s_lshl_b32 s13, s12, 12")
    a(f"v_add_u32 v{vRD}, s13, v{vRD}")
    a(f"s_mul_i32 s13, s12, {32*1280}")
    a(f"s_add_u32 s13, s13, s{sOUTB}")
    for i in range(4): a(f"ds_read_b128 {vr(R+24+4*i,4)}, v{vRD} offset:{(24+i)*1024}")
    a.label("L_p5_a")
    for w in range(2):
        acc = ACC + 20*w
        a(f"s_waitcnt lgkmcnt({3-3*w})")
        for i in range(4): a(f"v_add_f32 v{R+12*w+i}, v{R+12*w+i}, v{R+12*w+4+i}")
        for i in range(4): a(f"v_add_f32 v{acc+i}, v{acc+i}, v{R+12*w+8+i}")
        for i in range(4): a(f"v_add_f32 v{acc+i}, v{acc+i}, v{R+12*w+i}")
        a(f"v_cvt_pk_bf16_f32 v{OA+2*w}, v{acc}, v{acc+1}")
        a(f"v_cvt_pk_bf16_f32 v{OA+2*w+1}, v{acc+2}, v{acc+3}")
    a("s_nop 1")
    a(f"v_permlane16_swap_b32 v{OA}, v{OA+2}")
    a(f"v_permlane16_swap_b32 v{OA+1}, v{OA+3}")
    a(f"buffer_store_dwordx4 {vr(OA,4)}, v{vOUT}, s[{SOUT}:{SOUT+3}], s31 offen{OF}")
    a("s_cmp_lt_u32 s12, 2")
    a("s_cbranch_scc0 L_p5_end")
    for i in range(4): a(f"v_add_f32 v{R+24+i}, v{R+24+i}, v{R+28+i}")
    for i in range(4): a(f"v_add_f32 v{R+32+i}, v{R+32+i}, v{R+36+i}")
    for i in range(4): a(f"v_add_f32 v{R+24+i}, v{R+24+i}, v{R+32+i}")
    a(f"v_cvt_pk_bf16_f32 v{R+24}, v{R+24}, v{R+25}")
    a(f"v_cvt_pk_bf16_f32 v{R+25}, v{R+26}, v{R+27}")
    a(f"buffer_store_dwordx2 {vr(R+24,2)}, v{vOUT2}, s[{SOUT}:{SOUT+3}], s13 offen offset:128{OF}")
    a.label("L_p5_end")

HEADER = open("cdna_kernels/" + NAME + ".s.ref").read().split("; Override launch")[0]

def kd(name, vgpr, sgpr=100):
    return f""".section .rodata,"a"
.p2align 6
.amdhsa_kernel {name}
  .amdhsa_next_free_vgpr {vgpr}
  .amdhsa_next_free_sgpr {sgpr}
  .amdhsa_accum_offset {(vgpr+3)//4*4}
  .amdhsa_group_segment_fixed_size 0
  .amdhsa_kernarg_size 80
  .amdhsa_user_sgpr_count 2
  .amdhsa_user_sgpr_kernarg_segment_ptr 1
  .amdhsa_system_sgpr_workgroup_id_x 1
.end_amdhsa_kernel
"""

def gen(opts):
    a = Asm()
    k = NAME + "_kernel"
    a(".text"); a(f".globl {k}"); a(".p2align 8"); a(f".type {k},@function"); a.label(k)
    a("s_cmp_ge_u32 s2, 256"); a("s_cbranch_scc1 L_end")
    a(f"s_load_dwordx2 s[{SX}:{SX+1}], s[0:1], 0")
    a(f"s_load_dwordx2 s[{SW}:{SW+1}], s[0:1], 8")
    a(f"s_load_dwordx2 s[{SW1}:{SW1+1}], s[0:1], 32")
    a(f"s_load_dwordx2 s[{SG}:{SG+1}], s[0:1], 48")
    a(f"s_load_dwordx2 s[{SWS}:{SWS+1}], s[0:1], 72")
    a(f"s_load_dwordx2 s[{SDBG}:{SDBG+1}], s[0:1], 64")
    a(f"s_load_dwordx2 s[46:47], s[0:1], 40")
    a(f"s_load_dwordx2 s[48:49], s[0:1], 16")
    a(f"s_load_dwordx2 s[50:51], s[0:1], 56")
    st = Stamps(opts.get("stamps")); st.cyc = opts.get("cyc"); st.dbg = opts.get("dbg"); st(a, "start")
    cfg = dict(opts, stamp=st); late = []
    phase12(a, cfg, late)
    phase3(a, cfg, late)
    phase45(a, cfg, late)
    if st.on: a("s_waitcnt vmcnt(0)")
    st(a, "end"); st.flush(a)
    a.label("L_end"); a("s_endpgm")
    while late: late.pop(0)(a)
    errs = check_linear(a.lines)
    head = HEADER + ("; @launch grid=(256,1,1) block=(512,1,1) lds=163840\n"
                     '.amdgcn_target "amdgcn-amd-amdhsa--gfx950"\n')
    return head + a.text() + kd(k, 256), errs

if __name__ == "__main__":
    out = sys.argv[1] if len(sys.argv) > 1 else "cdna_kernels/" + NAME + ".s"
    opts = {}
    for o in sys.argv[2:]:
        k, _, v = o.partition("=")
        opts[k] = v or True
    txt, errs = gen(opts)
    open(out, "w").write(txt)
    print("written", out, "hazards:", errs, "bytes:", len(txt))
```

```python
import sys, math, struct
from dsl import *

NAME = "gated_mix__mha_block__dense_activation_relu__prompt"
WS_Q  = 0x0
WS_KV = 0x280000
WS_H  = 0x780000
WS_O  = 0xD80000
WS_OR = 0xF80000
WS_G  = 0x1000000
FS = 3
FL1   = 0x1002000
FL2   = 0x100A000
FL3   = 0x1012000
FL4   = 0x101A000
WS_WP = 0x1200000
WS_END = WS_WP + 8*348160
OOB = 0x80000000
SPIN = 1 << 15
def f32bits(x): return struct.unpack("<I", struct.pack("<f", x))[0]
QSCALE = f32bits(math.log2(math.e) / math.sqrt(20.0))
ST = "sc1"; LDF = "sc1"

SX, SW, SW1, SWS, SG, SDBG = 4, 8, 12, 16, 20, 52
SW2, SWO, SOUT = SX, SW, SG
sF1, sHE, sNON = 42, 43, 44
sKW, sKH, sHB, sOB, sW2B, sWOB, sHL, sOUTB, sG4, sM4, sF2, sF3 = range(56, 68)
sF4 = 100
PKW = (216, 244)
vPS, vPD, vA4B, vA4, vR4, vP2, vKA, vVA, vP1, vD = 252, 242, 248, 249, 250, 251, 252, 253, 254, 255
vRA, vRA7, vWARM, vSENT = 224, 229, 234, 236
sOR = 15

def srd_tail(a, base, nbytes):
    a(f"s_mov_b32 s{base+2}, {nbytes}")
    a(f"s_mov_b32 s{base+3}, 0x00020000")

STAMP_BASE = 0x1100000
class Stamps:
    DEF = "start,p1_first,p1_end,p2_end,at_first,at_loopend,o_stored,p4_b1,p4_b4,p4_b8,p4_ok11,p4_ok13,p5_end,end"
    def __init__(self, on):
        self.on = on; self.names = []
        self.sel = set((self.DEF if on is True else "start," + str(on)).split(","))
    def __call__(self, a, name):
        if not self.on or name not in self.sel: return
        if name in self.names: i = self.names.index(name)
        else:
            i = len(self.names); self.names.append(name)
        assert i < 16
        if name.startswith("val_"): a(f"s_mov_b32 s{68+2*i}, {name[4:]}"); return
        a(f"{'s_memtime' if self.cyc else 's_memrealtime'} s[{68+2*i}:{69+2*i}]")
    def flush(self, a):
        if not self.on: return
        a("s_waitcnt lgkmcnt(0)")
        if self.dbg is not None:
            n = len(self.names); assert n <= 13
            a("s_mov_b64 exec, 1")
            a(f"s_sub_u32 s31, s68, s{sNON}"); a("s_add_u32 s31, s31, 1000"); a("v_mov_b32 v0, s31")
            a(f"buffer_atomic_umax v0, off, s[{SDBG}:{SDBG+3}], 0 offset:56 sc1")
            a(f"s_sub_u32 s31, s{68+2*(n-1)}, s{sNON}"); a("v_mov_b32 v1, s31")
            a(f"buffer_atomic_umax v1, off, s[{SDBG}:{SDBG+3}], 0 offset:60 sc1")
            a(f"s_cmp_eq_u32 s2, {self.dbg}"); a("s_cbranch_scc0 L_end")
            a("s_cmp_eq_u32 s24, 0"); a("s_cbranch_scc0 L_end")
            for i in range(1, n):
                a(f"s_sub_u32 s31, s{68+2*i}, s{sNON}"); a(f"v_mov_b32 v{2+i}, s31")
                a(f"buffer_store_dword v{2+i}, off, s[{SDBG}:{SDBG+3}], 0 offset:{4+4*i} sc1")
            a("; stamps " + ",".join(self.names))
            return
        a("s_lshl_b32 s31, s2, 3")
        a("s_add_u32 s31, s31, s24")
        a("s_lshl_b32 s31, s31, 6")
        a(f"s_add_u32 s31, s31, {STAMP_BASE}")
        a(f"s_mov_b32 s{SWS+2}, 0x2000000")
        a("v_mov_b32 v2, 0")
        for i in range(len(self.names)):
            a(f"v_mov_b32 v0, s{68+2*i}")
            a(f"buffer_store_dword v0, v2, s[{SWS}:{SWS+3}], s31 offen offset:{4*i}")
            a("s_nop 1")
        a("; stamps " + ",".join(self.names))

class VM:
    def __init__(self): self.q = []
    def add(self, tag, n=1): self.q += [tag]*n
    def after(self, *tags):
        last = max(i for i, t in enumerate(self.q) if t in tags)
        assert all(t in self.q for t in tags), tags
        n = len(self.q) - 1 - last
        assert n <= 63
        return n

def flag_store(sregs, tmp):
    return [f"v_mov_b32 v{tmp+2}, s{sregs[0]}", f"v_mov_b32 v{tmp}, s{sNON}", f"v_mov_b32 v{tmp+1}, s{sNON+1}"] + \
           [f"v_writelane_b32 v{tmp+2}, s{r}, {i+1}" for i, r in enumerate(sregs[1:])] + [
            f"s_mov_b64 exec, {(1 << len(sregs)) - 1}",
            f"buffer_store_dwordx2 v[{tmp}:{tmp+1}], v{tmp+2}, s[{SWS}:{SWS+3}], 0 offen {ST}",
            "s_mov_b64 exec, -1"]

UID = [0]
def pieces(soff, pre, post, z):
    ld = [f"buffer_load_dwordx4 v{vD}, s[{SWS}:{SWS+3}], {soff} offen offset:{1024*i} {LDF} lds" for i in range(3)]
    if z is not None: return pre + ld[:3-z] + post
    UID[0] += 1
    return [pre + ld[:1], ld[1:2], [f"s_cbranch_vccnz L_pc{UID[0]}", ld[2], f"L_pc{UID[0]}:"] + post]
SETZ = ["s_cmp_eq_u32 s27, 0", "s_cselect_b64 vcc, 0, -1"]
def kv_dma(i):
    return pieces("s34", [f"s_add_u32 m0, s{sM4}, {i*10240}", "s_add_u32 s34, s34, 10240"], [], None)

aS, aO, aQ1, aK1, aK2, aV, aQ2 = 0, 64, 96, 104, 108, 112, 120
aIDX, aG, aG4, aOA, HP = 122, 123, 124, 126, 128
HPK = 192

SLOTP = [0, 1, 2, 3, 4, 5, 7, 6]
def w4_dma(t, z=None):
    m0 = f"s_add_u32 m0, s{sM4}, {SLOTP[t % 8]*10240}"
    if t < 12:
        return pieces(f"s{sKW}", [m0, "s_nop 0"], [f"s_add_u32 s{sKW}, s{sKW}, 20480", f"s_cmp_eq_u32 s{sKW}, s{sWOB}", f"s_cselect_b32 s{sKW}, s{sW2B}, s{sKW}"], z)
    return pieces("s40", [m0, f"s_add_u32 s40, s{sWOB}, {(t-12)*20480}"], [], z)
def pk_ld(): return [f"buffer_load_dwordx4 {vr(PKW[0],4)}, v{vPS}, s[{SW2}:{SW2+3}], 0 offen", f"buffer_load_dwordx4 {vr(PKW[1],4)}, v{vPS+1}, s[{SWO}:{SWO+3}], 0 offen"]
def act_reg(t):
    return HP + 8*t if t < 12 else 8*(t-12)
def act_ld(t, vrem=None, vo2=None):
    r = act_reg(t)
    ld = lambda r, v, so, off=0: f"buffer_load_dwordx4 {vr(r,4)}, v{v}, s[{SWS}:{SWS+3}], {so} offen offset:{off} {LDF}"
    if t < 12:
        return [[ld(r, vA4, f"s{sKH}")],
                [ld(r+4, vA4B, f"s{sKH}"), f"s_add_u32 s{sKH}, s{sKH}, 8192", f"s_cmp_eq_u32 s{sKH}, s{sHL}", f"s_cselect_b32 s{sKH}, s{sHB}, s{sKH}"]]
    if t < 16:
        return [[f"s_add_u32 s41, s{sOB}, {(t-12)*8192}", ld(r, vA4, "s41")], [ld(r+4, vo2, "s41")]]
    return [[ld(r, vrem, f"s{sOR}")], [ld(r+4, vrem, f"s{sOR}", 512)]]

def poll_ld(addr, width, tmp):
    if FS == 3: return [f"buffer_load_dwordx{width} {vr(tmp,width)}, v{addr}, s[{SWS}:{SWS+3}], 0 offen {LDF}"]
    return [f"buffer_load_dwordx2 {vr(tmp+2*i,2)}, v{addr}, s[{SWS}:{SWS+3}], 0 offen offset:{i << FS} {LDF}" for i in range(width//2)]
def spin(a, name, addr, width, tmp, sc, sp=40, mask=None):
    a.label(name)
    a(f"s_mov_b32 s{sc}, {SPIN}")
    a.label(name + "_l")
    for l in poll_ld(addr, width, tmp): a(l)
    a(f"s_sub_u32 s{sc}, s{sc}, 1")
    a(f"s_cmp_eq_u32 s{sc}, 0")
    a(f"s_cbranch_scc1 {name}_ret")
    a("s_waitcnt vmcnt(0)")
    for l in flag_test(tmp, width, sp, mask): a(l)
    a(f"s_cbranch_vccnz {name}_l")
    a(f"s_branch {name}_ret")
def flag_test(tmp, width, sp=40, mask=None):
    r = [f"v_cmp_ne_u64 vcc, s[{sNON}:{sNON+1}], {vr(tmp,2)}"]
    if width == 4:
        r += [f"v_cmp_ne_u64 s[{sp}:{sp+1}], s[{sNON}:{sNON+1}], {vr(tmp+2,2)}", "s_nop 0", f"s_or_b64 vcc, vcc, s[{sp}:{sp+1}]"]
    else:
        r += ["s_nop 0"]
    if mask: r += [f"s_and_b64 vcc, vcc, s[{mask}:{mask+1}]"]
    return r

def phase12(a, cfg, late):
    stamp = cfg["stamp"]
    sK, sM0, sT0, sT1, sT2 = 27, 30, 31, 32, 33
    X = 0; ACC = 160; WB = 192
    vXR = 208; vWR = 212; vWR2 = 214; vXS = 216; vWS = 218; vW1S = 219; vEP = 220
    vT = 228; vL = 236; vGR = 237; vNON = 238
    WBS = [192, 200, 228]
    PK = [224, 240, 244, 248]
    t0, t1, t2, t3, t4, t5, t6 = range(vT, vT+7)
    a(f"v_and_b32 v{vL}, 63, v0")
    a(f"v_lshrrev_b32 v{t0}, 6, v0")
    a("s_and_b32 s31, s2, 7")
    a(f"v_readfirstlane_b32 s24, v{t0}")
    a("s_lshr_b32 s32, s2, 3")
    a("s_and_b32 s33, s32, 7")
    a("s_lshr_b32 s32, s32, 3")
    a("s_and_b32 s25, s31, 1")
    a("s_lshl_b32 s25, s25, 3")
    a("s_add_u32 s25, s25, s33")
    a("s_lshr_b32 s26, s31, 1")
    a("s_lshl_b32 s26, s26, 2")
    a("s_add_u32 s26, s26, s32")
    if cfg.get("norot"): a("s_mov_b32 s27, 0")
    elif cfg.get("rot2"):
        a("s_add_u32 s27, s33, s32")
        a("s_and_b32 s27, s27, 1")
        a("s_mul_i32 s27, s27, 5")
    elif cfg.get("rot4"):
        a("s_add_u32 s27, s33, s32")
        a("s_and_b32 s27, s27, 3")
        a("s_mul_i32 s27, s27, 5")
        a("s_lshr_b32 s27, s27, 1")
    else:
        a("s_mul_i32 s33, s33, 5")
        a("s_mul_i32 s32, s32, 10")
        a("s_add_u32 s27, s33, s32")
        a("s_lshr_b32 s27, s27, 2")
        a("s_cmp_ge_u32 s27, 10")
        a("s_cselect_b32 s31, 10, 0")
        a("s_sub_u32 s27, s27, s31")
    a("s_lshl_b32 s31, s26, 2")
    a("s_mul_i32 s28, s26, 3")
    a("s_add_u32 s28, s28, 12")
    a("s_min_u32 s28, s28, s31")
    a("s_lshl_b32 s30, s24, 11")
    a(f"s_lshl_b32 s31, s25, 7")
    a(f"s_lshl_b32 s32, s24, 4")
    a(f"s_add_u32 s31, s31, s32")
    a(f"v_lshrrev_b32 v{t0}, 3, v{vL}")
    a(f"v_lshrrev_b32 v{t1}, 4, v{vL}")
    a(f"v_and_b32 v{t2}, 7, v{vL}")
    a(f"v_xor_b32 v{t2}, v{t2}, v{t1}")
    a(f"v_add_u32 v{t0}, s31, v{t0}")
    a(f"v_mul_u32_u24 v{t0}, 1280, v{t0}")
    a(f"v_lshl_add_u32 v{vXS}, v{t2}, 4, v{t0}")
    a(f"v_xor_b32 v{vXS+1}, 64, v{vXS}")
    a(f"v_add_u32 v{vXS+1}, {8*1280}, v{vXS+1}")
    a(f"v_bfe_u32 v{t4}, v{vL}, 2, 2")
    a(f"v_xor_b32 v{t4}, v{t4}, v{t1}")
    a(f"v_and_b32 v{t2}, 3, v{vL}")
    a(f"v_lshlrev_b32 v{t2}, 4, v{t2}")
    a(f"v_lshl_add_u32 v{t2}, v{t4}, 6, v{t2}")
    a(f"s_lshl_b32 s31, s24, 3")
    a(f"v_add_u32 v{t0}, s31, v{t1}")
    a(f"v_mul_u32_u24 v{t3}, 3840, v{t0}")
    a(f"s_lshl_b32 s31, s28, 6")
    a(f"v_add3_u32 v{vWS}, v{t3}, v{t2}, s31")
    a(f"v_cmp_eq_u32 vcc, 3, v{t4}")
    a(f"v_mov_b32 v{t5}, 0x{OOB:x}")
    a(f"s_cmp_ge_u32 s26, 12")
    a(f"s_cselect_b64 s[36:37], vcc, 0")
    a(f"s_lshr_b32 s34, s24, 2")
    a(f"v_cndmask_b32 v{vWS}, v{vWS}, v{t5}, s[36:37]")
    a("s_waitcnt lgkmcnt(0)")
    srd_tail(a, SX, 2048*1280); srd_tail(a, SW, 640*3840)

    def adv_k():
        return [f"s_add_u32 s{sK}, s{sK}, 1", f"s_cmp_eq_u32 s{sK}, 10", f"s_cselect_b32 s{sK}, 0, s{sK}"]
    def dma_groups(t):
        slot = t % 4
        g = []
        if t < 10:
            g.append([f"s_lshl_b32 s{sT0}, s{sK}, 7", f"s_add_u32 m0, s{sM0}, {slot*16384}", f"s_mul_i32 s{sT1}, s{sK}, {64*3840}",
                      f"buffer_load_dwordx4 v{vXS}, s[{SX}:{SX+3}], s{sT0} offen lds"])
            g.append([f"s_add_u32 m0, s{sM0}, {slot*16384+1024}", f"s_add_u32 s{sT2}, s{sT1}, {4*3840}",
                      f"buffer_load_dwordx4 v{vXS+1}, s[{SX}:{SX+3}], s{sT0} offen lds"])
            g.append([f"s_add_u32 m0, s{sM0}, {65536+slot*16384}", adv_k()[0],
                      f"buffer_load_dwordx4 v{vWS}, s[{SW}:{SW+3}], s{sT1} offen lds"])
            g.append([f"s_add_u32 m0, s{sM0}, {65536+slot*16384+1024}"] + adv_k()[1:] + [
                      f"buffer_load_dwordx4 v{vWS}, s[{SW}:{SW+3}], s{sT2} offen lds"])
        elif t < 15:
            for half in range(2):
                base = (65536 if half == 0 else 0) + slot*16384
                g.append([f"s_mul_i32 s{sT1}, s{sK}, {64*3072}", f"s_add_u32 m0, s{sM0}, {base}", f"s_add_u32 s{sT2}, s{sT1}, {4*3072}",
                          f"buffer_load_dwordx4 v{vW1S}, s[{SW1}:{SW1+3}], s{sT1} offen lds"])
                g.append([f"s_add_u32 m0, s{sM0}, {base+1024}"] + adv_k() + [
                          f"buffer_load_dwordx4 v{vW1S}, s[{SW1}:{SW1+3}], s{sT2} offen lds"])
        return g
    a("s_mov_b32 s29, s27")
    stamp(a, "karg")
    for g in dma_groups(0):
        for l in g: a(l)
    a("s_and_b32 s35, s24, 3")
    a("s_cmp_ge_u32 s26, 12")
    a("s_cselect_b32 s38, s34, 0")
    srd_tail(a, SG, 1280)
    a("s_cmp_eq_u32 s38, 1")
    a("s_cbranch_scc1 L_gate")
    a.label("L_gate_ret")
    def gate(a):
        u0, u1, u2 = vEP, vEP+1, vEP+2
        a.label("L_gate")
        a(f"s_lshl_b32 s31, s29, 3")
        for i in range(2):
            a(f"v_add_u32 v{u0}, {64*i}, v{vL}")
            a(f"v_add_u32 v{u1}, s31, v{u0}")
            a(f"v_subrev_u32 v{u2}, 80, v{u1}")
            a(f"v_cmp_le_u32 vcc, 80, v{u1}")
            a(f"s_lshl_b32 s32, s35, 11")
            a(f"s_add_u32 m0, s32, {131072 + 1024*i}")
            a(f"v_cndmask_b32 v{u1}, v{u1}, v{u2}, vcc")
            a(f"v_lshlrev_b32 v{u1}, 4, v{u1}")
            a(f"v_cmp_le_u32 vcc, 80, v{u0}")
            a("s_nop 1")
            a(f"v_cndmask_b32 v{u1}, v{u1}, v{t5}, vcc")
            a(f"buffer_load_dwordx4 v{u1}, s[{SG}:{SG+3}], 0 offen lds")
        a("s_branch L_gate_ret")
    late.append(gate)
    a("s_barrier")
    for g in dma_groups(1):
        for l in g: a(l)
    stamp(a, "dma1")
    srd_tail(a, SW1, 640*3072); srd_tail(a, SWS, WS_END); srd_tail(a, SDBG, 256)
    a("s_or_b32 s31, s2, s24")
    a("s_cmp_eq_u32 s31, 0")
    a("s_cbranch_scc1 L_tag")
    a.label("L_tag_ret")
    def tag(a):
        a.label("L_tag")
        a(f"s_memrealtime s[{sNON}:{sNON+1}]")
        a(f"v_mov_b32 v{vEP+2}, 0")
        a("s_waitcnt lgkmcnt(0)")
        a(f"s_or_b32 s31, s{sNON}, 1")
        a(f"v_mov_b32 v{vEP}, s31")
        a(f"v_mov_b32 v{vEP+1}, s{sNON+1}")
        a("s_mov_b64 exec, 1")
        a(f"buffer_store_dwordx2 v[{vEP}:{vEP+1}], v{vEP+2}, s[{SDBG}:{SDBG+3}], 0 offen {ST}")
        a("s_mov_b64 exec, -1")
        a("s_branch L_tag_ret")
    late.append(tag)
    a(f"v_mul_u32_u24 v{t3}, 3072, v{t0}")
    a(f"s_mul_i32 s31, s26, 192")
    a(f"v_add3_u32 v{vW1S}, v{t3}, v{t2}, s31")
    a(f"v_cmp_eq_u32 vcc, 3, v{t4}")
    a(f"v_and_b32 v{t0}, 31, v{vL}")
    a(f"s_lshl_b32 s31, s35, 5")
    a(f"v_cndmask_b32 v{vW1S}, v{vW1S}, v{t5}, vcc")
    a(f"v_mul_u32_u24 v{t1}, 43, v0")
    a(f"v_lshrrev_b32 v{t1}, 8, v{t1}")
    a(f"v_mul_u32_u24 v{t2}, {3072-6*128}, v{t1}")
    a(f"v_lshl_add_u32 v{t2}, v0, 7, v{t2}")
    a("s_lshr_b32 s32, s2, 3"); a(f"s_mul_i32 s32, s32, {20*3072}")
    a("s_bfe_u32 s33, s2, 0x20001"); a("s_mul_i32 s33, s33, 768"); a("s_add_u32 s32, s32, s33")
    a(f"v_cmp_gt_u32 vcc, 120, v0")
    a(f"v_add_u32 v{t2}, s32, v{t2}")
    a("s_nop 0")
    a(f"v_cndmask_b32 v{vNON+1}, v{t5}, v{t2}, vcc")
    if cfg.get("tlb"):
        a(f"v_and_b32 v{t1}, 31, v{vL}")
        a(f"v_min_u32 v{t1}, 24, v{t1}")
        a(f"v_lshlrev_b32 v{t1}, 15, v{t1}")
        a(f"v_min_u32 v{t2}, 29, v{vL}")
        a(f"v_lshlrev_b32 v{t2}, 16, v{t2}")
        a(f"v_cmp_gt_u32 vcc, 32, v{vL}")
        a(f"v_mov_b32 v{t3}, s48"); a(f"v_mov_b32 v{t4}, s46")
        a(f"v_cndmask_b32 v{t1}, v{t1}, v{t2}, vcc")
        a(f"v_cndmask_b32 v{t3}, v{t3}, v{t4}, vcc")
        a(f"v_mov_b32 v{t2}, s49"); a(f"v_mov_b32 v{t4}, s47")
        a(f"v_cndmask_b32 v{t2}, v{t2}, v{t4}, vcc")
        a(f"v_add_co_u32 v{vNON}, vcc, v{t1}, v{t3}")
        a("s_nop 1")
        a(f"v_addc_co_u32 v{vNON+1}, vcc, 0, v{t2}, vcc")
    a(f"v_add_u32 v{t0}, s31, v{t0}")
    a(f"v_bfe_u32 v{t1}, v{t0}, 1, 3")
    a(f"v_lshrrev_b32 v{t2}, 5, v{vL}")
    a(f"v_xor_b32 v{t1}, v{t1}, v{t2}")
    a(f"v_lshlrev_b32 v{t1}, 4, v{t1}")
    a(f"v_lshl_add_u32 v{vXR}, v{t0}, 7, v{t1}")
    for ks in range(1, 4):
        a(f"v_xor_b32 v{vXR+ks}, {ks<<5}, v{vXR}")
    a(f"v_bfe_u32 v{t0}, v{vL}, 2, 2")
    a(f"v_lshl_add_u32 v{t1}, v{t2}, 3, v{t0}")
    a(f"v_lshlrev_b32 v{t1}, 8, v{t1}")
    a(f"v_bfe_u32 v{t3}, v{vL}, 4, 1")
    a(f"v_lshl_add_u32 v{t1}, v{t3}, 5, v{t1}")
    a(f"v_and_b32 v{t3}, 3, v{vL}")
    a(f"v_lshl_add_u32 v{t1}, v{t3}, 3, v{t1}")
    for e in range(2):
        a(f"s_lshl_b32 s31, s34, 1")
        a(f"s_add_u32 s31, s31, {e}")
        a(f"v_xor_b32 v{t3}, s31, v{t0}")
        a(f"v_lshl_add_u32 v{vWR2+e}, v{t3}, 6, v{t1}")
        a(f"v_add_u32 v{vWR+e}, 0x10000, v{vWR2+e}")
    a(f"s_lshl_b32 s31, s35, 11")
    a(f"s_add_u32 s31, s31, 131072")
    a(f"v_lshl_add_u32 v{vGR}, v{t2}, 4, s31")
    a("s_and_b32 s31, s2, 7"); a("s_lshr_b32 s33, s2, 6"); a("s_bfe_u32 s32, s2, 0x30003")
    a("s_lshr_b32 s39, s31, 1"); a("s_lshl_b32 s39, s39, 3"); a("s_add_u32 s39, s39, s32")
    a("s_and_b32 s40, s31, 1"); a("s_lshl_b32 s40, s40, 2"); a("s_add_u32 s40, s40, s33")
    a("s_mul_i32 s41, s40, 160")
    a(f"v_mul_u32_u24 v{t1}, 205, v0")
    a(f"v_lshrrev_b32 v{t1}, 11, v{t1}")
    a(f"v_mul_u32_u24 v{t1}, {1280-160}, v{t1}")
    a(f"v_lshl_add_u32 v{t1}, v0, 4, v{t1}")
    a(f"s_mul_i32 s31, s39, {48*1280}"); a("s_add_u32 s31, s31, s41"); a(f"s_mul_i32 s32, s39, {20*1280}"); a("s_add_u32 s32, s32, s41")
    a(f"v_cmp_gt_u32 vcc, 480, v0")
    a(f"v_add_u32 v{t3}, s31, v{t1}")
    a(f"v_add_u32 v{t4}, s32, v{t1}")
    a(f"v_cndmask_b32 v{vPS}, v{t5}, v{t3}, vcc")
    a(f"v_cmp_gt_u32 vcc, 200, v0")
    a("s_nop 1")
    a(f"v_cndmask_b32 v{vPS+1}, v{t5}, v{t4}, vcc")
    a("s_cmp_ge_u32 s26, 10")
    a("s_cbranch_scc1 L_p1_v")
    a("s_cmp_ge_u32 s26, 5")
    a(f"s_cselect_b32 s31, 1, 0")
    a(f"s_lshl_b32 s39, 81920, s31")
    a(f"s_lshl_b32 s40, 5120, s31")
    a("s_cmp_ge_u32 s26, 5")
    a(f"s_cselect_b32 s41, {WS_KV}, {WS_Q}")
    a(f"s_cselect_b32 s42, 20, 0")
    a("s_mul_i32 s40, s40, s25")
    a("s_add_u32 s40, s40, s41")
    a("s_sub_u32 s42, s28, s42")
    a("s_lshl_b32 s31, s34, 1")
    a("s_add_u32 s42, s42, s31")
    a("s_lshl_b32 s42, s42, 2")
    a("s_and_b32 s31, s35, 1")
    a("s_lshl_b32 s31, s31, 8")
    a("s_add_u32 s40, s40, s31")
    a("s_lshr_b32 s31, s35, 1")
    a("s_lshl_b32 s41, s31, 11")
    a("s_lshl_b32 s31, s31, 9")
    a("s_add_u32 s33, s31, 4096")
    a(f"v_and_b32 v{t0}, 15, v{vL}")
    a(f"v_lshl_add_u32 v{t0}, v{t0}, 4, s40")
    a(f"v_add_u32 v{t2}, s42, v{t2}")
    a(f"v_bfe_u32 v{t5}, v{vL}, 4, 1")
    a(f"v_lshl_add_u32 v{t6}, v{t5}, 10, s41")
    a(f"v_mov_b32 v{vGR}, s33")
    QM = [36, 40, 42, 0]
    for i in range(4):
        u0 = vT+7
        a(f"v_add_u32 v{t1}, {2*i}, v{t2}")
        a(f"v_mul_u32_u24 v{t3}, 205, v{t1}")
        a(f"v_lshrrev_b32 v{t3}, 10, v{t3}")
        a(f"v_mul_u32_u24 v{t4}, 5, v{t3}")
        a(f"v_sub_u32 v{t1}, v{t1}, v{t4}")
        a(f"v_cmp_le_u32 vcc, 3, v{t1}")
        a(f"v_cmp_eq_u32 s[{QM[i]}:{QM[i]+1}], 2, v{t1}")
        a(f"v_subrev_u32 v{u0}, 3, v{t1}")
        a(f"v_cndmask_b32 v{t4}, 0, 1, vcc")
        a(f"v_cndmask_b32 v{t1}, v{t1}, v{u0}, vcc")
        a(f"v_cndmask_b32 v{t4}, v{t4}, v{t5}, s[{QM[i]}:{QM[i]+1}]")
        a(f"v_lshl_add_u32 v{t3}, v{t3}, 1, v{t4}")
        a(f"v_mul_lo_u32 v{t3}, v{t3}, s39")
        a(f"v_lshl_add_u32 v{t1}, v{t1}, 9, v{t6}")
        a(f"v_cndmask_b32 v{t1}, v{t1}, v{vGR}, s[{QM[i]}:{QM[i]+1}]")
        a(f"v_add3_u32 v{vEP+i}, v{t0}, v{t3}, v{t1}")
    a(f"v_lshrrev_b32 v{t1}, 1, v{vL}")
    a(f"v_xor_b32 v{t1}, v{t1}, v{vL}")
    a(f"v_and_b32 v{t1}, 1, v{t1}")
    a(f"v_mul_u32_u24 v{vGR}, 24, v{t1}")
    for e in range(2): a(f"v_xor_b32 v{vWR+e}, v{vWR+e}, v{vGR}")
    def ep_v():
        a("s_sub_u32 s42, s28, 40")
        a("s_lshl_b32 s31, s34, 1")
        a("s_add_u32 s42, s42, s31")
        a("s_lshl_b32 s42, s42, 5")
        a("s_mul_i32 s40, s25, 10240")
        a("s_lshr_b32 s31, s35, 1")
        a("s_mul_i32 s31, s31, 2560")
        a("s_add_u32 s40, s40, s31")
        a("s_and_b32 s31, s35, 1")
        a("s_mul_i32 s31, s31, 640")
        a("s_add_u32 s40, s40, s31")
        a(f"s_add_u32 s40, s40, {WS_KV + 5120}")
        a(f"s_mov_b32 s39, 163840")
        a(f"v_and_b32 v{t0}, 31, v{vL}")
        a(f"v_mul_u32_u24 v{t2}, 320, v{t2}")
        a(f"v_add_u32 v{t2}, s40, v{t2}")
        for e in range(2):
            a(f"v_add_u32 v{t1}, s42, v{t0}")
            if e: a(f"v_add_u32 v{t1}, 32, v{t1}")
            a(f"v_mul_u32_u24 v{t3}, 3277, v{t1}")
            a(f"v_lshrrev_b32 v{t3}, 16, v{t3}")
            a(f"v_mul_u32_u24 v{t4}, 20, v{t3}")
            a(f"v_sub_u32 v{t1}, v{t1}, v{t4}")
            a(f"v_mul_lo_u32 v{t3}, v{t3}, s39")
            a(f"v_lshl_add_u32 v{t1}, v{t1}, 4, v{t2}")
            a(f"v_add_u32 v{vEP+2*e}, v{t1}, v{t3}")
            a(f"v_add_u32 v{vEP+2*e+1}, 1280, v{vEP+2*e}")

    def p1_reads(variant, step):
        t, ks = divmod(step, 4)
        slot = t % 4; wb = WBS[step % 3]
        r = [f"ds_read_b128 {vr(X+4*step,4)}, v{vXR+ks} offset:{slot*16384}"]
        for e in range(2):
            if variant == "VG" and e == 1:
                r.append(f"ds_read_b128 {vr(wb+4,4)}, v{vGR} offset:{t*128+ks*32}")
            else:
                for u in range(2):
                    r.append(f"ds_read_b64_tr_b16 {vr(wb+4*e+2*u,2)}, v{vWR+e} offset:{slot*16384+ks*4096+u*1024}")
        return r
    def mf(acc, A, B, first):
        return f"v_mfma_f32_32x32x16_bf16 {vr(acc,16)}, {vr(A,4)}, {vr(B,4)}, " + ("0" if first else vr(acc,16))
    class LQ:
        def __init__(self, p1=False): self.q = []; self.p1 = p1
        def rd(self, lines, tag):
            for l in lines:
                if cfg.get("x_nox") and "b128" in l: l = "s_nop 0"
                elif cfg.get("x_now") and "_tr_" in l and "offset" in l and self.p1: l = "s_nop 0"
                else: self.q.append(tag)
                a(l)
        def wait(self, tag):
            if tag not in self.q: return
            n = len(self.q) - 1 - max(i for i, x in enumerate(self.q) if x == tag)
            a(f"s_waitcnt lgkmcnt({min(n, 15)})")
    uid = [0]
    def site(stage, sg, extra=None):
        uid[0] += 1
        a(f"s_cmp_eq_u32 s34, {sg}")
        a(f"s_cbranch_scc0 L_site{uid[0]}")
        for g in dma_groups(stage):
            for l in g:
                if cfg.get("x_nodma") and stage < 10 and l.startswith("buffer_load"): l = l.replace(f"v{vXS},", f"v{vNON},").replace(f"v{vXS+1},", f"v{vNON},").replace(f"v{vWS},", f"v{vNON},")
                if cfg.get("x_skipdma") and stage < 10 and l.startswith("buffer_load"): continue
                a(l)
        for l in extra or []: a(l)
        a.label(f"L_site{uid[0]}")
    TAGT = int(cfg.get("tagt", 5)); assert TAGT <= 6
    NOLG = cfg.get("nolg")
    def p1_main(variant):
        for g in dma_groups(2):
            for l in g: a(l)
        WT = int(cfg.get("wt", 1)); assert WT < TAGT
        warm = [] if not cfg.get("warm") else [f"buffer_load_dword v{vNON}, v{vNON+1}, s[{SW1}:{SW1+3}], 0 offen"]
        if cfg.get("tlb"): warm = [f"global_load_dword v{vNON}, v[{vNON}:{vNON+1}], off"]
        stamp(a, "p1_pre")
        a(f"s_waitcnt vmcnt(8)")
        a("s_barrier")
        stamp(a, "p1_first")
        if cfg.get("x_nodma"): a(f"v_mov_b32 v{vNON}, 0x{OOB:x}")
        lq = LQ(True)
        for st in range(2):
            rd = p1_reads(variant, st); lq.rd(rd[:3], (st, 0)); lq.rd(rd[3:], (st, 1))
        if variant != "VG": site(3, 0)
        tagld = [f"buffer_load_dwordx2 v[{vNON}:{vNON+1}], off, s[{SDBG}:{SDBG+3}], 0" + (f" {LDF}" if cfg.get("tagsc") else "")]
        for step in range(40):
            t, ks = divmod(step, 4)
            rd = p1_reads(variant, step+2) if step < 38 else []
            for e in range(2):
                w = WBS[step % 3]+4*e; x = X+4*step
                swap = (variant == "VV") or (variant == "VG" and e == 0)
                lq.wait((step, e))
                a(mf(ACC+16*e, x if swap else w, w if swap else x, step == 0))
                if ks == 2 and e == 0:
                    site(t+3, 1, tagld if t == TAGT+1 else warm if t == WT+1 else None)
                    stamp(a, f"p1_p{t}")
                    a(f"s_waitcnt vmcnt({8 + (t in (TAGT+1, TAGT+2)) + (bool(warm) and t in (WT+1, WT+2, WT+3))})" + ("" if NOLG else " lgkmcnt(0)"))
                    a("s_barrier")
                    stamp(a, f"p1_b{t}")
                lq.rd(rd[:3] if e == 0 else rd[3:], (step+2, e))
                if ks == 2 and e == 0 and variant != "VG":
                    site(t+4, 0, tagld if t == TAGT else warm if t == WT else None)
        site(13, 1)
        stamp(a, "p1_end")
    def v_epilogue(e):
        for s in range(2):
            d = PK[2*e+s]
            for c in range(4):
                r = ACC + 16*e + 8*s + 2*c
                a(f"v_cvt_pk_bf16_f32 v{d+c}, v{r}, v{r+1}")
            a("s_nop 1")
            a(f"v_permlane32_swap_b32 v{d}, v{d+2}")
            a(f"v_permlane32_swap_b32 v{d+1}, v{d+3}")

    p1_main("QK")
    a("s_cmp_ge_u32 s26, 5")
    a(f"s_cselect_b32 s31, 1.0, 0x{QSCALE:x}")
    for e in range(2): a(f"v_xor_b32 v{vWR+e}, v{vWR+e}, v{vGR}")
    a("s_nop 5")
    for i in range(4):
        r = ACC + 8*i; d = PK[i]
        for c in range(8): a(f"v_mul_f32 v{r+c}, s31, v{r+c}")
        for c in range(4): a(f"v_cvt_pk_bf16_f32 v{d+c}, v{r+2*c}, v{r+2*c+1}")
        a(f"s_mov_b64 exec, s[{QM[i]}:{QM[i]+1}]")
        a("s_nop 0")
        a(f"v_permlane16_swap_b32 v{d}, v{d+2}")
        a(f"v_permlane16_swap_b32 v{d+1}, v{d+3}")
        a("s_mov_b64 exec, -1")
    def vpart(a2):
        assert a2 is a
        a.label("L_p1_v")
        ep_v()
        a("s_cmp_eq_u32 s38, 1")
        a("s_cbranch_scc1 L_p1_vg")
        p1_main("VV")
        a("s_nop 7"); a("s_nop 1")
        v_epilogue(0); v_epilogue(1)
        a("s_branch L_p2")
        a.label("L_p1_vg")
        for i in (2, 3): a(f"v_mov_b32 v{vEP+i}, 0x{OOB:x}")
        p1_main("VG")
        a("s_nop 7"); a("s_nop 1")
        v_epilogue(0)
        z = ACC + 16
        a(f"v_cvt_pk_bf16_f32 v{z}, v{z}, v{z}")
        a(f"v_and_b32 v{z}, 0xffff0000, v{z}")
        a(f"v_mul_f32 v{z}, 0x{f32bits(-math.log2(math.e)):x}, v{z}")
        a(f"v_exp_f32 v{z}, v{z}")
        a("s_nop 0")
        a(f"v_add_f32 v{z}, 1.0, v{z}")
        a(f"v_rcp_f32 v{z}, v{z}")
        a(f"s_lshl_b32 s31, s25, 9")
        a(f"s_lshl_b32 s32, s35, 7")
        a(f"v_cvt_pk_bf16_f32 v{z}, v{z}, v{z}")
        a(f"v_and_b32 v{z}, 0xffff0000, v{z}")
        a(f"s_add_u32 s31, s31, s32")
        a(f"s_add_u32 s31, s31, {WS_G}")
        a(f"v_and_b32 v{z+1}, 31, v{vL}")
        a(f"v_lshlrev_b32 v{z+1}, 2, v{z+1}")
        a("s_cmp_eq_u32 s26, 15")
        a("s_cbranch_scc0 L_p2")
        a(f"buffer_store_dword v{z}, v{z+1}, s[{SWS}:{SWS+3}], s31 offen {ST}")
        a("s_branch L_p2")
    late.insert(0, vpart)
    a.label("L_p2")
    a(f"v_readfirstlane_b32 s{sNON}, v{vNON}")
    a(f"v_readfirstlane_b32 s{sNON+1}, v{vNON+1}")
    a("s_nop 0")
    a(f"s_cmp_eq_u32 s{sNON}, 0")
    a("s_cbranch_scc1 L_tagw")
    a.label("L_tagw_ret")
    def tagw(a):
        a.label("L_tagw")
        a(f"s_mov_b32 s31, {SPIN}")
        a.label("L_tagw_l")
        a(f"buffer_load_dwordx2 v[{vNON}:{vNON+1}], off, s[{SDBG}:{SDBG+3}], 0 {LDF}")
        a("s_sub_u32 s31, s31, 1")
        a("s_cmp_eq_u32 s31, 0")
        a("s_cbranch_scc1 L_tagw_ret")
        a("s_waitcnt vmcnt(0)")
        a(f"v_readfirstlane_b32 s{sNON}, v{vNON}")
        a(f"v_readfirstlane_b32 s{sNON+1}, v{vNON+1}")
        a("s_nop 0")
        a(f"s_cmp_eq_u32 s{sNON}, 0")
        a("s_cbranch_scc1 L_tagw_l")
        a("s_branch L_tagw_ret")
    late.append(tagw)
    def p2_reads(ns, step):
        D, rem = divmod(step, 8); half, ks = divmod(rem, 4)
        slot = (10 + D) % 4; wb = WBS[step % 3]
        base = vWR if half == 0 else vWR2
        return [f"ds_read_b64_tr_b16 {vr(wb+4*e+2*u,2)}, v{base+e} offset:{slot*16384+ks*4096+u*1024}" for e in range(ns) for u in range(2)]
    fillA, fillB = setup_later(cfg, vL)
    MA = 48 if cfg.get("two", "0") in "12" else None
    SIG = int(cfg.get("sig1", 14)); POLL1 = int(cfg.get("poll1", 30)); CHK1 = int(cfg.get("chk1", 38))
    POLLB = int(cfg.get("pollb", 34)); vPB = 16; assert not POLLB or POLL1 < POLLB < CHK1
    STS = {2: [int(x) for x in cfg.get("sts", "0,1,2,3").split(",")], 1: [0, 1, 2, 3]}
    def first_loads(ns):
        r = [f"buffer_load_dwordx4 {vr(aQ1,4)}, v{vD}, s[{SWS}:{SWS+3}], s32 offen {LDF}",
             f"buffer_load_dwordx4 {vr(aQ1+4,4)}, v{vD}, s[{SWS}:{SWS+3}], s32 offen offset:1024 {LDF}",
             f"buffer_load_dwordx4 {vr(aK2,4)}, v12, s[{SWS}:{SWS+3}], s33 offen {LDF}"]
        if ns == 1:
            ld = lambda i: f"buffer_load_dwordx4 v{vD}, s[{SWS}:{SWS+3}], s37 offen offset:{1024*i} {LDF} lds"
            r = ["s_mov_b32 m0, s35", "s_add_u32 s37, s35, s36"] + [ld(i) for i in range(4)] + ["s_add_u32 m0, s35, 4096", "s_add_u32 s37, s37, 4096", ld(0)] + r
        return r
    def p2_main(ns):
        stamp(a, "p2_start")
        vm = VM()
        for st in (11, 12, 13): vm.add(f"s{st}", 4)
        lq = LQ()
        for st in range(2):
            rd = p2_reads(ns, st)
            for e in range(ns): lq.rd(rd[2*e:2*e+2], (st, e))
        fa = list(fillA); fb = list(fillB); PKS = [int(x) for x in cfg.get("pks", "11,12").split(",")]
        pkl = pk_ld()[::-1] if cfg.get("pke", "2") == "2" else []; assert PKS[0] >= 4 and PKS[1] >= 7
        xw = cfg.get("x_pkw")
        a(f"s_mov_b64 s[{SW2}:{SW2+1}], s[{'12:13' if xw else '46:47'}]"); a(f"s_mov_b32 s{SW2+2}, {1536*1280}")
        a(f"s_mov_b64 s[{SWO}:{SWO+1}], s[{'12:13' if xw else '48:49'}]"); a(f"s_mov_b32 s{SWO+2}, {640*1280}")
        for step in range(40):
            D, rem = divmod(step, 8)
            rd = p2_reads(ns, step+2) if step < 38 else []
            for e in range(ns):
                lq.wait((step, e))
                a(mf(ACC+16*e, WBS[step % 3]+4*e, X+4*step, step == 0))
                bar = rem == 6 and D < 4
                if e == 0 and (bar or step == SIG):
                    need = ([f"s{11+D}"] if bar else []) + (["st"] if step == SIG else [])
                    stamp(a, f"p2_p{D}" if bar else "p2_ps")
                    a(f"s_waitcnt vmcnt({vm.after(*need)})" + (" lgkmcnt(0)" if (D == 0 and not NOLG) else ""))
                    a("s_barrier")
                    stamp(a, f"p2_b{D}" if bar else "p2_bs")
                lq.rd(rd[2*e:2*e+2], (step+2, e))
                if e == 0 and step == 6:
                    for g in dma_groups(14):
                        for l in g: a(l)
                    vm.add("s14", 4)
                if e == 0 and step == SIG and ns == 1:
                    assert not any(f"s{sF1}," in l for l in fa)
                    for l in flag_store([sF1], 8): a(l)
                    vm.add("flag")
                if e == ns-1 and step in STS[ns]:
                    i = STS[ns].index(step)
                    a(f"buffer_store_dwordx4 {vr(PK[i],4)}, v{vEP+i}, s[{SWS}:{SWS+3}], 0 offen {ST}")
                    vm.add("st")
                poll = "\n".join(poll_ld(vP1, 4, vEP))
                if e == 0 and step == POLL1 and ns == 1:
                    assert not (fa + fb)[:1] or "cselect" not in (fa + fb)[0]
                    a("s_cmp_eq_u32 s24, 4"); a("s_cbranch_scc0 L_p1s")
                    for i in (0, 2): a(f"v_mov_b32 v{vEP+i}, 0")
                    a(poll)
                    a.label("L_p1s")
                if POLLB and e == 0 and step == POLLB and ns == 1:
                    assert not (fa + fb)[:1] or "cselect" not in (fa + fb)[0]
                    a("s_cmp_eq_u32 s24, 4"); a("s_cbranch_scc0 L_pbs")
                    for l in poll_ld(vP1, 4, vPB): a(l)
                    a.label("L_pbs")
                if e == 0 and step == CHK1:
                    assert not fa and CHK1 >= 31
                    a(f"v_mov_b32 v14, {139264}")
                    if ns == 1:
                        a("s_cmp_eq_u32 s24, 4"); a("s_cbranch_scc0 L_c1s")
                        if cfg.get("blk"): a("s_waitcnt vmcnt(0)")
                        for l in flag_test(vEP, 4, 46, MA): a(l)
                        a("s_or_b32 s14, vcc_lo, vcc_hi")
                        a("v_mov_b32 v13, s14")
                        a("s_mov_b64 exec, 1")
                        a("ds_write_b32 v14, v13")
                        a("s_mov_b64 exec, -1")
                        a(poll)
                        a("s_waitcnt lgkmcnt(0)")
                        a.label("L_c1s")
                    a("s_barrier")
                    lq.rd(["ds_read_b32 v13, v14"], "chk")
                if e == 0 and step == CHK1+1:
                    lq.wait("chk")
                    a("v_readfirstlane_b32 s14, v13")
                    stamp(a, "chk"); stamp(a, "val_s14")
                    a("s_cmp_eq_u32 s14, 0")
                    a(f"s_cbranch_scc0 L_early{ns}")
                    for l in first_loads(ns): a(l)
                    a.label(f"L_early{ns}")
                while e == 0 and pkl and step == PKS[2-len(pkl)]:
                    assert any(f"v{vKA}," in l for l in fa)
                    a(pkl.pop(0)); vm.add("pk")
                if step >= 7:
                    for _ in range(8 // ns):
                        if fa: a(fa.pop(0))
                        elif fb and step > max(STS[2]): a(fb.pop(0))
        assert not fa and not fb and not pkl, (fa, fb)
        stamp(a, "p2_end")
        def latecheck():
            a("s_cmp_eq_u32 s14, 0")
            a(f"s_cbranch_scc0 L_late{ns}")
            a.label(f"L_late{ns}_ret")
        if POLLB: latecheck()
        a(f"v_bfe_u32 v{aS}, v{vD}, 4, 5")
        a(f"v_mov_b32 v{aS+1}, 0x3f803f80")
        a(f"v_cmp_eq_u32 vcc, 20, v{aS}")
        for i in range(32): a(f"v_mov_b32 v{aO+i}, 0")
        a(f"v_mov_b32 v{aIDX}, 0xdddddddd")
        for i in range(8): a(f"v_cndmask_b32 v{aV+i}, 0, v{aS+1}, vcc")
        for e in range(ns):
            for s in range(2):
                d = HPK + 8*e + 4*s
                for c in range(4):
                    r = ACC + 16*e + 8*s + 2*c
                    a(f"v_max_f32 v{r}, 0, v{r}")
                    a(f"v_max_f32 v{r+1}, 0, v{r+1}")
                    a(f"v_cvt_pk_bf16_f32 v{d+c}, v{r}, v{r+1}")
        a(f"v_mov_b32 v{HPK+16}, " + (f"v{vD}" if ns == 2 else f"0x{OOB:x}"))
        a(f"v_lshrrev_b32 v2, 2, v12")
        a(f"v_and_b32 v3, 64, v2")
        a(f"v_add_u32 v{aG}, v2, v3")
        a(f"v_bfe_u32 v2, v{vD}, 8, 1")
        a(f"v_mul_u32_u24 v2, {32768-256}, v2")
        a(f"v_add_u32 v{aOA}, v2, v{vD}")
        a("s_lshr_b32 s31, s24, 1")
        for j in range(5):
            if j < 4: a(f"s_xor_b32 s13, s31, {j}"); a("s_lshl_b32 s13, s13, 5")
            a(f"v_add_u32 v{vRA+j}, {'s13' if j < 4 else 128}, v{vR4}")
            a(f"v_add_u32 v{vRA7+j}, {7*10240}, v{vRA+j}")
        a("s_lshl_b32 s31, s24, 6")
        a(f"v_lshrrev_b32 v2, 4, v{vD}")
        a(f"v_add_u32 v2, s31, v2")
        a(f"v_lshlrev_b32 v3, 7, v2")
        a(f"s_mul_i32 s31, s26, {100*128}"); a(f"s_add_u32 s31, s31, s1")
        a(f"v_cmp_gt_u32 vcc, 100, v2")
        a(f"v_add_u32 v3, s31, v3")
        a(f"v_mov_b32 v2, 0x{OOB:x}")
        for i in range(4): a(f"v_mov_b32 v{vSENT+i}, -1")
        a(f"v_cndmask_b32 v{vWARM}, v2, v3, vcc")
        stamp(a, "at_init")
        if not POLLB: latecheck()
        def lateload(a):
            a.label(f"L_late{ns}")
            if ns == 1:
                a("s_cmp_eq_u32 s24, 4")
                a("s_cbranch_scc0 L_w1_ret")
                if POLLB:
                    a("s_waitcnt vmcnt(1)")
                    for l in flag_test(vPB, 4, 46, MA): a(l)
                    a("s_cbranch_vccz L_w1_ret")
                a("s_waitcnt vmcnt(0)")
                for l in flag_test(vEP, 4, 46, MA): a(l)
                a("s_cbranch_vccnz L_w1")
                a.label("L_w1_ret")
            a("s_barrier")
            stamp(a, "chk")
            for l in first_loads(ns): a(l)
            a(f"s_branch L_late{ns}_ret")
            if ns == 1: spin(a, "L_w1", vP1, 4, vEP, 31, 46, MA)
        late.append(lateload)
    a("s_cmp_eq_u32 s34, 0")
    a("s_cbranch_scc0 L_p2_1")
    p2_main(2)
    def p2one(a2):
        a.label("L_p2_1")
        p2_main(1)
        a("s_branch L_p2_done")
    late.insert(0, p2one)
    a.label("L_p2_done")

def setup_later(cfg, vL):
    t0, t1, t2, t3, t4, t5, t6 = range(7)
    A = Asm(); B = Asm()
    a = A
    a(f"v_lshlrev_b32 v{vD}, 4, v{vL}")
    a(f"v_and_b32 v12, 0x1ff, v{vD}")
    a("s_lshl_b32 s31, s25, 2"); a("s_add_u32 s31, s31, s35"); a("s_mul_i32 s31, s31, 98304"); a("s_mul_i32 s32, s26, 3")
    a("s_lshl_b32 s33, s34, 1"); a("s_add_u32 s32, s32, s33"); a("s_lshl_b32 s32, s32, 11"); a("s_add_u32 s31, s31, s32")
    a(f"s_add_u32 s{sHE}, s31, {WS_H}")
    a(f"s_lshl_b32 s39, s25, {FS+4}"); a(f"s_lshl_b32 s40, s26, {FS}"); a("s_add_u32 s39, s39, s40"); a(f"s_add_u32 s39, s39, {FL2}")
    a("s_cmp_eq_u32 s24, 0"); a(f"s_cselect_b32 s{sF2}, s39, 0x{OOB:x}")
    a(f"s_lshl_b32 s39, s26, {FS+4}"); a(f"s_lshl_b32 s40, s25, {FS}"); a("s_add_u32 s39, s39, s40"); a(f"s_add_u32 s39, s39, {FL1}")
    a("s_cmp_eq_u32 s24, 4"); a(f"s_cselect_b32 s{sF1}, s39, 0x{OOB:x}")
    a("s_mov_b32 s27, s34"); a("s_mov_b32 s28, s35")
    a("s_mul_i32 s0, s27, 81920")
    a("s_and_b32 s3, s24, 1"); a("s_sub_u32 s32, 3, s27"); a("s_mul_i32 s32, s32, s3"); a("s_mul_i32 s33, s27, 6"); a("s_add_u32 s12, s32, s33")
    a("s_bfe_u32 s13, s24, 0x10001"); a("s_mul_i32 s32, s13, 81920"); a("s_lshl_b32 s12, s12, 10"); a(f"s_add_u32 s{sM4}, s32, s12")
    a("s_mul_i32 s35, s3, 5120"); a("s_add_u32 s35, s35, s32")
    a("s_mul_i32 s32, s13, 10240"); a("s_add_u32 s12, s12, s32")
    a("s_and_b32 s31, s2, 7"); a("s_lshr_b32 s33, s2, 6"); a("s_bfe_u32 s26, s2, 0x30003")
    a("s_lshl_b32 s25, s31, 2"); a("s_add_u32 s25, s25, s33")
    a("s_mov_b32 s48, 0x11111111"); a("s_lshl_b32 s49, 0x101, s26")
    a(f"s_lshl_b32 s39, s26, {FS+5}"); a(f"s_lshl_b32 s40, s25, {FS}"); a("s_add_u32 s39, s39, s40"); a(f"s_add_u32 s39, s39, {FL3}")
    a("s_cmp_eq_u32 s24, 0"); a(f"s_cselect_b32 s{sF3}, s39, 0x{OOB:x}")
    a(f"v_lshrrev_b32 v{t0}, 4, v{vL}")
    a(f"v_add_u32 v{t0}, 1, v{t0}")
    a(f"v_mul_u32_u24 v{t1}, 640, v{t0}")
    a(f"v_cmp_eq_u32 vcc, 3, v{t0}")
    a(f"s_mul_i32 s39, s25, 20")
    a(f"v_bfe_u32 v{t3}, v{vL}, 3, 1")
    a(f"v_cndmask_b32 v{t1}, v{t1}, 0, vcc")
    a(f"v_mul_u32_u24 v{t3}, 19, v{t3}")
    a(f"v_add3_u32 v{t1}, v{t1}, v{t3}, s39")
    a(f"v_min_u32 v{t1}, 1919, v{t1}")
    a(f"v_lshrrev_b32 v{t1}, 5, v{t1}")
    a(f"v_lshrrev_b32 v{t3}, 2, v{t1}")
    a(f"v_subrev_u32 v{t4}, 12, v{t1}")
    a(f"v_mul_u32_u24 v{t4}, 43, v{t4}")
    a(f"v_lshrrev_b32 v{t4}, 7, v{t4}")
    a(f"v_cmp_le_u32 vcc, 48, v{t1}")
    a(f"v_and_b32 v{t0}, 7, v{vL}")
    a(f"v_lshlrev_b32 v{t0}, {FS+1}, v{t0}")
    a(f"v_cndmask_b32 v{t3}, v{t3}, v{t4}, vcc")
    a(f"v_lshl_add_u32 v{t3}, v{t3}, {FS+4}, v{t0}")
    a(f"v_add_u32 v{vP1}, {FL1}, v{t3}")
    a("s_lshr_b32 s39, s31, 1"); a("s_lshl_b32 s39, s39, 3"); a("s_add_u32 s39, s39, s26")
    a("s_and_b32 s40, s31, 1"); a("s_lshl_b32 s40, s40, 2"); a("s_add_u32 s40, s40, s33")
    a("s_mul_i32 s36, s26, 3"); a("s_lshr_b32 s36, s36, 1"); a("s_mul_i32 s33, s33, 3"); a("s_add_u32 s36, s36, s33")
    a("s_cmp_ge_u32 s36, 12"); a("s_cselect_b32 s33, 12, 0"); a("s_sub_u32 s36, s36, s33")
    a("s_lshr_b32 s33, s24, 1"); a("s_lshl_b32 s31, s33, 11")
    a(f"s_mul_i32 s{sHB}, s39, {2*98304}"); a(f"s_add_u32 s{sHB}, s{sHB}, s31"); a(f"s_add_u32 s{sHB}, s{sHB}, {WS_H}")
    a(f"s_add_u32 s{sHL}, s{sHB}, 98304"); a(f"s_lshl_b32 s{sKH}, s36, 13"); a(f"s_add_u32 s{sKH}, s{sKH}, s{sHB}")
    a(f"s_lshl_b32 s{sOB}, s39, 16"); a(f"s_add_u32 s{sOB}, s{sOB}, s31"); a(f"s_add_u32 s{sOB}, s{sOB}, {WS_O}")
    a(f"s_lshl_b32 s{sOR}, s39, 2"); a(f"s_add_u32 s{sOR}, s{sOR}, s33"); a(f"s_lshl_b32 s{sOR}, s{sOR}, 12"); a(f"s_add_u32 s{sOR}, s{sOR}, {WS_OR}")
    a("s_lshl_b32 s31, s39, 2"); a("s_add_u32 s31, s31, s3")
    a(f"s_lshl_b32 s{sG4}, s31, 6"); a(f"s_add_u32 s{sG4}, s{sG4}, {WS_G}")
    a(f"s_mul_i32 s{sOUTB}, s31, 20480"); a("s_mul_i32 s41, s40, 160"); a(f"s_add_u32 s{sOUTB}, s{sOUTB}, s41")
    a("s_mul_i32 s1, s40, 348160"); a(f"s_add_u32 s1, s1, {WS_WP}")
    a(f"s_add_u32 s{sW2B}, s1, s12"); a(f"s_add_u32 s{sWOB}, s{sW2B}, {12*20480}")
    a(f"s_mul_i32 s{sKW}, s36, 20480"); a(f"s_add_u32 s{sKW}, s{sKW}, s{sW2B}")
    a("s_lshl_b32 s31, s24, 6")
    a(f"v_add_u32 v{t0}, s31, v{vL}")
    a(f"v_mov_b32 v{t5}, 0x{OOB:x}")
    a(f"s_mul_i32 s32, s39, {48*160}"); a("s_add_u32 s32, s32, s1")
    a(f"v_cmp_gt_u32 vcc, 480, v{t0}")
    a(f"v_lshl_add_u32 v{t4}, v{t0}, 4, s32")
    a(f"s_mul_i32 s32, s39, {16*160}"); a(f"s_add_u32 s1, s1, {1536*160}"); a("s_add_u32 s32, s32, s1")
    a(f"v_cndmask_b32 v{vPD}, v{t5}, v{t4}, vcc")
    a("s_and_b32 s33, s39, 28"); a("s_bfe_u32 s36, s39, 0x10001"); a("s_add_u32 s33, s33, s36"); a("s_and_b32 s36, s39, 1"); a("s_lshl_b32 s36, s36, 1")
    a("s_add_u32 s33, s33, s36"); a("s_mul_i32 s33, s33, 640"); a(f"s_add_u32 s33, s33, {(512-16)*160}"); a("s_add_u32 s33, s33, s1")
    a(f"v_mov_b32 v{t3}, s32")
    a(f"v_mov_b32 v{t4}, s33")
    a(f"v_cmp_gt_u32 vcc, 160, v{t0}")
    a("s_nop 1")
    a(f"v_cndmask_b32 v{t3}, v{t4}, v{t3}, vcc")
    a(f"v_cmp_gt_u32 vcc, 200, v{t0}")
    a(f"v_lshl_add_u32 v{t3}, v{t0}, 4, v{t3}")
    a("s_nop 0")
    a(f"v_cndmask_b32 v{vPD+1}, v{t5}, v{t3}, vcc")
    a("s_lshl_b32 s31, s40, 8"); a(f"s_add_u32 s31, s31, {FL4}"); a("s_lshl_b32 s32, s39, 3"); a("s_add_u32 s32, s32, s31")
    a("s_cmp_eq_u32 s24, 0"); a(f"s_cselect_b32 s{sF4}, s32, 0x{OOB:x}")
    a("s_lshr_b32 s32, s39, 1"); a("s_lshl_b32 s32, s32, 7"); a(f"s_add_u32 s32, s32, {FL2}")
    a("s_lshr_b32 s33, s39, 2"); a("s_lshl_b32 s33, s33, 8"); a(f"s_add_u32 s33, s33, {FL3}")
    a(f"v_and_b32 v{t0}, 15, v{vL}")
    a(f"v_and_b32 v{t1}, 7, v{vL}")
    a(f"v_lshl_add_u32 v{t3}, v{t0}, 4, s33")
    a(f"v_lshl_add_u32 v{t4}, v{t1}, 4, s32")
    a(f"v_cmp_gt_u32 vcc, 16, v{vL}")
    a(f"v_lshl_add_u32 v{t0}, v{t0}, 4, s31")
    a("s_nop 0")
    a(f"v_cndmask_b32 v{t3}, v{t4}, v{t3}, vcc")
    a(f"v_cmp_gt_u32 vcc, 32, v{vL}")
    a("s_nop 1")
    a(f"v_cndmask_b32 v{vP2}, v{t0}, v{t3}, vcc")
    a("s_mul_i32 s31, s25, 81920"); a("s_lshl_b32 s32, s26, 1"); a("s_lshr_b32 s33, s28, 1"); a("s_add_u32 s32, s32, s33")
    a("s_mul_i32 s32, s32, 5120"); a("s_add_u32 s31, s31, s32"); a("s_and_b32 s33, s28, 1"); a("s_lshl_b32 s32, s33, 11")
    a("s_add_u32 s32, s32, s31")
    a("s_lshl_b32 s33, s33, 9"); a("s_add_u32 s33, s33, s31"); a("s_add_u32 s33, s33, 4096")
    a("s_lshl_b32 s31, s26, 3"); a("s_lshl_b32 s29, s28, 1"); a("s_add_u32 s29, s31, s29")
    a("s_lshl_b32 s30, s29, 7"); a("s_lshl_b32 s31, s27, 6"); a("s_add_u32 s30, s30, s31"); a(f"s_add_u32 s30, s30, {WS_G}")
    a("s_mul_i32 s36, s25, 163840"); a(f"s_add_u32 s36, s36, {WS_KV}"); a(f"s_add_u32 s34, s36, s{sM4}")
    a("s_mov_b32 s38, 0x000fffff"); a("s_mov_b32 s39, 0x000fffff")
    a(f"s_mov_b64 s[{SOUT}:{SOUT+1}], s[50:51]"); a(f"s_mov_b32 s{SOUT+2}, {2048*1280}")
    a(f"v_lshrrev_b32 v{t2}, 5, v{vL}")
    a(f"v_add_u32 v{vKA}, s0, v{vD}")
    a(f"v_and_b32 v{t0}, 31, v{vL}")
    a(f"v_mul_u32_u24 v{t3}, 320, v{t2}")
    a(f"v_lshl_add_u32 v{t3}, v{t0}, 4, v{t3}")
    a(f"v_add_u32 v{t3}, 5120, v{t3}")
    a(f"v_add_u32 v{vVA}, s0, v{t3}")
    a = B
    a(f"v_and_b32 v{t0}, 15, v{vL}")
    a("s_mul_i32 s31, s13, 5120")
    a("s_add_u32 s31, s31, s0")
    a(f"v_mul_u32_u24 v{t3}, 2560, v{t2}")
    a(f"v_bfe_u32 v{t1}, v{vL}, 2, 3")
    a(f"v_mul_u32_u24 v{t1}, 160, v{t1}")
    a(f"v_and_b32 v{t4}, 3, v{vL}")
    a(f"v_lshl_add_u32 v{t1}, v{t4}, 3, v{t1}")
    a(f"v_add3_u32 v{vR4}, v{t3}, v{t1}, s31")
    a(f"v_lshrrev_b32 v{t3}, 4, v{vL}")
    a(f"v_lshlrev_b32 v{t0}, 4, v{t0}")
    a(f"v_lshl_add_u32 v{vA4}, v{t3}, 9, v{t0}")
    a("s_lshl_b32 s31, s3, 8")
    a(f"v_add_u32 v{vA4}, s31, v{vA4}")
    a(f"v_add_u32 v{vA4B}, 98304, v{vA4}")
    return A.lines, B.lines

def phase3(a, cfg, late):
    stamp = cfg["stamp"]
    S, O, Q1, Q2, K1, K2, V, vIDX, vG = aS, aO, aQ1, aQ2, aK1, aK2, aV, aIDX, aG
    PKE = int(cfg.get("pke", "2"))
    pk_st = [f"buffer_store_dwordx4 {vr(PKW[i],4)}, v{vPD+i}, s[{SWS}:{SWS+3}], 0 offen {ST}" for i in range(2)]
    if PKE == 1:
        for l in pk_ld(): a(l)
    a(f"s_waitcnt vmcnt({2 if PKE == 1 else 0})")
    stamp(a, "at_q")
    if cfg.get("two") == "2":
        for l in ["s_cmp_eq_u32 s24, 4", "s_cbranch_scc0 L_w3_ret"] + flag_test(220, 4, 46) + ["s_cbranch_vccnz L_w3", "L_w3_ret:"]: a(l)
        late.append(lambda a: spin(a, "L_w3", vP1, 4, 220, 31, 46))
    for c in range(2): a(f"v_mov_b32 v{Q2+c}, v{K2+c}")
    a("s_mov_b32 exec_lo, 0")
    for c in range(2): a(f"v_mov_b32 v{Q2+c}, v{K2+2+c}")
    a("s_mov_b64 exec, -1")
    bump = {"k": 0}
    def koff(g, off): return g*10240 + off - bump["k"]
    def rd_k1(T):
        g, tt = divmod(T, 4)
        return f"ds_read_b128 {vr(K1,4)}, v{vKA} offset:{koff(g, tt*1024)}"
    def rd_k2(g):
        return f"ds_read_b128 {vr(K2,4)}, v{vKA} offset:{koff(g, 4096)}"
    def rd_v(T, s):
        g, tt = divmod(T, 4)
        return f"ds_read_b128 {vr(V+4*s,4)}, v{vVA} offset:{koff(g, tt*1280+640*s)}"
    def sreg(T, q): return S + 32*(T % 2) + 16*q
    def b2(T):
        tt = T % 4
        return f"v_mfma_f32_32x32x4_2b_bf16 {vr(sreg(T,0),32)}, {vr(K2+2*(tt&1),2)}, {vr(Q2,2)}, 0 cbsz:1 abid:{tt>>1}"
    def qk(T, q):
        return f"v_mfma_f32_32x32x16_bf16 {vr(sreg(T,q),16)}, {vr(K1,4)}, {vr(Q1+4*q,4)}, {vr(sreg(T,q),16)}"
    def pv(T, q, h):
        return f"v_smfmac_f32_32x32x32_bf16 {vr(O+16*q,16)}, {vr(V+4*h,4)}, {vr(sreg(T,q)+8*h,8)}, v{vIDX}"
    a("s_barrier")
    stamp(a, "at_first")
    a(rd_k2(0)); a(rd_k1(0))
    a("s_lshl_b32 s31, s29, 15"); a("s_lshl_b32 s32, s25, 10"); a("s_add_u32 s32, s32, s31")
    a("s_lshl_b32 s13, s27, 8"); a(f"s_add_u32 s31, s13, {WS_O}"); a("s_add_u32 s32, s32, s31")
    a("s_lshl_b32 s31, s29, 13"); a("s_lshl_b32 s33, s25, 9"); a("s_add_u32 s33, s33, s31")
    a(f"s_add_u32 s31, s13, {WS_OR}"); a("s_add_u32 s33, s33, s31")
    a("s_waitcnt lgkmcnt(1)")
    a(b2(0))
    for l in SETZ: a(l)
    for g in kv_dma(1):
        for l in g: a(l)
    a("s_waitcnt lgkmcnt(0)")
    a("s_nop 7"); a("s_nop 2")
    a(qk(0, 0)); a(qk(0, 1))
    a("s_nop 7")
    vm = VM(); cfg["vm"] = vm
    extra = {u: [] for u in range(64)}
    TWO = cfg.get("two", "0") == "1"
    gld = [f"buffer_load_dword v{aG}, v{aG}, s[{SWS}:{SWS+3}], s30 offen {LDF}"]
    hst = [[f"buffer_store_dwordx4 {vr(HPK+4*i,4)}, v{vD if i < 2 else HPK+16}, s[{SWS}:{SWS+3}], s{sHE} offen offset:{1024*i} {ST}"] for i in range(4)]
    sst = [[f"buffer_store_dwordx4 {vr(vSENT,4)}, v{aOA}, s[{SWS}:{SWS+3}], s32 offen {ST}"],
           ["s_mov_b64 exec, 0xffff", f"buffer_store_dwordx4 {vr(vSENT,4)}, v{vD}, s[{SWS}:{SWS+3}], s33 offen {ST}", "s_mov_b64 exec, -1"]]
    kvs = [g for k in range(2, 8) for g in kv_dma(k)]
    FLU = 22
    sync = {6: ["s_waitcnt vmcnt(8)", "s_barrier"],
            14: ["s_waitcnt vmcnt(17)", "s_barrier"],
            22: ["s_waitcnt vmcnt(0)", "s_barrier"],
            56: ["s_waitcnt vmcnt(0)", "s_barrier"]}
    if not TWO:
        for i, g in enumerate(kvs): extra[i//2].append(g)
        pk = pk_st if PKE in (1, 2) else pk_ld()
        extra[9].append(gld + [pk[0]])
        extra[9].append([pk[1]])
        for i in range(4): extra[10+i].append(hst[i])
        extra[14].append(sst[0]); extra[15].append(sst[1])
        if not PKE:
            extra[17].append(["s_waitcnt vmcnt(6)", pk_st[0]])
            extra[17].append([pk_st[1]])
    else:
        assert PKE == 2
        vEP = 220; FLU = int(cfg.get("flu", 14))
        sts = hst + [[x] for x in pk_st] + sst
        ne = int(cfg.get("ne", 8))
        extra[0].append(["s_cmp_eq_u32 s24, 4", "s_cbranch_scc0 L_p3s"] + poll_ld(vP1, 4, vEP) + ["L_p3s:"])
        u0 = int(cfg.get("stu", 1))
        for i in range(ne): extra[u0 + (i*(6-u0))//ne].append(sts[i])
        sync[6] = [f"s_waitcnt vmcnt({ne})", "s_cmp_eq_u32 s24, 4", "s_cbranch_scc0 L_w3_ret"] + flag_test(vEP, 4, 46) + \
                  ["s_cbranch_vccnz L_w3", "L_w3_ret:"] + SETZ + ["s_barrier"]
        late.append(lambda a: spin(a, "L_w3", vP1, 4, vEP, 31, 46))
        seq = [(g, i % 3 < 2) for i, g in enumerate(kvs[:6])] + [(g, 1) for g in sts[ne:]] + [(g, i % 3 < 2) for i, g in enumerate(kvs[6:])] + [(gld, 1)]
        for i, (g, n) in enumerate(seq): extra[6 + i//2].append(g)
        sync[14] = [f"s_waitcnt vmcnt({sum(n for g, n in seq[3:16])})", "s_barrier"]
        assert FLU == 22 or ne == 8
    POL2 = int(cfg.get("pol2", 31)); CHK2 = int(cfg.get("chk2", 34))
    sync[CHK2] = ["s_waitcnt vmcnt(0)"] + flag_test(HP, 4) + ["s_cbranch_vccnz L_w2", "L_w2_ret:"] + SETZ
    g4 = [f"v_bfe_u32 v{aG4}, v{vD}, 4, 4", f"v_lshlrev_b32 v{aG4}, 2, v{aG4}",
          f"buffer_load_dword v{aG4+1}, v{aG4}, s[{SWS}:{SWS+3}], s{sG4} offen offset:128 {LDF}",
          f"buffer_load_dword v{aG4}, v{aG4}, s[{SWS}:{SWS+3}], s{sG4} offen {LDF}"]
    wrm = [f"buffer_load_dword v{vWARM}, v{vWARM}, s[{SWS}:{SWS+3}], 0 offen {LDF}"]
    extra[CHK2].append(g4)
    if PKE < 3:
        late.append(lambda a: spin(a, "L_w2", vP2, 4, HP, 31))
        extra[FLU].insert(0, flag_store([sF2, sF3, sF4], HP+4) + (extra[FLU].pop(0) if len(extra[FLU]) == 2 else []))
        extra[POL2].append(poll_ld(vP2, 4, HP))
        seq = [g for t in range(2) for g in w4_dma(t)] + [wrm]
        seq += [g for t in range(12) for g in act_ld(t)]
        for i, g in enumerate(seq): extra[CHK2 + 1 + (i*5)//9].append(g)
        for i, g in enumerate(g for t in (2, 3, 4, 5) for g in w4_dma(t)): extra[56 + i//2].append(g)
        for t in (2, 3, 4, 5): vm.add(f"w{t}", 2)
    else:
        lo = lambda ls: ["s_mov_b32 exec_hi, 0"] + ls + ["s_mov_b32 exec_hi, -1"]
        hi = lambda ls: ["s_mov_b32 exec_lo, 0"] + ls + ["s_mov_b32 exec_lo, -1"]
        PT = PKW[1]; P4U = int(cfg.get("p4u", 47)); C4U = int(cfg.get("c4u", 50))
        late.append(lambda a: (spin(a, "L_w2", vP2, 4, HP, 31), spin(a, "L_w4", vP2, 4, PT, 31)))
        extra[22].append(flag_store([sF2, sF3], HP+4))
        for i in range(2): extra[23].append([pk_st[i]])
        extra[31].append(lo(poll_ld(vP2, 4, HP)))
        sync[34] = ["s_waitcnt vmcnt(0)", "s_mov_b32 exec_hi, 0"] + flag_test(HP, 4) + ["s_cbranch_vccnz L_w2", "L_w2_ret:", "s_mov_b32 exec_hi, -1", "s_barrier"]
        extra[34].append(flag_store([sF4], PKW[0]))
        seq = [g for t in range(12) for g in act_ld(t)]
        n = 0
        for u in range(35, 64):
            if u == P4U: extra[u].append(hi(poll_ld(vP2, 4, PT)))
            while seq and len(extra[u]) < 2:
                extra[u].append(seq.pop(0))
                if P4U <= u < C4U: n += 1
                assert u < C4U
        sync[C4U] = [f"s_waitcnt vmcnt({n})", "s_mov_b32 exec_lo, 0"] + flag_test(PT, 4) + ["s_cbranch_vccnz L_w4", "L_w4_ret:", "s_mov_b32 exec_lo, -1"] + SETZ
        sync[56] = ["s_barrier"]
        seq = [wrm] + [g for t in range(4) for g in w4_dma(t)]
        for i, g in enumerate(seq): extra[C4U + i//2].append(g)
        u = max(56, C4U + (len(seq)+1)//2)
        for i, g in enumerate(g for t in (4, 5) for g in w4_dma(t)): extra[u + i//2].append(g)
        for t in range(6): vm.add(f"w{t}", 2)
    if cfg.get("x_noextra"):
        keep = cfg["x_noextra"]
        for k in extra:
            if keep == "lo" and k < 23: continue
            if keep == "hi" and k >= 23: continue
            extra[k] = []
        sync[34] = ["L_w2_ret:"]
        if cfg.get("x_nobar"): sync = {34: sync[34]}
    def E(s, i, j):
        for k in range(i, j): a(f"v_exp_f32 v{s+k}, v{s+k}")
    XF = [int(x) for x in cfg.get("x_ffn", "0,0,0,1").split(",")]
    XP = cfg.get("x_pos", "a")
    pend = []
    def sm(n=1):
        for _ in range(n):
            if pend: a(pend.pop(0))
    for T in range(32):
        g, tt = divmod(T, 4); u = 2*T
        s0, s1 = sreg(T, 0), sreg(T, 1)
        ex0 = list(extra[u]); ex1 = list(extra[u+1])
        def side(ex):
            if ex:
                for l in ex.pop(0): a(l)
        stamp(a, f"u{u}")
        if T > 0: a(pv(T-1, 1, 0))
        for l in sync.get(u, []): a(l)
        if T == 16:
            a(f"v_add_u32 v{vKA}, {4*10240}, v{vKA}"); a(f"v_add_u32 v{vVA}, {4*10240}, v{vVA}")
            bump["k"] = 4*10240
        if tt == 3 and g < 7: a(rd_k2(g+1))
        if T < 31: a(rd_k1(T+1))
        side(ex0)
        E(s0, 0, 4)
        if XP == "a": sm()
        if T > 0: a(pv(T-1, 1, 1))
        side(ex0)
        E(s0, 4, 8)
        sm(9)
        if T < 31:
            if tt == 3: a("s_waitcnt lgkmcnt(1)")
            a(b2(T+1))
        for l in ["s_mov_b64 exec, s[38:39]", rd_v(T, 0), rd_v(T, 1), "s_mov_b64 exec, -1"]: a(l)
        nf = ((T-XF[0]+1)*XF[2])//XF[3] - ((T-XF[0])*XF[2])//XF[3] if XF[0] <= T < XF[1] else 0
        for f in range(nf):
            for uu in range(2): a(f"ds_read_b64_tr_b16 {vr(236+4*f+2*uu,2)}, v{vRA+f} offset:{10240*6 + 1280*uu}")
        E(s0, 8, 16)
        a(f"s_waitcnt lgkmcnt({2*nf})")
        a(pv(T, 0, 0))
        E(s1, 0, 4)
        if nf:
            pend += [f"v_mfma_f32_16x16x32_bf16 {vr(244,4)}, {vr(236+4*(f%2),4)}, {vr(Q1+4*w,4)}, {vr(244,4)}" for f in range(nf) for w in range(2)]
            a("s_waitcnt lgkmcnt(0)")
        if XP == "a": sm()
        if T < 31: a(qk(T+1, 0))
        if XP == "b": sm()
        side(ex1)
        E(s1, 4, 8)
        if XP == "a": sm()
        a(pv(T, 0, 1))
        if XP == "b": sm()
        side(ex1)
        E(s1, 8, 12)
        if XP == "a": sm()
        if T < 31: a(qk(T+1, 1))
        if XP == "b": sm()
        E(s1, 12, 16)
        if XP == "a": sm()
        assert not ex0 and not ex1
    sm(9)
    a(pv(31, 1, 0)); a("s_nop 0"); a(pv(31, 1, 1))
    stamp(a, "at_loopend")
    t0, t1, t2, t3 = K1, K1+1, K1+2, K1+3
    a("s_mul_i32 s31, s28, 2560")
    a(f"s_add_u32 s31, s31, {6*10240 - 4*10240}")
    a(f"v_add_u32 v{t0}, s31, v{vKA}")
    a("s_and_b32 s13, s28, 1"); a("s_lshl_b32 s13, s13, 9"); a("s_lshr_b32 s12, s28, 1"); a("s_lshl_b32 s12, s12, 12")
    a("s_add_u32 s13, s13, s12"); a(f"s_add_u32 s13, s13, {3*10240 - 512}")
    a(f"v_add_u32 v{t2}, 2048, v{t0}")
    a("s_mov_b32 exec_lo, 0")
    a(f"v_add_u32 v{t2}, s13, v{vKA}")
    a("s_mov_b64 exec, -1")
    a("s_mul_i32 s31, s27, 163840")
    a("s_sub_u32 s31, 81920, s31")
    a("s_cmp_eq_u32 s27, 0")
    a(f"v_add_u32 v{t1}, s31, v{t0}")
    a(f"v_add_u32 v{t3}, s31, v{t2}")
    a("s_cbranch_scc0 L_at_z1")
    for c in range(3): a(f"ds_write_b128 v{t0 if c < 2 else t2}, {vr(O+16+4*c,4)} offset:{1024*c if c < 2 else 0}")
    a.label("L_at_zj")
    def z1(a):
        a.label("L_at_z1")
        for c in range(3): a(f"ds_write_b128 v{t0 if c < 2 else t2}, {vr(O+4*c,4)} offset:{1024*c if c < 2 else 0}")
        for c in range(12): a(f"v_mov_b32 v{O+c}, v{O+16+c}")
        a("s_branch L_at_zj")
    late.insert(0, z1)
    a((f"s_waitcnt vmcnt({vm.after('w0')}) " if PKE == 3 else "s_waitcnt ") + "lgkmcnt(0)")
    a("s_barrier")
    for c in range(3): a(f"ds_read_b128 {vr(S+4*c,4)}, v{t1 if c < 2 else t3} offset:{1024*c if c < 2 else 0}")
    a("s_waitcnt lgkmcnt(0)")
    for c in range(12): a(f"v_add_f32 v{O+c}, v{O+c}, v{S+c}")
    a(f"v_mov_b32 v{t2}, v{O+8}")
    a(f"v_mov_b32 v{t3}, v{O+8}")
    a(f"v_add_f32 v{t0}, abs(v{O}), abs(v{O+1})")
    a(f"v_add_f32 v{t0}, v{t0}, abs(v{O+2})")
    a(f"v_permlane32_swap_b32 v{t3}, v{t2}")
    for c in range(3, 12): a(f"v_add_f32 v{t0}, v{t0}, abs(v{O+c})")
    a(f"v_rcp_f32 v{t1}, v{t2}")
    a(f"v_cmp_nle_f32 vcc, 0x{f32bits(2.0**-40):x}, v{t2}")
    a(f"s_mov_b64 s[40:41], vcc")
    a(f"v_cmp_nge_f32 vcc, 0x{f32bits(2.0**100):x}, v{t2}")
    a(f"s_or_b64 s[40:41], s[40:41], vcc")
    a(f"v_cmp_nge_f32 vcc, 0x{f32bits(2.0**126):x}, v{t0}")
    a(f"s_or_b64 s[40:41], s[40:41], vcc")
    if cfg.get("force_fallback"): a("s_mov_b64 s[40:41], -1")
    a("s_cmp_lg_u64 s[40:41], 0")
    a("s_cbranch_scc1 L_at_slow")
    a.label("L_at_store")
    a(f"v_mul_f32 v{t1}, v{t1}, v{vG}")
    for c in range(12): a(f"v_mul_f32 v{O+c}, v{O+c}, v{t1}")
    for c in (4, 5, 0, 1, 2, 3): a(f"v_cvt_pk_bf16_f32 v{S+c}, v{O+2*c}, v{O+2*c+1}")
    for c in (4, 5, 0, 1, 2, 3): a(f"v_min_u32 v{S+c}, -2, v{S+c}")
    a(f"v_permlane16_swap_b32 v{S+4}, v{S+6}")
    a(f"v_permlane16_swap_b32 v{S+5}, v{S+7}")
    a(f"buffer_store_dwordx4 {vr(S,4)}, v{aOA}, s[{SWS}:{SWS+3}], s32 offen {ST}")
    a("s_mov_b64 exec, 0xffff")
    a(f"buffer_store_dwordx4 {vr(S+4,4)}, v{vD}, s[{SWS}:{SWS+3}], s33 offen {ST}")
    a("s_mov_b64 exec, -1")
    vm.add("ost", 2)
    stamp(a, "o_stored")

    def slow(a):
        a.label("L_at_slow")
        NM = 16; QZ = 32
        KA = 44; vV2 = 52; mx = 53
        def qz(qt, tt): return QZ + 4*(tt >> 1) + (2 if (tt & 1) == 0 else 0)
        for c in range(2): a(f"v_mov_b32 v{KA+c}, v{Q2+c}")
        for i in range(10): a(f"v_mov_b32 v{QZ+i}, 0")
        for c in range(2): a(f"v_permlane32_swap_b32 v{Q2+c}, v{KA+c}")
        a("s_cmp_eq_u32 s27, 0")
        a("s_cbranch_scc1 L_slow_z0")
        a("s_nop 0")
        for c in range(2): a(f"v_mov_b32 v{Q2+c}, v{KA+c}")
        for c in range(4): a(f"v_mov_b32 v{Q1+c}, v{Q1+4+c}")
        a.label("L_slow_z0")
        a("s_mov_b32 exec_hi, 0")
        for c in range(2): a(f"v_mov_b32 v{QZ+2+c}, v{Q2+c}")
        a("s_mov_b64 exec, -1")
        a("s_mov_b32 exec_lo, 0")
        for c in range(2): a(f"v_mov_b32 v{QZ+6+c}, v{Q2+c}")
        a("s_mov_b64 exec, -1")
        a("s_mul_i32 s34, s27, 81920")
        a(f"s_add_u32 s34, s34, {4*10240 + 5120}")
        a(f"v_subrev_u32 v{vV2}, s34, v{vVA}")
        a(f"v_mov_b32 v{mx}, 0xff7fffff")
        for i in range(16): a(f"v_mov_b32 v{NM+i}, 0")
        for i in range(16): a(f"v_mov_b32 v{O+i}, 0")
        for ps in range(2):
            a("s_mul_i32 s34, s25, 163840")
            a(f"s_add_u32 s34, s34, {WS_KV}")
            a("s_mov_b32 s35, 16")
            a.label(f"L_slow_loop{ps}")
            a(f"s_add_u32 s36, s34, 4096")
            a(f"buffer_load_dwordx4 {vr(K2,4)}, v{vD}, s[{SWS}:{SWS+3}], s36 offen {LDF}")
            for tt in range(4):
                a(f"buffer_load_dwordx4 {vr(KA,4)}, v{vD}, s[{SWS}:{SWS+3}], s34 offen offset:{1024*tt} {LDF}")
                if ps == 1:
                    a(f"s_add_u32 s36, s34, {5120+1280*tt}")
                    a("s_mov_b64 exec, s[38:39]")
                    a(f"buffer_load_dwordx4 {vr(V,4)}, v{vV2}, s[{SWS}:{SWS+3}], s36 offen {LDF}")
                    a(f"buffer_load_dwordx4 {vr(V+4,4)}, v{vV2}, s[{SWS}:{SWS+3}], s36 offen offset:640 {LDF}")
                    a("s_mov_b64 exec, -1")
                a("s_waitcnt vmcnt(0)")
                a(f"v_mfma_f32_32x32x16_bf16 {vr(S,16)}, {vr(KA,4)}, {vr(Q1,4)}, {vr(NM,16)}")
                a(f"v_mfma_f32_32x32x16_bf16 {vr(S,16)}, {vr(K2,4)}, {vr(qz(0,tt),4)}, {vr(S,16)}")
                a("s_nop 11")
                if ps == 0:
                    for i in range(0, 16, 2): a(f"v_max3_f32 v{mx}, v{mx}, v{S+i}, v{S+i+1}")
                else:
                    for i in range(16): a(f"v_exp_f32 v{S+i}, v{S+i}")
                    a("s_nop 1")
                    for h in range(2):
                        a(f"v_smfmac_f32_32x32x32_bf16 {vr(O,16)}, {vr(V+4*h,4)}, {vr(S+8*h,8)}, v{vIDX}")
                    a("s_nop 3")
            a("s_add_u32 s34, s34, 10240")
            a("s_sub_u32 s35, s35, 1")
            a("s_cmp_lg_u32 s35, 0")
            a(f"s_cbranch_scc1 L_slow_loop{ps}")
            if ps == 0:
                a(f"v_mov_b32 v{t3}, v{mx}")
                a(f"v_mov_b32 v{t1}, v{mx}")
                a("s_nop 1")
                a(f"v_permlane32_swap_b32 v{t3}, v{t1}")
                a("s_nop 1")
                a(f"v_max_f32 v{mx}, v{t3}, v{t1}")
                for i in range(16): a(f"v_sub_f32 v{NM+i}, 0, v{mx}")
        a("s_nop 11")
        a(f"v_mov_b32 v{t2}, v{O+8}")
        a(f"v_mov_b32 v{t3}, v{O+8}")
        a("s_nop 1")
        a(f"v_permlane32_swap_b32 v{t3}, v{t2}")
        a("s_nop 1")
        a(f"v_rcp_f32 v{t1}, v{t2}")
        a("s_nop 0")
        a("s_branch L_at_store")
    late.append(slow)

def phase45(a, cfg, late):
    stamp = cfg["stamp"]; vm = cfg["vm"]
    OA = 0; ACC = 40; WB = 80; NB = 10
    vREM, vMX, vG1, vOUT, vOUT2, vRD, vO2, vPR = 120, 121, 122, 126, 127, 234, 240, 241
    NS = 17; MG = int(cfg.get("mg", 14))
    OS = dict(zip(range(12, 17), [int(x) for x in cfg.get("os", "7,8,9,10,10").split(",")]))
    KB = int(cfg.get("kb", 7))
    F = [(t, j) for t in range(MG) for j in range(5)] + [(t, j) for j in (1, 2, 3, 4, 0) for t in range(MG, NS)]
    def reads(i):
        t, j = F[i]; slot = SLOTP[t % 8]
        return [(f"ds_read_b64_tr_b16 {vr(WB+4*(i%NB)+2*u,2)}, v{(vRA7 if slot == 7 else vRA)+j} offset:{(0 if slot == 7 else slot*10240) + u*1280}", i)
                for u in range(2)]
    lq = []
    def rd(x): a(x[0]); lq.append(x[1])
    def lwait(tag):
        n = len(lq) - 1 - max(i for i, x in enumerate(lq) if x == tag)
        a(f"s_waitcnt lgkmcnt({min(n, 15)})")
    rq = [x for i in range(len(F)) for x in reads(i)]
    for _ in range(10): rd(rq.pop(0))
    def oloads(t0): return [l for tt in range(t0, 17) for g in act_ld(tt, vREM, vO2) for l in g]
    def check(t0, t1):
        r = list(range(act_reg(t0), act_reg(t1-1)+8))
        return [f"v_max3_u32 v{vMX}, v{r[0]}, v{r[1]}, v{r[2]}"] + [f"v_max3_u32 v{vMX}, v{vMX}, v{r[i]}, v{r[min(i+1,len(r)-1)]}" for i in range(3, len(r), 2)]
    CKS = {11: (12, MG), MG-1: (MG, 17)}
    fill = {t: [] for t in range(NS)}
    fill[0] = [f"v_add_u32 v{vO2}, 32768, v{vA4}", f"v_and_b32 v{vREM}, 0x600, v{vA4}", f"v_add_u32 v{vREM}, v{vREM}, v{vA4}",
               f"v_bfe_u32 v{vMX}, v{vD}, 4, 4", f"v_mul_u32_u24 v{vMX}, 1280, v{vMX}",
               f"v_bfe_u32 v{vOUT}, v{vD}, 8, 1", f"v_mul_u32_u24 v{vOUT}, {32*1280}, v{vOUT}", f"v_lshrrev_b32 v{vOUT2}, 9, v{vD}",
               f"v_lshl_add_u32 v{vOUT}, v{vOUT2}, 4, v{vOUT}", f"v_add_u32 v{vOUT}, v{vOUT}, v{vMX}",
               f"v_lshrrev_b32 v{vOUT2}, 8, v{vD}", f"v_lshl_add_u32 v{vOUT2}, v{vOUT2}, 3, v{vMX}"]
    fill[1] = [l for w in range(2) for l in (f"v_sub_f32 v{vG1+w}, 1.0, v{aG4+w}", f"v_cvt_pk_bf16_f32 v{vG1+w}, v{vG1+w}, v{vG1+w}",
                                            f"v_and_b32 v{vG1+w}, 0xffff0000, v{vG1+w}")]
    fill[2] = ["s_lshr_b32 s12, s24, 1", "s_mul_i32 s13, s3, 81920", "s_add_u32 s13, s13, 10240", f"v_add_u32 v{vRD}, s13, v{vD}",
               "s_lshl_b32 s31, s12, 10", f"s_add_u32 s31, s31, {24*1024}", f"v_add_u32 v{vRD+4}, s31, v{vRD}"]
    for j in (1, 2, 3):
        fill[3] += [f"s_xor_b32 s31, s12, {j}", "s_mul_i32 s31, s31, 6144", f"v_add_u32 v{vRD+j}, s31, v{vRD}"]
    fill[3] += ["s_mul_i32 s31, s12, 6144", f"v_add_u32 v{vRD+5}, s31, v{vRD}"]
    def scale(j, w): return [f"v_mul_f32 v{ACC+20*w+4*j+i}, v{ACC+20*w+4*j+i}, v{vG1+w}" for i in range(4)]
    def site(t, z):
        ws = [tt for tt in ({0: [6, 7]}.get(t, [t+7])) if tt < NS]
        os_ = [tt for tt in OS if OS[tt] == t]
        if not ws and not os_: return
        a(f"s_cmp_eq_u32 s27, {z}")
        a(f"s_cbranch_scc0 L_s4_{t}_{z}")
        for tt in os_:
            for g in act_ld(tt, vREM, vO2):
                for l in g: a(l)
        for tt in ws:
            for l in w4_dma(tt, z): a(l)
        a.label(f"L_s4_{t}_{z}")
        if z == 1:
            for tt in os_: vm.add(f"o{tt}", 2)
            for tt in ws: vm.add(f"w{tt}", 2)
    wr = []
    fl = []
    for i, (t, j) in enumerate(F):
        plain = t < MG
        if plain and j == 0: fl = list(fill[t])
        for w in range(2):
            k = 2*j + w
            acc = ACC + 20*w + 4*j
            if t == 12:
                if k == 0:
                    for l in scale(0, 0): a(l)
                if k < 9:
                    for l in scale(*divmod(k+1, 2)): a(l)
            if w == 0: lwait(i)
            a(f"v_mfma_f32_16x16x32_bf16 {vr(acc,4)}, {vr(WB+4*(i%NB),4)}, {vr(act_reg(t)+4*w,4)}, " + ("0" if t == 0 else vr(acc,4)))
            if plain and k == 0:
                stamp(a, f"p4_p{t}")
                need = [f"w{tt}" for tt in (range(MG, NS) if t == MG-1 else [t+1]) if f"w{tt}" in vm.q]
                if need: a(f"s_waitcnt vmcnt({vm.after(*need)})")
                a("s_barrier")
                stamp(a, f"p4_b{t}")
            for _ in range(2 if (plain and k == 0) else 0 if (plain and k == 9) else 1):
                if rq: rd(rq.pop(0))
            if plain and k == 0: site(t, 0)
            if plain and k == KB: site(t, 1)
            if plain and t in CKS and k == 2:
                a(f"s_waitcnt vmcnt({vm.after(*[f'o{tt}' for tt in range(*CKS[t])])})")
                stamp(a, f"p4_og{t}")
                fl += check(*CKS[t])
            if plain:
                for _ in range(-(-len(fl) // (10-k))): a(fl.pop(0))
            else:
                are = [x for x in wr if x[1] <= 2*i + w]
                if are: a(are[0][0]); wr.remove(are[0])
                if t == NS-1 and j:
                    wr.append((f"ds_write_b128 v{vRD+j}, {vr(acc,4)} offset:{(3*w + j-1)*1024 if j < 4 else 4096*w}", 2*i + w + (4 if j < 4 else 6)))
        if plain and j == 4 and t in CKS:
            a(f"v_cmp_eq_u32 vcc, -1, v{vMX}")
            a("s_nop 0")
            a(f"s_cbranch_vccnz L_or{t}")
            a.label(f"L_or{t}_ret")
            stamp(a, f"p4_ok{t}")
            if t == MG-1:
                a(f"v_swap_b32 v{OA+34}, v{OA+36}"); a(f"v_swap_b32 v{OA+35}, v{OA+37}")
        if t == 11 and j == 4: stamp(a, "p4_end")
    def retry(a):
        for t in CKS:
            a.label(f"L_or{t}")
            a(f"s_mov_b32 s31, {SPIN}")
            a(f"v_bfe_u32 v{vPR}, v{vD}, 4, 5")
            a(f"v_lshlrev_b32 v{vPR}, 9, v{vPR}")
            a("s_lshl_b32 s13, s3, 8")
            a(f"s_and_b32 s41, s{sOR}, 0xffffc000")
            a("s_add_u32 s13, s13, s41")
            a.label(f"L_or{t}_l")
            a("s_sub_u32 s31, s31, 1")
            a("s_cmp_eq_u32 s31, 0")
            a(f"s_cbranch_scc1 L_or{t}_ret")
            a(f"buffer_load_dword v{vMX}, v{vPR}, s[{SWS}:{SWS+3}], s13 offen {LDF}")
            a("s_waitcnt vmcnt(0)")
            a(f"v_cmp_eq_u32 vcc, -1, v{vMX}")
            a("s_nop 0")
            a(f"s_cbranch_vccnz L_or{t}_l")
            for l in oloads(CKS[t][0]): a(l)
            a("s_waitcnt vmcnt(0)")
            for l in check(*CKS[t]): a(l)
            a(f"v_cmp_eq_u32 vcc, -1, v{vMX}")
            a("s_nop 0")
            a(f"s_cbranch_vccnz L_or{t}_l")
            a(f"s_branch L_or{t}_ret")
    late.append(retry)
    for l, _ in wr: a(l)
    stamp(a, "p5_end")
    R = 128
    OF = "".join(" " + x for x in cfg.get("of", "").split(",") if x)
    a("s_lshl_b32 s31, s12, 5")
    a(f"s_add_u32 s31, s31, s{sOUTB}")
    a("s_waitcnt lgkmcnt(0)")
    a("s_barrier")
    for w in range(2):
        for i in range(3): a(f"ds_read_b128 {vr(R+12*w+4*i,4)}, v{vRD+5} offset:{(3*w+i)*1024}")
    a("s_cmp_lt_u32 s12, 2")
    a("s_cbranch_scc0 L_p5_a")
    a("s_lshl_b32 s13, s12, 12")
    a(f"v_add_u32 v{vRD}, s13, v{vRD}")
    a(f"s_mul_i32 s13, s12, {32*1280}")
    a(f"s_add_u32 s13, s13, s{sOUTB}")
    for i in range(4): a(f"ds_read_b128 {vr(R+24+4*i,4)}, v{vRD} offset:{(24+i)*1024}")
    a.label("L_p5_a")
    for w in range(2):
        acc = ACC + 20*w
        a(f"s_waitcnt lgkmcnt({3-3*w})")
        for i in range(4): a(f"v_add_f32 v{R+12*w+i}, v{R+12*w+i}, v{R+12*w+4+i}")
        for i in range(4): a(f"v_add_f32 v{acc+i}, v{acc+i}, v{R+12*w+8+i}")
        for i in range(4): a(f"v_add_f32 v{acc+i}, v{acc+i}, v{R+12*w+i}")
        a(f"v_cvt_pk_bf16_f32 v{OA+2*w}, v{acc}, v{acc+1}")
        a(f"v_cvt_pk_bf16_f32 v{OA+2*w+1}, v{acc+2}, v{acc+3}")
    a("s_nop 1")
    a(f"v_permlane16_swap_b32 v{OA}, v{OA+2}")
    a(f"v_permlane16_swap_b32 v{OA+1}, v{OA+3}")
    a(f"buffer_store_dwordx4 {vr(OA,4)}, v{vOUT}, s[{SOUT}:{SOUT+3}], s31 offen{OF}")
    a("s_cmp_lt_u32 s12, 2")
    a("s_cbranch_scc0 L_p5_end")
    for i in range(4): a(f"v_add_f32 v{R+24+i}, v{R+24+i}, v{R+28+i}")
    for i in range(4): a(f"v_add_f32 v{R+32+i}, v{R+32+i}, v{R+36+i}")
    for i in range(4): a(f"v_add_f32 v{R+24+i}, v{R+24+i}, v{R+32+i}")
    a(f"v_cvt_pk_bf16_f32 v{R+24}, v{R+24}, v{R+25}")
    a(f"v_cvt_pk_bf16_f32 v{R+25}, v{R+26}, v{R+27}")
    a(f"buffer_store_dwordx2 {vr(R+24,2)}, v{vOUT2}, s[{SOUT}:{SOUT+3}], s13 offen offset:128{OF}")
    a.label("L_p5_end")

HEADER = open("cdna_kernels/" + NAME + ".s.ref").read().split("; Override launch")[0]

def kd(name, vgpr, sgpr=100):
    return f""".section .rodata,"a"
.p2align 6
.amdhsa_kernel {name}
  .amdhsa_next_free_vgpr {vgpr}
  .amdhsa_next_free_sgpr {sgpr}
  .amdhsa_accum_offset {(vgpr+3)//4*4}
  .amdhsa_group_segment_fixed_size 0
  .amdhsa_kernarg_size 80
  .amdhsa_user_sgpr_count 2
  .amdhsa_user_sgpr_kernarg_segment_ptr 1
  .amdhsa_system_sgpr_workgroup_id_x 1
.end_amdhsa_kernel
"""

def gen(opts):
    a = Asm()
    k = NAME + "_kernel"
    a(".text"); a(f".globl {k}"); a(".p2align 8"); a(f".type {k},@function"); a.label(k)
    a("s_cmp_ge_u32 s2, 256"); a("s_cbranch_scc1 L_end")
    a(f"s_load_dwordx2 s[{SX}:{SX+1}], s[0:1], 0")
    a(f"s_load_dwordx2 s[{SW}:{SW+1}], s[0:1], 8")
    a(f"s_load_dwordx2 s[{SW1}:{SW1+1}], s[0:1], 32")
    a(f"s_load_dwordx2 s[{SG}:{SG+1}], s[0:1], 48")
    a(f"s_load_dwordx2 s[{SWS}:{SWS+1}], s[0:1], 72")
    a(f"s_load_dwordx2 s[{SDBG}:{SDBG+1}], s[0:1], 64")
    a(f"s_load_dwordx2 s[46:47], s[0:1], 40")
    a(f"s_load_dwordx2 s[48:49], s[0:1], 16")
    a(f"s_load_dwordx2 s[50:51], s[0:1], 56")
    st = Stamps(opts.get("stamps")); st.cyc = opts.get("cyc"); st.dbg = opts.get("dbg"); st(a, "start")
    cfg = dict(opts, stamp=st); late = []
    phase12(a, cfg, late)
    phase3(a, cfg, late)
    phase45(a, cfg, late)
    if st.on: a("s_waitcnt vmcnt(0)")
    st(a, "end"); st.flush(a)
    a.label("L_end"); a("s_endpgm")
    while late: late.pop(0)(a)
    errs = check_linear(a.lines)
    head = HEADER + ("; @launch grid=(256,1,1) block=(512,1,1) lds=163840\n"
                     '.amdgcn_target "amdgcn-amd-amdhsa--gfx950"\n')
    return head + a.text() + kd(k, 256), errs

if __name__ == "__main__":
    out = sys.argv[1] if len(sys.argv) > 1 else "cdna_kernels/" + NAME + ".s"
    opts = {}
    for o in sys.argv[2:]:
        k, _, v = o.partition("=")
        opts[k] = v or True
    txt, errs = gen(opts)
    open(out, "w").write(txt)
    print("written", out, "hazards:", errs, "bytes:", len(txt))
```

```python
import sys, math, struct
from dsl import *

NAME = "gated_mix__mha_block__dense_activation_relu__prompt"
WS_Q  = 0x0
WS_KV = 0x280000
WS_H  = 0x780000
WS_O  = 0xD80000
WS_OR = 0xF80000
WS_G  = 0x1000000
FS = 3
FL1   = 0x1002000
FL2   = 0x100A000
FL3   = 0x1012000
FL4   = 0x101A000
WS_WP = 0x1200000
WS_END = WS_WP + 8*348160
OOB = 0x80000000
SPIN = 1 << 15
def f32bits(x): return struct.unpack("<I", struct.pack("<f", x))[0]
QSCALE = f32bits(math.log2(math.e) / math.sqrt(20.0))
ST = "sc1"; LDF = "sc1"

SX, SW, SW1, SWS, SG, SDBG = 4, 8, 12, 16, 20, 52
SW2, SWO, SOUT = SX, SW, SG
sF1, sHE, sNON = 42, 43, 44
sKW, sKH, sHB, sOB, sW2B, sWOB, sHL, sOUTB, sG4, sM4, sF2, sF3 = range(56, 68)
sF4 = 100
PKW = (216, 244)
vPS, vPD, vA4B, vA4, vR4, vP2, vKA, vVA, vP1, vD = 252, 242, 248, 249, 250, 251, 252, 253, 254, 255
vRA, vRA7, vWARM, vSENT = 224, 229, 234, 236
sOR = 15

def srd_tail(a, base, nbytes):
    a(f"s_mov_b32 s{base+2}, {nbytes}")
    a(f"s_mov_b32 s{base+3}, 0x00020000")

STAMP_BASE = 0x1100000
class Stamps:
    DEF = "start,p1_first,p1_end,p2_end,at_first,at_loopend,o_stored,p4_b1,p4_b4,p4_b8,p4_ok11,p4_ok13,p5_end,end"
    def __init__(self, on):
        self.on = on; self.names = []
        self.sel = set((self.DEF if on is True else "start," + str(on)).split(","))
    def __call__(self, a, name):
        if not self.on or name not in self.sel: return
        if name in self.names: i = self.names.index(name)
        else:
            i = len(self.names); self.names.append(name)
        assert i < 15
        if name.startswith("val_"): a(f"s_mov_b32 s{68+2*i}, {name[4:]}"); return
        a(f"{'s_memtime' if self.cyc else 's_memrealtime'} s[{68+2*i}:{69+2*i}]")
    def flush(self, a):
        if not self.on: return
        a("s_waitcnt lgkmcnt(0)")
        if self.dbg is not None:
            n = len(self.names); assert n <= 13
            a("s_mov_b64 exec, 1")
            a(f"s_sub_u32 s31, s68, s{sNON}"); a("s_add_u32 s31, s31, 1000"); a("v_mov_b32 v0, s31")
            a(f"buffer_atomic_umax v0, off, s[{SDBG}:{SDBG+3}], 0 offset:56 sc1")
            a(f"s_sub_u32 s31, s{68+2*(n-1)}, s{sNON}"); a("v_mov_b32 v1, s31")
            a(f"buffer_atomic_umax v1, off, s[{SDBG}:{SDBG+3}], 0 offset:60 sc1")
            a(f"s_cmp_eq_u32 s2, {self.dbg}"); a("s_cbranch_scc0 L_end")
            a("s_cmp_eq_u32 s24, 0"); a("s_cbranch_scc0 L_end")
            for i in range(1, n):
                a(f"s_sub_u32 s31, s{68+2*i}, s{sNON}"); a(f"v_mov_b32 v{2+i}, s31")
                a(f"buffer_store_dword v{2+i}, off, s[{SDBG}:{SDBG+3}], 0 offset:{4+4*i} sc1")
            a("; stamps " + ",".join(self.names))
            return
        a("s_lshl_b32 s31, s2, 3")
        a("s_add_u32 s31, s31, s24")
        a("s_lshl_b32 s31, s31, 6")
        a(f"s_add_u32 s31, s31, {STAMP_BASE}")
        a(f"s_mov_b32 s{SWS+2}, 0x2000000")
        a("v_mov_b32 v2, 0")
        for i in range(len(self.names)):
            a(f"v_mov_b32 v0, s{68+2*i}")
            a(f"buffer_store_dword v0, v2, s[{SWS}:{SWS+3}], s31 offen offset:{4*i}")
            a("s_nop 1")
        a("; stamps " + ",".join(self.names))

class VM:
    def __init__(self): self.q = []
    def add(self, tag, n=1): self.q += [tag]*n
    def after(self, *tags):
        last = max(i for i, t in enumerate(self.q) if t in tags)
        assert all(t in self.q for t in tags), tags
        n = len(self.q) - 1 - last
        assert n <= 63
        return n

def flag_store(sregs, tmp):
    return [f"v_mov_b32 v{tmp+2}, s{sregs[0]}", f"v_mov_b32 v{tmp}, s{sNON}", f"v_mov_b32 v{tmp+1}, s{sNON+1}"] + \
           [f"v_writelane_b32 v{tmp+2}, s{r}, {i+1}" for i, r in enumerate(sregs[1:])] + [
            f"s_mov_b64 exec, {(1 << len(sregs)) - 1}",
            f"buffer_store_dwordx2 v[{tmp}:{tmp+1}], v{tmp+2}, s[{SWS}:{SWS+3}], 0 offen {ST}",
            "s_mov_b64 exec, -1"]

UID = [0]
def pieces(soff, pre, post, z):
    ld = [f"buffer_load_dwordx4 v{vD}, s[{SWS}:{SWS+3}], {soff} offen offset:{1024*i} {LDF} lds" for i in range(3)]
    if z is not None: return pre + ld[:3-z] + post
    UID[0] += 1
    return [pre + ld[:1], ld[1:2], [f"s_cbranch_vccnz L_pc{UID[0]}", ld[2], f"L_pc{UID[0]}:"] + post]
SETZ = ["s_cmp_eq_u32 s27, 0", "s_cselect_b64 vcc, 0, -1"]
def kv_dma(i):
    return pieces("s34", [f"s_add_u32 m0, s{sM4}, {i*10240}", "s_add_u32 s34, s34, 10240"], [], None)

aS, aO, aQ1, aK1, aK2, aV, aQ2 = 0, 64, 96, 104, 108, 112, 120
aIDX, aG, aG4, aOA, HP = 122, 123, 124, 126, 128
HPK = 192

SLOTP = [0, 1, 2, 3, 4, 5, 7, 6]
def w4_dma(t, z=None):
    m0 = f"s_add_u32 m0, s{sM4}, {SLOTP[t % 8]*10240}"
    if t < 12:
        return pieces(f"s{sKW}", [m0, "s_nop 0"], [f"s_add_u32 s{sKW}, s{sKW}, 20480", f"s_cmp_eq_u32 s{sKW}, s{sWOB}", f"s_cselect_b32 s{sKW}, s{sW2B}, s{sKW}"], z)
    return pieces("s40", [m0, f"s_add_u32 s40, s{sWOB}, {(t-12)*20480}"], [], z)
def pk_ld(): return [f"buffer_load_dwordx4 {vr(PKW[0],4)}, v{vPS}, s[{SW2}:{SW2+3}], 0 offen", f"buffer_load_dwordx4 {vr(PKW[1],4)}, v{vPS+1}, s[{SWO}:{SWO+3}], 0 offen"]
def act_reg(t):
    return HP + 8*t if t < 12 else 8*(t-12)
def act_ld(t, vrem=None, vo2=None):
    r = act_reg(t)
    ld = lambda r, v, so, off=0: f"buffer_load_dwordx4 {vr(r,4)}, v{v}, s[{SWS}:{SWS+3}], {so} offen offset:{off} {LDF}"
    if t < 12:
        return [[ld(r, vA4, f"s{sKH}")],
                [ld(r+4, vA4B, f"s{sKH}"), f"s_add_u32 s{sKH}, s{sKH}, 8192", f"s_cmp_eq_u32 s{sKH}, s{sHL}", f"s_cselect_b32 s{sKH}, s{sHB}, s{sKH}"]]
    if t < 16:
        return [[f"s_add_u32 s41, s{sOB}, {(t-12)*8192}", ld(r, vA4, "s41")], [ld(r+4, vo2, "s41")]]
    return [[ld(r, vrem, f"s{sOR}")], [ld(r+4, vrem, f"s{sOR}", 512)]]

def poll_ld(addr, width, tmp):
    if FS == 3: return [f"buffer_load_dwordx{width} {vr(tmp,width)}, v{addr}, s[{SWS}:{SWS+3}], 0 offen {LDF}"]
    return [f"buffer_load_dwordx2 {vr(tmp+2*i,2)}, v{addr}, s[{SWS}:{SWS+3}], 0 offen offset:{i << FS} {LDF}" for i in range(width//2)]
def spin(a, name, addr, width, tmp, sc, sp=40, mask=None):
    a.label(name)
    a(f"s_mov_b32 s{sc}, {SPIN}")
    a.label(name + "_l")
    for l in poll_ld(addr, width, tmp): a(l)
    a(f"s_sub_u32 s{sc}, s{sc}, 1")
    a(f"s_cmp_eq_u32 s{sc}, 0")
    a(f"s_cbranch_scc1 {name}_ret")
    a("s_waitcnt vmcnt(0)")
    for l in flag_test(tmp, width, sp, mask): a(l)
    a(f"s_cbranch_vccnz {name}_l")
    a(f"s_branch {name}_ret")
def flag_test(tmp, width, sp=40, mask=None):
    r = [f"v_cmp_ne_u64 vcc, s[{sNON}:{sNON+1}], {vr(tmp,2)}"]
    if width == 4:
        r += [f"v_cmp_ne_u64 s[{sp}:{sp+1}], s[{sNON}:{sNON+1}], {vr(tmp+2,2)}", "s_nop 0", f"s_or_b64 vcc, vcc, s[{sp}:{sp+1}]"]
    else:
        r += ["s_nop 0"]
    if mask: r += [f"s_and_b64 vcc, vcc, s[{mask}:{mask+1}]"]
    return r

def phase12(a, cfg, late):
    stamp = cfg["stamp"]
    sK, sM0, sT0, sT1, sT2 = 27, 30, 31, 32, 33
    X = 0; ACC = 160; WB = 192
    vXR = 208; vWR = 212; vWR2 = 214; vXS = 216; vWS = 218; vW1S = 219; vEP = 220
    vT = 228; vL = 236; vGR = 237; vNON = 238
    WBS = [192, 200, 228]
    PK = [224, 240, 244, 248]
    t0, t1, t2, t3, t4, t5, t6 = range(vT, vT+7)
    a(f"v_and_b32 v{vL}, 63, v0")
    a(f"v_lshrrev_b32 v{t0}, 6, v0")
    a("s_and_b32 s31, s2, 7")
    a(f"v_readfirstlane_b32 s24, v{t0}")
    a("s_lshr_b32 s32, s2, 3")
    a("s_and_b32 s33, s32, 7")
    a("s_lshr_b32 s32, s32, 3")
    a("s_and_b32 s25, s31, 1")
    a("s_lshl_b32 s25, s25, 3")
    a("s_add_u32 s25, s25, s33")
    a("s_lshr_b32 s26, s31, 1")
    a("s_lshl_b32 s26, s26, 2")
    a("s_add_u32 s26, s26, s32")
    PF = cfg.get("pf"); CW = cfg.get("cw", "1") == "1" and not cfg.get("warm")
    if cfg.get("norot") or (PF and not cfg.get("rot2") and not cfg.get("rot4")): a("s_mov_b32 s27, 0")
    elif cfg.get("rot2"):
        a("s_add_u32 s27, s33, s32")
        a("s_and_b32 s27, s27, 1")
        a("s_mul_i32 s27, s27, 5")
    elif cfg.get("rot4"):
        a("s_add_u32 s27, s33, s32")
        a("s_and_b32 s27, s27, 3")
        a("s_mul_i32 s27, s27, 5")
        a("s_lshr_b32 s27, s27, 1")
    else:
        a("s_mul_i32 s33, s33, 5")
        a("s_mul_i32 s32, s32, 10")
        a("s_add_u32 s27, s33, s32")
        a("s_lshr_b32 s27, s27, 2")
        a("s_cmp_ge_u32 s27, 10")
        a("s_cselect_b32 s31, 10, 0")
        a("s_sub_u32 s27, s27, s31")
    a("s_lshl_b32 s31, s26, 2")
    a("s_mul_i32 s28, s26, 3")
    a("s_add_u32 s28, s28, 12")
    a("s_min_u32 s28, s28, s31")
    a("s_lshl_b32 s30, s24, 11")
    a(f"s_lshl_b32 s31, s25, 7")
    a(f"s_lshl_b32 s32, s24, 4")
    a(f"s_add_u32 s31, s31, s32")
    a(f"v_lshrrev_b32 v{t0}, 3, v{vL}")
    a(f"v_lshrrev_b32 v{t1}, 4, v{vL}")
    a(f"v_and_b32 v{t2}, 7, v{vL}")
    a(f"v_xor_b32 v{t2}, v{t2}, v{t1}")
    a(f"v_add_u32 v{t0}, s31, v{t0}")
    a(f"v_mul_u32_u24 v{t0}, 1280, v{t0}")
    a(f"v_lshl_add_u32 v{vXS}, v{t2}, 4, v{t0}")
    a(f"v_xor_b32 v{vXS+1}, 64, v{vXS}")
    a(f"v_add_u32 v{vXS+1}, {8*1280}, v{vXS+1}")
    a(f"v_bfe_u32 v{t4}, v{vL}, 2, 2")
    a(f"v_xor_b32 v{t4}, v{t4}, v{t1}")
    a(f"v_and_b32 v{t2}, 3, v{vL}")
    a(f"v_lshlrev_b32 v{t2}, 4, v{t2}")
    a(f"v_lshl_add_u32 v{t2}, v{t4}, 6, v{t2}")
    a(f"s_lshl_b32 s31, s24, 3")
    a(f"v_add_u32 v{t0}, s31, v{t1}")
    a(f"v_mul_u32_u24 v{t3}, 3840, v{t0}")
    a(f"s_lshl_b32 s31, s28, 6")
    a(f"v_add3_u32 v{vWS}, v{t3}, v{t2}, s31")
    a(f"v_cmp_eq_u32 vcc, 3, v{t4}")
    a(f"v_mov_b32 v{t5}, 0x{OOB:x}")
    a(f"s_cmp_ge_u32 s26, 12")
    a(f"s_cselect_b64 s[36:37], vcc, 0")
    a(f"s_lshr_b32 s34, s24, 2")
    a(f"v_cndmask_b32 v{vWS}, v{vWS}, v{t5}, s[36:37]")
    a("s_waitcnt lgkmcnt(0)")
    srd_tail(a, SX, 2048*1280); srd_tail(a, SW, 640*3840)

    def adv_k():
        return [f"s_add_u32 s{sK}, s{sK}, 1", f"s_cmp_eq_u32 s{sK}, 10", f"s_cselect_b32 s{sK}, 0, s{sK}"]
    def dma_groups(t):
        slot = t % 4
        g = []
        if t < 10:
            g.append([f"s_lshl_b32 s{sT0}, s{sK}, 7", f"s_add_u32 m0, s{sM0}, {slot*16384}", f"s_mul_i32 s{sT1}, s{sK}, {64*3840}",
                      f"buffer_load_dwordx4 v{vXS}, s[{SX}:{SX+3}], s{sT0} offen lds"])
            g.append([f"s_add_u32 m0, s{sM0}, {slot*16384+1024}", f"s_add_u32 s{sT2}, s{sT1}, {4*3840}",
                      f"buffer_load_dwordx4 v{vXS+1}, s[{SX}:{SX+3}], s{sT0} offen lds"])
            g.append([f"s_add_u32 m0, s{sM0}, {65536+slot*16384}", adv_k()[0],
                      f"buffer_load_dwordx4 v{vWS}, s[{SW}:{SW+3}], s{sT1} offen lds"])
            g.append([f"s_add_u32 m0, s{sM0}, {65536+slot*16384+1024}"] + adv_k()[1:] + [
                      f"buffer_load_dwordx4 v{vWS}, s[{SW}:{SW+3}], s{sT2} offen lds"])
        elif t < 15:
            for half in range(2):
                base = (65536 if half == 0 else 0) + slot*16384
                g.append([f"s_mul_i32 s{sT1}, s{sK}, {64*3072}", f"s_add_u32 m0, s{sM0}, {base}", f"s_add_u32 s{sT2}, s{sT1}, {4*3072}",
                          f"buffer_load_dwordx4 v{vW1S}, s[{SW1}:{SW1+3}], s{sT1} offen lds"])
                g.append([f"s_add_u32 m0, s{sM0}, {base+1024}"] + adv_k() + [
                          f"buffer_load_dwordx4 v{vW1S}, s[{SW1}:{SW1+3}], s{sT2} offen lds"])
        return g
    a("s_mov_b32 s29, s27")
    stamp(a, "karg")
    for g in dma_groups(0):
        for l in g: a(l)
    a("s_and_b32 s35, s24, 3")
    a("s_cmp_ge_u32 s26, 12")
    a("s_cselect_b32 s38, s34, 0")
    srd_tail(a, SG, 1280)
    a("s_cmp_eq_u32 s38, 1")
    a("s_cbranch_scc1 L_gate")
    a.label("L_gate_ret")
    def gate(a):
        u0, u1, u2 = vEP, vEP+1, vEP+2
        a.label("L_gate")
        a(f"s_lshl_b32 s31, s29, 3")
        for i in range(2):
            a(f"v_add_u32 v{u0}, {64*i}, v{vL}")
            a(f"v_add_u32 v{u1}, s31, v{u0}")
            a(f"v_subrev_u32 v{u2}, 80, v{u1}")
            a(f"v_cmp_le_u32 vcc, 80, v{u1}")
            a(f"s_lshl_b32 s32, s35, 11")
            a(f"s_add_u32 m0, s32, {131072 + 1024*i}")
            a(f"v_cndmask_b32 v{u1}, v{u1}, v{u2}, vcc")
            a(f"v_lshlrev_b32 v{u1}, 4, v{u1}")
            a(f"v_cmp_le_u32 vcc, 80, v{u0}")
            a("s_nop 1")
            a(f"v_cndmask_b32 v{u1}, v{u1}, v{t5}, vcc")
            a(f"buffer_load_dwordx4 v{u1}, s[{SG}:{SG+3}], 0 offen lds")
        a("s_branch L_gate_ret")
    late.append(gate)
    a("s_barrier")
    for g in dma_groups(1):
        for l in g: a(l)
    stamp(a, "dma1")
    srd_tail(a, SW1, 640*3072); srd_tail(a, SWS, WS_END); srd_tail(a, SDBG, 256)
    a("s_or_b32 s31, s2, s24")
    a("s_cmp_eq_u32 s31, 0")
    a("s_cbranch_scc1 L_tag")
    a.label("L_tag_ret")
    def tag(a):
        a.label("L_tag")
        a(f"s_memrealtime s[{sNON}:{sNON+1}]")
        a(f"v_mov_b32 v{vEP+2}, 0")
        a("s_waitcnt lgkmcnt(0)")
        a(f"s_or_b32 s31, s{sNON}, 1")
        a(f"v_mov_b32 v{vEP}, s31")
        a(f"v_mov_b32 v{vEP+1}, s{sNON+1}")
        a("s_mov_b64 exec, 1")
        a(f"buffer_store_dwordx2 v[{vEP}:{vEP+1}], v{vEP+2}, s[{SDBG}:{SDBG+3}], 0 offen {ST}")
        a("s_mov_b64 exec, -1")
        a("s_branch L_tag_ret")
    late.append(tag)
    a(f"v_mul_u32_u24 v{t3}, 3072, v{t0}")
    a(f"s_mul_i32 s31, s26, 192")
    a(f"v_add3_u32 v{vW1S}, v{t3}, v{t2}, s31")
    a(f"v_cmp_eq_u32 vcc, 3, v{t4}")
    a(f"v_and_b32 v{t0}, 31, v{vL}")
    a(f"s_lshl_b32 s31, s35, 5")
    a(f"v_cndmask_b32 v{vW1S}, v{vW1S}, v{t5}, vcc")
    a(f"v_mul_u32_u24 v{t1}, 43, v0")
    a(f"v_lshrrev_b32 v{t1}, 8, v{t1}")
    a(f"v_mul_u32_u24 v{t2}, {3072-6*128}, v{t1}")
    a(f"v_lshl_add_u32 v{t2}, v0, 7, v{t2}")
    a("s_lshr_b32 s32, s2, 3"); a(f"s_mul_i32 s32, s32, {20*3072}")
    a("s_bfe_u32 s33, s2, 0x20001"); a("s_mul_i32 s33, s33, 768"); a("s_add_u32 s32, s32, s33")
    a(f"v_cmp_gt_u32 vcc, 120, v0")
    a(f"v_add_u32 v{t2}, s32, v{t2}")
    a("s_nop 0")
    a(f"v_cndmask_b32 v{vNON+1}, v{t5}, v{t2}, vcc")
    if CW:
        a("s_getpc_b64 s[98:99]")
        a.label("L_pc")
        a(f"s_sub_u32 s98, s98, L_pc-{NAME}_kernel"); a("s_subb_u32 s99, s99, 0")
        n = f"((L_code_end-{NAME}_kernel+2047)/2048)"
        a("s_lshr_b32 s32, s2, 3"); a(f"s_mul_i32 s32, s32, {n}")
        a(f"v_min_u32 v{t1}, {n}-1, v0")
        a(f"v_add_u32 v{t1}, s32, v{t1}")
        a(f"v_lshlrev_b32 v{t1}, 6, v{t1}")
        a(f"v_min_u32 v{vNON+1}, L_code_end-{NAME}_kernel-4, v{t1}")
    if cfg.get("tlb"):
        a(f"v_and_b32 v{t1}, 31, v{vL}")
        a(f"v_min_u32 v{t1}, 24, v{t1}")
        a(f"v_lshlrev_b32 v{t1}, 15, v{t1}")
        a(f"v_min_u32 v{t2}, 29, v{vL}")
        a(f"v_lshlrev_b32 v{t2}, 16, v{t2}")
        a(f"v_cmp_gt_u32 vcc, 32, v{vL}")
        a(f"v_mov_b32 v{t3}, s48"); a(f"v_mov_b32 v{t4}, s46")
        a(f"v_cndmask_b32 v{t1}, v{t1}, v{t2}, vcc")
        a(f"v_cndmask_b32 v{t3}, v{t3}, v{t4}, vcc")
        a(f"v_mov_b32 v{t2}, s49"); a(f"v_mov_b32 v{t4}, s47")
        a(f"v_cndmask_b32 v{t2}, v{t2}, v{t4}, vcc")
        a(f"v_add_co_u32 v{vNON}, vcc, v{t1}, v{t3}")
        a("s_nop 1")
        a(f"v_addc_co_u32 v{vNON+1}, vcc, 0, v{t2}, vcc")
    a(f"v_add_u32 v{t0}, s31, v{t0}")
    a(f"v_bfe_u32 v{t1}, v{t0}, 1, 3")
    a(f"v_lshrrev_b32 v{t2}, 5, v{vL}")
    a(f"v_xor_b32 v{t1}, v{t1}, v{t2}")
    a(f"v_lshlrev_b32 v{t1}, 4, v{t1}")
    a(f"v_lshl_add_u32 v{vXR}, v{t0}, 7, v{t1}")
    for ks in range(1, 4):
        a(f"v_xor_b32 v{vXR+ks}, {ks<<5}, v{vXR}")
    a(f"v_bfe_u32 v{t0}, v{vL}, 2, 2")
    a(f"v_lshl_add_u32 v{t1}, v{t2}, 3, v{t0}")
    a(f"v_lshlrev_b32 v{t1}, 8, v{t1}")
    a(f"v_bfe_u32 v{t3}, v{vL}, 4, 1")
    a(f"v_lshl_add_u32 v{t1}, v{t3}, 5, v{t1}")
    a(f"v_and_b32 v{t3}, 3, v{vL}")
    a(f"v_lshl_add_u32 v{t1}, v{t3}, 3, v{t1}")
    for e in range(2):
        a(f"s_lshl_b32 s31, s34, 1")
        a(f"s_add_u32 s31, s31, {e}")
        a(f"v_xor_b32 v{t3}, s31, v{t0}")
        a(f"v_lshl_add_u32 v{vWR2+e}, v{t3}, 6, v{t1}")
        a(f"v_add_u32 v{vWR+e}, 0x10000, v{vWR2+e}")
    a(f"s_lshl_b32 s31, s35, 11")
    a(f"s_add_u32 s31, s31, 131072")
    a(f"v_lshl_add_u32 v{vGR}, v{t2}, 4, s31")
    if PF:
        vPF = 250
        a("s_lshr_b32 s32, s2, 3")
        a(f"s_add_u32 s33, s24, {PF}")
        a("s_and_b32 s31, s2, 1"); a("s_lshl_b32 s31, s31, 5"); a("s_add_u32 s31, s31, s32"); a(f"s_mul_i32 s31, s31, {32*1280}")
        a("s_lshl_b32 s39, s33, 7"); a("s_add_u32 s31, s31, s39")
        a(f"v_mul_u32_u24 v{t1}, 1280, v{vL}")
        a(f"v_add_u32 v{t1}, s31, v{t1}")
        a("s_lshl_b32 s31, s33, 5"); a("s_add_u32 s31, s31, s32"); a(f"s_mul_i32 s31, s31, {2*3840}")
        a("s_bfe_u32 s39, s2, 0x20001"); a("s_lshl_b32 s39, s39, 10"); a("s_add_u32 s31, s31, s39")
        a(f"v_lshrrev_b32 v{t3}, 3, v{vL}")
        a(f"v_mul_u32_u24 v{t3}, {3840-1024}, v{t3}")
        a(f"v_lshl_add_u32 v{t3}, v{vL}, 7, v{t3}")
        a(f"v_add_u32 v{t3}, s31, v{t3}")
        a("s_cmp_lt_u32 s33, 10"); a("s_cselect_b32 s31, 32, 0"); a("s_cselect_b32 s32, 16, 0")
        a(f"v_cmp_gt_u32 vcc, s31, v{vL}")
        a("s_nop 1")
        a(f"v_cndmask_b32 v{vPF}, v{t5}, v{t1}, vcc")
        a(f"v_cmp_gt_u32 vcc, s32, v{vL}")
        a("s_nop 1")
        a(f"v_cndmask_b32 v{vPF+1}, v{t5}, v{t3}, vcc")
    a("s_and_b32 s31, s2, 7"); a("s_lshr_b32 s33, s2, 6"); a("s_bfe_u32 s32, s2, 0x30003")
    a("s_lshr_b32 s39, s31, 1"); a("s_lshl_b32 s39, s39, 3"); a("s_add_u32 s39, s39, s32")
    a("s_and_b32 s40, s31, 1"); a("s_lshl_b32 s40, s40, 2"); a("s_add_u32 s40, s40, s33")
    a("s_mul_i32 s41, s40, 160")
    a(f"v_mul_u32_u24 v{t1}, 205, v0")
    a(f"v_lshrrev_b32 v{t1}, 11, v{t1}")
    a(f"v_mul_u32_u24 v{t1}, {1280-160}, v{t1}")
    a(f"v_lshl_add_u32 v{t1}, v0, 4, v{t1}")
    a(f"s_mul_i32 s31, s39, {48*1280}"); a("s_add_u32 s31, s31, s41"); a(f"s_mul_i32 s32, s39, {20*1280}"); a("s_add_u32 s32, s32, s41")
    a(f"v_cmp_gt_u32 vcc, 480, v0")
    a(f"v_add_u32 v{t3}, s31, v{t1}")
    a(f"v_add_u32 v{t4}, s32, v{t1}")
    a(f"v_cndmask_b32 v{vPS}, v{t5}, v{t3}, vcc")
    a(f"v_cmp_gt_u32 vcc, 200, v0")
    a("s_nop 1")
    a(f"v_cndmask_b32 v{vPS+1}, v{t5}, v{t4}, vcc")
    a("s_cmp_ge_u32 s26, 10")
    a("s_cbranch_scc1 L_p1_v")
    a("s_cmp_ge_u32 s26, 5")
    a(f"s_cselect_b32 s31, 1, 0")
    a(f"s_lshl_b32 s39, 81920, s31")
    a(f"s_lshl_b32 s40, 5120, s31")
    a("s_cmp_ge_u32 s26, 5")
    a(f"s_cselect_b32 s41, {WS_KV}, {WS_Q}")
    a(f"s_cselect_b32 s42, 20, 0")
    a("s_mul_i32 s40, s40, s25")
    a("s_add_u32 s40, s40, s41")
    a("s_sub_u32 s42, s28, s42")
    a("s_lshl_b32 s31, s34, 1")
    a("s_add_u32 s42, s42, s31")
    a("s_lshl_b32 s42, s42, 2")
    a("s_and_b32 s31, s35, 1")
    a("s_lshl_b32 s31, s31, 8")
    a("s_add_u32 s40, s40, s31")
    a("s_lshr_b32 s31, s35, 1")
    a("s_lshl_b32 s41, s31, 11")
    a("s_lshl_b32 s31, s31, 9")
    a("s_add_u32 s33, s31, 4096")
    a(f"v_and_b32 v{t0}, 15, v{vL}")
    a(f"v_lshl_add_u32 v{t0}, v{t0}, 4, s40")
    a(f"v_add_u32 v{t2}, s42, v{t2}")
    a(f"v_bfe_u32 v{t5}, v{vL}, 4, 1")
    a(f"v_lshl_add_u32 v{t6}, v{t5}, 10, s41")
    a(f"v_mov_b32 v{vGR}, s33")
    QM = [36, 40, 42, 0]
    for i in range(4):
        u0 = vT+7
        a(f"v_add_u32 v{t1}, {2*i}, v{t2}")
        a(f"v_mul_u32_u24 v{t3}, 205, v{t1}")
        a(f"v_lshrrev_b32 v{t3}, 10, v{t3}")
        a(f"v_mul_u32_u24 v{t4}, 5, v{t3}")
        a(f"v_sub_u32 v{t1}, v{t1}, v{t4}")
        a(f"v_cmp_le_u32 vcc, 3, v{t1}")
        a(f"v_cmp_eq_u32 s[{QM[i]}:{QM[i]+1}], 2, v{t1}")
        a(f"v_subrev_u32 v{u0}, 3, v{t1}")
        a(f"v_cndmask_b32 v{t4}, 0, 1, vcc")
        a(f"v_cndmask_b32 v{t1}, v{t1}, v{u0}, vcc")
        a(f"v_cndmask_b32 v{t4}, v{t4}, v{t5}, s[{QM[i]}:{QM[i]+1}]")
        a(f"v_lshl_add_u32 v{t3}, v{t3}, 1, v{t4}")
        a(f"v_mul_lo_u32 v{t3}, v{t3}, s39")
        a(f"v_lshl_add_u32 v{t1}, v{t1}, 9, v{t6}")
        a(f"v_cndmask_b32 v{t1}, v{t1}, v{vGR}, s[{QM[i]}:{QM[i]+1}]")
        a(f"v_add3_u32 v{vEP+i}, v{t0}, v{t3}, v{t1}")
    a(f"v_lshrrev_b32 v{t1}, 1, v{vL}")
    a(f"v_xor_b32 v{t1}, v{t1}, v{vL}")
    a(f"v_and_b32 v{t1}, 1, v{t1}")
    a(f"v_mul_u32_u24 v{vGR}, 24, v{t1}")
    for e in range(2): a(f"v_xor_b32 v{vWR+e}, v{vWR+e}, v{vGR}")
    def ep_v():
        a("s_sub_u32 s42, s28, 40")
        a("s_lshl_b32 s31, s34, 1")
        a("s_add_u32 s42, s42, s31")
        a("s_lshl_b32 s42, s42, 5")
        a("s_mul_i32 s40, s25, 10240")
        a("s_lshr_b32 s31, s35, 1")
        a("s_mul_i32 s31, s31, 2560")
        a("s_add_u32 s40, s40, s31")
        a("s_and_b32 s31, s35, 1")
        a("s_mul_i32 s31, s31, 640")
        a("s_add_u32 s40, s40, s31")
        a(f"s_add_u32 s40, s40, {WS_KV + 5120}")
        a(f"s_mov_b32 s39, 163840")
        a(f"v_and_b32 v{t0}, 31, v{vL}")
        a(f"v_mul_u32_u24 v{t2}, 320, v{t2}")
        a(f"v_add_u32 v{t2}, s40, v{t2}")
        for e in range(2):
            a(f"v_add_u32 v{t1}, s42, v{t0}")
            if e: a(f"v_add_u32 v{t1}, 32, v{t1}")
            a(f"v_mul_u32_u24 v{t3}, 3277, v{t1}")
            a(f"v_lshrrev_b32 v{t3}, 16, v{t3}")
            a(f"v_mul_u32_u24 v{t4}, 20, v{t3}")
            a(f"v_sub_u32 v{t1}, v{t1}, v{t4}")
            a(f"v_mul_lo_u32 v{t3}, v{t3}, s39")
            a(f"v_lshl_add_u32 v{t1}, v{t1}, 4, v{t2}")
            a(f"v_add_u32 v{vEP+2*e}, v{t1}, v{t3}")
            a(f"v_add_u32 v{vEP+2*e+1}, 1280, v{vEP+2*e}")

    def p1_reads(variant, step):
        t, ks = divmod(step, 4)
        slot = t % 4; wb = WBS[step % 3]
        r = [f"ds_read_b128 {vr(X+4*step,4)}, v{vXR+ks} offset:{slot*16384}"]
        for e in range(2):
            if variant == "VG" and e == 1:
                r.append(f"ds_read_b128 {vr(wb+4,4)}, v{vGR} offset:{t*128+ks*32}")
            else:
                for u in range(2):
                    r.append(f"ds_read_b64_tr_b16 {vr(wb+4*e+2*u,2)}, v{vWR+e} offset:{slot*16384+ks*4096+u*1024}")
        return r
    def mf(acc, A, B, first):
        return f"v_mfma_f32_32x32x16_bf16 {vr(acc,16)}, {vr(A,4)}, {vr(B,4)}, " + ("0" if first else vr(acc,16))
    class LQ:
        def __init__(self, p1=False): self.q = []; self.p1 = p1
        def rd(self, lines, tag):
            for l in lines:
                if cfg.get("x_nox") and "b128" in l: l = "s_nop 0"
                elif cfg.get("x_now") and "_tr_" in l and "offset" in l and self.p1: l = "s_nop 0"
                else: self.q.append(tag)
                a(l)
        def wait(self, tag):
            if tag not in self.q: return
            n = len(self.q) - 1 - max(i for i, x in enumerate(self.q) if x == tag)
            a(f"s_waitcnt lgkmcnt({min(n, 15)})")
    uid = [0]
    def site(stage, sg, extra=None):
        uid[0] += 1
        a(f"s_cmp_eq_u32 s34, {sg}")
        a(f"s_cbranch_scc0 L_site{uid[0]}")
        for g in dma_groups(stage):
            for l in g:
                if cfg.get("x_nodma") and stage < 10 and l.startswith("buffer_load"): l = l.replace(f"v{vXS},", f"v{vNON},").replace(f"v{vXS+1},", f"v{vNON},").replace(f"v{vWS},", f"v{vNON},")
                if cfg.get("x_skipdma") and stage < 10 and l.startswith("buffer_load"): continue
                a(l)
        for l in extra or []: a(l)
        a.label(f"L_site{uid[0]}")
    TAGT = int(cfg.get("tagt", 5)); assert TAGT <= 6
    NOLG = cfg.get("nolg")
    def p1_main(variant):
        for g in dma_groups(2):
            for l in g: a(l)
        WT = int(cfg.get("wt", 2)); assert WT < TAGT
        warm = [] if not cfg.get("warm") else [f"buffer_load_dword v{vNON}, v{vNON+1}, s[{SW1}:{SW1+3}], 0 offen"]
        if CW: warm = [f"global_load_dword v{vNON}, v{vNON+1}, s[98:99]"]
        if cfg.get("tlb"): warm = [f"global_load_dword v{vNON}, v[{vNON}:{vNON+1}], off"]
        if PF:
            a(f"buffer_load_dword v{vPF}, v{vPF}, s[{SX}:{SX+3}], 0 offen")
            a(f"buffer_load_dword v{vPF+1}, v{vPF+1}, s[{SW}:{SW+3}], 0 offen")
        stamp(a, "p1_pre")
        a(f"s_waitcnt vmcnt({10 if PF else 8})")
        a("s_barrier")
        stamp(a, "p1_first")
        if cfg.get("x_nodma"): a(f"v_mov_b32 v{vNON}, 0x{OOB:x}")
        lq = LQ(True)
        for st in range(2):
            rd = p1_reads(variant, st); lq.rd(rd[:3], (st, 0)); lq.rd(rd[3:], (st, 1))
        if variant != "VG": site(3, 0)
        tagld = [f"buffer_load_dwordx2 v[{vNON}:{vNON+1}], off, s[{SDBG}:{SDBG+3}], 0" + (f" {LDF}" if cfg.get("tagsc") else "")]
        for step in range(40):
            t, ks = divmod(step, 4)
            rd = p1_reads(variant, step+2) if step < 38 else []
            for e in range(2):
                w = WBS[step % 3]+4*e; x = X+4*step
                swap = (variant == "VV") or (variant == "VG" and e == 0)
                lq.wait((step, e))
                a(mf(ACC+16*e, x if swap else w, w if swap else x, step == 0))
                if ks == 2 and e == 0:
                    site(t+3, 1, tagld if t == TAGT+1 else warm if t == WT+1 else None)
                    stamp(a, f"p1_p{t}")
                    a(f"s_waitcnt vmcnt({8 + (2 if PF and t < 2 else 0) + (t in (TAGT+1, TAGT+2)) + (bool(warm) and t in (WT+1, WT+2, WT+3))})" + ("" if NOLG else " lgkmcnt(0)"))
                    a("s_barrier")
                    stamp(a, f"p1_b{t}")
                lq.rd(rd[:3] if e == 0 else rd[3:], (step+2, e))
                if ks == 2 and e == 0 and variant != "VG":
                    site(t+4, 0, tagld if t == TAGT else warm if t == WT else None)
        site(13, 1)
        stamp(a, "p1_end")
    def v_epilogue(e):
        for s in range(2):
            d = PK[2*e+s]
            for c in range(4):
                r = ACC + 16*e + 8*s + 2*c
                a(f"v_cvt_pk_bf16_f32 v{d+c}, v{r}, v{r+1}")
            a("s_nop 1")
            a(f"v_permlane32_swap_b32 v{d}, v{d+2}")
            a(f"v_permlane32_swap_b32 v{d+1}, v{d+3}")

    p1_main("QK")
    a("s_cmp_ge_u32 s26, 5")
    a(f"s_cselect_b32 s31, 1.0, 0x{QSCALE:x}")
    for e in range(2): a(f"v_xor_b32 v{vWR+e}, v{vWR+e}, v{vGR}")
    a("s_nop 5")
    for i in range(4):
        r = ACC + 8*i; d = PK[i]
        for c in range(8): a(f"v_mul_f32 v{r+c}, s31, v{r+c}")
        for c in range(4): a(f"v_cvt_pk_bf16_f32 v{d+c}, v{r+2*c}, v{r+2*c+1}")
        a(f"s_mov_b64 exec, s[{QM[i]}:{QM[i]+1}]")
        a("s_nop 0")
        a(f"v_permlane16_swap_b32 v{d}, v{d+2}")
        a(f"v_permlane16_swap_b32 v{d+1}, v{d+3}")
        a("s_mov_b64 exec, -1")
    def vpart(a2):
        assert a2 is a
        a.label("L_p1_v")
        ep_v()
        a("s_cmp_eq_u32 s38, 1")
        a("s_cbranch_scc1 L_p1_vg")
        p1_main("VV")
        a("s_nop 7"); a("s_nop 1")
        v_epilogue(0); v_epilogue(1)
        a("s_branch L_p2")
        a.label("L_p1_vg")
        for i in (2, 3): a(f"v_mov_b32 v{vEP+i}, 0x{OOB:x}")
        p1_main("VG")
        a("s_nop 7"); a("s_nop 1")
        v_epilogue(0)
        z = ACC + 16
        a(f"v_cvt_pk_bf16_f32 v{z}, v{z}, v{z}")
        a(f"v_and_b32 v{z}, 0xffff0000, v{z}")
        a(f"v_mul_f32 v{z}, 0x{f32bits(-math.log2(math.e)):x}, v{z}")
        a(f"v_exp_f32 v{z}, v{z}")
        a("s_nop 0")
        a(f"v_add_f32 v{z}, 1.0, v{z}")
        a(f"v_rcp_f32 v{z}, v{z}")
        a(f"s_lshl_b32 s31, s25, 9")
        a(f"s_lshl_b32 s32, s35, 7")
        a(f"v_cvt_pk_bf16_f32 v{z}, v{z}, v{z}")
        a(f"v_and_b32 v{z}, 0xffff0000, v{z}")
        a(f"s_add_u32 s31, s31, s32")
        a(f"s_add_u32 s31, s31, {WS_G}")
        a(f"v_and_b32 v{z+1}, 31, v{vL}")
        a(f"v_lshlrev_b32 v{z+1}, 2, v{z+1}")
        a("s_cmp_eq_u32 s26, 15")
        a("s_cbranch_scc0 L_p2")
        a(f"buffer_store_dword v{z}, v{z+1}, s[{SWS}:{SWS+3}], s31 offen {ST}")
        a("s_branch L_p2")
    late.insert(0, vpart)
    a.label("L_p2")
    a(f"v_readfirstlane_b32 s{sNON}, v{vNON}")
    a(f"v_readfirstlane_b32 s{sNON+1}, v{vNON+1}")
    a("s_nop 0")
    a(f"s_cmp_eq_u32 s{sNON}, 0")
    a("s_cbranch_scc1 L_tagw")
    a.label("L_tagw_ret")
    def tagw(a):
        a.label("L_tagw")
        a(f"s_mov_b32 s31, {SPIN}")
        a.label("L_tagw_l")
        a(f"buffer_load_dwordx2 v[{vNON}:{vNON+1}], off, s[{SDBG}:{SDBG+3}], 0 {LDF}")
        a("s_sub_u32 s31, s31, 1")
        a("s_cmp_eq_u32 s31, 0")
        a("s_cbranch_scc1 L_tagw_ret")
        a("s_waitcnt vmcnt(0)")
        a(f"v_readfirstlane_b32 s{sNON}, v{vNON}")
        a(f"v_readfirstlane_b32 s{sNON+1}, v{vNON+1}")
        a("s_nop 0")
        a(f"s_cmp_eq_u32 s{sNON}, 0")
        a("s_cbranch_scc1 L_tagw_l")
        a("s_branch L_tagw_ret")
    late.append(tagw)
    def p2_reads(ns, step):
        D, rem = divmod(step, 8); half, ks = divmod(rem, 4)
        slot = (10 + D) % 4; wb = WBS[step % 3]
        base = vWR if half == 0 else vWR2
        return [f"ds_read_b64_tr_b16 {vr(wb+4*e+2*u,2)}, v{base+e} offset:{slot*16384+ks*4096+u*1024}" for e in range(ns) for u in range(2)]
    fillA, fillB = setup_later(cfg, vL)
    MA = 48 if cfg.get("two", "0") in "12" else None
    SIG = int(cfg.get("sig1", 14)); POLL1 = int(cfg.get("poll1", 30)); CHK1 = int(cfg.get("chk1", 38))
    POLLB = int(cfg.get("pollb", 34)); vPB = 16; assert not POLLB or POLL1 < POLLB < CHK1
    STS = {2: [int(x) for x in cfg.get("sts", "0,1,2,3").split(",")], 1: [0, 1, 2, 3]}
    def first_loads(ns):
        r = [f"buffer_load_dwordx4 {vr(aQ1,4)}, v{vD}, s[{SWS}:{SWS+3}], s32 offen {LDF}",
             f"buffer_load_dwordx4 {vr(aQ1+4,4)}, v{vD}, s[{SWS}:{SWS+3}], s32 offen offset:1024 {LDF}",
             f"buffer_load_dwordx4 {vr(aK2,4)}, v12, s[{SWS}:{SWS+3}], s33 offen {LDF}"]
        if ns == 1:
            ld = lambda i: f"buffer_load_dwordx4 v{vD}, s[{SWS}:{SWS+3}], s37 offen offset:{1024*i} {LDF} lds"
            r = ["s_mov_b32 m0, s35", "s_add_u32 s37, s35, s36"] + [ld(i) for i in range(4)] + ["s_add_u32 m0, s35, 4096", "s_add_u32 s37, s37, 4096", ld(0)] + r
        return r
    def p2_main(ns):
        stamp(a, "p2_start")
        vm = VM()
        for st in (11, 12, 13): vm.add(f"s{st}", 4)
        lq = LQ()
        for st in range(2):
            rd = p2_reads(ns, st)
            for e in range(ns): lq.rd(rd[2*e:2*e+2], (st, e))
        fa = list(fillA); fb = list(fillB); PKS = [int(x) for x in cfg.get("pks", "11,12").split(",")]
        pkl = pk_ld()[::-1] if cfg.get("pke", "2") == "2" else []; assert PKS[0] >= 4 and PKS[1] >= 7
        xw = cfg.get("x_pkw")
        a(f"s_mov_b64 s[{SW2}:{SW2+1}], s[{'12:13' if xw else '46:47'}]"); a(f"s_mov_b32 s{SW2+2}, {1536*1280}")
        a(f"s_mov_b64 s[{SWO}:{SWO+1}], s[{'12:13' if xw else '48:49'}]"); a(f"s_mov_b32 s{SWO+2}, {640*1280}")
        for step in range(40):
            D, rem = divmod(step, 8)
            rd = p2_reads(ns, step+2) if step < 38 else []
            for e in range(ns):
                lq.wait((step, e))
                a(mf(ACC+16*e, WBS[step % 3]+4*e, X+4*step, step == 0))
                bar = rem == 6 and D < 4
                if e == 0 and (bar or step == SIG):
                    need = ([f"s{11+D}"] if bar else []) + (["st"] if step == SIG else [])
                    stamp(a, f"p2_p{D}" if bar else "p2_ps")
                    a(f"s_waitcnt vmcnt({vm.after(*need)})" + (" lgkmcnt(0)" if (D == 0 and not NOLG) else ""))
                    a("s_barrier")
                    stamp(a, f"p2_b{D}" if bar else "p2_bs")
                lq.rd(rd[2*e:2*e+2], (step+2, e))
                if e == 0 and step == 6:
                    for g in dma_groups(14):
                        for l in g: a(l)
                    vm.add("s14", 4)
                if e == 0 and step == SIG and ns == 1:
                    assert not any(f"s{sF1}," in l for l in fa)
                    for l in flag_store([sF1], 8): a(l)
                    vm.add("flag")
                if e == ns-1 and step in STS[ns]:
                    i = STS[ns].index(step)
                    a(f"buffer_store_dwordx4 {vr(PK[i],4)}, v{vEP+i}, s[{SWS}:{SWS+3}], 0 offen {ST}")
                    vm.add("st")
                poll = "\n".join(poll_ld(vP1, 4, vEP))
                if e == 0 and step == POLL1 and ns == 1:
                    assert not (fa + fb)[:1] or "cselect" not in (fa + fb)[0]
                    a("s_cmp_eq_u32 s24, 4"); a("s_cbranch_scc0 L_p1s")
                    for i in (0, 2): a(f"v_mov_b32 v{vEP+i}, 0")
                    a(poll)
                    a.label("L_p1s")
                if POLLB and e == 0 and step == POLLB and ns == 1:
                    assert not (fa + fb)[:1] or "cselect" not in (fa + fb)[0]
                    a("s_cmp_eq_u32 s24, 4"); a("s_cbranch_scc0 L_pbs")
                    for l in poll_ld(vP1, 4, vPB): a(l)
                    a.label("L_pbs")
                if e == 0 and step == CHK1:
                    assert not fa and CHK1 >= 31
                    a(f"v_mov_b32 v14, {139264}")
                    if ns == 1:
                        a("s_cmp_eq_u32 s24, 4"); a("s_cbranch_scc0 L_c1s")
                        if cfg.get("blk"): a("s_waitcnt vmcnt(0)")
                        for l in flag_test(vEP, 4, 46, MA): a(l)
                        a("s_or_b32 s14, vcc_lo, vcc_hi")
                        a("v_mov_b32 v13, s14")
                        a("s_mov_b64 exec, 1")
                        a("ds_write_b32 v14, v13")
                        a("s_mov_b64 exec, -1")
                        a(poll)
                        a("s_waitcnt lgkmcnt(0)")
                        a.label("L_c1s")
                    a("s_barrier")
                    lq.rd(["ds_read_b32 v13, v14"], "chk")
                if e == 0 and step == CHK1+1:
                    lq.wait("chk")
                    a("v_readfirstlane_b32 s14, v13")
                    stamp(a, "chk"); stamp(a, "val_s14")
                    a("s_cmp_eq_u32 s14, 0")
                    a(f"s_cbranch_scc0 L_early{ns}")
                    for l in first_loads(ns): a(l)
                    a.label(f"L_early{ns}")
                while e == 0 and pkl and step == PKS[2-len(pkl)]:
                    assert any(f"v{vKA}," in l for l in fa)
                    a(pkl.pop(0)); vm.add("pk")
                if step >= 7:
                    for _ in range(8 // ns):
                        if fa: a(fa.pop(0))
                        elif fb and step > max(STS[2]): a(fb.pop(0))
        assert not fa and not fb and not pkl, (fa, fb)
        stamp(a, "p2_end")
        def latecheck():
            a("s_cmp_eq_u32 s14, 0")
            a(f"s_cbranch_scc0 L_late{ns}")
            a.label(f"L_late{ns}_ret")
        if POLLB: latecheck()
        a(f"v_bfe_u32 v{aS}, v{vD}, 4, 5")
        a(f"v_mov_b32 v{aS+1}, 0x3f803f80")
        a(f"v_cmp_eq_u32 vcc, 20, v{aS}")
        for i in range(32): a(f"v_mov_b32 v{aO+i}, 0")
        a(f"v_mov_b32 v{aIDX}, 0xdddddddd")
        for i in range(8): a(f"v_cndmask_b32 v{aV+i}, 0, v{aS+1}, vcc")
        for e in range(ns):
            for s in range(2):
                d = HPK + 8*e + 4*s
                for c in range(4):
                    r = ACC + 16*e + 8*s + 2*c
                    a(f"v_max_f32 v{r}, 0, v{r}")
                    a(f"v_max_f32 v{r+1}, 0, v{r+1}")
                    a(f"v_cvt_pk_bf16_f32 v{d+c}, v{r}, v{r+1}")
        a(f"v_mov_b32 v{HPK+16}, " + (f"v{vD}" if ns == 2 else f"0x{OOB:x}"))
        a(f"v_lshrrev_b32 v2, 2, v12")
        a(f"v_and_b32 v3, 64, v2")
        a(f"v_add_u32 v{aG}, v2, v3")
        a(f"v_bfe_u32 v2, v{vD}, 8, 1")
        a(f"v_mul_u32_u24 v2, {32768-256}, v2")
        a(f"v_add_u32 v{aOA}, v2, v{vD}")
        a("s_lshr_b32 s31, s24, 1")
        for j in range(5):
            if j < 4: a(f"s_xor_b32 s13, s31, {j}"); a("s_lshl_b32 s13, s13, 5")
            a(f"v_add_u32 v{vRA+j}, {'s13' if j < 4 else 128}, v{vR4}")
            a(f"v_add_u32 v{vRA7+j}, {7*10240}, v{vRA+j}")
        a("s_lshl_b32 s31, s24, 6")
        a(f"v_lshrrev_b32 v2, 4, v{vD}")
        a(f"v_add_u32 v2, s31, v2")
        a(f"v_lshlrev_b32 v3, 7, v2")
        a(f"s_mul_i32 s31, s26, {100*128}"); a(f"s_add_u32 s31, s31, s1")
        a(f"v_cmp_gt_u32 vcc, 100, v2")
        a(f"v_add_u32 v3, s31, v3")
        a(f"v_mov_b32 v2, 0x{OOB:x}")
        for i in range(4): a(f"v_mov_b32 v{vSENT+i}, -1")
        a(f"v_cndmask_b32 v{vWARM}, v2, v3, vcc")
        stamp(a, "at_init")
        if not POLLB: latecheck()
        def lateload(a):
            a.label(f"L_late{ns}")
            if ns == 1:
                a("s_cmp_eq_u32 s24, 4")
                a("s_cbranch_scc0 L_w1_ret")
                if POLLB:
                    a("s_waitcnt vmcnt(1)")
                    for l in flag_test(vPB, 4, 46, MA): a(l)
                    a("s_cbranch_vccz L_w1_ret")
                a("s_waitcnt vmcnt(0)")
                for l in flag_test(vEP, 4, 46, MA): a(l)
                a("s_cbranch_vccnz L_w1")
                a.label("L_w1_ret")
            a("s_barrier")
            stamp(a, "chk")
            for l in first_loads(ns): a(l)
            a(f"s_branch L_late{ns}_ret")
            if ns == 1: spin(a, "L_w1", vP1, 4, vEP, 31, 46, MA)
        late.append(lateload)
    a("s_cmp_eq_u32 s34, 0")
    a("s_cbranch_scc0 L_p2_1")
    p2_main(2)
    def p2one(a2):
        a.label("L_p2_1")
        p2_main(1)
        a("s_branch L_p2_done")
    late.insert(0, p2one)
    a.label("L_p2_done")

def setup_later(cfg, vL):
    t0, t1, t2, t3, t4, t5, t6 = range(7)
    A = Asm(); B = Asm()
    a = A
    a(f"v_lshlrev_b32 v{vD}, 4, v{vL}")
    a(f"v_and_b32 v12, 0x1ff, v{vD}")
    a("s_lshl_b32 s31, s25, 2"); a("s_add_u32 s31, s31, s35"); a("s_mul_i32 s31, s31, 98304"); a("s_mul_i32 s32, s26, 3")
    a("s_lshl_b32 s33, s34, 1"); a("s_add_u32 s32, s32, s33"); a("s_lshl_b32 s32, s32, 11"); a("s_add_u32 s31, s31, s32")
    a(f"s_add_u32 s{sHE}, s31, {WS_H}")
    a(f"s_lshl_b32 s39, s25, {FS+4}"); a(f"s_lshl_b32 s40, s26, {FS}"); a("s_add_u32 s39, s39, s40"); a(f"s_add_u32 s39, s39, {FL2}")
    a("s_cmp_eq_u32 s24, 0"); a(f"s_cselect_b32 s{sF2}, s39, 0x{OOB:x}")
    a(f"s_lshl_b32 s39, s26, {FS+4}"); a(f"s_lshl_b32 s40, s25, {FS}"); a("s_add_u32 s39, s39, s40"); a(f"s_add_u32 s39, s39, {FL1}")
    a("s_cmp_eq_u32 s24, 4"); a(f"s_cselect_b32 s{sF1}, s39, 0x{OOB:x}")
    a("s_mov_b32 s27, s34"); a("s_mov_b32 s28, s35")
    a("s_mul_i32 s0, s27, 81920")
    a("s_and_b32 s3, s24, 1"); a("s_sub_u32 s32, 3, s27"); a("s_mul_i32 s32, s32, s3"); a("s_mul_i32 s33, s27, 6"); a("s_add_u32 s12, s32, s33")
    a("s_bfe_u32 s13, s24, 0x10001"); a("s_mul_i32 s32, s13, 81920"); a("s_lshl_b32 s12, s12, 10"); a(f"s_add_u32 s{sM4}, s32, s12")
    a("s_mul_i32 s35, s3, 5120"); a("s_add_u32 s35, s35, s32")
    a("s_mul_i32 s32, s13, 10240"); a("s_add_u32 s12, s12, s32")
    a("s_and_b32 s31, s2, 7"); a("s_lshr_b32 s33, s2, 6"); a("s_bfe_u32 s26, s2, 0x30003")
    a("s_lshl_b32 s25, s31, 2"); a("s_add_u32 s25, s25, s33")
    a("s_mov_b32 s48, 0x11111111"); a("s_lshl_b32 s49, 0x101, s26")
    a(f"s_lshl_b32 s39, s26, {FS+5}"); a(f"s_lshl_b32 s40, s25, {FS}"); a("s_add_u32 s39, s39, s40"); a(f"s_add_u32 s39, s39, {FL3}")
    a("s_cmp_eq_u32 s24, 0"); a(f"s_cselect_b32 s{sF3}, s39, 0x{OOB:x}")
    a(f"v_lshrrev_b32 v{t0}, 4, v{vL}")
    a(f"v_add_u32 v{t0}, 1, v{t0}")
    a(f"v_mul_u32_u24 v{t1}, 640, v{t0}")
    a(f"v_cmp_eq_u32 vcc, 3, v{t0}")
    a(f"s_mul_i32 s39, s25, 20")
    a(f"v_bfe_u32 v{t3}, v{vL}, 3, 1")
    a(f"v_cndmask_b32 v{t1}, v{t1}, 0, vcc")
    a(f"v_mul_u32_u24 v{t3}, 19, v{t3}")
    a(f"v_add3_u32 v{t1}, v{t1}, v{t3}, s39")
    a(f"v_min_u32 v{t1}, 1919, v{t1}")
    a(f"v_lshrrev_b32 v{t1}, 5, v{t1}")
    a(f"v_lshrrev_b32 v{t3}, 2, v{t1}")
    a(f"v_subrev_u32 v{t4}, 12, v{t1}")
    a(f"v_mul_u32_u24 v{t4}, 43, v{t4}")
    a(f"v_lshrrev_b32 v{t4}, 7, v{t4}")
    a(f"v_cmp_le_u32 vcc, 48, v{t1}")
    a(f"v_and_b32 v{t0}, 7, v{vL}")
    a(f"v_lshlrev_b32 v{t0}, {FS+1}, v{t0}")
    a(f"v_cndmask_b32 v{t3}, v{t3}, v{t4}, vcc")
    a(f"v_lshl_add_u32 v{t3}, v{t3}, {FS+4}, v{t0}")
    a(f"v_add_u32 v{vP1}, {FL1}, v{t3}")
    a("s_lshr_b32 s39, s31, 1"); a("s_lshl_b32 s39, s39, 3"); a("s_add_u32 s39, s39, s26")
    a("s_and_b32 s40, s31, 1"); a("s_lshl_b32 s40, s40, 2"); a("s_add_u32 s40, s40, s33")
    a("s_mul_i32 s36, s26, 3"); a("s_lshr_b32 s36, s36, 1"); a("s_mul_i32 s33, s33, 3"); a("s_add_u32 s36, s36, s33")
    a("s_cmp_ge_u32 s36, 12"); a("s_cselect_b32 s33, 12, 0"); a("s_sub_u32 s36, s36, s33")
    a("s_lshr_b32 s33, s24, 1"); a("s_lshl_b32 s31, s33, 11")
    a(f"s_mul_i32 s{sHB}, s39, {2*98304}"); a(f"s_add_u32 s{sHB}, s{sHB}, s31"); a(f"s_add_u32 s{sHB}, s{sHB}, {WS_H}")
    a(f"s_add_u32 s{sHL}, s{sHB}, 98304"); a(f"s_lshl_b32 s{sKH}, s36, 13"); a(f"s_add_u32 s{sKH}, s{sKH}, s{sHB}")
    a(f"s_lshl_b32 s{sOB}, s39, 16"); a(f"s_add_u32 s{sOB}, s{sOB}, s31"); a(f"s_add_u32 s{sOB}, s{sOB}, {WS_O}")
    a(f"s_lshl_b32 s{sOR}, s39, 2"); a(f"s_add_u32 s{sOR}, s{sOR}, s33"); a(f"s_lshl_b32 s{sOR}, s{sOR}, 12"); a(f"s_add_u32 s{sOR}, s{sOR}, {WS_OR}")
    a("s_lshl_b32 s31, s39, 2"); a("s_add_u32 s31, s31, s3")
    a(f"s_lshl_b32 s{sG4}, s31, 6"); a(f"s_add_u32 s{sG4}, s{sG4}, {WS_G}")
    a(f"s_mul_i32 s{sOUTB}, s31, 20480"); a("s_mul_i32 s41, s40, 160"); a(f"s_add_u32 s{sOUTB}, s{sOUTB}, s41")
    a("s_mul_i32 s1, s40, 348160"); a(f"s_add_u32 s1, s1, {WS_WP}")
    a(f"s_add_u32 s{sW2B}, s1, s12"); a(f"s_add_u32 s{sWOB}, s{sW2B}, {12*20480}")
    a(f"s_mul_i32 s{sKW}, s36, 20480"); a(f"s_add_u32 s{sKW}, s{sKW}, s{sW2B}")
    a("s_lshl_b32 s31, s24, 6")
    a(f"v_add_u32 v{t0}, s31, v{vL}")
    a(f"v_mov_b32 v{t5}, 0x{OOB:x}")
    a(f"s_mul_i32 s32, s39, {48*160}"); a("s_add_u32 s32, s32, s1")
    a(f"v_cmp_gt_u32 vcc, 480, v{t0}")
    a(f"v_lshl_add_u32 v{t4}, v{t0}, 4, s32")
    a(f"s_mul_i32 s32, s39, {16*160}"); a(f"s_add_u32 s1, s1, {1536*160}"); a("s_add_u32 s32, s32, s1")
    a(f"v_cndmask_b32 v{vPD}, v{t5}, v{t4}, vcc")
    a("s_and_b32 s33, s39, 28"); a("s_bfe_u32 s36, s39, 0x10001"); a("s_add_u32 s33, s33, s36"); a("s_and_b32 s36, s39, 1"); a("s_lshl_b32 s36, s36, 1")
    a("s_add_u32 s33, s33, s36"); a("s_mul_i32 s33, s33, 640"); a(f"s_add_u32 s33, s33, {(512-16)*160}"); a("s_add_u32 s33, s33, s1")
    a(f"v_mov_b32 v{t3}, s32")
    a(f"v_mov_b32 v{t4}, s33")
    a(f"v_cmp_gt_u32 vcc, 160, v{t0}")
    a("s_nop 1")
    a(f"v_cndmask_b32 v{t3}, v{t4}, v{t3}, vcc")
    a(f"v_cmp_gt_u32 vcc, 200, v{t0}")
    a(f"v_lshl_add_u32 v{t3}, v{t0}, 4, v{t3}")
    a("s_nop 0")
    a(f"v_cndmask_b32 v{vPD+1}, v{t5}, v{t3}, vcc")
    a("s_lshl_b32 s31, s40, 8"); a(f"s_add_u32 s31, s31, {FL4}"); a("s_lshl_b32 s32, s39, 3"); a("s_add_u32 s32, s32, s31")
    a("s_cmp_eq_u32 s24, 0"); a(f"s_cselect_b32 s{sF4}, s32, 0x{OOB:x}")
    a("s_lshr_b32 s32, s39, 1"); a("s_lshl_b32 s32, s32, 7"); a(f"s_add_u32 s32, s32, {FL2}")
    a("s_lshr_b32 s33, s39, 2"); a("s_lshl_b32 s33, s33, 8"); a(f"s_add_u32 s33, s33, {FL3}")
    a(f"v_and_b32 v{t0}, 15, v{vL}")
    a(f"v_and_b32 v{t1}, 7, v{vL}")
    a(f"v_lshl_add_u32 v{t3}, v{t0}, 4, s33")
    a(f"v_lshl_add_u32 v{t4}, v{t1}, 4, s32")
    a(f"v_cmp_gt_u32 vcc, 16, v{vL}")
    a(f"v_lshl_add_u32 v{t0}, v{t0}, 4, s31")
    a("s_nop 0")
    a(f"v_cndmask_b32 v{t3}, v{t4}, v{t3}, vcc")
    a(f"v_cmp_gt_u32 vcc, 32, v{vL}")
    a("s_nop 1")
    a(f"v_cndmask_b32 v{vP2}, v{t0}, v{t3}, vcc")
    a("s_mul_i32 s31, s25, 81920"); a("s_lshl_b32 s32, s26, 1"); a("s_lshr_b32 s33, s28, 1"); a("s_add_u32 s32, s32, s33")
    a("s_mul_i32 s32, s32, 5120"); a("s_add_u32 s31, s31, s32"); a("s_and_b32 s33, s28, 1"); a("s_lshl_b32 s32, s33, 11")
    a("s_add_u32 s32, s32, s31")
    a("s_lshl_b32 s33, s33, 9"); a("s_add_u32 s33, s33, s31"); a("s_add_u32 s33, s33, 4096")
    a("s_lshl_b32 s31, s26, 3"); a("s_lshl_b32 s29, s28, 1"); a("s_add_u32 s29, s31, s29")
    a("s_lshl_b32 s30, s29, 7"); a("s_lshl_b32 s31, s27, 6"); a("s_add_u32 s30, s30, s31"); a(f"s_add_u32 s30, s30, {WS_G}")
    a("s_mul_i32 s36, s25, 163840"); a(f"s_add_u32 s36, s36, {WS_KV}"); a(f"s_add_u32 s34, s36, s{sM4}")
    a("s_mov_b32 s38, 0x000fffff"); a("s_mov_b32 s39, 0x000fffff")
    a(f"s_mov_b64 s[{SOUT}:{SOUT+1}], s[50:51]"); a(f"s_mov_b32 s{SOUT+2}, {2048*1280}")
    a(f"v_lshrrev_b32 v{t2}, 5, v{vL}")
    a(f"v_add_u32 v{vKA}, s0, v{vD}")
    a(f"v_and_b32 v{t0}, 31, v{vL}")
    a(f"v_mul_u32_u24 v{t3}, 320, v{t2}")
    a(f"v_lshl_add_u32 v{t3}, v{t0}, 4, v{t3}")
    a(f"v_add_u32 v{t3}, 5120, v{t3}")
    a(f"v_add_u32 v{vVA}, s0, v{t3}")
    a = B
    a(f"v_and_b32 v{t0}, 15, v{vL}")
    a("s_mul_i32 s31, s13, 5120")
    a("s_add_u32 s31, s31, s0")
    a(f"v_mul_u32_u24 v{t3}, 2560, v{t2}")
    a(f"v_bfe_u32 v{t1}, v{vL}, 2, 3")
    a(f"v_mul_u32_u24 v{t1}, 160, v{t1}")
    a(f"v_and_b32 v{t4}, 3, v{vL}")
    a(f"v_lshl_add_u32 v{t1}, v{t4}, 3, v{t1}")
    a(f"v_add3_u32 v{vR4}, v{t3}, v{t1}, s31")
    a(f"v_lshrrev_b32 v{t3}, 4, v{vL}")
    a(f"v_lshlrev_b32 v{t0}, 4, v{t0}")
    a(f"v_lshl_add_u32 v{vA4}, v{t3}, 9, v{t0}")
    a("s_lshl_b32 s31, s3, 8")
    a(f"v_add_u32 v{vA4}, s31, v{vA4}")
    a(f"v_add_u32 v{vA4B}, 98304, v{vA4}")
    return A.lines, B.lines

def phase3(a, cfg, late):
    stamp = cfg["stamp"]
    S, O, Q1, Q2, K1, K2, V, vIDX, vG = aS, aO, aQ1, aQ2, aK1, aK2, aV, aIDX, aG
    PKE = int(cfg.get("pke", "2"))
    pk_st = [f"buffer_store_dwordx4 {vr(PKW[i],4)}, v{vPD+i}, s[{SWS}:{SWS+3}], 0 offen {ST}" for i in range(2)]
    if PKE == 1:
        for l in pk_ld(): a(l)
    a(f"s_waitcnt vmcnt({2 if PKE == 1 else 0})")
    stamp(a, "at_q")
    if cfg.get("two") == "2":
        for l in ["s_cmp_eq_u32 s24, 4", "s_cbranch_scc0 L_w3_ret"] + flag_test(220, 4, 46) + ["s_cbranch_vccnz L_w3", "L_w3_ret:"]: a(l)
        late.append(lambda a: spin(a, "L_w3", vP1, 4, 220, 31, 46))
    for c in range(2): a(f"v_mov_b32 v{Q2+c}, v{K2+c}")
    a("s_mov_b32 exec_lo, 0")
    for c in range(2): a(f"v_mov_b32 v{Q2+c}, v{K2+2+c}")
    a("s_mov_b64 exec, -1")
    bump = {"k": 0}
    def koff(g, off): return g*10240 + off - bump["k"]
    def rd_k1(T):
        g, tt = divmod(T, 4)
        return f"ds_read_b128 {vr(K1,4)}, v{vKA} offset:{koff(g, tt*1024)}"
    def rd_k2(g):
        return f"ds_read_b128 {vr(K2,4)}, v{vKA} offset:{koff(g, 4096)}"
    def rd_v(T, s):
        g, tt = divmod(T, 4)
        return f"ds_read_b128 {vr(V+4*s,4)}, v{vVA} offset:{koff(g, tt*1280+640*s)}"
    def sreg(T, q): return S + 32*(T % 2) + 16*q
    def b2(T):
        tt = T % 4
        return f"v_mfma_f32_32x32x4_2b_bf16 {vr(sreg(T,0),32)}, {vr(K2+2*(tt&1),2)}, {vr(Q2,2)}, 0 cbsz:1 abid:{tt>>1}"
    def qk(T, q):
        return f"v_mfma_f32_32x32x16_bf16 {vr(sreg(T,q),16)}, {vr(K1,4)}, {vr(Q1+4*q,4)}, {vr(sreg(T,q),16)}"
    def pv(T, q, h):
        return f"v_smfmac_f32_32x32x32_bf16 {vr(O+16*q,16)}, {vr(V+4*h,4)}, {vr(sreg(T,q)+8*h,8)}, v{vIDX}"
    a("s_barrier")
    stamp(a, "at_first")
    a(rd_k2(0)); a(rd_k1(0))
    a("s_lshl_b32 s31, s29, 15"); a("s_lshl_b32 s32, s25, 10"); a("s_add_u32 s32, s32, s31")
    a("s_lshl_b32 s13, s27, 8"); a(f"s_add_u32 s31, s13, {WS_O}"); a("s_add_u32 s32, s32, s31")
    a("s_lshl_b32 s31, s29, 13"); a("s_lshl_b32 s33, s25, 9"); a("s_add_u32 s33, s33, s31")
    a(f"s_add_u32 s31, s13, {WS_OR}"); a("s_add_u32 s33, s33, s31")
    a("s_waitcnt lgkmcnt(1)")
    a(b2(0))
    for l in SETZ: a(l)
    for g in kv_dma(1):
        for l in g: a(l)
    a("s_waitcnt lgkmcnt(0)")
    a("s_nop 7"); a("s_nop 2")
    a(qk(0, 0)); a(qk(0, 1))
    a("s_nop 7")
    vm = VM(); cfg["vm"] = vm
    extra = {u: [] for u in range(64)}
    TWO = cfg.get("two", "0") == "1"
    gld = [f"buffer_load_dword v{aG}, v{aG}, s[{SWS}:{SWS+3}], s30 offen {LDF}"]
    hst = [[f"buffer_store_dwordx4 {vr(HPK+4*i,4)}, v{vD if i < 2 else HPK+16}, s[{SWS}:{SWS+3}], s{sHE} offen offset:{1024*i} {ST}"] for i in range(4)]
    sst = [[f"buffer_store_dwordx4 {vr(vSENT,4)}, v{aOA}, s[{SWS}:{SWS+3}], s32 offen {ST}"],
           ["s_mov_b64 exec, 0xffff", f"buffer_store_dwordx4 {vr(vSENT,4)}, v{vD}, s[{SWS}:{SWS+3}], s33 offen {ST}", "s_mov_b64 exec, -1"]]
    kvs = [g for k in range(2, 8) for g in kv_dma(k)]
    FLU = 22
    sync = {6: ["s_waitcnt vmcnt(8)", "s_barrier"],
            14: ["s_waitcnt vmcnt(17)", "s_barrier"],
            22: ["s_waitcnt vmcnt(0)", "s_barrier"],
            56: ["s_waitcnt vmcnt(0)", "s_barrier"]}
    if not TWO:
        for i, g in enumerate(kvs): extra[i//2].append(g)
        pk = pk_st if PKE in (1, 2) else pk_ld()
        extra[9].append(gld + [pk[0]])
        extra[9].append([pk[1]])
        for i in range(4): extra[10+i].append(hst[i])
        extra[14].append(sst[0]); extra[15].append(sst[1])
        if not PKE:
            extra[17].append(["s_waitcnt vmcnt(6)", pk_st[0]])
            extra[17].append([pk_st[1]])
    else:
        assert PKE == 2
        vEP = 220; FLU = int(cfg.get("flu", 14))
        sts = hst + [[x] for x in pk_st] + sst
        ne = int(cfg.get("ne", 8))
        extra[0].append(["s_cmp_eq_u32 s24, 4", "s_cbranch_scc0 L_p3s"] + poll_ld(vP1, 4, vEP) + ["L_p3s:"])
        u0 = int(cfg.get("stu", 1))
        for i in range(ne): extra[u0 + (i*(6-u0))//ne].append(sts[i])
        sync[6] = [f"s_waitcnt vmcnt({ne})", "s_cmp_eq_u32 s24, 4", "s_cbranch_scc0 L_w3_ret"] + flag_test(vEP, 4, 46) + \
                  ["s_cbranch_vccnz L_w3", "L_w3_ret:"] + SETZ + ["s_barrier"]
        late.append(lambda a: spin(a, "L_w3", vP1, 4, vEP, 31, 46))
        seq = [(g, i % 3 < 2) for i, g in enumerate(kvs[:6])] + [(g, 1) for g in sts[ne:]] + [(g, i % 3 < 2) for i, g in enumerate(kvs[6:])] + [(gld, 1)]
        for i, (g, n) in enumerate(seq): extra[6 + i//2].append(g)
        sync[14] = [f"s_waitcnt vmcnt({sum(n for g, n in seq[3:16])})", "s_barrier"]
        assert FLU == 22 or ne == 8
    POL2 = int(cfg.get("pol2", 31)); CHK2 = int(cfg.get("chk2", 34))
    sync[CHK2] = ["s_waitcnt vmcnt(0)"] + flag_test(HP, 4) + ["s_cbranch_vccnz L_w2", "L_w2_ret:"] + SETZ
    g4 = [f"v_bfe_u32 v{aG4}, v{vD}, 4, 4", f"v_lshlrev_b32 v{aG4}, 2, v{aG4}",
          f"buffer_load_dword v{aG4+1}, v{aG4}, s[{SWS}:{SWS+3}], s{sG4} offen offset:128 {LDF}",
          f"buffer_load_dword v{aG4}, v{aG4}, s[{SWS}:{SWS+3}], s{sG4} offen {LDF}"]
    wrm = [f"buffer_load_dword v{vWARM}, v{vWARM}, s[{SWS}:{SWS+3}], 0 offen {LDF}"]
    extra[CHK2].append(g4)
    if PKE < 3:
        late.append(lambda a: spin(a, "L_w2", vP2, 4, HP, 31))
        extra[FLU].insert(0, flag_store([sF2, sF3, sF4], HP+4) + (extra[FLU].pop(0) if len(extra[FLU]) == 2 else []))
        extra[POL2].append(poll_ld(vP2, 4, HP))
        seq = [g for t in range(2) for g in w4_dma(t)] + [wrm]
        seq += [g for t in range(12) for g in act_ld(t)]
        for i, g in enumerate(seq): extra[CHK2 + 1 + (i*5)//9].append(g)
        for i, g in enumerate(g for t in (2, 3, 4, 5) for g in w4_dma(t)): extra[56 + i//2].append(g)
        for t in (2, 3, 4, 5): vm.add(f"w{t}", 2)
    else:
        lo = lambda ls: ["s_mov_b32 exec_hi, 0"] + ls + ["s_mov_b32 exec_hi, -1"]
        hi = lambda ls: ["s_mov_b32 exec_lo, 0"] + ls + ["s_mov_b32 exec_lo, -1"]
        PT = PKW[1]; P4U = int(cfg.get("p4u", 47)); C4U = int(cfg.get("c4u", 50))
        late.append(lambda a: (spin(a, "L_w2", vP2, 4, HP, 31), spin(a, "L_w4", vP2, 4, PT, 31)))
        extra[22].append(flag_store([sF2, sF3], HP+4))
        for i in range(2): extra[23].append([pk_st[i]])
        extra[31].append(lo(poll_ld(vP2, 4, HP)))
        sync[34] = ["s_waitcnt vmcnt(0)", "s_mov_b32 exec_hi, 0"] + flag_test(HP, 4) + ["s_cbranch_vccnz L_w2", "L_w2_ret:", "s_mov_b32 exec_hi, -1", "s_barrier"]
        extra[34].append(flag_store([sF4], PKW[0]))
        seq = [g for t in range(12) for g in act_ld(t)]
        n = 0
        for u in range(35, 64):
            if u == P4U: extra[u].append(hi(poll_ld(vP2, 4, PT)))
            while seq and len(extra[u]) < 2:
                extra[u].append(seq.pop(0))
                if P4U <= u < C4U: n += 1
                assert u < C4U
        sync[C4U] = [f"s_waitcnt vmcnt({n})", "s_mov_b32 exec_lo, 0"] + flag_test(PT, 4) + ["s_cbranch_vccnz L_w4", "L_w4_ret:", "s_mov_b32 exec_lo, -1"] + SETZ
        sync[56] = ["s_barrier"]
        seq = [wrm] + [g for t in range(4) for g in w4_dma(t)]
        for i, g in enumerate(seq): extra[C4U + i//2].append(g)
        u = max(56, C4U + (len(seq)+1)//2)
        for i, g in enumerate(g for t in (4, 5) for g in w4_dma(t)): extra[u + i//2].append(g)
        for t in range(6): vm.add(f"w{t}", 2)
    if cfg.get("x_noextra"):
        keep = cfg["x_noextra"]
        for k in extra:
            if keep == "lo" and k < 23: continue
            if keep == "hi" and k >= 23: continue
            extra[k] = []
        sync[34] = ["L_w2_ret:"]
        if cfg.get("x_nobar"): sync = {34: sync[34]}
    def E(s, i, j):
        for k in range(i, j): a(f"v_exp_f32 v{s+k}, v{s+k}")
    XF = [int(x) for x in cfg.get("x_ffn", "0,0,0,1").split(",")]
    XP = cfg.get("x_pos", "a")
    pend = []
    def sm(n=1):
        for _ in range(n):
            if pend: a(pend.pop(0))
    for T in range(32):
        g, tt = divmod(T, 4); u = 2*T
        s0, s1 = sreg(T, 0), sreg(T, 1)
        ex0 = list(extra[u]); ex1 = list(extra[u+1])
        def side(ex):
            if ex:
                for l in ex.pop(0): a(l)
        stamp(a, f"u{u}")
        if T > 0: a(pv(T-1, 1, 0))
        for l in sync.get(u, []): a(l)
        if T == 16:
            a(f"v_add_u32 v{vKA}, {4*10240}, v{vKA}"); a(f"v_add_u32 v{vVA}, {4*10240}, v{vVA}")
            bump["k"] = 4*10240
        if tt == 3 and g < 7: a(rd_k2(g+1))
        if T < 31: a(rd_k1(T+1))
        side(ex0)
        E(s0, 0, 4)
        if XP == "a": sm()
        if T > 0: a(pv(T-1, 1, 1))
        side(ex0)
        E(s0, 4, 8)
        sm(9)
        if T < 31:
            if tt == 3: a("s_waitcnt lgkmcnt(1)")
            a(b2(T+1))
        for l in ["s_mov_b64 exec, s[38:39]", rd_v(T, 0), rd_v(T, 1), "s_mov_b64 exec, -1"]: a(l)
        nf = ((T-XF[0]+1)*XF[2])//XF[3] - ((T-XF[0])*XF[2])//XF[3] if XF[0] <= T < XF[1] else 0
        for f in range(nf):
            for uu in range(2): a(f"ds_read_b64_tr_b16 {vr(236+4*f+2*uu,2)}, v{vRA+f} offset:{10240*6 + 1280*uu}")
        E(s0, 8, 16)
        a(f"s_waitcnt lgkmcnt({2*nf})")
        a(pv(T, 0, 0))
        E(s1, 0, 4)
        if nf:
            pend += [f"v_mfma_f32_16x16x32_bf16 {vr(244,4)}, {vr(236+4*(f%2),4)}, {vr(Q1+4*w,4)}, {vr(244,4)}" for f in range(nf) for w in range(2)]
            a("s_waitcnt lgkmcnt(0)")
        if XP == "a": sm()
        if T < 31: a(qk(T+1, 0))
        if XP == "b": sm()
        side(ex1)
        E(s1, 4, 8)
        if XP == "a": sm()
        a(pv(T, 0, 1))
        if XP == "b": sm()
        side(ex1)
        E(s1, 8, 12)
        if XP == "a": sm()
        if T < 31: a(qk(T+1, 1))
        if XP == "b": sm()
        E(s1, 12, 16)
        if XP == "a": sm()
        assert not ex0 and not ex1
    sm(9)
    a(pv(31, 1, 0)); a("s_nop 0"); a(pv(31, 1, 1))
    stamp(a, "at_loopend")
    t0, t1, t2, t3 = K1, K1+1, K1+2, K1+3
    a("s_mul_i32 s31, s28, 2560")
    a(f"s_add_u32 s31, s31, {6*10240 - 4*10240}")
    a(f"v_add_u32 v{t0}, s31, v{vKA}")
    a("s_and_b32 s13, s28, 1"); a("s_lshl_b32 s13, s13, 9"); a("s_lshr_b32 s12, s28, 1"); a("s_lshl_b32 s12, s12, 12")
    a("s_add_u32 s13, s13, s12"); a(f"s_add_u32 s13, s13, {3*10240 - 512}")
    a(f"v_add_u32 v{t2}, 2048, v{t0}")
    a("s_mov_b32 exec_lo, 0")
    a(f"v_add_u32 v{t2}, s13, v{vKA}")
    a("s_mov_b64 exec, -1")
    a("s_mul_i32 s31, s27, 163840")
    a("s_sub_u32 s31, 81920, s31")
    a("s_cmp_eq_u32 s27, 0")
    a(f"v_add_u32 v{t1}, s31, v{t0}")
    a(f"v_add_u32 v{t3}, s31, v{t2}")
    a("s_cbranch_scc0 L_at_z1")
    for c in range(3): a(f"ds_write_b128 v{t0 if c < 2 else t2}, {vr(O+16+4*c,4)} offset:{1024*c if c < 2 else 0}")
    a.label("L_at_zj")
    def z1(a):
        a.label("L_at_z1")
        for c in range(3): a(f"ds_write_b128 v{t0 if c < 2 else t2}, {vr(O+4*c,4)} offset:{1024*c if c < 2 else 0}")
        for c in range(12): a(f"v_mov_b32 v{O+c}, v{O+16+c}")
        a("s_branch L_at_zj")
    late.insert(0, z1)
    a((f"s_waitcnt vmcnt({vm.after('w0')}) " if PKE == 3 else "s_waitcnt ") + "lgkmcnt(0)")
    a("s_barrier")
    for c in range(3): a(f"ds_read_b128 {vr(S+4*c,4)}, v{t1 if c < 2 else t3} offset:{1024*c if c < 2 else 0}")
    a("s_waitcnt lgkmcnt(0)")
    for c in range(12): a(f"v_add_f32 v{O+c}, v{O+c}, v{S+c}")
    a(f"v_mov_b32 v{t2}, v{O+8}")
    a(f"v_mov_b32 v{t3}, v{O+8}")
    a(f"v_add_f32 v{t0}, abs(v{O}), abs(v{O+1})")
    a(f"v_add_f32 v{t0}, v{t0}, abs(v{O+2})")
    a(f"v_permlane32_swap_b32 v{t3}, v{t2}")
    for c in range(3, 12): a(f"v_add_f32 v{t0}, v{t0}, abs(v{O+c})")
    a(f"v_rcp_f32 v{t1}, v{t2}")
    a(f"v_cmp_nle_f32 vcc, 0x{f32bits(2.0**-40):x}, v{t2}")
    a(f"s_mov_b64 s[40:41], vcc")
    a(f"v_cmp_nge_f32 vcc, 0x{f32bits(2.0**100):x}, v{t2}")
    a(f"s_or_b64 s[40:41], s[40:41], vcc")
    a(f"v_cmp_nge_f32 vcc, 0x{f32bits(2.0**126):x}, v{t0}")
    a(f"s_or_b64 s[40:41], s[40:41], vcc")
    if cfg.get("force_fallback"): a("s_mov_b64 s[40:41], -1")
    a("s_cmp_lg_u64 s[40:41], 0")
    a("s_cbranch_scc1 L_at_slow")
    a.label("L_at_store")
    a(f"v_mul_f32 v{t1}, v{t1}, v{vG}")
    for c in range(12): a(f"v_mul_f32 v{O+c}, v{O+c}, v{t1}")
    for c in (4, 5, 0, 1, 2, 3): a(f"v_cvt_pk_bf16_f32 v{S+c}, v{O+2*c}, v{O+2*c+1}")
    for c in (4, 5, 0, 1, 2, 3): a(f"v_min_u32 v{S+c}, -2, v{S+c}")
    a(f"v_permlane16_swap_b32 v{S+4}, v{S+6}")
    a(f"v_permlane16_swap_b32 v{S+5}, v{S+7}")
    a(f"buffer_store_dwordx4 {vr(S,4)}, v{aOA}, s[{SWS}:{SWS+3}], s32 offen {ST}")
    a("s_mov_b64 exec, 0xffff")
    a(f"buffer_store_dwordx4 {vr(S+4,4)}, v{vD}, s[{SWS}:{SWS+3}], s33 offen {ST}")
    a("s_mov_b64 exec, -1")
    vm.add("ost", 2)
    stamp(a, "o_stored")

    def slow(a):
        a.label("L_at_slow")
        NM = 16; QZ = 32
        KA = 44; vV2 = 52; mx = 53
        def qz(qt, tt): return QZ + 4*(tt >> 1) + (2 if (tt & 1) == 0 else 0)
        for c in range(2): a(f"v_mov_b32 v{KA+c}, v{Q2+c}")
        for i in range(10): a(f"v_mov_b32 v{QZ+i}, 0")
        for c in range(2): a(f"v_permlane32_swap_b32 v{Q2+c}, v{KA+c}")
        a("s_cmp_eq_u32 s27, 0")
        a("s_cbranch_scc1 L_slow_z0")
        a("s_nop 0")
        for c in range(2): a(f"v_mov_b32 v{Q2+c}, v{KA+c}")
        for c in range(4): a(f"v_mov_b32 v{Q1+c}, v{Q1+4+c}")
        a.label("L_slow_z0")
        a("s_mov_b32 exec_hi, 0")
        for c in range(2): a(f"v_mov_b32 v{QZ+2+c}, v{Q2+c}")
        a("s_mov_b64 exec, -1")
        a("s_mov_b32 exec_lo, 0")
        for c in range(2): a(f"v_mov_b32 v{QZ+6+c}, v{Q2+c}")
        a("s_mov_b64 exec, -1")
        a("s_mul_i32 s34, s27, 81920")
        a(f"s_add_u32 s34, s34, {4*10240 + 5120}")
        a(f"v_subrev_u32 v{vV2}, s34, v{vVA}")
        a(f"v_mov_b32 v{mx}, 0xff7fffff")
        for i in range(16): a(f"v_mov_b32 v{NM+i}, 0")
        for i in range(16): a(f"v_mov_b32 v{O+i}, 0")
        for ps in range(2):
            a("s_mul_i32 s34, s25, 163840")
            a(f"s_add_u32 s34, s34, {WS_KV}")
            a("s_mov_b32 s35, 16")
            a.label(f"L_slow_loop{ps}")
            a(f"s_add_u32 s36, s34, 4096")
            a(f"buffer_load_dwordx4 {vr(K2,4)}, v{vD}, s[{SWS}:{SWS+3}], s36 offen {LDF}")
            for tt in range(4):
                a(f"buffer_load_dwordx4 {vr(KA,4)}, v{vD}, s[{SWS}:{SWS+3}], s34 offen offset:{1024*tt} {LDF}")
                if ps == 1:
                    a(f"s_add_u32 s36, s34, {5120+1280*tt}")
                    a("s_mov_b64 exec, s[38:39]")
                    a(f"buffer_load_dwordx4 {vr(V,4)}, v{vV2}, s[{SWS}:{SWS+3}], s36 offen {LDF}")
                    a(f"buffer_load_dwordx4 {vr(V+4,4)}, v{vV2}, s[{SWS}:{SWS+3}], s36 offen offset:640 {LDF}")
                    a("s_mov_b64 exec, -1")
                a("s_waitcnt vmcnt(0)")
                a(f"v_mfma_f32_32x32x16_bf16 {vr(S,16)}, {vr(KA,4)}, {vr(Q1,4)}, {vr(NM,16)}")
                a(f"v_mfma_f32_32x32x16_bf16 {vr(S,16)}, {vr(K2,4)}, {vr(qz(0,tt),4)}, {vr(S,16)}")
                a("s_nop 11")
                if ps == 0:
                    for i in range(0, 16, 2): a(f"v_max3_f32 v{mx}, v{mx}, v{S+i}, v{S+i+1}")
                else:
                    for i in range(16): a(f"v_exp_f32 v{S+i}, v{S+i}")
                    a("s_nop 1")
                    for h in range(2):
                        a(f"v_smfmac_f32_32x32x32_bf16 {vr(O,16)}, {vr(V+4*h,4)}, {vr(S+8*h,8)}, v{vIDX}")
                    a("s_nop 3")
            a("s_add_u32 s34, s34, 10240")
            a("s_sub_u32 s35, s35, 1")
            a("s_cmp_lg_u32 s35, 0")
            a(f"s_cbranch_scc1 L_slow_loop{ps}")
            if ps == 0:
                a(f"v_mov_b32 v{t3}, v{mx}")
                a(f"v_mov_b32 v{t1}, v{mx}")
                a("s_nop 1")
                a(f"v_permlane32_swap_b32 v{t3}, v{t1}")
                a("s_nop 1")
                a(f"v_max_f32 v{mx}, v{t3}, v{t1}")
                for i in range(16): a(f"v_sub_f32 v{NM+i}, 0, v{mx}")
        a("s_nop 11")
        a(f"v_mov_b32 v{t2}, v{O+8}")
        a(f"v_mov_b32 v{t3}, v{O+8}")
        a("s_nop 1")
        a(f"v_permlane32_swap_b32 v{t3}, v{t2}")
        a("s_nop 1")
        a(f"v_rcp_f32 v{t1}, v{t2}")
        a("s_nop 0")
        a("s_branch L_at_store")
    late.append(slow)

def phase45(a, cfg, late):
    stamp = cfg["stamp"]; vm = cfg["vm"]
    OA = 0; ACC = 40; WB = 80; NB = 10
    vREM, vMX, vG1, vOUT, vOUT2, vRD, vO2, vPR = 120, 121, 122, 126, 127, 234, 240, 241
    NS = 17; MG = int(cfg.get("mg", 14))
    OS = dict(zip(range(12, 17), [int(x) for x in cfg.get("os", "7,8,9,10,10").split(",")]))
    KB = int(cfg.get("kb", 7))
    F = [(t, j) for t in range(MG) for j in range(5)] + [(t, j) for j in (1, 2, 3, 4, 0) for t in range(MG, NS)]
    def reads(i):
        t, j = F[i]; slot = SLOTP[t % 8]
        return [(f"ds_read_b64_tr_b16 {vr(WB+4*(i%NB)+2*u,2)}, v{(vRA7 if slot == 7 else vRA)+j} offset:{(0 if slot == 7 else slot*10240) + u*1280}", i)
                for u in range(2)]
    lq = []
    def rd(x): a(x[0]); lq.append(x[1])
    def lwait(tag):
        n = len(lq) - 1 - max(i for i, x in enumerate(lq) if x == tag)
        a(f"s_waitcnt lgkmcnt({min(n, 15)})")
    rq = [x for i in range(len(F)) for x in reads(i)]
    for _ in range(10): rd(rq.pop(0))
    def oloads(t0): return [l for tt in range(t0, 17) for g in act_ld(tt, vREM, vO2) for l in g]
    def check(t0, t1):
        r = list(range(act_reg(t0), act_reg(t1-1)+8))
        return [f"v_max3_u32 v{vMX}, v{r[0]}, v{r[1]}, v{r[2]}"] + [f"v_max3_u32 v{vMX}, v{vMX}, v{r[i]}, v{r[min(i+1,len(r)-1)]}" for i in range(3, len(r), 2)]
    CKS = {11: (12, MG), MG-1: (MG, 17)}
    if cfg.get("ck"):
        c = [tuple(int(y) for y in x.split(":")) for x in cfg["ck"].split(",")]
        CKS = {t: (o, c[i+1][1] if i+1 < len(c) else 17) for i, (t, o) in enumerate(c)}
    assert all(t < o0 and t < MG and all(OS[o] < t for o in range(o0, o1)) for t, (o0, o1) in CKS.items())
    fill = {t: [] for t in range(NS)}
    fill[0] = [f"v_add_u32 v{vO2}, 32768, v{vA4}", f"v_and_b32 v{vREM}, 0x600, v{vA4}", f"v_add_u32 v{vREM}, v{vREM}, v{vA4}",
               f"v_bfe_u32 v{vMX}, v{vD}, 4, 4", f"v_mul_u32_u24 v{vMX}, 1280, v{vMX}",
               f"v_bfe_u32 v{vOUT}, v{vD}, 8, 1", f"v_mul_u32_u24 v{vOUT}, {32*1280}, v{vOUT}", f"v_lshrrev_b32 v{vOUT2}, 9, v{vD}",
               f"v_lshl_add_u32 v{vOUT}, v{vOUT2}, 4, v{vOUT}", f"v_add_u32 v{vOUT}, v{vOUT}, v{vMX}",
               f"v_lshrrev_b32 v{vOUT2}, 8, v{vD}", f"v_lshl_add_u32 v{vOUT2}, v{vOUT2}, 3, v{vMX}"]
    fill[1] = [l for w in range(2) for l in (f"v_sub_f32 v{vG1+w}, 1.0, v{aG4+w}", f"v_cvt_pk_bf16_f32 v{vG1+w}, v{vG1+w}, v{vG1+w}",
                                            f"v_and_b32 v{vG1+w}, 0xffff0000, v{vG1+w}")]
    fill[2] = ["s_lshr_b32 s12, s24, 1", "s_mul_i32 s13, s3, 81920", "s_add_u32 s13, s13, 10240", f"v_add_u32 v{vRD}, s13, v{vD}",
               "s_lshl_b32 s31, s12, 10", f"s_add_u32 s31, s31, {24*1024}", f"v_add_u32 v{vRD+4}, s31, v{vRD}"]
    for j in (1, 2, 3):
        fill[3] += [f"s_xor_b32 s31, s12, {j}", "s_mul_i32 s31, s31, 6144", f"v_add_u32 v{vRD+j}, s31, v{vRD}"]
    fill[3] += ["s_mul_i32 s31, s12, 6144", f"v_add_u32 v{vRD+5}, s31, v{vRD}"]
    def scale(j, w): return [f"v_mul_f32 v{ACC+20*w+4*j+i}, v{ACC+20*w+4*j+i}, v{vG1+w}" for i in range(4)]
    def site(t, z):
        ws = [tt for tt in ({0: [6, 7]}.get(t, [t+7])) if tt < NS]
        os_ = [tt for tt in OS if OS[tt] == t]
        if not ws and not os_: return
        a(f"s_cmp_eq_u32 s27, {z}")
        a(f"s_cbranch_scc0 L_s4_{t}_{z}")
        for tt in os_:
            for g in act_ld(tt, vREM, vO2):
                for l in g: a(l)
        for tt in ws:
            for l in w4_dma(tt, z): a(l)
        a.label(f"L_s4_{t}_{z}")
        if z == 1:
            for tt in os_: vm.add(f"o{tt}", 2)
            for tt in ws: vm.add(f"w{tt}", 2)
    wr = []
    fl = []
    for i, (t, j) in enumerate(F):
        plain = t < MG
        if plain and j == 0: fl = list(fill[t])
        for w in range(2):
            k = 2*j + w
            acc = ACC + 20*w + 4*j
            if t == 12:
                if k == 0:
                    for l in scale(0, 0): a(l)
                if k < 9:
                    for l in scale(*divmod(k+1, 2)): a(l)
            if w == 0: lwait(i)
            a(f"v_mfma_f32_16x16x32_bf16 {vr(acc,4)}, {vr(WB+4*(i%NB),4)}, {vr(act_reg(t)+4*w,4)}, " + ("0" if t == 0 else vr(acc,4)))
            if plain and k == 0:
                stamp(a, f"p4_p{t}")
                need = [f"w{tt}" for tt in (range(MG, NS) if t == MG-1 else [t+1]) if f"w{tt}" in vm.q]
                if need: a(f"s_waitcnt vmcnt({vm.after(*need)})")
                a("s_barrier")
                stamp(a, f"p4_b{t}")
            for _ in range(2 if (plain and k == 0) else 0 if (plain and k == 9) else 1):
                if rq: rd(rq.pop(0))
            if plain and k == 0: site(t, 0)
            if plain and k == KB: site(t, 1)
            if plain and t in CKS and k == 2:
                a(f"s_waitcnt vmcnt({vm.after(*[f'o{tt}' for tt in range(*CKS[t])])})")
                stamp(a, f"p4_og{t}")
                fl += check(*CKS[t])
            if plain:
                for _ in range(-(-len(fl) // (10-k))): a(fl.pop(0))
            else:
                are = [x for x in wr if x[1] <= 2*i + w]
                if are: a(are[0][0]); wr.remove(are[0])
                if t == NS-1 and j:
                    wr.append((f"ds_write_b128 v{vRD+j}, {vr(acc,4)} offset:{(3*w + j-1)*1024 if j < 4 else 4096*w}", 2*i + w + (4 if j < 4 else 6)))
        if plain and j == 4 and t in CKS:
            a(f"v_cmp_eq_u32 vcc, -1, v{vMX}")
            a("s_nop 0")
            a(f"s_cbranch_vccnz L_or{t}")
            a.label(f"L_or{t}_ret")
            stamp(a, f"p4_ok{t}")
            if CKS[t][1] == 17:
                a(f"v_swap_b32 v{OA+34}, v{OA+36}"); a(f"v_swap_b32 v{OA+35}, v{OA+37}")
        if t == 11 and j == 4: stamp(a, "p4_end")
    def retry(a):
        for t in CKS:
            a.label(f"L_or{t}")
            a(f"s_mov_b32 s31, {SPIN}")
            a(f"v_bfe_u32 v{vPR}, v{vD}, 4, 5")
            a(f"v_lshlrev_b32 v{vPR}, 9, v{vPR}")
            a("s_lshl_b32 s13, s3, 8")
            a(f"s_and_b32 s41, s{sOR}, 0xffffc000")
            a("s_add_u32 s13, s13, s41")
            a.label(f"L_or{t}_l")
            a("s_sub_u32 s31, s31, 1")
            a("s_cmp_eq_u32 s31, 0")
            a(f"s_cbranch_scc1 L_or{t}_ret")
            a(f"buffer_load_dword v{vMX}, v{vPR}, s[{SWS}:{SWS+3}], s13 offen {LDF}")
            a("s_waitcnt vmcnt(0)")
            a(f"v_cmp_eq_u32 vcc, -1, v{vMX}")
            a("s_nop 0")
            a(f"s_cbranch_vccnz L_or{t}_l")
            for l in oloads(CKS[t][0]): a(l)
            a("s_waitcnt vmcnt(0)")
            for l in check(*CKS[t]): a(l)
            a(f"v_cmp_eq_u32 vcc, -1, v{vMX}")
            a("s_nop 0")
            a(f"s_cbranch_vccnz L_or{t}_l")
            a(f"s_branch L_or{t}_ret")
    late.append(retry)
    for l, _ in wr: a(l)
    stamp(a, "p5_end")
    R = 128
    OF = "".join(" " + x for x in cfg.get("of", "").split(",") if x)
    a("s_lshl_b32 s31, s12, 5")
    a(f"s_add_u32 s31, s31, s{sOUTB}")
    a("s_waitcnt lgkmcnt(0)")
    a("s_barrier")
    for w in range(2):
        for i in range(3): a(f"ds_read_b128 {vr(R+12*w+4*i,4)}, v{vRD+5} offset:{(3*w+i)*1024}")
    a("s_cmp_lt_u32 s12, 2")
    a("s_cbranch_scc0 L_p5_a")
    a("s_lshl_b32 s13, s12, 12")
    a(f"v_add_u32 v{vRD}, s13, v{vRD}")
    a(f"s_mul_i32 s13, s12, {32*1280}")
    a(f"s_add_u32 s13, s13, s{sOUTB}")
    for i in range(4): a(f"ds_read_b128 {vr(R+24+4*i,4)}, v{vRD} offset:{(24+i)*1024}")
    a.label("L_p5_a")
    for w in range(2):
        acc = ACC + 20*w
        a(f"s_waitcnt lgkmcnt({3-3*w})")
        for i in range(4): a(f"v_add_f32 v{R+12*w+i}, v{R+12*w+i}, v{R+12*w+4+i}")
        for i in range(4): a(f"v_add_f32 v{acc+i}, v{acc+i}, v{R+12*w+8+i}")
        for i in range(4): a(f"v_add_f32 v{acc+i}, v{acc+i}, v{R+12*w+i}")
        a(f"v_cvt_pk_bf16_f32 v{OA+2*w}, v{acc}, v{acc+1}")
        a(f"v_cvt_pk_bf16_f32 v{OA+2*w+1}, v{acc+2}, v{acc+3}")
    a("s_nop 1")
    a(f"v_permlane16_swap_b32 v{OA}, v{OA+2}")
    a(f"v_permlane16_swap_b32 v{OA+1}, v{OA+3}")
    a(f"buffer_store_dwordx4 {vr(OA,4)}, v{vOUT}, s[{SOUT}:{SOUT+3}], s31 offen{OF}")
    a("s_cmp_lt_u32 s12, 2")
    a("s_cbranch_scc0 L_p5_end")
    for i in range(4): a(f"v_add_f32 v{R+24+i}, v{R+24+i}, v{R+28+i}")
    for i in range(4): a(f"v_add_f32 v{R+32+i}, v{R+32+i}, v{R+36+i}")
    for i in range(4): a(f"v_add_f32 v{R+24+i}, v{R+24+i}, v{R+32+i}")
    a(f"v_cvt_pk_bf16_f32 v{R+24}, v{R+24}, v{R+25}")
    a(f"v_cvt_pk_bf16_f32 v{R+25}, v{R+26}, v{R+27}")
    a(f"buffer_store_dwordx2 {vr(R+24,2)}, v{vOUT2}, s[{SOUT}:{SOUT+3}], s13 offen offset:128{OF}")
    a.label("L_p5_end")

HEADER = open("cdna_kernels/" + NAME + ".s.ref").read().split("; Override launch")[0]

def kd(name, vgpr, sgpr=100):
    return f""".section .rodata,"a"
.p2align 6
.amdhsa_kernel {name}
  .amdhsa_next_free_vgpr {vgpr}
  .amdhsa_next_free_sgpr {sgpr}
  .amdhsa_accum_offset {(vgpr+3)//4*4}
  .amdhsa_group_segment_fixed_size 0
  .amdhsa_kernarg_size 80
  .amdhsa_user_sgpr_count 2
  .amdhsa_user_sgpr_kernarg_segment_ptr 1
  .amdhsa_system_sgpr_workgroup_id_x 1
.end_amdhsa_kernel
"""

def gen(opts):
    a = Asm()
    k = NAME + "_kernel"
    a(".text"); a(f".globl {k}"); a(".p2align 8"); a(f".type {k},@function"); a.label(k)
    a("s_cmp_ge_u32 s2, 256"); a("s_cbranch_scc1 L_end")
    a(f"s_load_dwordx2 s[{SX}:{SX+1}], s[0:1], 0")
    a(f"s_load_dwordx2 s[{SW}:{SW+1}], s[0:1], 8")
    a(f"s_load_dwordx2 s[{SW1}:{SW1+1}], s[0:1], 32")
    a(f"s_load_dwordx2 s[{SG}:{SG+1}], s[0:1], 48")
    a(f"s_load_dwordx2 s[{SWS}:{SWS+1}], s[0:1], 72")
    a(f"s_load_dwordx2 s[{SDBG}:{SDBG+1}], s[0:1], 64")
    a(f"s_load_dwordx2 s[46:47], s[0:1], 40")
    a(f"s_load_dwordx2 s[48:49], s[0:1], 16")
    a(f"s_load_dwordx2 s[50:51], s[0:1], 56")
    st = Stamps(opts.get("stamps")); st.cyc = opts.get("cyc"); st.dbg = opts.get("dbg"); st(a, "start")
    cfg = dict(opts, stamp=st); late = []
    phase12(a, cfg, late)
    phase3(a, cfg, late)
    phase45(a, cfg, late)
    if st.on: a("s_waitcnt vmcnt(0)")
    st(a, "end"); st.flush(a)
    a.label("L_end"); a("s_endpgm")
    while late: late.pop(0)(a)
    a.label("L_code_end")
    errs = check_linear(a.lines)
    head = HEADER + ("; @launch grid=(256,1,1) block=(512,1,1) lds=163840\n"
                     '.amdgcn_target "amdgcn-amd-amdhsa--gfx950"\n')
    return head + a.text() + kd(k, 256), errs

if __name__ == "__main__":
    out = sys.argv[1] if len(sys.argv) > 1 else "cdna_kernels/" + NAME + ".s"
    opts = {}
    for o in sys.argv[2:]:
        k, _, v = o.partition("=")
        opts[k] = v or True
    txt, errs = gen(opts)
    open(out, "w").write(txt)
    print("written", out, "hazards:", errs, "bytes:", len(txt))
```

```python
import sys, math, struct
from dsl import *

NAME = "gated_mix__mha_block__dense_activation_relu__prompt"
WS_Q  = 0x0
WS_KV = 0x280000
WS_H  = 0x780000
WS_O  = 0xD80000
WS_OR = 0xF80000
WS_G  = 0x1000000
FS = 3
FL1   = 0x1002000
FL2   = 0x100A000
FL3   = 0x1012000
FL4   = 0x101A000
WS_WP = 0x1200000
WS_END = WS_WP + 8*348160
OOB = 0x80000000
SPIN = 1 << 15
def f32bits(x): return struct.unpack("<I", struct.pack("<f", x))[0]
QSCALE = f32bits(math.log2(math.e) / math.sqrt(20.0))
ST = "sc1"; LDF = "sc1"

SX, SW, SW1, SWS, SG, SDBG = 4, 8, 12, 16, 20, 52
SW2, SWO, SOUT = SX, SW, SG
sF1, sHE, sNON = 42, 43, 44
sKW, sKH, sHB, sOB, sW2B, sWOB, sHL, sOUTB, sG4, sM4, sF2, sF3 = range(56, 68)
sF4 = 100
PKW = (216, 244)
vPS, vPD, vA4B, vA4, vR4, vP2, vKA, vVA, vP1, vD = 252, 242, 248, 249, 250, 251, 252, 253, 254, 255
vRA, vRA7, vWARM, vSENT = 224, 229, 234, 236
sOR = 15

def srd_tail(a, base, nbytes):
    a(f"s_mov_b32 s{base+2}, {nbytes}")
    a(f"s_mov_b32 s{base+3}, 0x00020000")

STAMP_BASE = 0x1100000
class Stamps:
    DEF = "start,p1_first,p1_end,p2_end,at_first,at_loopend,o_stored,p4_b1,p4_b4,p4_b8,p4_ok11,p4_ok13,p5_end,end"
    def __init__(self, on):
        self.on = on; self.names = []
        self.sel = set((self.DEF if on is True else "start," + str(on)).split(","))
    def __call__(self, a, name):
        if not self.on or name not in self.sel: return
        if name in self.names: i = self.names.index(name)
        else:
            i = len(self.names); self.names.append(name)
        assert i < 15
        if name.startswith("val_"): a(f"s_mov_b32 s{68+2*i}, {name[4:]}"); return
        a(f"{'s_memtime' if self.cyc else 's_memrealtime'} s[{68+2*i}:{69+2*i}]")
    def flush(self, a):
        if not self.on: return
        a("s_waitcnt lgkmcnt(0)")
        if self.dbg is not None:
            n = len(self.names); assert n <= 13
            a("s_mov_b64 exec, 1")
            a(f"s_sub_u32 s31, s68, s{sNON}"); a("s_add_u32 s31, s31, 1000"); a("v_mov_b32 v0, s31")
            a(f"buffer_atomic_umax v0, off, s[{SDBG}:{SDBG+3}], 0 offset:56 sc1")
            a(f"s_sub_u32 s31, s{68+2*(n-1)}, s{sNON}"); a("v_mov_b32 v1, s31")
            a(f"buffer_atomic_umax v1, off, s[{SDBG}:{SDBG+3}], 0 offset:60 sc1")
            a(f"s_cmp_eq_u32 s2, {self.dbg}"); a("s_cbranch_scc0 L_end")
            a("s_cmp_eq_u32 s24, 0"); a("s_cbranch_scc0 L_end")
            for i in range(1, n):
                a(f"s_sub_u32 s31, s{68+2*i}, s{sNON}"); a(f"v_mov_b32 v{2+i}, s31")
                a(f"buffer_store_dword v{2+i}, off, s[{SDBG}:{SDBG+3}], 0 offset:{4+4*i} sc1")
            a("; stamps " + ",".join(self.names))
            return
        a("s_lshl_b32 s31, s2, 3")
        a("s_add_u32 s31, s31, s24")
        a("s_lshl_b32 s31, s31, 6")
        a(f"s_add_u32 s31, s31, {STAMP_BASE}")
        a(f"s_mov_b32 s{SWS+2}, 0x2000000")
        a("v_mov_b32 v2, 0")
        for i in range(len(self.names)):
            a(f"v_mov_b32 v0, s{68+2*i}")
            a(f"buffer_store_dword v0, v2, s[{SWS}:{SWS+3}], s31 offen offset:{4*i}")
            a("s_nop 1")
        a("; stamps " + ",".join(self.names))

class VM:
    def __init__(self): self.q = []
    def add(self, tag, n=1): self.q += [tag]*n
    def after(self, *tags):
        last = max(i for i, t in enumerate(self.q) if t in tags)
        assert all(t in self.q for t in tags), tags
        n = len(self.q) - 1 - last
        assert n <= 63
        return n

def flag_store(sregs, tmp):
    return [f"v_mov_b32 v{tmp+2}, s{sregs[0]}", f"v_mov_b32 v{tmp}, s{sNON}", f"v_mov_b32 v{tmp+1}, s{sNON+1}"] + \
           [f"v_writelane_b32 v{tmp+2}, s{r}, {i+1}" for i, r in enumerate(sregs[1:])] + [
            f"s_mov_b64 exec, {(1 << len(sregs)) - 1}",
            f"buffer_store_dwordx2 v[{tmp}:{tmp+1}], v{tmp+2}, s[{SWS}:{SWS+3}], 0 offen {ST}",
            "s_mov_b64 exec, -1"]

UID = [0]
def pieces(soff, pre, post, z):
    ld = [f"buffer_load_dwordx4 v{vD}, s[{SWS}:{SWS+3}], {soff} offen offset:{1024*i} {LDF} lds" for i in range(3)]
    if z is not None: return pre + ld[:3-z] + post
    UID[0] += 1
    return [pre + ld[:1], ld[1:2], [f"s_cbranch_vccnz L_pc{UID[0]}", ld[2], f"L_pc{UID[0]}:"] + post]
SETZ = ["s_cmp_eq_u32 s27, 0", "s_cselect_b64 vcc, 0, -1"]
def kv_dma(i):
    return pieces("s34", [f"s_add_u32 m0, s{sM4}, {i*10240}", "s_add_u32 s34, s34, 10240"], [], None)

aS, aO, aQ1, aK1, aK2, aV, aQ2 = 0, 64, 96, 104, 108, 112, 120
aIDX, aG, aG4, aOA, HP = 122, 123, 124, 126, 128
HPK = 192

SLOTP = [0, 1, 2, 3, 4, 5, 7, 6]
def w4_dma(t, z=None):
    m0 = f"s_add_u32 m0, s{sM4}, {SLOTP[t % 8]*10240}"
    if t < 12:
        return pieces(f"s{sKW}", [m0, "s_nop 0"], [f"s_add_u32 s{sKW}, s{sKW}, 20480", f"s_cmp_eq_u32 s{sKW}, s{sWOB}", f"s_cselect_b32 s{sKW}, s{sW2B}, s{sKW}"], z)
    return pieces("s40", [m0, f"s_add_u32 s40, s{sWOB}, {(t-12)*20480}"], [], z)
def pk_ld(): return [f"buffer_load_dwordx4 {vr(PKW[0],4)}, v{vPS}, s[{SW2}:{SW2+3}], 0 offen", f"buffer_load_dwordx4 {vr(PKW[1],4)}, v{vPS+1}, s[{SWO}:{SWO+3}], 0 offen"]
def act_reg(t):
    return HP + 8*t if t < 12 else 8*(t-12)
def act_ld(t, vrem=None, vo2=None):
    r = act_reg(t)
    ld = lambda r, v, so, off=0: f"buffer_load_dwordx4 {vr(r,4)}, v{v}, s[{SWS}:{SWS+3}], {so} offen offset:{off} {LDF}"
    if t < 12:
        return [[ld(r, vA4, f"s{sKH}")],
                [ld(r+4, vA4B, f"s{sKH}"), f"s_add_u32 s{sKH}, s{sKH}, 8192", f"s_cmp_eq_u32 s{sKH}, s{sHL}", f"s_cselect_b32 s{sKH}, s{sHB}, s{sKH}"]]
    if t < 16:
        return [[f"s_add_u32 s41, s{sOB}, {(t-12)*8192}", ld(r, vA4, "s41")], [ld(r+4, vo2, "s41")]]
    return [[ld(r, vrem, f"s{sOR}")], [ld(r+4, vrem, f"s{sOR}", 512)]]

def poll_ld(addr, width, tmp):
    if FS == 3: return [f"buffer_load_dwordx{width} {vr(tmp,width)}, v{addr}, s[{SWS}:{SWS+3}], 0 offen {LDF}"]
    return [f"buffer_load_dwordx2 {vr(tmp+2*i,2)}, v{addr}, s[{SWS}:{SWS+3}], 0 offen offset:{i << FS} {LDF}" for i in range(width//2)]
def spin(a, name, addr, width, tmp, sc, sp=40, mask=None):
    a.label(name)
    a(f"s_mov_b32 s{sc}, {SPIN}")
    a.label(name + "_l")
    for l in poll_ld(addr, width, tmp): a(l)
    a(f"s_sub_u32 s{sc}, s{sc}, 1")
    a(f"s_cmp_eq_u32 s{sc}, 0")
    a(f"s_cbranch_scc1 {name}_ret")
    a("s_waitcnt vmcnt(0)")
    for l in flag_test(tmp, width, sp, mask): a(l)
    a(f"s_cbranch_vccnz {name}_l")
    a(f"s_branch {name}_ret")
def flag_test(tmp, width, sp=40, mask=None):
    r = [f"v_cmp_ne_u64 vcc, s[{sNON}:{sNON+1}], {vr(tmp,2)}"]
    if width == 4:
        r += [f"v_cmp_ne_u64 s[{sp}:{sp+1}], s[{sNON}:{sNON+1}], {vr(tmp+2,2)}", "s_nop 0", f"s_or_b64 vcc, vcc, s[{sp}:{sp+1}]"]
    else:
        r += ["s_nop 0"]
    if mask: r += [f"s_and_b64 vcc, vcc, s[{mask}:{mask+1}]"]
    return r

def phase12(a, cfg, late):
    stamp = cfg["stamp"]
    sK, sM0, sT0, sT1, sT2 = 27, 30, 31, 32, 33
    X = 0; ACC = 160; WB = 192
    vXR = 208; vWR = 212; vWR2 = 214; vXS = 216; vWS = 218; vW1S = 219; vEP = 220
    vT = 228; vL = 236; vGR = 237; vNON = 238
    WBS = [192, 200, 228]
    PK = [224, 240, 244, 248]
    t0, t1, t2, t3, t4, t5, t6 = range(vT, vT+7)
    a(f"v_and_b32 v{vL}, 63, v0")
    a(f"v_lshrrev_b32 v{t0}, 6, v0")
    a("s_and_b32 s31, s2, 7")
    a(f"v_readfirstlane_b32 s24, v{t0}")
    a("s_lshr_b32 s32, s2, 3")
    a("s_and_b32 s33, s32, 7")
    a("s_lshr_b32 s32, s32, 3")
    a("s_and_b32 s25, s31, 1")
    a("s_lshl_b32 s25, s25, 3")
    a("s_add_u32 s25, s25, s33")
    a("s_lshr_b32 s26, s31, 1")
    a("s_lshl_b32 s26, s26, 2")
    a("s_add_u32 s26, s26, s32")
    PF = cfg.get("pf"); CW = cfg.get("cw", "1") == "1"
    if cfg.get("norot") or (PF and not cfg.get("rot2") and not cfg.get("rot4")): a("s_mov_b32 s27, 0")
    elif cfg.get("rot2"):
        a("s_add_u32 s27, s33, s32")
        a("s_and_b32 s27, s27, 1")
        a("s_mul_i32 s27, s27, 5")
    elif cfg.get("rot4"):
        a("s_add_u32 s27, s33, s32")
        a("s_and_b32 s27, s27, 3")
        a("s_mul_i32 s27, s27, 5")
        a("s_lshr_b32 s27, s27, 1")
    else:
        a("s_mul_i32 s33, s33, 5")
        a("s_mul_i32 s32, s32, 10")
        a("s_add_u32 s27, s33, s32")
        a("s_lshr_b32 s27, s27, 2")
        a("s_cmp_ge_u32 s27, 10")
        a("s_cselect_b32 s31, 10, 0")
        a("s_sub_u32 s27, s27, s31")
    a("s_lshl_b32 s31, s26, 2")
    a("s_mul_i32 s28, s26, 3")
    a("s_add_u32 s28, s28, 12")
    a("s_min_u32 s28, s28, s31")
    a("s_lshl_b32 s30, s24, 11")
    a(f"s_lshl_b32 s31, s25, 7")
    a(f"s_lshl_b32 s32, s24, 4")
    a(f"s_add_u32 s31, s31, s32")
    a(f"v_lshrrev_b32 v{t0}, 3, v{vL}")
    a(f"v_lshrrev_b32 v{t1}, 4, v{vL}")
    a(f"v_and_b32 v{t2}, 7, v{vL}")
    a(f"v_xor_b32 v{t2}, v{t2}, v{t1}")
    a(f"v_add_u32 v{t0}, s31, v{t0}")
    a(f"v_mul_u32_u24 v{t0}, 1280, v{t0}")
    a(f"v_lshl_add_u32 v{vXS}, v{t2}, 4, v{t0}")
    a(f"v_xor_b32 v{vXS+1}, 64, v{vXS}")
    a(f"v_add_u32 v{vXS+1}, {8*1280}, v{vXS+1}")
    a(f"v_bfe_u32 v{t4}, v{vL}, 2, 2")
    a(f"v_xor_b32 v{t4}, v{t4}, v{t1}")
    a(f"v_and_b32 v{t2}, 3, v{vL}")
    a(f"v_lshlrev_b32 v{t2}, 4, v{t2}")
    a(f"v_lshl_add_u32 v{t2}, v{t4}, 6, v{t2}")
    a(f"s_lshl_b32 s31, s24, 3")
    a(f"v_add_u32 v{t0}, s31, v{t1}")
    a(f"v_mul_u32_u24 v{t3}, 3840, v{t0}")
    a(f"s_lshl_b32 s31, s28, 6")
    a(f"v_add3_u32 v{vWS}, v{t3}, v{t2}, s31")
    a(f"v_cmp_eq_u32 vcc, 3, v{t4}")
    a(f"v_mov_b32 v{t5}, 0x{OOB:x}")
    a(f"s_cmp_ge_u32 s26, 12")
    a(f"s_cselect_b64 s[36:37], vcc, 0")
    a(f"s_lshr_b32 s34, s24, 2")
    a(f"v_cndmask_b32 v{vWS}, v{vWS}, v{t5}, s[36:37]")
    a("s_waitcnt lgkmcnt(0)")
    srd_tail(a, SX, 2048*1280); srd_tail(a, SW, 640*3840)

    def adv_k():
        return [f"s_add_u32 s{sK}, s{sK}, 1", f"s_cmp_eq_u32 s{sK}, 10", f"s_cselect_b32 s{sK}, 0, s{sK}"]
    def dma_groups(t):
        slot = t % 4
        g = []
        if t < 10:
            g.append([f"s_lshl_b32 s{sT0}, s{sK}, 7", f"s_add_u32 m0, s{sM0}, {slot*16384}", f"s_mul_i32 s{sT1}, s{sK}, {64*3840}",
                      f"buffer_load_dwordx4 v{vXS}, s[{SX}:{SX+3}], s{sT0} offen lds"])
            g.append([f"s_add_u32 m0, s{sM0}, {slot*16384+1024}", f"s_add_u32 s{sT2}, s{sT1}, {4*3840}",
                      f"buffer_load_dwordx4 v{vXS+1}, s[{SX}:{SX+3}], s{sT0} offen lds"])
            g.append([f"s_add_u32 m0, s{sM0}, {65536+slot*16384}", adv_k()[0],
                      f"buffer_load_dwordx4 v{vWS}, s[{SW}:{SW+3}], s{sT1} offen lds"])
            g.append([f"s_add_u32 m0, s{sM0}, {65536+slot*16384+1024}"] + adv_k()[1:] + [
                      f"buffer_load_dwordx4 v{vWS}, s[{SW}:{SW+3}], s{sT2} offen lds"])
        elif t < 15:
            for half in range(2):
                base = (65536 if half == 0 else 0) + slot*16384
                g.append([f"s_mul_i32 s{sT1}, s{sK}, {64*3072}", f"s_add_u32 m0, s{sM0}, {base}", f"s_add_u32 s{sT2}, s{sT1}, {4*3072}",
                          f"buffer_load_dwordx4 v{vW1S}, s[{SW1}:{SW1+3}], s{sT1} offen lds"])
                g.append([f"s_add_u32 m0, s{sM0}, {base+1024}"] + adv_k() + [
                          f"buffer_load_dwordx4 v{vW1S}, s[{SW1}:{SW1+3}], s{sT2} offen lds"])
        return g
    a("s_mov_b32 s29, s27")
    stamp(a, "karg")
    for g in dma_groups(0):
        for l in g: a(l)
    a("s_and_b32 s35, s24, 3")
    a("s_cmp_ge_u32 s26, 12")
    a("s_cselect_b32 s38, s34, 0")
    srd_tail(a, SG, 1280)
    a("s_cmp_eq_u32 s38, 1")
    a("s_cbranch_scc1 L_gate")
    a.label("L_gate_ret")
    def gate(a):
        u0, u1, u2 = vEP, vEP+1, vEP+2
        a.label("L_gate")
        a(f"s_lshl_b32 s31, s29, 3")
        for i in range(2):
            a(f"v_add_u32 v{u0}, {64*i}, v{vL}")
            a(f"v_add_u32 v{u1}, s31, v{u0}")
            a(f"v_subrev_u32 v{u2}, 80, v{u1}")
            a(f"v_cmp_le_u32 vcc, 80, v{u1}")
            a(f"s_lshl_b32 s32, s35, 11")
            a(f"s_add_u32 m0, s32, {131072 + 1024*i}")
            a(f"v_cndmask_b32 v{u1}, v{u1}, v{u2}, vcc")
            a(f"v_lshlrev_b32 v{u1}, 4, v{u1}")
            a(f"v_cmp_le_u32 vcc, 80, v{u0}")
            a("s_nop 1")
            a(f"v_cndmask_b32 v{u1}, v{u1}, v{t5}, vcc")
            a(f"buffer_load_dwordx4 v{u1}, s[{SG}:{SG+3}], 0 offen lds")
        a("s_branch L_gate_ret")
    late.append(gate)
    a("s_barrier")
    for g in dma_groups(1):
        for l in g: a(l)
    stamp(a, "dma1")
    srd_tail(a, SW1, 640*3072); srd_tail(a, SWS, WS_END); srd_tail(a, SDBG, 256)
    a("s_or_b32 s31, s2, s24")
    a("s_cmp_eq_u32 s31, 0")
    a("s_cbranch_scc1 L_tag")
    a.label("L_tag_ret")
    def tag(a):
        a.label("L_tag")
        a(f"s_memrealtime s[{sNON}:{sNON+1}]")
        a(f"v_mov_b32 v{vEP+2}, 0")
        a("s_waitcnt lgkmcnt(0)")
        a(f"s_or_b32 s31, s{sNON}, 1")
        a(f"v_mov_b32 v{vEP}, s31")
        a(f"v_mov_b32 v{vEP+1}, s{sNON+1}")
        a("s_mov_b64 exec, 1")
        a(f"buffer_store_dwordx2 v[{vEP}:{vEP+1}], v{vEP+2}, s[{SDBG}:{SDBG+3}], 0 offen {ST}")
        a("s_mov_b64 exec, -1")
        a("s_branch L_tag_ret")
    late.append(tag)
    a(f"v_mul_u32_u24 v{t3}, 3072, v{t0}")
    a(f"s_mul_i32 s31, s26, 192")
    a(f"v_add3_u32 v{vW1S}, v{t3}, v{t2}, s31")
    a(f"v_cmp_eq_u32 vcc, 3, v{t4}")
    a(f"v_and_b32 v{t0}, 31, v{vL}")
    a(f"s_lshl_b32 s31, s35, 5")
    a(f"v_cndmask_b32 v{vW1S}, v{vW1S}, v{t5}, vcc")
    a(f"v_mul_u32_u24 v{t1}, 43, v0")
    a(f"v_lshrrev_b32 v{t1}, 8, v{t1}")
    a(f"v_mul_u32_u24 v{t2}, {3072-6*128}, v{t1}")
    a(f"v_lshl_add_u32 v{t2}, v0, 7, v{t2}")
    a("s_lshr_b32 s32, s2, 3"); a(f"s_mul_i32 s32, s32, {20*3072}")
    a("s_bfe_u32 s33, s2, 0x20001"); a("s_mul_i32 s33, s33, 768"); a("s_add_u32 s32, s32, s33")
    a(f"v_cmp_gt_u32 vcc, 120, v0")
    a(f"v_add_u32 v{t2}, s32, v{t2}")
    a("s_nop 0")
    a(f"v_cndmask_b32 v{vP1}, v{t5}, v{t2}, vcc")
    if CW:
        a("s_getpc_b64 s[98:99]")
        a.label("L_pc")
        a(f"s_sub_u32 s98, s98, L_pc-{NAME}_kernel"); a("s_subb_u32 s99, s99, 0")
        n = f"((L_code_end-{NAME}_kernel+2047)/2048)"
        a("s_lshr_b32 s32, s2, 3"); a(f"s_mul_i32 s32, s32, {n}")
        a(f"v_min_u32 v{t1}, {n}-1, v0")
        a(f"v_add_u32 v{t1}, s32, v{t1}")
        a(f"v_lshlrev_b32 v{t1}, 6, v{t1}")
        a(f"v_min_u32 v{vNON+1}, L_code_end-{NAME}_kernel-4, v{t1}")
    if cfg.get("tlb"):
        a(f"v_and_b32 v{t1}, 31, v{vL}")
        a(f"v_min_u32 v{t1}, 24, v{t1}")
        a(f"v_lshlrev_b32 v{t1}, 15, v{t1}")
        a(f"v_min_u32 v{t2}, 29, v{vL}")
        a(f"v_lshlrev_b32 v{t2}, 16, v{t2}")
        a(f"v_cmp_gt_u32 vcc, 32, v{vL}")
        a(f"v_mov_b32 v{t3}, s48"); a(f"v_mov_b32 v{t4}, s46")
        a(f"v_cndmask_b32 v{t1}, v{t1}, v{t2}, vcc")
        a(f"v_cndmask_b32 v{t3}, v{t3}, v{t4}, vcc")
        a(f"v_mov_b32 v{t2}, s49"); a(f"v_mov_b32 v{t4}, s47")
        a(f"v_cndmask_b32 v{t2}, v{t2}, v{t4}, vcc")
        a(f"v_add_co_u32 v{vNON}, vcc, v{t1}, v{t3}")
        a("s_nop 1")
        a(f"v_addc_co_u32 v{vNON+1}, vcc, 0, v{t2}, vcc")
    a(f"v_add_u32 v{t0}, s31, v{t0}")
    a(f"v_bfe_u32 v{t1}, v{t0}, 1, 3")
    a(f"v_lshrrev_b32 v{t2}, 5, v{vL}")
    a(f"v_xor_b32 v{t1}, v{t1}, v{t2}")
    a(f"v_lshlrev_b32 v{t1}, 4, v{t1}")
    a(f"v_lshl_add_u32 v{vXR}, v{t0}, 7, v{t1}")
    for ks in range(1, 4):
        a(f"v_xor_b32 v{vXR+ks}, {ks<<5}, v{vXR}")
    a(f"v_bfe_u32 v{t0}, v{vL}, 2, 2")
    a(f"v_lshl_add_u32 v{t1}, v{t2}, 3, v{t0}")
    a(f"v_lshlrev_b32 v{t1}, 8, v{t1}")
    a(f"v_bfe_u32 v{t3}, v{vL}, 4, 1")
    a(f"v_lshl_add_u32 v{t1}, v{t3}, 5, v{t1}")
    a(f"v_and_b32 v{t3}, 3, v{vL}")
    a(f"v_lshl_add_u32 v{t1}, v{t3}, 3, v{t1}")
    for e in range(2):
        a(f"s_lshl_b32 s31, s34, 1")
        a(f"s_add_u32 s31, s31, {e}")
        a(f"v_xor_b32 v{t3}, s31, v{t0}")
        a(f"v_lshl_add_u32 v{vWR2+e}, v{t3}, 6, v{t1}")
        a(f"v_add_u32 v{vWR+e}, 0x10000, v{vWR2+e}")
    a(f"s_lshl_b32 s31, s35, 11")
    a(f"s_add_u32 s31, s31, 131072")
    a(f"v_lshl_add_u32 v{vGR}, v{t2}, 4, s31")
    if PF:
        vPF = 250
        a("s_lshr_b32 s32, s2, 3")
        a(f"s_add_u32 s33, s24, {PF}")
        a("s_and_b32 s31, s2, 1"); a("s_lshl_b32 s31, s31, 5"); a("s_add_u32 s31, s31, s32"); a(f"s_mul_i32 s31, s31, {32*1280}")
        a("s_lshl_b32 s39, s33, 7"); a("s_add_u32 s31, s31, s39")
        a(f"v_mul_u32_u24 v{t1}, 1280, v{vL}")
        a(f"v_add_u32 v{t1}, s31, v{t1}")
        a("s_lshl_b32 s31, s33, 5"); a("s_add_u32 s31, s31, s32"); a(f"s_mul_i32 s31, s31, {2*3840}")
        a("s_bfe_u32 s39, s2, 0x20001"); a("s_lshl_b32 s39, s39, 10"); a("s_add_u32 s31, s31, s39")
        a(f"v_lshrrev_b32 v{t3}, 3, v{vL}")
        a(f"v_mul_u32_u24 v{t3}, {3840-1024}, v{t3}")
        a(f"v_lshl_add_u32 v{t3}, v{vL}, 7, v{t3}")
        a(f"v_add_u32 v{t3}, s31, v{t3}")
        a("s_cmp_lt_u32 s33, 10"); a("s_cselect_b32 s31, 32, 0"); a("s_cselect_b32 s32, 16, 0")
        a(f"v_cmp_gt_u32 vcc, s31, v{vL}")
        a("s_nop 1")
        a(f"v_cndmask_b32 v{vPF}, v{t5}, v{t1}, vcc")
        a(f"v_cmp_gt_u32 vcc, s32, v{vL}")
        a("s_nop 1")
        a(f"v_cndmask_b32 v{vPF+1}, v{t5}, v{t3}, vcc")
    a("s_and_b32 s31, s2, 7"); a("s_lshr_b32 s33, s2, 6"); a("s_bfe_u32 s32, s2, 0x30003")
    a("s_lshr_b32 s39, s31, 1"); a("s_lshl_b32 s39, s39, 3"); a("s_add_u32 s39, s39, s32")
    a("s_and_b32 s40, s31, 1"); a("s_lshl_b32 s40, s40, 2"); a("s_add_u32 s40, s40, s33")
    a("s_mul_i32 s41, s40, 160")
    a(f"v_mul_u32_u24 v{t1}, 205, v0")
    a(f"v_lshrrev_b32 v{t1}, 11, v{t1}")
    a(f"v_mul_u32_u24 v{t1}, {1280-160}, v{t1}")
    a(f"v_lshl_add_u32 v{t1}, v0, 4, v{t1}")
    a(f"s_mul_i32 s31, s39, {48*1280}"); a("s_add_u32 s31, s31, s41"); a(f"s_mul_i32 s32, s39, {20*1280}"); a("s_add_u32 s32, s32, s41")
    a(f"v_cmp_gt_u32 vcc, 480, v0")
    a(f"v_add_u32 v{t3}, s31, v{t1}")
    a(f"v_add_u32 v{t4}, s32, v{t1}")
    a(f"v_cndmask_b32 v{vPS}, v{t5}, v{t3}, vcc")
    a(f"v_cmp_gt_u32 vcc, 200, v0")
    a("s_nop 1")
    a(f"v_cndmask_b32 v{vPS+1}, v{t5}, v{t4}, vcc")
    a("s_cmp_ge_u32 s26, 10")
    a("s_cbranch_scc1 L_p1_v")
    a("s_cmp_ge_u32 s26, 5")
    a(f"s_cselect_b32 s31, 1, 0")
    a(f"s_lshl_b32 s39, 81920, s31")
    a(f"s_lshl_b32 s40, 5120, s31")
    a("s_cmp_ge_u32 s26, 5")
    a(f"s_cselect_b32 s41, {WS_KV}, {WS_Q}")
    a(f"s_cselect_b32 s42, 20, 0")
    a("s_mul_i32 s40, s40, s25")
    a("s_add_u32 s40, s40, s41")
    a("s_sub_u32 s42, s28, s42")
    a("s_lshl_b32 s31, s34, 1")
    a("s_add_u32 s42, s42, s31")
    a("s_lshl_b32 s42, s42, 2")
    a("s_and_b32 s31, s35, 1")
    a("s_lshl_b32 s31, s31, 8")
    a("s_add_u32 s40, s40, s31")
    a("s_lshr_b32 s31, s35, 1")
    a("s_lshl_b32 s41, s31, 11")
    a("s_lshl_b32 s31, s31, 9")
    a("s_add_u32 s33, s31, 4096")
    a(f"v_and_b32 v{t0}, 15, v{vL}")
    a(f"v_lshl_add_u32 v{t0}, v{t0}, 4, s40")
    a(f"v_add_u32 v{t2}, s42, v{t2}")
    a(f"v_bfe_u32 v{t5}, v{vL}, 4, 1")
    a(f"v_lshl_add_u32 v{t6}, v{t5}, 10, s41")
    a(f"v_mov_b32 v{vGR}, s33")
    QM = [36, 40, 42, 0]
    for i in range(4):
        u0 = vT+7
        a(f"v_add_u32 v{t1}, {2*i}, v{t2}")
        a(f"v_mul_u32_u24 v{t3}, 205, v{t1}")
        a(f"v_lshrrev_b32 v{t3}, 10, v{t3}")
        a(f"v_mul_u32_u24 v{t4}, 5, v{t3}")
        a(f"v_sub_u32 v{t1}, v{t1}, v{t4}")
        a(f"v_cmp_le_u32 vcc, 3, v{t1}")
        a(f"v_cmp_eq_u32 s[{QM[i]}:{QM[i]+1}], 2, v{t1}")
        a(f"v_subrev_u32 v{u0}, 3, v{t1}")
        a(f"v_cndmask_b32 v{t4}, 0, 1, vcc")
        a(f"v_cndmask_b32 v{t1}, v{t1}, v{u0}, vcc")
        a(f"v_cndmask_b32 v{t4}, v{t4}, v{t5}, s[{QM[i]}:{QM[i]+1}]")
        a(f"v_lshl_add_u32 v{t3}, v{t3}, 1, v{t4}")
        a(f"v_mul_lo_u32 v{t3}, v{t3}, s39")
        a(f"v_lshl_add_u32 v{t1}, v{t1}, 9, v{t6}")
        a(f"v_cndmask_b32 v{t1}, v{t1}, v{vGR}, s[{QM[i]}:{QM[i]+1}]")
        a(f"v_add3_u32 v{vEP+i}, v{t0}, v{t3}, v{t1}")
    a(f"v_lshrrev_b32 v{t1}, 1, v{vL}")
    a(f"v_xor_b32 v{t1}, v{t1}, v{vL}")
    a(f"v_and_b32 v{t1}, 1, v{t1}")
    a(f"v_mul_u32_u24 v{vGR}, 24, v{t1}")
    for e in range(2): a(f"v_xor_b32 v{vWR+e}, v{vWR+e}, v{vGR}")
    def ep_v():
        a("s_sub_u32 s42, s28, 40")
        a("s_lshl_b32 s31, s34, 1")
        a("s_add_u32 s42, s42, s31")
        a("s_lshl_b32 s42, s42, 5")
        a("s_mul_i32 s40, s25, 10240")
        a("s_lshr_b32 s31, s35, 1")
        a("s_mul_i32 s31, s31, 2560")
        a("s_add_u32 s40, s40, s31")
        a("s_and_b32 s31, s35, 1")
        a("s_mul_i32 s31, s31, 640")
        a("s_add_u32 s40, s40, s31")
        a(f"s_add_u32 s40, s40, {WS_KV + 5120}")
        a(f"s_mov_b32 s39, 163840")
        a(f"v_and_b32 v{t0}, 31, v{vL}")
        a(f"v_mul_u32_u24 v{t2}, 320, v{t2}")
        a(f"v_add_u32 v{t2}, s40, v{t2}")
        for e in range(2):
            a(f"v_add_u32 v{t1}, s42, v{t0}")
            if e: a(f"v_add_u32 v{t1}, 32, v{t1}")
            a(f"v_mul_u32_u24 v{t3}, 3277, v{t1}")
            a(f"v_lshrrev_b32 v{t3}, 16, v{t3}")
            a(f"v_mul_u32_u24 v{t4}, 20, v{t3}")
            a(f"v_sub_u32 v{t1}, v{t1}, v{t4}")
            a(f"v_mul_lo_u32 v{t3}, v{t3}, s39")
            a(f"v_lshl_add_u32 v{t1}, v{t1}, 4, v{t2}")
            a(f"v_add_u32 v{vEP+2*e}, v{t1}, v{t3}")
            a(f"v_add_u32 v{vEP+2*e+1}, 1280, v{vEP+2*e}")

    def p1_reads(variant, step):
        t, ks = divmod(step, 4)
        slot = t % 4; wb = WBS[step % 3]
        r = [f"ds_read_b128 {vr(X+4*step,4)}, v{vXR+ks} offset:{slot*16384}"]
        for e in range(2):
            if variant == "VG" and e == 1:
                r.append(f"ds_read_b128 {vr(wb+4,4)}, v{vGR} offset:{t*128+ks*32}")
            else:
                for u in range(2):
                    r.append(f"ds_read_b64_tr_b16 {vr(wb+4*e+2*u,2)}, v{vWR+e} offset:{slot*16384+ks*4096+u*1024}")
        return r
    def mf(acc, A, B, first):
        return f"v_mfma_f32_32x32x16_bf16 {vr(acc,16)}, {vr(A,4)}, {vr(B,4)}, " + ("0" if first else vr(acc,16))
    class LQ:
        def __init__(self, p1=False): self.q = []; self.p1 = p1
        def rd(self, lines, tag):
            for l in lines:
                if cfg.get("x_nox") and "b128" in l: l = "s_nop 0"
                elif cfg.get("x_now") and "_tr_" in l and "offset" in l and self.p1: l = "s_nop 0"
                else: self.q.append(tag)
                a(l)
        def wait(self, tag):
            if tag not in self.q: return
            n = len(self.q) - 1 - max(i for i, x in enumerate(self.q) if x == tag)
            a(f"s_waitcnt lgkmcnt({min(n, 15)})")
    uid = [0]
    def site(stage, sg, extra=None):
        uid[0] += 1
        a(f"s_cmp_eq_u32 s34, {sg}")
        a(f"s_cbranch_scc0 L_site{uid[0]}")
        for g in dma_groups(stage):
            for l in g:
                if cfg.get("x_nodma") and stage < 10 and l.startswith("buffer_load"): l = l.replace(f"v{vXS},", f"v{vNON},").replace(f"v{vXS+1},", f"v{vNON},").replace(f"v{vWS},", f"v{vNON},")
                if cfg.get("x_skipdma") and stage < 10 and l.startswith("buffer_load"): continue
                a(l)
        for l in extra or []: a(l)
        a.label(f"L_site{uid[0]}")
    TAGT = int(cfg.get("tagt", 5)); assert TAGT <= 6
    NOLG = cfg.get("nolg")
    def p1_main(variant):
        for g in dma_groups(2):
            for l in g: a(l)
        xl = {TAGT: ([f"buffer_load_dwordx2 v[{vNON}:{vNON+1}], off, s[{SDBG}:{SDBG+3}], 0"], 2)}
        WT = int(cfg.get("wt", 2)); W1T = int(cfg.get("w1t", 4)); assert WT < TAGT and len({WT, W1T, TAGT}) == 3
        if CW: xl[WT] = ([f"global_load_dword v{vNON}, v{vNON+1}, s[98:99]"], 3 if WT >= 0 else 2)
        if WT < 0: a(xl[WT][0][0])
        if cfg.get("warm", "1") != "0": xl[W1T] = ([f"buffer_load_dword v{vP1}, v{vP1}, s[{SW1}:{SW1+3}], 0 offen"], 3); assert W1T < TAGT
        if PF:
            a(f"buffer_load_dword v{vPF}, v{vPF}, s[{SX}:{SX+3}], 0 offen")
            a(f"buffer_load_dword v{vPF+1}, v{vPF+1}, s[{SW}:{SW+3}], 0 offen")
        stamp(a, "p1_pre")
        a(f"s_waitcnt vmcnt({(10 if PF else 8) + (-1 in xl)})")
        a("s_barrier")
        stamp(a, "p1_first")
        if cfg.get("x_nodma"): a(f"v_mov_b32 v{vNON}, 0x{OOB:x}")
        lq = LQ(True)
        for st in range(2):
            rd = p1_reads(variant, st); lq.rd(rd[:3], (st, 0)); lq.rd(rd[3:], (st, 1))
        if variant != "VG": site(3, 0)
        for step in range(40):
            t, ks = divmod(step, 4)
            rd = p1_reads(variant, step+2) if step < 38 else []
            for e in range(2):
                w = WBS[step % 3]+4*e; x = X+4*step
                swap = (variant == "VV") or (variant == "VG" and e == 0)
                lq.wait((step, e))
                a(mf(ACC+16*e, x if swap else w, w if swap else x, step == 0))
                if ks == 2 and e == 0:
                    site(t+3, 1, xl.get(t-1, [None])[0] if t else None)
                    stamp(a, f"p1_p{t}")
                    a(f"s_waitcnt vmcnt({8 + (2 if PF and t < 2 else 0) + sum(x < t <= x+n for x, (_, n) in xl.items())})" + ("" if NOLG else " lgkmcnt(0)"))
                    a("s_barrier")
                    stamp(a, f"p1_b{t}")
                lq.rd(rd[:3] if e == 0 else rd[3:], (step+2, e))
                if ks == 2 and e == 0 and variant != "VG":
                    site(t+4, 0, xl.get(t, [None])[0])
        site(13, 1)
        stamp(a, "p1_end")
    def v_epilogue(e):
        for s in range(2):
            d = PK[2*e+s]
            for c in range(4):
                r = ACC + 16*e + 8*s + 2*c
                a(f"v_cvt_pk_bf16_f32 v{d+c}, v{r}, v{r+1}")
            a("s_nop 1")
            a(f"v_permlane32_swap_b32 v{d}, v{d+2}")
            a(f"v_permlane32_swap_b32 v{d+1}, v{d+3}")
            if 2*e+s < STE: a(qst(2*e+s))

    STE = int(cfg.get("ste", 4))
    qst = lambda i: f"buffer_store_dwordx4 {vr(PK[i],4)}, v{vEP+i}, s[{SWS}:{SWS+3}], 0 offen {ST}"
    p1_main("QK")
    a("s_cmp_ge_u32 s26, 5")
    a(f"s_cselect_b32 s31, 1.0, 0x{QSCALE:x}")
    for e in range(2): a(f"v_xor_b32 v{vWR+e}, v{vWR+e}, v{vGR}")
    a("s_nop 5")
    for i in range(4):
        r = ACC + 8*i; d = PK[i]
        for c in range(8): a(f"v_mul_f32 v{r+c}, s31, v{r+c}")
        for c in range(4): a(f"v_cvt_pk_bf16_f32 v{d+c}, v{r+2*c}, v{r+2*c+1}")
        a(f"s_mov_b64 exec, s[{QM[i]}:{QM[i]+1}]")
        a("s_nop 0")
        a(f"v_permlane16_swap_b32 v{d}, v{d+2}")
        a(f"v_permlane16_swap_b32 v{d+1}, v{d+3}")
        a("s_mov_b64 exec, -1")
        if i < STE: a(qst(i))
    def vpart(a2):
        assert a2 is a
        a.label("L_p1_v")
        ep_v()
        a("s_cmp_eq_u32 s38, 1")
        a("s_cbranch_scc1 L_p1_vg")
        p1_main("VV")
        a("s_nop 7"); a("s_nop 1")
        v_epilogue(0); v_epilogue(1)
        a("s_branch L_p2")
        a.label("L_p1_vg")
        for i in (2, 3): a(f"v_mov_b32 v{vEP+i}, 0x{OOB:x}")
        p1_main("VG")
        a("s_nop 7"); a("s_nop 1")
        v_epilogue(0)
        for i in range(2, STE): a(qst(i))
        z = ACC + 16
        a(f"v_cvt_pk_bf16_f32 v{z}, v{z}, v{z}")
        a(f"v_and_b32 v{z}, 0xffff0000, v{z}")
        a(f"v_mul_f32 v{z}, 0x{f32bits(-math.log2(math.e)):x}, v{z}")
        a(f"v_exp_f32 v{z}, v{z}")
        a("s_nop 0")
        a(f"v_add_f32 v{z}, 1.0, v{z}")
        a(f"v_rcp_f32 v{z}, v{z}")
        a(f"s_lshl_b32 s31, s25, 9")
        a(f"s_lshl_b32 s32, s35, 7")
        a(f"v_cvt_pk_bf16_f32 v{z}, v{z}, v{z}")
        a(f"v_and_b32 v{z}, 0xffff0000, v{z}")
        a(f"s_add_u32 s31, s31, s32")
        a(f"s_add_u32 s31, s31, {WS_G}")
        a(f"v_and_b32 v{z+1}, 31, v{vL}")
        a(f"v_lshlrev_b32 v{z+1}, 2, v{z+1}")
        a("s_cmp_eq_u32 s26, 15")
        a("s_cbranch_scc0 L_p2")
        a(f"buffer_store_dword v{z}, v{z+1}, s[{SWS}:{SWS+3}], s31 offen {ST}")
        a("s_branch L_p2")
    late.insert(0, vpart)
    a.label("L_p2")
    a(f"v_readfirstlane_b32 s{sNON}, v{vNON}")
    a(f"v_readfirstlane_b32 s{sNON+1}, v{vNON+1}")
    a("s_nop 0")
    a(f"s_cmp_eq_u32 s{sNON}, 0")
    a("s_cbranch_scc1 L_tagw")
    a.label("L_tagw_ret")
    def tagw(a):
        a.label("L_tagw")
        a(f"s_mov_b32 s31, {SPIN}")
        a.label("L_tagw_l")
        a(f"buffer_load_dwordx2 v[{vNON}:{vNON+1}], off, s[{SDBG}:{SDBG+3}], 0 {LDF}")
        a("s_sub_u32 s31, s31, 1")
        a("s_cmp_eq_u32 s31, 0")
        a("s_cbranch_scc1 L_tagw_ret")
        a("s_waitcnt vmcnt(0)")
        a(f"v_readfirstlane_b32 s{sNON}, v{vNON}")
        a(f"v_readfirstlane_b32 s{sNON+1}, v{vNON+1}")
        a("s_nop 0")
        a(f"s_cmp_eq_u32 s{sNON}, 0")
        a("s_cbranch_scc1 L_tagw_l")
        a("s_branch L_tagw_ret")
    late.append(tagw)
    def p2_reads(ns, step):
        D, rem = divmod(step, 8); half, ks = divmod(rem, 4)
        slot = (10 + D) % 4; wb = WBS[step % 3]
        base = vWR if half == 0 else vWR2
        return [f"ds_read_b64_tr_b16 {vr(wb+4*e+2*u,2)}, v{base+e} offset:{slot*16384+ks*4096+u*1024}" for e in range(ns) for u in range(2)]
    fillA, fillB = setup_later(cfg, vL)
    MA = 48 if cfg.get("two", "0") in "12" else None
    SIG = int(cfg.get("sig1", 10)); POLL1 = int(cfg.get("poll1", 30)); CHK1 = int(cfg.get("chk1", 38))
    POLLB = int(cfg.get("pollb", 34)); vPB = 16; assert not POLLB or POLL1 < POLLB < CHK1
    STS = {2: [int(x) for x in cfg.get("sts", "0,1,2,3").split(",")], 1: [0, 1, 2, 3]}
    def first_loads(ns):
        r = [f"buffer_load_dwordx4 {vr(aQ1,4)}, v{vD}, s[{SWS}:{SWS+3}], s32 offen {LDF}",
             f"buffer_load_dwordx4 {vr(aQ1+4,4)}, v{vD}, s[{SWS}:{SWS+3}], s32 offen offset:1024 {LDF}",
             f"buffer_load_dwordx4 {vr(aK2,4)}, v12, s[{SWS}:{SWS+3}], s33 offen {LDF}"]
        if ns == 1:
            ld = lambda i: f"buffer_load_dwordx4 v{vD}, s[{SWS}:{SWS+3}], s37 offen offset:{1024*i} {LDF} lds"
            r = ["s_mov_b32 m0, s35", "s_add_u32 s37, s35, s36"] + [ld(i) for i in range(4)] + ["s_add_u32 m0, s35, 4096", "s_add_u32 s37, s37, 4096", ld(0)] + r
        return r
    def p2_main(ns):
        stamp(a, "p2_start")
        vm = VM()
        for st in (11, 12, 13): vm.add(f"s{st}", 4)
        vm.add("st", STE)
        lq = LQ()
        for st in range(2):
            rd = p2_reads(ns, st)
            for e in range(ns): lq.rd(rd[2*e:2*e+2], (st, e))
        fa = list(fillA); fb = list(fillB); PKS = [int(x) for x in cfg.get("pks", "11,12").split(",")]
        pkl = pk_ld()[::-1] if cfg.get("pke", "2") == "2" else []; assert PKS[0] >= 4 and PKS[1] >= 7
        xw = cfg.get("x_pkw")
        a(f"s_mov_b64 s[{SW2}:{SW2+1}], s[{'12:13' if xw else '46:47'}]"); a(f"s_mov_b32 s{SW2+2}, {1536*1280}")
        a(f"s_mov_b64 s[{SWO}:{SWO+1}], s[{'12:13' if xw else '48:49'}]"); a(f"s_mov_b32 s{SWO+2}, {640*1280}")
        for step in range(40):
            D, rem = divmod(step, 8)
            rd = p2_reads(ns, step+2) if step < 38 else []
            for e in range(ns):
                lq.wait((step, e))
                a(mf(ACC+16*e, WBS[step % 3]+4*e, X+4*step, step == 0))
                bar = rem == 6 and D < 4
                if e == 0 and (bar or step == SIG):
                    need = ([f"s{11+D}"] if bar else []) + (["st"] if step == SIG else [])
                    stamp(a, f"p2_p{D}" if bar else "p2_ps")
                    a(f"s_waitcnt vmcnt({vm.after(*need)})" + (" lgkmcnt(0)" if (D == 0 and not NOLG) else ""))
                    a("s_barrier")
                    stamp(a, f"p2_b{D}" if bar else "p2_bs")
                lq.rd(rd[2*e:2*e+2], (step+2, e))
                if e == 0 and step == 6:
                    for g in dma_groups(14):
                        for l in g: a(l)
                    vm.add("s14", 4)
                if e == 0 and step == SIG and ns == 1:
                    assert not any(f"s{sF1}," in l for l in fa)
                    for l in flag_store([sF1], 8): a(l)
                    vm.add("flag")
                if e == ns-1 and step in STS[ns][:4-STE]:
                    a(qst(STE + STS[ns].index(step)))
                    vm.add("st")
                poll = "\n".join(poll_ld(vP1, 4, vEP))
                if e == 0 and step == POLL1 and ns == 1:
                    assert not (fa + fb)[:1] or "cselect" not in (fa + fb)[0]
                    a("s_cmp_eq_u32 s24, 4"); a("s_cbranch_scc0 L_p1s")
                    for i in (0, 2): a(f"v_mov_b32 v{vEP+i}, 0")
                    a(poll)
                    a.label("L_p1s")
                if POLLB and e == 0 and step == POLLB and ns == 1:
                    assert not (fa + fb)[:1] or "cselect" not in (fa + fb)[0]
                    a("s_cmp_eq_u32 s24, 4"); a("s_cbranch_scc0 L_pbs")
                    for l in poll_ld(vP1, 4, vPB): a(l)
                    a.label("L_pbs")
                if e == 0 and step == CHK1:
                    assert not fa and CHK1 >= 31
                    a(f"v_mov_b32 v14, {139264}")
                    if ns == 1:
                        a("s_cmp_eq_u32 s24, 4"); a("s_cbranch_scc0 L_c1s")
                        if cfg.get("blk"): a("s_waitcnt vmcnt(0)")
                        for l in flag_test(vEP, 4, 46, MA): a(l)
                        a("s_or_b32 s14, vcc_lo, vcc_hi")
                        a("v_mov_b32 v13, s14")
                        a("s_mov_b64 exec, 1")
                        a("ds_write_b32 v14, v13")
                        a("s_mov_b64 exec, -1")
                        a(poll)
                        a("s_waitcnt lgkmcnt(0)")
                        a.label("L_c1s")
                    a("s_barrier")
                    lq.rd(["ds_read_b32 v13, v14"], "chk")
                if e == 0 and step == CHK1+1:
                    lq.wait("chk")
                    a("v_readfirstlane_b32 s14, v13")
                    stamp(a, "chk"); stamp(a, "val_s14")
                    a("s_cmp_eq_u32 s14, 0")
                    a(f"s_cbranch_scc0 L_early{ns}")
                    for l in first_loads(ns): a(l)
                    a.label(f"L_early{ns}")
                while e == 0 and pkl and step == PKS[2-len(pkl)]:
                    assert any(f"v{vKA}," in l for l in fa)
                    a(pkl.pop(0)); vm.add("pk")
                if step >= 7:
                    for _ in range(8 // ns):
                        if fa: a(fa.pop(0))
                        elif fb and step > max(STS[2]): a(fb.pop(0))
        assert not fa and not fb and not pkl, (fa, fb)
        stamp(a, "p2_end")
        def latecheck():
            a("s_cmp_eq_u32 s14, 0")
            a(f"s_cbranch_scc0 L_late{ns}")
            a.label(f"L_late{ns}_ret")
        if POLLB: latecheck()
        a(f"v_bfe_u32 v{aS}, v{vD}, 4, 5")
        a(f"v_mov_b32 v{aS+1}, 0x3f803f80")
        a(f"v_cmp_eq_u32 vcc, 20, v{aS}")
        for i in range(32): a(f"v_mov_b32 v{aO+i}, 0")
        a(f"v_mov_b32 v{aIDX}, 0xdddddddd")
        for i in range(8): a(f"v_cndmask_b32 v{aV+i}, 0, v{aS+1}, vcc")
        for e in range(ns):
            for s in range(2):
                d = HPK + 8*e + 4*s
                for c in range(4):
                    r = ACC + 16*e + 8*s + 2*c
                    a(f"v_max_f32 v{r}, 0, v{r}")
                    a(f"v_max_f32 v{r+1}, 0, v{r+1}")
                    a(f"v_cvt_pk_bf16_f32 v{d+c}, v{r}, v{r+1}")
        a(f"v_mov_b32 v{HPK+16}, " + (f"v{vD}" if ns == 2 else f"0x{OOB:x}"))
        a(f"v_lshrrev_b32 v2, 2, v12")
        a(f"v_and_b32 v3, 64, v2")
        a(f"v_add_u32 v{aG}, v2, v3")
        a(f"v_bfe_u32 v2, v{vD}, 8, 1")
        a(f"v_mul_u32_u24 v2, {32768-256}, v2")
        a(f"v_add_u32 v{aOA}, v2, v{vD}")
        a("s_lshr_b32 s31, s24, 1")
        for j in range(5):
            if j < 4: a(f"s_xor_b32 s13, s31, {j}"); a("s_lshl_b32 s13, s13, 5")
            a(f"v_add_u32 v{vRA+j}, {'s13' if j < 4 else 128}, v{vR4}")
            a(f"v_add_u32 v{vRA7+j}, {7*10240}, v{vRA+j}")
        a("s_lshl_b32 s31, s24, 6")
        a(f"v_lshrrev_b32 v2, 4, v{vD}")
        a(f"v_add_u32 v2, s31, v2")
        a(f"v_lshlrev_b32 v3, 7, v2")
        a(f"s_mul_i32 s31, s26, {100*128}"); a(f"s_add_u32 s31, s31, s1")
        a(f"v_cmp_gt_u32 vcc, 100, v2")
        a(f"v_add_u32 v3, s31, v3")
        a(f"v_mov_b32 v2, 0x{OOB:x}")
        for i in range(4): a(f"v_mov_b32 v{vSENT+i}, -1")
        a(f"v_cndmask_b32 v{vWARM}, v2, v3, vcc")
        stamp(a, "at_init")
        if not POLLB: latecheck()
        def lateload(a):
            a.label(f"L_late{ns}")
            if ns == 1:
                a("s_cmp_eq_u32 s24, 4")
                a("s_cbranch_scc0 L_w1_ret")
                if POLLB:
                    a("s_waitcnt vmcnt(1)")
                    for l in flag_test(vPB, 4, 46, MA): a(l)
                    a("s_cbranch_vccz L_w1_ret")
                a("s_waitcnt vmcnt(0)")
                for l in flag_test(vEP, 4, 46, MA): a(l)
                a("s_cbranch_vccnz L_w1")
                a.label("L_w1_ret")
            a("s_barrier")
            stamp(a, "chk")
            for l in first_loads(ns): a(l)
            a(f"s_branch L_late{ns}_ret")
            if ns == 1: spin(a, "L_w1", vP1, 4, vEP, 31, 46, MA)
        late.append(lateload)
    a("s_cmp_eq_u32 s34, 0")
    a("s_cbranch_scc0 L_p2_1")
    p2_main(2)
    def p2one(a2):
        a.label("L_p2_1")
        p2_main(1)
        a("s_branch L_p2_done")
    late.insert(0, p2one)
    a.label("L_p2_done")

def setup_later(cfg, vL):
    t0, t1, t2, t3, t4, t5, t6 = range(7)
    A = Asm(); B = Asm()
    a = A
    a(f"v_lshlrev_b32 v{vD}, 4, v{vL}")
    a(f"v_and_b32 v12, 0x1ff, v{vD}")
    a("s_lshl_b32 s31, s25, 2"); a("s_add_u32 s31, s31, s35"); a("s_mul_i32 s31, s31, 98304"); a("s_mul_i32 s32, s26, 3")
    a("s_lshl_b32 s33, s34, 1"); a("s_add_u32 s32, s32, s33"); a("s_lshl_b32 s32, s32, 11"); a("s_add_u32 s31, s31, s32")
    a(f"s_add_u32 s{sHE}, s31, {WS_H}")
    a(f"s_lshl_b32 s39, s25, {FS+4}"); a(f"s_lshl_b32 s40, s26, {FS}"); a("s_add_u32 s39, s39, s40"); a(f"s_add_u32 s39, s39, {FL2}")
    a("s_cmp_eq_u32 s24, 0"); a(f"s_cselect_b32 s{sF2}, s39, 0x{OOB:x}")
    a(f"s_lshl_b32 s39, s26, {FS+4}"); a(f"s_lshl_b32 s40, s25, {FS}"); a("s_add_u32 s39, s39, s40"); a(f"s_add_u32 s39, s39, {FL1}")
    a("s_cmp_eq_u32 s24, 4"); a(f"s_cselect_b32 s{sF1}, s39, 0x{OOB:x}")
    a("s_mov_b32 s27, s34"); a("s_mov_b32 s28, s35")
    a("s_mul_i32 s0, s27, 81920")
    a("s_and_b32 s3, s24, 1"); a("s_sub_u32 s32, 3, s27"); a("s_mul_i32 s32, s32, s3"); a("s_mul_i32 s33, s27, 6"); a("s_add_u32 s12, s32, s33")
    a("s_bfe_u32 s13, s24, 0x10001"); a("s_mul_i32 s32, s13, 81920"); a("s_lshl_b32 s12, s12, 10"); a(f"s_add_u32 s{sM4}, s32, s12")
    a("s_mul_i32 s35, s3, 5120"); a("s_add_u32 s35, s35, s32")
    a("s_mul_i32 s32, s13, 10240"); a("s_add_u32 s12, s12, s32")
    a("s_and_b32 s31, s2, 7"); a("s_lshr_b32 s33, s2, 6"); a("s_bfe_u32 s26, s2, 0x30003")
    a("s_lshl_b32 s25, s31, 2"); a("s_add_u32 s25, s25, s33")
    a("s_mov_b32 s48, 0x11111111"); a("s_lshl_b32 s49, 0x101, s26")
    a(f"s_lshl_b32 s39, s26, {FS+5}"); a(f"s_lshl_b32 s40, s25, {FS}"); a("s_add_u32 s39, s39, s40"); a(f"s_add_u32 s39, s39, {FL3}")
    a("s_cmp_eq_u32 s24, 0"); a(f"s_cselect_b32 s{sF3}, s39, 0x{OOB:x}")
    a(f"v_lshrrev_b32 v{t0}, 4, v{vL}")
    a(f"v_add_u32 v{t0}, 1, v{t0}")
    a(f"v_mul_u32_u24 v{t1}, 640, v{t0}")
    a(f"v_cmp_eq_u32 vcc, 3, v{t0}")
    a(f"s_mul_i32 s39, s25, 20")
    a(f"v_bfe_u32 v{t3}, v{vL}, 3, 1")
    a(f"v_cndmask_b32 v{t1}, v{t1}, 0, vcc")
    a(f"v_mul_u32_u24 v{t3}, 19, v{t3}")
    a(f"v_add3_u32 v{t1}, v{t1}, v{t3}, s39")
    a(f"v_min_u32 v{t1}, 1919, v{t1}")
    a(f"v_lshrrev_b32 v{t1}, 5, v{t1}")
    a(f"v_lshrrev_b32 v{t3}, 2, v{t1}")
    a(f"v_subrev_u32 v{t4}, 12, v{t1}")
    a(f"v_mul_u32_u24 v{t4}, 43, v{t4}")
    a(f"v_lshrrev_b32 v{t4}, 7, v{t4}")
    a(f"v_cmp_le_u32 vcc, 48, v{t1}")
    a(f"v_and_b32 v{t0}, 7, v{vL}")
    a(f"v_lshlrev_b32 v{t0}, {FS+1}, v{t0}")
    a(f"v_cndmask_b32 v{t3}, v{t3}, v{t4}, vcc")
    a(f"v_lshl_add_u32 v{t3}, v{t3}, {FS+4}, v{t0}")
    a(f"v_add_u32 v{vP1}, {FL1}, v{t3}")
    a("s_lshr_b32 s39, s31, 1"); a("s_lshl_b32 s39, s39, 3"); a("s_add_u32 s39, s39, s26")
    a("s_and_b32 s40, s31, 1"); a("s_lshl_b32 s40, s40, 2"); a("s_add_u32 s40, s40, s33")
    a("s_mul_i32 s36, s26, 3"); a("s_lshr_b32 s36, s36, 1"); a("s_mul_i32 s33, s33, 3"); a("s_add_u32 s36, s36, s33")
    a("s_cmp_ge_u32 s36, 12"); a("s_cselect_b32 s33, 12, 0"); a("s_sub_u32 s36, s36, s33")
    a("s_lshr_b32 s33, s24, 1"); a("s_lshl_b32 s31, s33, 11")
    a(f"s_mul_i32 s{sHB}, s39, {2*98304}"); a(f"s_add_u32 s{sHB}, s{sHB}, s31"); a(f"s_add_u32 s{sHB}, s{sHB}, {WS_H}")
    a(f"s_add_u32 s{sHL}, s{sHB}, 98304"); a(f"s_lshl_b32 s{sKH}, s36, 13"); a(f"s_add_u32 s{sKH}, s{sKH}, s{sHB}")
    a(f"s_lshl_b32 s{sOB}, s39, 16"); a(f"s_add_u32 s{sOB}, s{sOB}, s31"); a(f"s_add_u32 s{sOB}, s{sOB}, {WS_O}")
    a(f"s_lshl_b32 s{sOR}, s39, 2"); a(f"s_add_u32 s{sOR}, s{sOR}, s33"); a(f"s_lshl_b32 s{sOR}, s{sOR}, 12"); a(f"s_add_u32 s{sOR}, s{sOR}, {WS_OR}")
    a("s_lshl_b32 s31, s39, 2"); a("s_add_u32 s31, s31, s3")
    a(f"s_lshl_b32 s{sG4}, s31, 6"); a(f"s_add_u32 s{sG4}, s{sG4}, {WS_G}")
    a(f"s_mul_i32 s{sOUTB}, s31, 20480"); a("s_mul_i32 s41, s40, 160"); a(f"s_add_u32 s{sOUTB}, s{sOUTB}, s41")
    a("s_mul_i32 s1, s40, 348160"); a(f"s_add_u32 s1, s1, {WS_WP}")
    a(f"s_add_u32 s{sW2B}, s1, s12"); a(f"s_add_u32 s{sWOB}, s{sW2B}, {12*20480}")
    a(f"s_mul_i32 s{sKW}, s36, 20480"); a(f"s_add_u32 s{sKW}, s{sKW}, s{sW2B}")
    a("s_lshl_b32 s31, s24, 6")
    a(f"v_add_u32 v{t0}, s31, v{vL}")
    a(f"v_mov_b32 v{t5}, 0x{OOB:x}")
    a(f"s_mul_i32 s32, s39, {48*160}"); a("s_add_u32 s32, s32, s1")
    a(f"v_cmp_gt_u32 vcc, 480, v{t0}")
    a(f"v_lshl_add_u32 v{t4}, v{t0}, 4, s32")
    a(f"s_mul_i32 s32, s39, {16*160}"); a(f"s_add_u32 s1, s1, {1536*160}"); a("s_add_u32 s32, s32, s1")
    a(f"v_cndmask_b32 v{vPD}, v{t5}, v{t4}, vcc")
    a("s_and_b32 s33, s39, 28"); a("s_bfe_u32 s36, s39, 0x10001"); a("s_add_u32 s33, s33, s36"); a("s_and_b32 s36, s39, 1"); a("s_lshl_b32 s36, s36, 1")
    a("s_add_u32 s33, s33, s36"); a("s_mul_i32 s33, s33, 640"); a(f"s_add_u32 s33, s33, {(512-16)*160}"); a("s_add_u32 s33, s33, s1")
    a(f"v_mov_b32 v{t3}, s32")
    a(f"v_mov_b32 v{t4}, s33")
    a(f"v_cmp_gt_u32 vcc, 160, v{t0}")
    a("s_nop 1")
    a(f"v_cndmask_b32 v{t3}, v{t4}, v{t3}, vcc")
    a(f"v_cmp_gt_u32 vcc, 200, v{t0}")
    a(f"v_lshl_add_u32 v{t3}, v{t0}, 4, v{t3}")
    a("s_nop 0")
    a(f"v_cndmask_b32 v{vPD+1}, v{t5}, v{t3}, vcc")
    a("s_lshl_b32 s31, s40, 8"); a(f"s_add_u32 s31, s31, {FL4}"); a("s_lshl_b32 s32, s39, 3"); a("s_add_u32 s32, s32, s31")
    a("s_cmp_eq_u32 s24, 0"); a(f"s_cselect_b32 s{sF4}, s32, 0x{OOB:x}")
    a("s_lshr_b32 s32, s39, 1"); a("s_lshl_b32 s32, s32, 7"); a(f"s_add_u32 s32, s32, {FL2}")
    a("s_lshr_b32 s33, s39, 2"); a("s_lshl_b32 s33, s33, 8"); a(f"s_add_u32 s33, s33, {FL3}")
    a(f"v_and_b32 v{t0}, 15, v{vL}")
    a(f"v_and_b32 v{t1}, 7, v{vL}")
    a(f"v_lshl_add_u32 v{t3}, v{t0}, 4, s33")
    a(f"v_lshl_add_u32 v{t4}, v{t1}, 4, s32")
    a(f"v_cmp_gt_u32 vcc, 16, v{vL}")
    a(f"v_lshl_add_u32 v{t0}, v{t0}, 4, s31")
    a("s_nop 0")
    a(f"v_cndmask_b32 v{t3}, v{t4}, v{t3}, vcc")
    a(f"v_cmp_gt_u32 vcc, 32, v{vL}")
    a("s_nop 1")
    a(f"v_cndmask_b32 v{vP2}, v{t0}, v{t3}, vcc")
    a("s_mul_i32 s31, s25, 81920"); a("s_lshl_b32 s32, s26, 1"); a("s_lshr_b32 s33, s28, 1"); a("s_add_u32 s32, s32, s33")
    a("s_mul_i32 s32, s32, 5120"); a("s_add_u32 s31, s31, s32"); a("s_and_b32 s33, s28, 1"); a("s_lshl_b32 s32, s33, 11")
    a("s_add_u32 s32, s32, s31")
    a("s_lshl_b32 s33, s33, 9"); a("s_add_u32 s33, s33, s31"); a("s_add_u32 s33, s33, 4096")
    a("s_lshl_b32 s31, s26, 3"); a("s_lshl_b32 s29, s28, 1"); a("s_add_u32 s29, s31, s29")
    a("s_lshl_b32 s30, s29, 7"); a("s_lshl_b32 s31, s27, 6"); a("s_add_u32 s30, s30, s31"); a(f"s_add_u32 s30, s30, {WS_G}")
    a("s_mul_i32 s36, s25, 163840"); a(f"s_add_u32 s36, s36, {WS_KV}"); a(f"s_add_u32 s34, s36, s{sM4}")
    a("s_mov_b32 s38, 0x000fffff"); a("s_mov_b32 s39, 0x000fffff")
    a(f"s_mov_b64 s[{SOUT}:{SOUT+1}], s[50:51]"); a(f"s_mov_b32 s{SOUT+2}, {2048*1280}")
    a(f"v_lshrrev_b32 v{t2}, 5, v{vL}")
    a(f"v_add_u32 v{vKA}, s0, v{vD}")
    a(f"v_and_b32 v{t0}, 31, v{vL}")
    a(f"v_mul_u32_u24 v{t3}, 320, v{t2}")
    a(f"v_lshl_add_u32 v{t3}, v{t0}, 4, v{t3}")
    a(f"v_add_u32 v{t3}, 5120, v{t3}")
    a(f"v_add_u32 v{vVA}, s0, v{t3}")
    a = B
    a(f"v_and_b32 v{t0}, 15, v{vL}")
    a("s_mul_i32 s31, s13, 5120")
    a("s_add_u32 s31, s31, s0")
    a(f"v_mul_u32_u24 v{t3}, 2560, v{t2}")
    a(f"v_bfe_u32 v{t1}, v{vL}, 2, 3")
    a(f"v_mul_u32_u24 v{t1}, 160, v{t1}")
    a(f"v_and_b32 v{t4}, 3, v{vL}")
    a(f"v_lshl_add_u32 v{t1}, v{t4}, 3, v{t1}")
    a(f"v_add3_u32 v{vR4}, v{t3}, v{t1}, s31")
    a(f"v_lshrrev_b32 v{t3}, 4, v{vL}")
    a(f"v_lshlrev_b32 v{t0}, 4, v{t0}")
    a(f"v_lshl_add_u32 v{vA4}, v{t3}, 9, v{t0}")
    a("s_lshl_b32 s31, s3, 8")
    a(f"v_add_u32 v{vA4}, s31, v{vA4}")
    a(f"v_add_u32 v{vA4B}, 98304, v{vA4}")
    return A.lines, B.lines

def phase3(a, cfg, late):
    stamp = cfg["stamp"]
    S, O, Q1, Q2, K1, K2, V, vIDX, vG = aS, aO, aQ1, aQ2, aK1, aK2, aV, aIDX, aG
    PKE = int(cfg.get("pke", "2"))
    pk_st = [f"buffer_store_dwordx4 {vr(PKW[i],4)}, v{vPD+i}, s[{SWS}:{SWS+3}], 0 offen {ST}" for i in range(2)]
    if PKE == 1:
        for l in pk_ld(): a(l)
    a(f"s_waitcnt vmcnt({2 if PKE == 1 else 0})")
    stamp(a, "at_q")
    if cfg.get("two") == "2":
        for l in ["s_cmp_eq_u32 s24, 4", "s_cbranch_scc0 L_w3_ret"] + flag_test(220, 4, 46) + ["s_cbranch_vccnz L_w3", "L_w3_ret:"]: a(l)
        late.append(lambda a: spin(a, "L_w3", vP1, 4, 220, 31, 46))
    for c in range(2): a(f"v_mov_b32 v{Q2+c}, v{K2+c}")
    a("s_mov_b32 exec_lo, 0")
    for c in range(2): a(f"v_mov_b32 v{Q2+c}, v{K2+2+c}")
    a("s_mov_b64 exec, -1")
    bump = {"k": 0}
    def koff(g, off): return g*10240 + off - bump["k"]
    def rd_k1(T):
        g, tt = divmod(T, 4)
        return f"ds_read_b128 {vr(K1,4)}, v{vKA} offset:{koff(g, tt*1024)}"
    def rd_k2(g):
        return f"ds_read_b128 {vr(K2,4)}, v{vKA} offset:{koff(g, 4096)}"
    def rd_v(T, s):
        g, tt = divmod(T, 4)
        return f"ds_read_b128 {vr(V+4*s,4)}, v{vVA} offset:{koff(g, tt*1280+640*s)}"
    def sreg(T, q): return S + 32*(T % 2) + 16*q
    def b2(T):
        tt = T % 4
        return f"v_mfma_f32_32x32x4_2b_bf16 {vr(sreg(T,0),32)}, {vr(K2+2*(tt&1),2)}, {vr(Q2,2)}, 0 cbsz:1 abid:{tt>>1}"
    def qk(T, q):
        return f"v_mfma_f32_32x32x16_bf16 {vr(sreg(T,q),16)}, {vr(K1,4)}, {vr(Q1+4*q,4)}, {vr(sreg(T,q),16)}"
    def pv(T, q, h):
        return f"v_smfmac_f32_32x32x32_bf16 {vr(O+16*q,16)}, {vr(V+4*h,4)}, {vr(sreg(T,q)+8*h,8)}, v{vIDX}"
    a("s_barrier")
    stamp(a, "at_first")
    a(rd_k2(0)); a(rd_k1(0))
    a("s_lshl_b32 s31, s29, 15"); a("s_lshl_b32 s32, s25, 10"); a("s_add_u32 s32, s32, s31")
    a("s_lshl_b32 s13, s27, 8"); a(f"s_add_u32 s31, s13, {WS_O}"); a("s_add_u32 s32, s32, s31")
    a("s_lshl_b32 s31, s29, 13"); a("s_lshl_b32 s33, s25, 9"); a("s_add_u32 s33, s33, s31")
    a(f"s_add_u32 s31, s13, {WS_OR}"); a("s_add_u32 s33, s33, s31")
    a("s_waitcnt lgkmcnt(1)")
    a(b2(0))
    for l in SETZ: a(l)
    for g in kv_dma(1):
        for l in g: a(l)
    a("s_waitcnt lgkmcnt(0)")
    a("s_nop 7"); a("s_nop 2")
    a(qk(0, 0)); a(qk(0, 1))
    a("s_nop 7")
    vm = VM(); cfg["vm"] = vm
    extra = {u: [] for u in range(64)}
    TWO = cfg.get("two", "0") == "1"
    gld = [f"buffer_load_dword v{aG}, v{aG}, s[{SWS}:{SWS+3}], s30 offen {LDF}"]
    hst = [[f"buffer_store_dwordx4 {vr(HPK+4*i,4)}, v{vD if i < 2 else HPK+16}, s[{SWS}:{SWS+3}], s{sHE} offen offset:{1024*i} {ST}"] for i in range(4)]
    sst = [[f"buffer_store_dwordx4 {vr(vSENT,4)}, v{aOA}, s[{SWS}:{SWS+3}], s32 offen {ST}"],
           ["s_mov_b64 exec, 0xffff", f"buffer_store_dwordx4 {vr(vSENT,4)}, v{vD}, s[{SWS}:{SWS+3}], s33 offen {ST}", "s_mov_b64 exec, -1"]]
    kvs = [g for k in range(2, 8) for g in kv_dma(k)]
    FLU = 22
    sync = {6: ["s_waitcnt vmcnt(8)", "s_barrier"],
            14: ["s_waitcnt vmcnt(17)", "s_barrier"],
            22: ["s_waitcnt vmcnt(0)", "s_barrier"],
            56: ["s_waitcnt vmcnt(0)", "s_barrier"]}
    if not TWO:
        for i, g in enumerate(kvs): extra[i//2].append(g)
        pk = pk_st if PKE in (1, 2) else pk_ld()
        extra[9].append(gld + [pk[0]])
        extra[9].append([pk[1]])
        for i in range(4): extra[10+i].append(hst[i])
        extra[14].append(sst[0]); extra[15].append(sst[1])
        if not PKE:
            extra[17].append(["s_waitcnt vmcnt(6)", pk_st[0]])
            extra[17].append([pk_st[1]])
    else:
        assert PKE == 2
        vEP = 220; FLU = int(cfg.get("flu", 14))
        sts = hst + [[x] for x in pk_st] + sst
        ne = int(cfg.get("ne", 8))
        extra[0].append(["s_cmp_eq_u32 s24, 4", "s_cbranch_scc0 L_p3s"] + poll_ld(vP1, 4, vEP) + ["L_p3s:"])
        u0 = int(cfg.get("stu", 1))
        for i in range(ne): extra[u0 + (i*(6-u0))//ne].append(sts[i])
        sync[6] = [f"s_waitcnt vmcnt({ne})", "s_cmp_eq_u32 s24, 4", "s_cbranch_scc0 L_w3_ret"] + flag_test(vEP, 4, 46) + \
                  ["s_cbranch_vccnz L_w3", "L_w3_ret:"] + SETZ + ["s_barrier"]
        late.append(lambda a: spin(a, "L_w3", vP1, 4, vEP, 31, 46))
        seq = [(g, i % 3 < 2) for i, g in enumerate(kvs[:6])] + [(g, 1) for g in sts[ne:]] + [(g, i % 3 < 2) for i, g in enumerate(kvs[6:])] + [(gld, 1)]
        for i, (g, n) in enumerate(seq): extra[6 + i//2].append(g)
        sync[14] = [f"s_waitcnt vmcnt({sum(n for g, n in seq[3:16])})", "s_barrier"]
        assert FLU == 22 or ne == 8
    POL2 = int(cfg.get("pol2", 31)); CHK2 = int(cfg.get("chk2", 34))
    sync[CHK2] = ["s_waitcnt vmcnt(0)"] + flag_test(HP, 4) + ["s_cbranch_vccnz L_w2", "L_w2_ret:"] + SETZ
    g4 = [f"v_bfe_u32 v{aG4}, v{vD}, 4, 4", f"v_lshlrev_b32 v{aG4}, 2, v{aG4}",
          f"buffer_load_dword v{aG4+1}, v{aG4}, s[{SWS}:{SWS+3}], s{sG4} offen offset:128 {LDF}",
          f"buffer_load_dword v{aG4}, v{aG4}, s[{SWS}:{SWS+3}], s{sG4} offen {LDF}"]
    wrm = [f"buffer_load_dword v{vWARM}, v{vWARM}, s[{SWS}:{SWS+3}], 0 offen {LDF}"]
    extra[CHK2].append(g4)
    if PKE < 3:
        late.append(lambda a: spin(a, "L_w2", vP2, 4, HP, 31))
        extra[FLU].insert(0, flag_store([sF2, sF3, sF4], HP+4) + (extra[FLU].pop(0) if len(extra[FLU]) == 2 else []))
        extra[POL2].append(poll_ld(vP2, 4, HP))
        seq = [g for t in range(2) for g in w4_dma(t)] + [wrm]
        seq += [g for t in range(12) for g in act_ld(t)]
        for i, g in enumerate(seq): extra[CHK2 + 1 + (i*5)//9].append(g)
        for i, g in enumerate(g for t in (2, 3, 4, 5) for g in w4_dma(t)): extra[56 + i//2].append(g)
        for t in (2, 3, 4, 5): vm.add(f"w{t}", 2)
    else:
        lo = lambda ls: ["s_mov_b32 exec_hi, 0"] + ls + ["s_mov_b32 exec_hi, -1"]
        hi = lambda ls: ["s_mov_b32 exec_lo, 0"] + ls + ["s_mov_b32 exec_lo, -1"]
        PT = PKW[1]; P4U = int(cfg.get("p4u", 47)); C4U = int(cfg.get("c4u", 50))
        late.append(lambda a: (spin(a, "L_w2", vP2, 4, HP, 31), spin(a, "L_w4", vP2, 4, PT, 31)))
        extra[22].append(flag_store([sF2, sF3], HP+4))
        for i in range(2): extra[23].append([pk_st[i]])
        extra[31].append(lo(poll_ld(vP2, 4, HP)))
        sync[34] = ["s_waitcnt vmcnt(0)", "s_mov_b32 exec_hi, 0"] + flag_test(HP, 4) + ["s_cbranch_vccnz L_w2", "L_w2_ret:", "s_mov_b32 exec_hi, -1", "s_barrier"]
        extra[34].append(flag_store([sF4], PKW[0]))
        seq = [g for t in range(12) for g in act_ld(t)]
        n = 0
        for u in range(35, 64):
            if u == P4U: extra[u].append(hi(poll_ld(vP2, 4, PT)))
            while seq and len(extra[u]) < 2:
                extra[u].append(seq.pop(0))
                if P4U <= u < C4U: n += 1
                assert u < C4U
        sync[C4U] = [f"s_waitcnt vmcnt({n})", "s_mov_b32 exec_lo, 0"] + flag_test(PT, 4) + ["s_cbranch_vccnz L_w4", "L_w4_ret:", "s_mov_b32 exec_lo, -1"] + SETZ
        sync[56] = ["s_barrier"]
        seq = [wrm] + [g for t in range(4) for g in w4_dma(t)]
        for i, g in enumerate(seq): extra[C4U + i//2].append(g)
        u = max(56, C4U + (len(seq)+1)//2)
        for i, g in enumerate(g for t in (4, 5) for g in w4_dma(t)): extra[u + i//2].append(g)
        for t in range(6): vm.add(f"w{t}", 2)
    if cfg.get("x_noextra"):
        keep = cfg["x_noextra"]
        for k in extra:
            if keep == "lo" and k < 23: continue
            if keep == "hi" and k >= 23: continue
            extra[k] = []
        sync[34] = ["L_w2_ret:"]
        if cfg.get("x_nobar"): sync = {34: sync[34]}
    def E(s, i, j):
        for k in range(i, j): a(f"v_exp_f32 v{s+k}, v{s+k}")
    XF = [int(x) for x in cfg.get("x_ffn", "0,0,0,1").split(",")]
    XP = cfg.get("x_pos", "a")
    pend = []
    def sm(n=1):
        for _ in range(n):
            if pend: a(pend.pop(0))
    for T in range(32):
        g, tt = divmod(T, 4); u = 2*T
        s0, s1 = sreg(T, 0), sreg(T, 1)
        ex0 = list(extra[u]); ex1 = list(extra[u+1])
        def side(ex):
            if ex:
                for l in ex.pop(0): a(l)
        stamp(a, f"u{u}")
        if T > 0: a(pv(T-1, 1, 0))
        for l in sync.get(u, []): a(l)
        if T == 16:
            a(f"v_add_u32 v{vKA}, {4*10240}, v{vKA}"); a(f"v_add_u32 v{vVA}, {4*10240}, v{vVA}")
            bump["k"] = 4*10240
        if tt == 3 and g < 7: a(rd_k2(g+1))
        if T < 31: a(rd_k1(T+1))
        side(ex0)
        E(s0, 0, 4)
        if XP == "a": sm()
        if T > 0: a(pv(T-1, 1, 1))
        side(ex0)
        E(s0, 4, 8)
        sm(9)
        if T < 31:
            if tt == 3: a("s_waitcnt lgkmcnt(1)")
            a(b2(T+1))
        for l in ["s_mov_b64 exec, s[38:39]", rd_v(T, 0), rd_v(T, 1), "s_mov_b64 exec, -1"]: a(l)
        nf = ((T-XF[0]+1)*XF[2])//XF[3] - ((T-XF[0])*XF[2])//XF[3] if XF[0] <= T < XF[1] else 0
        for f in range(nf):
            for uu in range(2): a(f"ds_read_b64_tr_b16 {vr(236+4*f+2*uu,2)}, v{vRA+f} offset:{10240*6 + 1280*uu}")
        E(s0, 8, 16)
        a(f"s_waitcnt lgkmcnt({2*nf})")
        a(pv(T, 0, 0))
        E(s1, 0, 4)
        if nf:
            pend += [f"v_mfma_f32_16x16x32_bf16 {vr(244,4)}, {vr(236+4*(f%2),4)}, {vr(Q1+4*w,4)}, {vr(244,4)}" for f in range(nf) for w in range(2)]
            a("s_waitcnt lgkmcnt(0)")
        if XP == "a": sm()
        if T < 31: a(qk(T+1, 0))
        if XP == "b": sm()
        side(ex1)
        E(s1, 4, 8)
        if XP == "a": sm()
        a(pv(T, 0, 1))
        if XP == "b": sm()
        side(ex1)
        E(s1, 8, 12)
        if XP == "a": sm()
        if T < 31: a(qk(T+1, 1))
        if XP == "b": sm()
        E(s1, 12, 16)
        if XP == "a": sm()
        assert not ex0 and not ex1
    sm(9)
    a(pv(31, 1, 0)); a("s_nop 0"); a(pv(31, 1, 1))
    stamp(a, "at_loopend")
    t0, t1, t2, t3 = K1, K1+1, K1+2, K1+3
    a("s_mul_i32 s31, s28, 2560")
    a(f"s_add_u32 s31, s31, {6*10240 - 4*10240}")
    a(f"v_add_u32 v{t0}, s31, v{vKA}")
    a("s_and_b32 s13, s28, 1"); a("s_lshl_b32 s13, s13, 9"); a("s_lshr_b32 s12, s28, 1"); a("s_lshl_b32 s12, s12, 12")
    a("s_add_u32 s13, s13, s12"); a(f"s_add_u32 s13, s13, {3*10240 - 512}")
    a(f"v_add_u32 v{t2}, 2048, v{t0}")
    a("s_mov_b32 exec_lo, 0")
    a(f"v_add_u32 v{t2}, s13, v{vKA}")
    a("s_mov_b64 exec, -1")
    a("s_mul_i32 s31, s27, 163840")
    a("s_sub_u32 s31, 81920, s31")
    a("s_cmp_eq_u32 s27, 0")
    a(f"v_add_u32 v{t1}, s31, v{t0}")
    a(f"v_add_u32 v{t3}, s31, v{t2}")
    a("s_cbranch_scc0 L_at_z1")
    for c in range(3): a(f"ds_write_b128 v{t0 if c < 2 else t2}, {vr(O+16+4*c,4)} offset:{1024*c if c < 2 else 0}")
    a.label("L_at_zj")
    def z1(a):
        a.label("L_at_z1")
        for c in range(3): a(f"ds_write_b128 v{t0 if c < 2 else t2}, {vr(O+4*c,4)} offset:{1024*c if c < 2 else 0}")
        for c in range(12): a(f"v_mov_b32 v{O+c}, v{O+16+c}")
        a("s_branch L_at_zj")
    late.insert(0, z1)
    a((f"s_waitcnt vmcnt({vm.after('w0')}) " if PKE == 3 else "s_waitcnt ") + "lgkmcnt(0)")
    a("s_barrier")
    for c in range(3): a(f"ds_read_b128 {vr(S+4*c,4)}, v{t1 if c < 2 else t3} offset:{1024*c if c < 2 else 0}")
    a("s_waitcnt lgkmcnt(0)")
    for c in range(12): a(f"v_add_f32 v{O+c}, v{O+c}, v{S+c}")
    a(f"v_mov_b32 v{t2}, v{O+8}")
    a(f"v_mov_b32 v{t3}, v{O+8}")
    a(f"v_add_f32 v{t0}, abs(v{O}), abs(v{O+1})")
    a(f"v_add_f32 v{t0}, v{t0}, abs(v{O+2})")
    a(f"v_permlane32_swap_b32 v{t3}, v{t2}")
    for c in range(3, 12): a(f"v_add_f32 v{t0}, v{t0}, abs(v{O+c})")
    a(f"v_rcp_f32 v{t1}, v{t2}")
    a(f"v_cmp_nle_f32 vcc, 0x{f32bits(2.0**-40):x}, v{t2}")
    a(f"s_mov_b64 s[40:41], vcc")
    a(f"v_cmp_nge_f32 vcc, 0x{f32bits(2.0**100):x}, v{t2}")
    a(f"s_or_b64 s[40:41], s[40:41], vcc")
    a(f"v_cmp_nge_f32 vcc, 0x{f32bits(2.0**126):x}, v{t0}")
    a(f"s_or_b64 s[40:41], s[40:41], vcc")
    if cfg.get("force_fallback"): a("s_mov_b64 s[40:41], -1")
    a("s_cmp_lg_u64 s[40:41], 0")
    a("s_cbranch_scc1 L_at_slow")
    a.label("L_at_store")
    a(f"v_mul_f32 v{t1}, v{t1}, v{vG}")
    for c in range(12): a(f"v_mul_f32 v{O+c}, v{O+c}, v{t1}")
    for c in (4, 5, 0, 1, 2, 3): a(f"v_cvt_pk_bf16_f32 v{S+c}, v{O+2*c}, v{O+2*c+1}")
    for c in (4, 5, 0, 1, 2, 3): a(f"v_min_u32 v{S+c}, -2, v{S+c}")
    a(f"v_permlane16_swap_b32 v{S+4}, v{S+6}")
    a(f"v_permlane16_swap_b32 v{S+5}, v{S+7}")
    a(f"buffer_store_dwordx4 {vr(S,4)}, v{aOA}, s[{SWS}:{SWS+3}], s32 offen {ST}")
    a("s_mov_b64 exec, 0xffff")
    a(f"buffer_store_dwordx4 {vr(S+4,4)}, v{vD}, s[{SWS}:{SWS+3}], s33 offen {ST}")
    a("s_mov_b64 exec, -1")
    vm.add("ost", 2)
    stamp(a, "o_stored")

    def slow(a):
        a.label("L_at_slow")
        NM = 16; QZ = 32
        KA = 44; vV2 = 52; mx = 53
        def qz(qt, tt): return QZ + 4*(tt >> 1) + (2 if (tt & 1) == 0 else 0)
        for c in range(2): a(f"v_mov_b32 v{KA+c}, v{Q2+c}")
        for i in range(10): a(f"v_mov_b32 v{QZ+i}, 0")
        for c in range(2): a(f"v_permlane32_swap_b32 v{Q2+c}, v{KA+c}")
        a("s_cmp_eq_u32 s27, 0")
        a("s_cbranch_scc1 L_slow_z0")
        a("s_nop 0")
        for c in range(2): a(f"v_mov_b32 v{Q2+c}, v{KA+c}")
        for c in range(4): a(f"v_mov_b32 v{Q1+c}, v{Q1+4+c}")
        a.label("L_slow_z0")
        a("s_mov_b32 exec_hi, 0")
        for c in range(2): a(f"v_mov_b32 v{QZ+2+c}, v{Q2+c}")
        a("s_mov_b64 exec, -1")
        a("s_mov_b32 exec_lo, 0")
        for c in range(2): a(f"v_mov_b32 v{QZ+6+c}, v{Q2+c}")
        a("s_mov_b64 exec, -1")
        a("s_mul_i32 s34, s27, 81920")
        a(f"s_add_u32 s34, s34, {4*10240 + 5120}")
        a(f"v_subrev_u32 v{vV2}, s34, v{vVA}")
        a(f"v_mov_b32 v{mx}, 0xff7fffff")
        for i in range(16): a(f"v_mov_b32 v{NM+i}, 0")
        for i in range(16): a(f"v_mov_b32 v{O+i}, 0")
        for ps in range(2):
            a("s_mul_i32 s34, s25, 163840")
            a(f"s_add_u32 s34, s34, {WS_KV}")
            a("s_mov_b32 s35, 16")
            a.label(f"L_slow_loop{ps}")
            a(f"s_add_u32 s36, s34, 4096")
            a(f"buffer_load_dwordx4 {vr(K2,4)}, v{vD}, s[{SWS}:{SWS+3}], s36 offen {LDF}")
            for tt in range(4):
                a(f"buffer_load_dwordx4 {vr(KA,4)}, v{vD}, s[{SWS}:{SWS+3}], s34 offen offset:{1024*tt} {LDF}")
                if ps == 1:
                    a(f"s_add_u32 s36, s34, {5120+1280*tt}")
                    a("s_mov_b64 exec, s[38:39]")
                    a(f"buffer_load_dwordx4 {vr(V,4)}, v{vV2}, s[{SWS}:{SWS+3}], s36 offen {LDF}")
                    a(f"buffer_load_dwordx4 {vr(V+4,4)}, v{vV2}, s[{SWS}:{SWS+3}], s36 offen offset:640 {LDF}")
                    a("s_mov_b64 exec, -1")
                a("s_waitcnt vmcnt(0)")
                a(f"v_mfma_f32_32x32x16_bf16 {vr(S,16)}, {vr(KA,4)}, {vr(Q1,4)}, {vr(NM,16)}")
                a(f"v_mfma_f32_32x32x16_bf16 {vr(S,16)}, {vr(K2,4)}, {vr(qz(0,tt),4)}, {vr(S,16)}")
                a("s_nop 11")
                if ps == 0:
                    for i in range(0, 16, 2): a(f"v_max3_f32 v{mx}, v{mx}, v{S+i}, v{S+i+1}")
                else:
                    for i in range(16): a(f"v_exp_f32 v{S+i}, v{S+i}")
                    a("s_nop 1")
                    for h in range(2):
                        a(f"v_smfmac_f32_32x32x32_bf16 {vr(O,16)}, {vr(V+4*h,4)}, {vr(S+8*h,8)}, v{vIDX}")
                    a("s_nop 3")
            a("s_add_u32 s34, s34, 10240")
            a("s_sub_u32 s35, s35, 1")
            a("s_cmp_lg_u32 s35, 0")
            a(f"s_cbranch_scc1 L_slow_loop{ps}")
            if ps == 0:
                a(f"v_mov_b32 v{t3}, v{mx}")
                a(f"v_mov_b32 v{t1}, v{mx}")
                a("s_nop 1")
                a(f"v_permlane32_swap_b32 v{t3}, v{t1}")
                a("s_nop 1")
                a(f"v_max_f32 v{mx}, v{t3}, v{t1}")
                for i in range(16): a(f"v_sub_f32 v{NM+i}, 0, v{mx}")
        a("s_nop 11")
        a(f"v_mov_b32 v{t2}, v{O+8}")
        a(f"v_mov_b32 v{t3}, v{O+8}")
        a("s_nop 1")
        a(f"v_permlane32_swap_b32 v{t3}, v{t2}")
        a("s_nop 1")
        a(f"v_rcp_f32 v{t1}, v{t2}")
        a("s_nop 0")
        a("s_branch L_at_store")
    late.append(slow)

def phase45(a, cfg, late):
    stamp = cfg["stamp"]; vm = cfg["vm"]
    OA = 0; ACC = 40; WB = 80; NB = 10
    vREM, vMX, vG1, vOUT, vOUT2, vRD, vO2, vPR = 120, 121, 122, 126, 127, 234, 240, 241
    NS = 17; MG = int(cfg.get("mg", 14))
    OS = dict(zip(range(12, 17), [int(x) for x in cfg.get("os", "7,8,9,10,10").split(",")]))
    KB = int(cfg.get("kb", 7))
    F = [(t, j) for t in range(MG) for j in range(5)] + [(t, j) for j in (1, 2, 3, 4, 0) for t in range(MG, NS)]
    def reads(i):
        t, j = F[i]; slot = SLOTP[t % 8]
        return [(f"ds_read_b64_tr_b16 {vr(WB+4*(i%NB)+2*u,2)}, v{(vRA7 if slot == 7 else vRA)+j} offset:{(0 if slot == 7 else slot*10240) + u*1280}", i)
                for u in range(2)]
    lq = []
    def rd(x): a(x[0]); lq.append(x[1])
    def lwait(tag):
        n = len(lq) - 1 - max(i for i, x in enumerate(lq) if x == tag)
        a(f"s_waitcnt lgkmcnt({min(n, 15)})")
    rq = [x for i in range(len(F)) for x in reads(i)]
    for _ in range(10): rd(rq.pop(0))
    def oloads(t0): return [l for tt in range(t0, 17) for g in act_ld(tt, vREM, vO2) for l in g]
    def check(t0, t1):
        r = list(range(act_reg(t0), act_reg(t1-1)+8))
        return [f"v_max3_u32 v{vMX}, v{r[0]}, v{r[1]}, v{r[2]}"] + [f"v_max3_u32 v{vMX}, v{vMX}, v{r[i]}, v{r[min(i+1,len(r)-1)]}" for i in range(3, len(r), 2)]
    CKS = {11: (12, MG), MG-1: (MG, 17)}
    if cfg.get("ck"):
        c = [tuple(int(y) for y in x.split(":")) for x in cfg["ck"].split(",")]
        CKS = {t: (o, c[i+1][1] if i+1 < len(c) else 17) for i, (t, o) in enumerate(c)}
    assert all(t < o0 and t < MG and all(OS[o] < t for o in range(o0, o1)) for t, (o0, o1) in CKS.items())
    fill = {t: [] for t in range(NS)}
    fill[0] = [f"v_add_u32 v{vO2}, 32768, v{vA4}", f"v_and_b32 v{vREM}, 0x600, v{vA4}", f"v_add_u32 v{vREM}, v{vREM}, v{vA4}",
               f"v_bfe_u32 v{vMX}, v{vD}, 4, 4", f"v_mul_u32_u24 v{vMX}, 1280, v{vMX}",
               f"v_bfe_u32 v{vOUT}, v{vD}, 8, 1", f"v_mul_u32_u24 v{vOUT}, {32*1280}, v{vOUT}", f"v_lshrrev_b32 v{vOUT2}, 9, v{vD}",
               f"v_lshl_add_u32 v{vOUT}, v{vOUT2}, 4, v{vOUT}", f"v_add_u32 v{vOUT}, v{vOUT}, v{vMX}",
               f"v_lshrrev_b32 v{vOUT2}, 8, v{vD}", f"v_lshl_add_u32 v{vOUT2}, v{vOUT2}, 3, v{vMX}"]
    fill[1] = [l for w in range(2) for l in (f"v_sub_f32 v{vG1+w}, 1.0, v{aG4+w}", f"v_cvt_pk_bf16_f32 v{vG1+w}, v{vG1+w}, v{vG1+w}",
                                            f"v_and_b32 v{vG1+w}, 0xffff0000, v{vG1+w}")]
    fill[2] = ["s_lshr_b32 s12, s24, 1", "s_mul_i32 s13, s3, 81920", "s_add_u32 s13, s13, 10240", f"v_add_u32 v{vRD}, s13, v{vD}",
               "s_lshl_b32 s31, s12, 10", f"s_add_u32 s31, s31, {24*1024}", f"v_add_u32 v{vRD+4}, s31, v{vRD}"]
    for j in (1, 2, 3):
        fill[3] += [f"s_xor_b32 s31, s12, {j}", "s_mul_i32 s31, s31, 6144", f"v_add_u32 v{vRD+j}, s31, v{vRD}"]
    fill[3] += ["s_mul_i32 s31, s12, 6144", f"v_add_u32 v{vRD+5}, s31, v{vRD}"]
    def scale(j, w): return [f"v_mul_f32 v{ACC+20*w+4*j+i}, v{ACC+20*w+4*j+i}, v{vG1+w}" for i in range(4)]
    def site(t, z):
        ws = [tt for tt in ({0: [6, 7]}.get(t, [t+7])) if tt < NS]
        os_ = [tt for tt in OS if OS[tt] == t]
        if not ws and not os_: return
        a(f"s_cmp_eq_u32 s27, {z}")
        a(f"s_cbranch_scc0 L_s4_{t}_{z}")
        for tt in os_:
            for g in act_ld(tt, vREM, vO2):
                for l in g: a(l)
        for tt in ws:
            for l in w4_dma(tt, z): a(l)
        a.label(f"L_s4_{t}_{z}")
        if z == 1:
            for tt in os_: vm.add(f"o{tt}", 2)
            for tt in ws: vm.add(f"w{tt}", 2)
    wr = []
    fl = []
    for i, (t, j) in enumerate(F):
        plain = t < MG
        if plain and j == 0: fl = list(fill[t])
        for w in range(2):
            k = 2*j + w
            acc = ACC + 20*w + 4*j
            if t == 12:
                if k == 0:
                    for l in scale(0, 0): a(l)
                if k < 9:
                    for l in scale(*divmod(k+1, 2)): a(l)
            if w == 0: lwait(i)
            a(f"v_mfma_f32_16x16x32_bf16 {vr(acc,4)}, {vr(WB+4*(i%NB),4)}, {vr(act_reg(t)+4*w,4)}, " + ("0" if t == 0 else vr(acc,4)))
            if plain and k == 0:
                stamp(a, f"p4_p{t}")
                need = [f"w{tt}" for tt in (range(MG, NS) if t == MG-1 else [t+1]) if f"w{tt}" in vm.q]
                if need: a(f"s_waitcnt vmcnt({vm.after(*need)})")
                a("s_barrier")
                stamp(a, f"p4_b{t}")
            for _ in range(2 if (plain and k == 0) else 0 if (plain and k == 9) else 1):
                if rq: rd(rq.pop(0))
            if plain and k == 0: site(t, 0)
            if plain and k == KB: site(t, 1)
            if plain and t in CKS and k == 2:
                a(f"s_waitcnt vmcnt({vm.after(*[f'o{tt}' for tt in range(*CKS[t])])})")
                stamp(a, f"p4_og{t}")
                fl += check(*CKS[t])
            if plain:
                for _ in range(-(-len(fl) // (10-k))): a(fl.pop(0))
            else:
                are = [x for x in wr if x[1] <= 2*i + w]
                if are: a(are[0][0]); wr.remove(are[0])
                if t == NS-1 and j:
                    wr.append((f"ds_write_b128 v{vRD+j}, {vr(acc,4)} offset:{(3*w + j-1)*1024 if j < 4 else 4096*w}", 2*i + w + (4 if j < 4 else 6)))
        if plain and j == 4 and t in CKS:
            a(f"v_cmp_eq_u32 vcc, -1, v{vMX}")
            a("s_nop 0")
            a(f"s_cbranch_vccnz L_or{t}")
            a.label(f"L_or{t}_ret")
            stamp(a, f"p4_ok{t}")
            if CKS[t][1] == 17:
                a(f"v_swap_b32 v{OA+34}, v{OA+36}"); a(f"v_swap_b32 v{OA+35}, v{OA+37}")
        if t == 11 and j == 4: stamp(a, "p4_end")
    def retry(a):
        for t in CKS:
            a.label(f"L_or{t}")
            a(f"s_mov_b32 s31, {SPIN}")
            a(f"v_bfe_u32 v{vPR}, v{vD}, 4, 5")
            a(f"v_lshlrev_b32 v{vPR}, 9, v{vPR}")
            a("s_lshl_b32 s13, s3, 8")
            a(f"s_and_b32 s41, s{sOR}, 0xffffc000")
            a("s_add_u32 s13, s13, s41")
            a.label(f"L_or{t}_l")
            a("s_sub_u32 s31, s31, 1")
            a("s_cmp_eq_u32 s31, 0")
            a(f"s_cbranch_scc1 L_or{t}_ret")
            a(f"buffer_load_dword v{vMX}, v{vPR}, s[{SWS}:{SWS+3}], s13 offen {LDF}")
            a("s_waitcnt vmcnt(0)")
            a(f"v_cmp_eq_u32 vcc, -1, v{vMX}")
            a("s_nop 0")
            a(f"s_cbranch_vccnz L_or{t}_l")
            for l in oloads(CKS[t][0]): a(l)
            a("s_waitcnt vmcnt(0)")
            for l in check(*CKS[t]): a(l)
            a(f"v_cmp_eq_u32 vcc, -1, v{vMX}")
            a("s_nop 0")
            a(f"s_cbranch_vccnz L_or{t}_l")
            a(f"s_branch L_or{t}_ret")
    late.append(retry)
    for l, _ in wr: a(l)
    stamp(a, "p5_end")
    R = 128
    OF = "".join(" " + x for x in cfg.get("of", "").split(",") if x)
    a("s_lshl_b32 s31, s12, 5")
    a(f"s_add_u32 s31, s31, s{sOUTB}")
    a("s_waitcnt lgkmcnt(0)")
    a("s_barrier")
    for w in range(2):
        for i in range(3): a(f"ds_read_b128 {vr(R+12*w+4*i,4)}, v{vRD+5} offset:{(3*w+i)*1024}")
    a("s_cmp_lt_u32 s12, 2")
    a("s_cbranch_scc0 L_p5_a")
    a("s_lshl_b32 s13, s12, 12")
    a(f"v_add_u32 v{vRD}, s13, v{vRD}")
    a(f"s_mul_i32 s13, s12, {32*1280}")
    a(f"s_add_u32 s13, s13, s{sOUTB}")
    for i in range(4): a(f"ds_read_b128 {vr(R+24+4*i,4)}, v{vRD} offset:{(24+i)*1024}")
    a.label("L_p5_a")
    for w in range(2):
        acc = ACC + 20*w
        a(f"s_waitcnt lgkmcnt({3-3*w})")
        for i in range(4): a(f"v_add_f32 v{R+12*w+i}, v{R+12*w+i}, v{R+12*w+4+i}")
        for i in range(4): a(f"v_add_f32 v{acc+i}, v{acc+i}, v{R+12*w+8+i}")
        for i in range(4): a(f"v_add_f32 v{acc+i}, v{acc+i}, v{R+12*w+i}")
        a(f"v_cvt_pk_bf16_f32 v{OA+2*w}, v{acc}, v{acc+1}")
        a(f"v_cvt_pk_bf16_f32 v{OA+2*w+1}, v{acc+2}, v{acc+3}")
    a("s_nop 1")
    a(f"v_permlane16_swap_b32 v{OA}, v{OA+2}")
    a(f"v_permlane16_swap_b32 v{OA+1}, v{OA+3}")
    a(f"buffer_store_dwordx4 {vr(OA,4)}, v{vOUT}, s[{SOUT}:{SOUT+3}], s31 offen{OF}")
    a("s_cmp_lt_u32 s12, 2")
    a("s_cbranch_scc0 L_p5_end")
    for i in range(4): a(f"v_add_f32 v{R+24+i}, v{R+24+i}, v{R+28+i}")
    for i in range(4): a(f"v_add_f32 v{R+32+i}, v{R+32+i}, v{R+36+i}")
    for i in range(4): a(f"v_add_f32 v{R+24+i}, v{R+24+i}, v{R+32+i}")
    a(f"v_cvt_pk_bf16_f32 v{R+24}, v{R+24}, v{R+25}")
    a(f"v_cvt_pk_bf16_f32 v{R+25}, v{R+26}, v{R+27}")
    a(f"buffer_store_dwordx2 {vr(R+24,2)}, v{vOUT2}, s[{SOUT}:{SOUT+3}], s13 offen offset:128{OF}")
    a.label("L_p5_end")

HEADER = open("cdna_kernels/" + NAME + ".s.ref").read().split("; Override launch")[0]

def kd(name, vgpr, sgpr=100):
    return f""".section .rodata,"a"
.p2align 6
.amdhsa_kernel {name}
  .amdhsa_next_free_vgpr {vgpr}
  .amdhsa_next_free_sgpr {sgpr}
  .amdhsa_accum_offset {(vgpr+3)//4*4}
  .amdhsa_group_segment_fixed_size 0
  .amdhsa_kernarg_size 80
  .amdhsa_user_sgpr_count 2
  .amdhsa_user_sgpr_kernarg_segment_ptr 1
  .amdhsa_system_sgpr_workgroup_id_x 1
.end_amdhsa_kernel
"""

def gen(opts):
    a = Asm()
    k = NAME + "_kernel"
    a(".text"); a(f".globl {k}"); a(".p2align 8"); a(f".type {k},@function"); a.label(k)
    a("s_cmp_ge_u32 s2, 256"); a("s_cbranch_scc1 L_end")
    a(f"s_load_dwordx2 s[{SX}:{SX+1}], s[0:1], 0")
    a(f"s_load_dwordx2 s[{SW}:{SW+1}], s[0:1], 8")
    a(f"s_load_dwordx2 s[{SW1}:{SW1+1}], s[0:1], 32")
    a(f"s_load_dwordx2 s[{SG}:{SG+1}], s[0:1], 48")
    a(f"s_load_dwordx2 s[{SWS}:{SWS+1}], s[0:1], 72")
    a(f"s_load_dwordx2 s[{SDBG}:{SDBG+1}], s[0:1], 64")
    a(f"s_load_dwordx2 s[46:47], s[0:1], 40")
    a(f"s_load_dwordx2 s[48:49], s[0:1], 16")
    a(f"s_load_dwordx2 s[50:51], s[0:1], 56")
    st = Stamps(opts.get("stamps")); st.cyc = opts.get("cyc"); st.dbg = opts.get("dbg"); st(a, "start")
    cfg = dict(opts, stamp=st); late = []
    phase12(a, cfg, late)
    phase3(a, cfg, late)
    phase45(a, cfg, late)
    if st.on: a("s_waitcnt vmcnt(0)")
    st(a, "end"); st.flush(a)
    a.label("L_end"); a("s_endpgm")
    while late: late.pop(0)(a)
    a.label("L_code_end")
    errs = check_linear(a.lines)
    head = HEADER + ("; @launch grid=(256,1,1) block=(512,1,1) lds=163840\n"
                     '.amdgcn_target "amdgcn-amd-amdhsa--gfx950"\n')
    return head + a.text() + kd(k, 256), errs

if __name__ == "__main__":
    out = sys.argv[1] if len(sys.argv) > 1 else "cdna_kernels/" + NAME + ".s"
    opts = {}
    for o in sys.argv[2:]:
        k, _, v = o.partition("=")
        opts[k] = v or True
    txt, errs = gen(opts)
    open(out, "w").write(txt)
    print("written", out, "hazards:", errs, "bytes:", len(txt))
```

```python
import sys, math, struct
from dsl import *

NAME = "gated_mix__mha_block__dense_activation_relu__prompt"
WS_Q  = 0x0
WS_KV = 0x280000
WS_H  = 0x780000
WS_O  = 0xD80000
WS_OR = 0xF80000
WS_G  = 0x1000000
FS = 3
FL1   = 0x1002000
FL2   = 0x100A000
FL3   = 0x1012000
FL4   = 0x101A000
WS_WP = 0x1200000
WS_END = WS_WP + 8*348160
OOB = 0x80000000
SPIN = 1 << 15
def f32bits(x): return struct.unpack("<I", struct.pack("<f", x))[0]
QSCALE = f32bits(math.log2(math.e) / math.sqrt(20.0))
ST = "sc1"; LDF = "sc1"

SX, SW, SW1, SWS, SG, SDBG = 4, 8, 12, 16, 20, 52
SW2, SWO, SOUT = SX, SW, SG
sF1, sHE, sNON = 42, 43, 44
sKW, sKH, sHB, sOB, sW2B, sWOB, sHL, sOUTB, sG4, sM4, sF2, sF3 = range(56, 68)
sF4 = 100
PKW = (216, 244)
PKL = 143360; vPT = 20
vPS, vPD, vA4B, vA4, vR4, vP2, vKA, vVA, vP1, vD = 252, 242, 248, 249, 250, 251, 252, 253, 254, 255
vRA, vRA7, vWARM, vSENT = 224, 229, 234, 236
sOR = 15

def srd_tail(a, base, nbytes):
    a(f"s_mov_b32 s{base+2}, {nbytes}")
    a(f"s_mov_b32 s{base+3}, 0x00020000")

STAMP_BASE = 0x1100000
class Stamps:
    DEF = "start,p1_first,p1_end,p2_end,at_first,at_loopend,o_stored,p4_b1,p4_b4,p4_b8,p4_ok11,p4_ok13,p5_end,end"
    def __init__(self, on):
        self.on = on; self.names = []
        self.sel = set((self.DEF if on is True else "start," + str(on)).split(","))
    def __call__(self, a, name):
        if not self.on or name not in self.sel: return
        if name in self.names: i = self.names.index(name)
        else:
            i = len(self.names); self.names.append(name)
        assert i < 15
        if name.startswith("val_"): a(f"s_mov_b32 s{68+2*i}, {name[4:]}"); return
        a(f"{'s_memtime' if self.cyc else 's_memrealtime'} s[{68+2*i}:{69+2*i}]")
    def flush(self, a):
        if not self.on: return
        a("s_waitcnt lgkmcnt(0)")
        if self.dbg is not None:
            n = len(self.names); assert n <= 13
            a("s_mov_b64 exec, 1")
            a(f"s_sub_u32 s31, s68, s{sNON}"); a("s_add_u32 s31, s31, 1000"); a("v_mov_b32 v0, s31")
            a(f"buffer_atomic_umax v0, off, s[{SDBG}:{SDBG+3}], 0 offset:56 sc1")
            a(f"s_sub_u32 s31, s{68+2*(n-1)}, s{sNON}"); a("v_mov_b32 v1, s31")
            a(f"buffer_atomic_umax v1, off, s[{SDBG}:{SDBG+3}], 0 offset:60 sc1")
            a(f"s_cmp_eq_u32 s2, {self.dbg}"); a("s_cbranch_scc0 L_end")
            a("s_cmp_eq_u32 s24, 0"); a("s_cbranch_scc0 L_end")
            for i in range(1, n):
                a(f"s_sub_u32 s31, s{68+2*i}, s{sNON}"); a(f"v_mov_b32 v{2+i}, s31")
                a(f"buffer_store_dword v{2+i}, off, s[{SDBG}:{SDBG+3}], 0 offset:{4+4*i} sc1")
            a("; stamps " + ",".join(self.names))
            return
        a("s_lshl_b32 s31, s2, 3")
        a("s_add_u32 s31, s31, s24")
        a("s_lshl_b32 s31, s31, 6")
        a(f"s_add_u32 s31, s31, {STAMP_BASE}")
        a(f"s_mov_b32 s{SWS+2}, 0x2000000")
        a("v_mov_b32 v2, 0")
        for i in range(len(self.names)):
            a(f"v_mov_b32 v0, s{68+2*i}")
            a(f"buffer_store_dword v0, v2, s[{SWS}:{SWS+3}], s31 offen offset:{4*i}")
            a("s_nop 1")
        a("; stamps " + ",".join(self.names))

class VM:
    def __init__(self): self.q = []
    def add(self, tag, n=1): self.q += [tag]*n
    def after(self, *tags):
        last = max(i for i, t in enumerate(self.q) if t in tags)
        assert all(t in self.q for t in tags), tags
        n = len(self.q) - 1 - last
        assert n <= 63
        return n

def flag_store(sregs, tmp):
    return [f"v_mov_b32 v{tmp+2}, s{sregs[0]}", f"v_mov_b32 v{tmp}, s{sNON}", f"v_mov_b32 v{tmp+1}, s{sNON+1}"] + \
           [f"v_writelane_b32 v{tmp+2}, s{r}, {i+1}" for i, r in enumerate(sregs[1:])] + [
            f"s_mov_b64 exec, {(1 << len(sregs)) - 1}",
            f"buffer_store_dwordx2 v[{tmp}:{tmp+1}], v{tmp+2}, s[{SWS}:{SWS+3}], 0 offen {ST}",
            "s_mov_b64 exec, -1"]

UID = [0]
def pieces(soff, pre, post, z):
    ld = [f"buffer_load_dwordx4 v{vD}, s[{SWS}:{SWS+3}], {soff} offen offset:{1024*i} {LDF} lds" for i in range(3)]
    if z is not None: return pre + ld[:3-z] + post
    UID[0] += 1
    return [pre + ld[:1], ld[1:2], [f"s_cbranch_vccnz L_pc{UID[0]}", ld[2], f"L_pc{UID[0]}:"] + post]
SETZ = ["s_cmp_eq_u32 s27, 0", "s_cselect_b64 vcc, 0, -1"]
def kv_dma(i):
    return pieces("s34", [f"s_add_u32 m0, s{sM4}, {i*10240}", "s_add_u32 s34, s34, 10240"], [], None)

aS, aO, aQ1, aK1, aK2, aV, aQ2 = 0, 64, 96, 104, 108, 112, 120
aIDX, aG, aG4, aOA, HP = 122, 123, 124, 126, 128
HPK = 192

SLOTP = [0, 1, 2, 3, 4, 5, 7, 6]
def w4_dma(t, z=None):
    m0 = f"s_add_u32 m0, s{sM4}, {SLOTP[t % 8]*10240}"
    if t < 12:
        return pieces(f"s{sKW}", [m0, "s_nop 0"], [f"s_add_u32 s{sKW}, s{sKW}, 20480", f"s_cmp_eq_u32 s{sKW}, s{sWOB}", f"s_cselect_b32 s{sKW}, s{sW2B}, s{sKW}"], z)
    return pieces("s40", [m0, f"s_add_u32 s40, s{sWOB}, {(t-12)*20480}"], [], z)
def pk_ld(): return [f"buffer_load_dwordx4 {vr(PKW[0],4)}, v{vPS}, s[{SW2}:{SW2+3}], 0 offen", f"buffer_load_dwordx4 {vr(PKW[1],4)}, v{vPS+1}, s[{SWO}:{SWO+3}], 0 offen"]
def act_reg(t):
    return HP + 8*t if t < 12 else 8*(t-12)
def act_ld(t, vrem=None, vo2=None):
    r = act_reg(t)
    ld = lambda r, v, so, off=0: f"buffer_load_dwordx4 {vr(r,4)}, v{v}, s[{SWS}:{SWS+3}], {so} offen offset:{off} {LDF}"
    if t < 12:
        return [[ld(r, vA4, f"s{sKH}")],
                [ld(r+4, vA4B, f"s{sKH}"), f"s_add_u32 s{sKH}, s{sKH}, 8192", f"s_cmp_eq_u32 s{sKH}, s{sHL}", f"s_cselect_b32 s{sKH}, s{sHB}, s{sKH}"]]
    if t < 16:
        return [[f"s_add_u32 s41, s{sOB}, {(t-12)*8192}", ld(r, vA4, "s41")], [ld(r+4, vo2, "s41")]]
    return [[ld(r, vrem, f"s{sOR}")], [ld(r+4, vrem, f"s{sOR}", 512)]]

def poll_ld(addr, width, tmp):
    if FS == 3: return [f"buffer_load_dwordx{width} {vr(tmp,width)}, v{addr}, s[{SWS}:{SWS+3}], 0 offen {LDF}"]
    return [f"buffer_load_dwordx2 {vr(tmp+2*i,2)}, v{addr}, s[{SWS}:{SWS+3}], 0 offen offset:{i << FS} {LDF}" for i in range(width//2)]
def spin(a, name, addr, width, tmp, sc, sp=40, mask=None):
    a.label(name)
    a(f"s_mov_b32 s{sc}, {SPIN}")
    a.label(name + "_l")
    for l in poll_ld(addr, width, tmp): a(l)
    a(f"s_sub_u32 s{sc}, s{sc}, 1")
    a(f"s_cmp_eq_u32 s{sc}, 0")
    a(f"s_cbranch_scc1 {name}_ret")
    a("s_waitcnt vmcnt(0)")
    for l in flag_test(tmp, width, sp, mask): a(l)
    a(f"s_cbranch_vccnz {name}_l")
    a(f"s_branch {name}_ret")
def flag_test(tmp, width, sp=40, mask=None):
    r = [f"v_cmp_ne_u64 vcc, s[{sNON}:{sNON+1}], {vr(tmp,2)}"]
    if width == 4:
        r += [f"v_cmp_ne_u64 s[{sp}:{sp+1}], s[{sNON}:{sNON+1}], {vr(tmp+2,2)}", "s_nop 0", f"s_or_b64 vcc, vcc, s[{sp}:{sp+1}]"]
    else:
        r += ["s_nop 0"]
    if mask: r += [f"s_and_b64 vcc, vcc, s[{mask}:{mask+1}]"]
    return r

def phase12(a, cfg, late):
    stamp = cfg["stamp"]
    sK, sM0, sT0, sT1, sT2 = 27, 30, 31, 32, 33
    X = 0; ACC = 160; WB = 192
    vXR = 208; vWR = 212; vWR2 = 214; vXS = 216; vWS = 218; vW1S = 219; vEP = 220
    vT = 228; vL = 236; vGR = 237; vNON = 238
    WBS = [192, 200, 228]
    PK = [224, 240, 244, 248]
    t0, t1, t2, t3, t4, t5, t6 = range(vT, vT+7)
    a(f"v_and_b32 v{vL}, 63, v0")
    a(f"v_lshrrev_b32 v{t0}, 6, v0")
    a("s_and_b32 s31, s2, 7")
    a(f"v_readfirstlane_b32 s24, v{t0}")
    a("s_lshr_b32 s32, s2, 3")
    a("s_and_b32 s33, s32, 7")
    a("s_lshr_b32 s32, s32, 3")
    a("s_and_b32 s25, s31, 1")
    a("s_lshl_b32 s25, s25, 3")
    a("s_add_u32 s25, s25, s33")
    a("s_lshr_b32 s26, s31, 1")
    a("s_lshl_b32 s26, s26, 2")
    a("s_add_u32 s26, s26, s32")
    PF = cfg.get("pf"); CW = cfg.get("cw", "1") == "1"
    if cfg.get("norot") or (PF and not cfg.get("rot2") and not cfg.get("rot4")): a("s_mov_b32 s27, 0")
    elif cfg.get("rot2"):
        a("s_add_u32 s27, s33, s32")
        a("s_and_b32 s27, s27, 1")
        a("s_mul_i32 s27, s27, 5")
    elif cfg.get("rot4"):
        a("s_add_u32 s27, s33, s32")
        a("s_and_b32 s27, s27, 3")
        a("s_mul_i32 s27, s27, 5")
        a("s_lshr_b32 s27, s27, 1")
    else:
        a("s_mul_i32 s33, s33, 5")
        a("s_mul_i32 s32, s32, 10")
        a("s_add_u32 s27, s33, s32")
        a("s_lshr_b32 s27, s27, 2")
        a("s_cmp_ge_u32 s27, 10")
        a("s_cselect_b32 s31, 10, 0")
        a("s_sub_u32 s27, s27, s31")
    a("s_lshl_b32 s31, s26, 2")
    a("s_mul_i32 s28, s26, 3")
    a("s_add_u32 s28, s28, 12")
    a("s_min_u32 s28, s28, s31")
    a("s_lshl_b32 s30, s24, 11")
    a(f"s_lshl_b32 s31, s25, 7")
    a(f"s_lshl_b32 s32, s24, 4")
    a(f"s_add_u32 s31, s31, s32")
    a(f"v_lshrrev_b32 v{t0}, 3, v{vL}")
    a(f"v_lshrrev_b32 v{t1}, 4, v{vL}")
    a(f"v_and_b32 v{t2}, 7, v{vL}")
    a(f"v_xor_b32 v{t2}, v{t2}, v{t1}")
    a(f"v_add_u32 v{t0}, s31, v{t0}")
    a(f"v_mul_u32_u24 v{t0}, 1280, v{t0}")
    a(f"v_lshl_add_u32 v{vXS}, v{t2}, 4, v{t0}")
    a(f"v_xor_b32 v{vXS+1}, 64, v{vXS}")
    a(f"v_add_u32 v{vXS+1}, {8*1280}, v{vXS+1}")
    a(f"v_bfe_u32 v{t4}, v{vL}, 2, 2")
    a(f"v_xor_b32 v{t4}, v{t4}, v{t1}")
    a(f"v_and_b32 v{t2}, 3, v{vL}")
    a(f"v_lshlrev_b32 v{t2}, 4, v{t2}")
    a(f"v_lshl_add_u32 v{t2}, v{t4}, 6, v{t2}")
    a(f"s_lshl_b32 s31, s24, 3")
    a(f"v_add_u32 v{t0}, s31, v{t1}")
    a(f"v_mul_u32_u24 v{t3}, 3840, v{t0}")
    a(f"s_lshl_b32 s31, s28, 6")
    a(f"v_add3_u32 v{vWS}, v{t3}, v{t2}, s31")
    a(f"v_cmp_eq_u32 vcc, 3, v{t4}")
    a(f"v_mov_b32 v{t5}, 0x{OOB:x}")
    a(f"s_cmp_ge_u32 s26, 12")
    a(f"s_cselect_b64 s[36:37], vcc, 0")
    a(f"s_lshr_b32 s34, s24, 2")
    a(f"v_cndmask_b32 v{vWS}, v{vWS}, v{t5}, s[36:37]")
    a("s_waitcnt lgkmcnt(0)")
    srd_tail(a, SX, 2048*1280); srd_tail(a, SW, 640*3840)

    def adv_k():
        return [f"s_add_u32 s{sK}, s{sK}, 1", f"s_cmp_eq_u32 s{sK}, 10", f"s_cselect_b32 s{sK}, 0, s{sK}"]
    def dma_groups(t):
        slot = t % 4
        g = []
        if t < 10:
            g.append([f"s_lshl_b32 s{sT0}, s{sK}, 7", f"s_add_u32 m0, s{sM0}, {slot*16384}", f"s_mul_i32 s{sT1}, s{sK}, {64*3840}",
                      f"buffer_load_dwordx4 v{vXS}, s[{SX}:{SX+3}], s{sT0} offen lds"])
            g.append([f"s_add_u32 m0, s{sM0}, {slot*16384+1024}", f"s_add_u32 s{sT2}, s{sT1}, {4*3840}",
                      f"buffer_load_dwordx4 v{vXS+1}, s[{SX}:{SX+3}], s{sT0} offen lds"])
            g.append([f"s_add_u32 m0, s{sM0}, {65536+slot*16384}", adv_k()[0],
                      f"buffer_load_dwordx4 v{vWS}, s[{SW}:{SW+3}], s{sT1} offen lds"])
            g.append([f"s_add_u32 m0, s{sM0}, {65536+slot*16384+1024}"] + adv_k()[1:] + [
                      f"buffer_load_dwordx4 v{vWS}, s[{SW}:{SW+3}], s{sT2} offen lds"])
        elif t < 15:
            for half in range(2):
                base = (65536 if half == 0 else 0) + slot*16384
                g.append([f"s_mul_i32 s{sT1}, s{sK}, {64*3072}", f"s_add_u32 m0, s{sM0}, {base}", f"s_add_u32 s{sT2}, s{sT1}, {4*3072}",
                          f"buffer_load_dwordx4 v{vW1S}, s[{SW1}:{SW1+3}], s{sT1} offen lds"])
                g.append([f"s_add_u32 m0, s{sM0}, {base+1024}"] + adv_k() + [
                          f"buffer_load_dwordx4 v{vW1S}, s[{SW1}:{SW1+3}], s{sT2} offen lds"])
        return g
    a("s_mov_b32 s29, s27")
    stamp(a, "karg")
    for g in dma_groups(0):
        for l in g: a(l)
    a("s_and_b32 s35, s24, 3")
    a("s_cmp_ge_u32 s26, 12")
    a("s_cselect_b32 s38, s34, 0")
    srd_tail(a, SG, 1280)
    a("s_cmp_eq_u32 s38, 1")
    a("s_cbranch_scc1 L_gate")
    a.label("L_gate_ret")
    def gate(a):
        u0, u1, u2 = vEP, vEP+1, vEP+2
        a.label("L_gate")
        a(f"s_lshl_b32 s31, s29, 3")
        for i in range(2):
            a(f"v_add_u32 v{u0}, {64*i}, v{vL}")
            a(f"v_add_u32 v{u1}, s31, v{u0}")
            a(f"v_subrev_u32 v{u2}, 80, v{u1}")
            a(f"v_cmp_le_u32 vcc, 80, v{u1}")
            a(f"s_lshl_b32 s32, s35, 11")
            a(f"s_add_u32 m0, s32, {131072 + 1024*i}")
            a(f"v_cndmask_b32 v{u1}, v{u1}, v{u2}, vcc")
            a(f"v_lshlrev_b32 v{u1}, 4, v{u1}")
            a(f"v_cmp_le_u32 vcc, 80, v{u0}")
            a("s_nop 1")
            a(f"v_cndmask_b32 v{u1}, v{u1}, v{t5}, vcc")
            a(f"buffer_load_dwordx4 v{u1}, s[{SG}:{SG+3}], 0 offen lds")
        a("s_branch L_gate_ret")
    late.append(gate)
    a("s_barrier")
    for g in dma_groups(1):
        for l in g: a(l)
    stamp(a, "dma1")
    srd_tail(a, SW1, 640*3072); srd_tail(a, SWS, WS_END); srd_tail(a, SDBG, 256)
    a("s_or_b32 s31, s2, s24")
    a("s_cmp_eq_u32 s31, 0")
    a("s_cbranch_scc1 L_tag")
    a.label("L_tag_ret")
    def tag(a):
        a.label("L_tag")
        a(f"s_memrealtime s[{sNON}:{sNON+1}]")
        a(f"v_mov_b32 v{vEP+2}, 0")
        a("s_waitcnt lgkmcnt(0)")
        a(f"s_or_b32 s31, s{sNON}, 1")
        a(f"v_mov_b32 v{vEP}, s31")
        a(f"v_mov_b32 v{vEP+1}, s{sNON+1}")
        a("s_mov_b64 exec, 1")
        a(f"buffer_store_dwordx2 v[{vEP}:{vEP+1}], v{vEP+2}, s[{SDBG}:{SDBG+3}], 0 offen {ST}")
        a("s_mov_b64 exec, -1")
        a("s_branch L_tag_ret")
    late.append(tag)
    a(f"v_mul_u32_u24 v{t3}, 3072, v{t0}")
    a(f"s_mul_i32 s31, s26, 192")
    a(f"v_add3_u32 v{vW1S}, v{t3}, v{t2}, s31")
    a(f"v_cmp_eq_u32 vcc, 3, v{t4}")
    a(f"v_and_b32 v{t0}, 31, v{vL}")
    a(f"s_lshl_b32 s31, s35, 5")
    a(f"v_cndmask_b32 v{vW1S}, v{vW1S}, v{t5}, vcc")
    a(f"v_mul_u32_u24 v{t1}, 43, v0")
    a(f"v_lshrrev_b32 v{t1}, 8, v{t1}")
    a(f"v_mul_u32_u24 v{t2}, {3072-6*128}, v{t1}")
    a(f"v_lshl_add_u32 v{t2}, v0, 7, v{t2}")
    a("s_lshr_b32 s32, s2, 3"); a(f"s_mul_i32 s32, s32, {20*3072}")
    a("s_bfe_u32 s33, s2, 0x20001"); a("s_mul_i32 s33, s33, 768"); a("s_add_u32 s32, s32, s33")
    a(f"v_cmp_gt_u32 vcc, 120, v0")
    a(f"v_add_u32 v{t2}, s32, v{t2}")
    a("s_nop 0")
    a(f"v_cndmask_b32 v{vP1}, v{t5}, v{t2}, vcc")
    if CW:
        a("s_getpc_b64 s[98:99]")
        a.label("L_pc")
        a(f"s_sub_u32 s98, s98, L_pc-{NAME}_kernel"); a("s_subb_u32 s99, s99, 0")
        n = f"((L_code_end-{NAME}_kernel+2047)/2048)"
        a("s_lshr_b32 s32, s2, 3"); a(f"s_mul_i32 s32, s32, {n}")
        a(f"v_min_u32 v{t1}, {n}-1, v0")
        a(f"v_add_u32 v{t1}, s32, v{t1}")
        a(f"v_lshlrev_b32 v{t1}, 6, v{t1}")
        a(f"v_min_u32 v{vNON+1}, L_code_end-{NAME}_kernel-4, v{t1}")
    if cfg.get("tlb"):
        a(f"v_and_b32 v{t1}, 31, v{vL}")
        a(f"v_min_u32 v{t1}, 24, v{t1}")
        a(f"v_lshlrev_b32 v{t1}, 15, v{t1}")
        a(f"v_min_u32 v{t2}, 29, v{vL}")
        a(f"v_lshlrev_b32 v{t2}, 16, v{t2}")
        a(f"v_cmp_gt_u32 vcc, 32, v{vL}")
        a(f"v_mov_b32 v{t3}, s48"); a(f"v_mov_b32 v{t4}, s46")
        a(f"v_cndmask_b32 v{t1}, v{t1}, v{t2}, vcc")
        a(f"v_cndmask_b32 v{t3}, v{t3}, v{t4}, vcc")
        a(f"v_mov_b32 v{t2}, s49"); a(f"v_mov_b32 v{t4}, s47")
        a(f"v_cndmask_b32 v{t2}, v{t2}, v{t4}, vcc")
        a(f"v_add_co_u32 v{vNON}, vcc, v{t1}, v{t3}")
        a("s_nop 1")
        a(f"v_addc_co_u32 v{vNON+1}, vcc, 0, v{t2}, vcc")
    a(f"v_add_u32 v{t0}, s31, v{t0}")
    a(f"v_bfe_u32 v{t1}, v{t0}, 1, 3")
    a(f"v_lshrrev_b32 v{t2}, 5, v{vL}")
    a(f"v_xor_b32 v{t1}, v{t1}, v{t2}")
    a(f"v_lshlrev_b32 v{t1}, 4, v{t1}")
    a(f"v_lshl_add_u32 v{vXR}, v{t0}, 7, v{t1}")
    for ks in range(1, 4):
        a(f"v_xor_b32 v{vXR+ks}, {ks<<5}, v{vXR}")
    a(f"v_bfe_u32 v{t0}, v{vL}, 2, 2")
    a(f"v_lshl_add_u32 v{t1}, v{t2}, 3, v{t0}")
    a(f"v_lshlrev_b32 v{t1}, 8, v{t1}")
    a(f"v_bfe_u32 v{t3}, v{vL}, 4, 1")
    a(f"v_lshl_add_u32 v{t1}, v{t3}, 5, v{t1}")
    a(f"v_and_b32 v{t3}, 3, v{vL}")
    a(f"v_lshl_add_u32 v{t1}, v{t3}, 3, v{t1}")
    for e in range(2):
        a(f"s_lshl_b32 s31, s34, 1")
        a(f"s_add_u32 s31, s31, {e}")
        a(f"v_xor_b32 v{t3}, s31, v{t0}")
        a(f"v_lshl_add_u32 v{vWR2+e}, v{t3}, 6, v{t1}")
        a(f"v_add_u32 v{vWR+e}, 0x10000, v{vWR2+e}")
    a(f"s_lshl_b32 s31, s35, 11")
    a(f"s_add_u32 s31, s31, 131072")
    a(f"v_lshl_add_u32 v{vGR}, v{t2}, 4, s31")
    if PF:
        vPF = 250
        a("s_lshr_b32 s32, s2, 3")
        a(f"s_add_u32 s33, s24, {PF}")
        a("s_and_b32 s31, s2, 1"); a("s_lshl_b32 s31, s31, 5"); a("s_add_u32 s31, s31, s32"); a(f"s_mul_i32 s31, s31, {32*1280}")
        a("s_lshl_b32 s39, s33, 7"); a("s_add_u32 s31, s31, s39")
        a(f"v_mul_u32_u24 v{t1}, 1280, v{vL}")
        a(f"v_add_u32 v{t1}, s31, v{t1}")
        a("s_lshl_b32 s31, s33, 5"); a("s_add_u32 s31, s31, s32"); a(f"s_mul_i32 s31, s31, {2*3840}")
        a("s_bfe_u32 s39, s2, 0x20001"); a("s_lshl_b32 s39, s39, 10"); a("s_add_u32 s31, s31, s39")
        a(f"v_lshrrev_b32 v{t3}, 3, v{vL}")
        a(f"v_mul_u32_u24 v{t3}, {3840-1024}, v{t3}")
        a(f"v_lshl_add_u32 v{t3}, v{vL}, 7, v{t3}")
        a(f"v_add_u32 v{t3}, s31, v{t3}")
        a("s_cmp_lt_u32 s33, 10"); a("s_cselect_b32 s31, 32, 0"); a("s_cselect_b32 s32, 16, 0")
        a(f"v_cmp_gt_u32 vcc, s31, v{vL}")
        a("s_nop 1")
        a(f"v_cndmask_b32 v{vPF}, v{t5}, v{t1}, vcc")
        a(f"v_cmp_gt_u32 vcc, s32, v{vL}")
        a("s_nop 1")
        a(f"v_cndmask_b32 v{vPF+1}, v{t5}, v{t3}, vcc")
    a("s_and_b32 s31, s2, 7"); a("s_lshr_b32 s33, s2, 6"); a("s_bfe_u32 s32, s2, 0x30003")
    a("s_lshr_b32 s39, s31, 1"); a("s_lshl_b32 s39, s39, 3"); a("s_add_u32 s39, s39, s32")
    a("s_and_b32 s40, s31, 1"); a("s_lshl_b32 s40, s40, 2"); a("s_add_u32 s40, s40, s33")
    a("s_mul_i32 s41, s40, 160")
    a(f"v_mul_u32_u24 v{t1}, 205, v0")
    a(f"v_lshrrev_b32 v{t1}, 11, v{t1}")
    FR = cfg.get("fr", "1") == "1"
    if FR:
        a(f"v_mul_u32_u24 v{t2}, 43, v{t1}")
        a(f"v_lshrrev_b32 v{t2}, 10, v{t2}")
        a(f"v_mul_u32_u24 v{t6}, {12*1280}, v{t2}")
    a(f"v_mul_u32_u24 v{t1}, {1280-160}, v{t1}")
    a(f"v_lshl_add_u32 v{t1}, v0, 4, v{t1}")
    a(f"s_mul_i32 s31, s39, {48*1280}"); a("s_add_u32 s31, s31, s41"); a(f"s_mul_i32 s32, s39, {20*1280}"); a("s_add_u32 s32, s32, s41")
    a(f"v_cmp_gt_u32 vcc, 480, v0")
    a(f"v_add_u32 v{t3}, s31, v{t1}")
    a(f"v_add3_u32 v{t4}, s32, v{t1}, v{t6}" if FR else f"v_add_u32 v{t4}, s32, v{t1}")
    a(f"v_cndmask_b32 v{vPS}, v{t5}, v{t3}, vcc")
    a(f"v_cmp_gt_u32 vcc, {280 if FR else 200}, v0")
    a("s_nop 1")
    a(f"v_cndmask_b32 v{vPS+1}, v{t5}, v{t4}, vcc")
    if FR: a(f"v_lshrrev_b32 v{t2}, 5, v{vL}")
    a("s_cmp_ge_u32 s26, 10")
    a("s_cbranch_scc1 L_p1_v")
    a("s_cmp_ge_u32 s26, 5")
    a(f"s_cselect_b32 s31, 1, 0")
    a(f"s_lshl_b32 s39, 81920, s31")
    a(f"s_lshl_b32 s40, 5120, s31")
    a("s_cmp_ge_u32 s26, 5")
    a(f"s_cselect_b32 s41, {WS_KV}, {WS_Q}")
    a(f"s_cselect_b32 s42, 20, 0")
    a("s_mul_i32 s40, s40, s25")
    a("s_add_u32 s40, s40, s41")
    a("s_sub_u32 s42, s28, s42")
    a("s_lshl_b32 s31, s34, 1")
    a("s_add_u32 s42, s42, s31")
    a("s_lshl_b32 s42, s42, 2")
    a("s_and_b32 s31, s35, 1")
    a("s_lshl_b32 s31, s31, 8")
    a("s_add_u32 s40, s40, s31")
    a("s_lshr_b32 s31, s35, 1")
    a("s_lshl_b32 s41, s31, 11")
    a("s_lshl_b32 s31, s31, 9")
    a("s_add_u32 s33, s31, 4096")
    a(f"v_and_b32 v{t0}, 15, v{vL}")
    a(f"v_lshl_add_u32 v{t0}, v{t0}, 4, s40")
    a(f"v_add_u32 v{t2}, s42, v{t2}")
    a(f"v_bfe_u32 v{t5}, v{vL}, 4, 1")
    a(f"v_lshl_add_u32 v{t6}, v{t5}, 10, s41")
    a(f"v_mov_b32 v{vGR}, s33")
    QM = [36, 40, 42, 0]
    for i in range(4):
        u0 = vT+7
        a(f"v_add_u32 v{t1}, {2*i}, v{t2}")
        a(f"v_mul_u32_u24 v{t3}, 205, v{t1}")
        a(f"v_lshrrev_b32 v{t3}, 10, v{t3}")
        a(f"v_mul_u32_u24 v{t4}, 5, v{t3}")
        a(f"v_sub_u32 v{t1}, v{t1}, v{t4}")
        a(f"v_cmp_le_u32 vcc, 3, v{t1}")
        a(f"v_cmp_eq_u32 s[{QM[i]}:{QM[i]+1}], 2, v{t1}")
        a(f"v_subrev_u32 v{u0}, 3, v{t1}")
        a(f"v_cndmask_b32 v{t4}, 0, 1, vcc")
        a(f"v_cndmask_b32 v{t1}, v{t1}, v{u0}, vcc")
        a(f"v_cndmask_b32 v{t4}, v{t4}, v{t5}, s[{QM[i]}:{QM[i]+1}]")
        a(f"v_lshl_add_u32 v{t3}, v{t3}, 1, v{t4}")
        a(f"v_mul_lo_u32 v{t3}, v{t3}, s39")
        a(f"v_lshl_add_u32 v{t1}, v{t1}, 9, v{t6}")
        a(f"v_cndmask_b32 v{t1}, v{t1}, v{vGR}, s[{QM[i]}:{QM[i]+1}]")
        a(f"v_add3_u32 v{vEP+i}, v{t0}, v{t3}, v{t1}")
    a(f"v_lshrrev_b32 v{t1}, 1, v{vL}")
    a(f"v_xor_b32 v{t1}, v{t1}, v{vL}")
    a(f"v_and_b32 v{t1}, 1, v{t1}")
    a(f"v_mul_u32_u24 v{vGR}, 24, v{t1}")
    for e in range(2): a(f"v_xor_b32 v{vWR+e}, v{vWR+e}, v{vGR}")
    def ep_v():
        a("s_sub_u32 s42, s28, 40")
        a("s_lshl_b32 s31, s34, 1")
        a("s_add_u32 s42, s42, s31")
        a("s_lshl_b32 s42, s42, 5")
        a("s_mul_i32 s40, s25, 10240")
        a("s_lshr_b32 s31, s35, 1")
        a("s_mul_i32 s31, s31, 2560")
        a("s_add_u32 s40, s40, s31")
        a("s_and_b32 s31, s35, 1")
        a("s_mul_i32 s31, s31, 640")
        a("s_add_u32 s40, s40, s31")
        a(f"s_add_u32 s40, s40, {WS_KV + 5120}")
        a(f"s_mov_b32 s39, 163840")
        a(f"v_and_b32 v{t0}, 31, v{vL}")
        a(f"v_mul_u32_u24 v{t2}, 320, v{t2}")
        a(f"v_add_u32 v{t2}, s40, v{t2}")
        for e in range(2):
            a(f"v_add_u32 v{t1}, s42, v{t0}")
            if e: a(f"v_add_u32 v{t1}, 32, v{t1}")
            a(f"v_mul_u32_u24 v{t3}, 3277, v{t1}")
            a(f"v_lshrrev_b32 v{t3}, 16, v{t3}")
            a(f"v_mul_u32_u24 v{t4}, 20, v{t3}")
            a(f"v_sub_u32 v{t1}, v{t1}, v{t4}")
            a(f"v_mul_lo_u32 v{t3}, v{t3}, s39")
            a(f"v_lshl_add_u32 v{t1}, v{t1}, 4, v{t2}")
            a(f"v_add_u32 v{vEP+2*e}, v{t1}, v{t3}")
            a(f"v_add_u32 v{vEP+2*e+1}, 1280, v{vEP+2*e}")

    def p1_reads(variant, step):
        t, ks = divmod(step, 4)
        slot = t % 4; wb = WBS[step % 3]
        r = [f"ds_read_b128 {vr(X+4*step,4)}, v{vXR+ks} offset:{slot*16384}"]
        for e in range(2):
            if variant == "VG" and e == 1:
                r.append(f"ds_read_b128 {vr(wb+4,4)}, v{vGR} offset:{t*128+ks*32}")
            else:
                for u in range(2):
                    r.append(f"ds_read_b64_tr_b16 {vr(wb+4*e+2*u,2)}, v{vWR+e} offset:{slot*16384+ks*4096+u*1024}")
        return r
    def mf(acc, A, B, first):
        return f"v_mfma_f32_32x32x16_bf16 {vr(acc,16)}, {vr(A,4)}, {vr(B,4)}, " + ("0" if first else vr(acc,16))
    class LQ:
        def __init__(self, p1=False): self.q = []; self.p1 = p1
        def rd(self, lines, tag):
            for l in lines:
                if cfg.get("x_nox") and "b128" in l: l = "s_nop 0"
                elif cfg.get("x_now") and "_tr_" in l and "offset" in l and self.p1: l = "s_nop 0"
                else: self.q.append(tag)
                a(l)
        def wait(self, tag):
            if tag not in self.q: return
            n = len(self.q) - 1 - max(i for i, x in enumerate(self.q) if x == tag)
            a(f"s_waitcnt lgkmcnt({min(n, 15)})")
    uid = [0]
    def site(stage, sg, extra=None):
        uid[0] += 1
        a(f"s_cmp_eq_u32 s34, {sg}")
        a(f"s_cbranch_scc0 L_site{uid[0]}")
        for g in dma_groups(stage):
            for l in g:
                if cfg.get("x_nodma") and stage < 10 and l.startswith("buffer_load"): l = l.replace(f"v{vXS},", f"v{vNON},").replace(f"v{vXS+1},", f"v{vNON},").replace(f"v{vWS},", f"v{vNON},")
                if cfg.get("x_skipdma") and stage < 10 and l.startswith("buffer_load"): continue
                a(l)
        for l in extra or []: a(l)
        a.label(f"L_site{uid[0]}")
    TAGT = int(cfg.get("tagt", 5)); assert TAGT <= 6
    NOLG = cfg.get("nolg")
    def p1_main(variant):
        for g in dma_groups(2):
            for l in g: a(l)
        xl = {TAGT: ([f"buffer_load_dwordx2 v[{vNON}:{vNON+1}], off, s[{SDBG}:{SDBG+3}], 0"], 2)}
        WT = int(cfg.get("wt", 2)); W1T = int(cfg.get("w1t", 4)); assert WT < TAGT and len({WT, W1T, TAGT}) == 3
        if CW: xl[WT] = ([f"global_load_dword v{vNON}, v{vNON+1}, s[98:99]"], 3 if WT >= 0 else 2)
        if WT < 0: a(xl[WT][0][0])
        if cfg.get("warm", "1") != "0": xl[W1T] = ([f"buffer_load_dword v{vP1}, v{vP1}, s[{SW1}:{SW1+3}], 0 offen"], 3); assert W1T < TAGT
        if PF:
            a(f"buffer_load_dword v{vPF}, v{vPF}, s[{SX}:{SX+3}], 0 offen")
            a(f"buffer_load_dword v{vPF+1}, v{vPF+1}, s[{SW}:{SW+3}], 0 offen")
        stamp(a, "p1_pre")
        a(f"s_waitcnt vmcnt({(10 if PF else 8) + (-1 in xl)})")
        a("s_barrier")
        stamp(a, "p1_first")
        if cfg.get("x_nodma"): a(f"v_mov_b32 v{vNON}, 0x{OOB:x}")
        lq = LQ(True)
        for st in range(2):
            rd = p1_reads(variant, st); lq.rd(rd[:3], (st, 0)); lq.rd(rd[3:], (st, 1))
        if variant != "VG": site(3, 0)
        for step in range(40):
            t, ks = divmod(step, 4)
            rd = p1_reads(variant, step+2) if step < 38 else []
            for e in range(2):
                w = WBS[step % 3]+4*e; x = X+4*step
                swap = (variant == "VV") or (variant == "VG" and e == 0)
                lq.wait((step, e))
                a(mf(ACC+16*e, x if swap else w, w if swap else x, step == 0))
                if ks == 2 and e == 0:
                    site(t+3, 1, xl.get(t-1, [None])[0] if t else None)
                    stamp(a, f"p1_p{t}")
                    a(f"s_waitcnt vmcnt({8 + (2 if PF and t < 2 else 0) + sum(x < t <= x+n for x, (_, n) in xl.items())})" + ("" if NOLG else " lgkmcnt(0)"))
                    a("s_barrier")
                    stamp(a, f"p1_b{t}")
                lq.rd(rd[:3] if e == 0 else rd[3:], (step+2, e))
                if ks == 2 and e == 0 and variant != "VG":
                    site(t+4, 0, xl.get(t, [None])[0])
        site(13, 1)
        stamp(a, "p1_end")
    def v_epilogue(e):
        for s in range(2):
            d = PK[2*e+s]
            for c in range(4):
                r = ACC + 16*e + 8*s + 2*c
                a(f"v_cvt_pk_bf16_f32 v{d+c}, v{r}, v{r+1}")
            a("s_nop 1")
            a(f"v_permlane32_swap_b32 v{d}, v{d+2}")
            a(f"v_permlane32_swap_b32 v{d+1}, v{d+3}")
            if 2*e+s < STE: a(qst(2*e+s))

    STE = int(cfg.get("ste", 4))
    qst = lambda i: f"buffer_store_dwordx4 {vr(PK[i],4)}, v{vEP+i}, s[{SWS}:{SWS+3}], 0 offen {ST}"
    p1_main("QK")
    a("s_cmp_ge_u32 s26, 5")
    a(f"s_cselect_b32 s31, 1.0, 0x{QSCALE:x}")
    for e in range(2): a(f"v_xor_b32 v{vWR+e}, v{vWR+e}, v{vGR}")
    a("s_nop 5")
    for i in range(4):
        r = ACC + 8*i; d = PK[i]
        for c in range(8): a(f"v_mul_f32 v{r+c}, s31, v{r+c}")
        for c in range(4): a(f"v_cvt_pk_bf16_f32 v{d+c}, v{r+2*c}, v{r+2*c+1}")
        a(f"s_mov_b64 exec, s[{QM[i]}:{QM[i]+1}]")
        a("s_nop 0")
        a(f"v_permlane16_swap_b32 v{d}, v{d+2}")
        a(f"v_permlane16_swap_b32 v{d+1}, v{d+3}")
        a("s_mov_b64 exec, -1")
        if i < STE: a(qst(i))
    def vpart(a2):
        assert a2 is a
        a.label("L_p1_v")
        ep_v()
        a("s_cmp_eq_u32 s38, 1")
        a("s_cbranch_scc1 L_p1_vg")
        p1_main("VV")
        a("s_nop 7"); a("s_nop 1")
        v_epilogue(0); v_epilogue(1)
        a("s_branch L_p2")
        a.label("L_p1_vg")
        for i in (2, 3): a(f"v_mov_b32 v{vEP+i}, 0x{OOB:x}")
        p1_main("VG")
        a("s_nop 7"); a("s_nop 1")
        v_epilogue(0)
        for i in range(2, STE): a(qst(i))
        z = ACC + 16
        a(f"v_cvt_pk_bf16_f32 v{z}, v{z}, v{z}")
        a(f"v_and_b32 v{z}, 0xffff0000, v{z}")
        a(f"v_mul_f32 v{z}, 0x{f32bits(-math.log2(math.e)):x}, v{z}")
        a(f"v_exp_f32 v{z}, v{z}")
        a("s_nop 0")
        a(f"v_add_f32 v{z}, 1.0, v{z}")
        a(f"v_rcp_f32 v{z}, v{z}")
        a(f"s_lshl_b32 s31, s25, 9")
        a(f"s_lshl_b32 s32, s35, 7")
        a(f"v_cvt_pk_bf16_f32 v{z}, v{z}, v{z}")
        a(f"v_and_b32 v{z}, 0xffff0000, v{z}")
        a(f"s_add_u32 s31, s31, s32")
        a(f"s_add_u32 s31, s31, {WS_G}")
        a(f"v_and_b32 v{z+1}, 31, v{vL}")
        a(f"v_lshlrev_b32 v{z+1}, 2, v{z+1}")
        a("s_cmp_eq_u32 s26, 15")
        a("s_cbranch_scc0 L_p2")
        a(f"buffer_store_dword v{z}, v{z+1}, s[{SWS}:{SWS+3}], s31 offen {ST}")
        a("s_branch L_p2")
    late.insert(0, vpart)
    a.label("L_p2")
    a(f"v_readfirstlane_b32 s{sNON}, v{vNON}")
    a(f"v_readfirstlane_b32 s{sNON+1}, v{vNON+1}")
    a("s_nop 0")
    a(f"s_cmp_eq_u32 s{sNON}, 0")
    a("s_cbranch_scc1 L_tagw")
    a.label("L_tagw_ret")
    def tagw(a):
        a.label("L_tagw")
        a(f"s_mov_b32 s31, {SPIN}")
        a.label("L_tagw_l")
        a(f"buffer_load_dwordx2 v[{vNON}:{vNON+1}], off, s[{SDBG}:{SDBG+3}], 0 {LDF}")
        a("s_sub_u32 s31, s31, 1")
        a("s_cmp_eq_u32 s31, 0")
        a("s_cbranch_scc1 L_tagw_ret")
        a("s_waitcnt vmcnt(0)")
        a(f"v_readfirstlane_b32 s{sNON}, v{vNON}")
        a(f"v_readfirstlane_b32 s{sNON+1}, v{vNON+1}")
        a("s_nop 0")
        a(f"s_cmp_eq_u32 s{sNON}, 0")
        a("s_cbranch_scc1 L_tagw_l")
        a("s_branch L_tagw_ret")
    late.append(tagw)
    def p2_reads(ns, step):
        D, rem = divmod(step, 8); half, ks = divmod(rem, 4)
        slot = (10 + D) % 4; wb = WBS[step % 3]
        base = vWR if half == 0 else vWR2
        return [f"ds_read_b64_tr_b16 {vr(wb+4*e+2*u,2)}, v{base+e} offset:{slot*16384+ks*4096+u*1024}" for e in range(ns) for u in range(2)]
    fillA, fillB = setup_later(cfg, vL)
    MA = 48 if cfg.get("two", "0") in "12" else None
    SIG = int(cfg.get("sig1", 10)); POLL1 = int(cfg.get("poll1", 30)); CHK1 = int(cfg.get("chk1", 38))
    POLLB = int(cfg.get("pollb", 34)); vPB = 16; assert not POLLB or POLL1 < POLLB < CHK1
    STS = {2: [int(x) for x in cfg.get("sts", "0,1,2,3").split(",")], 1: [0, 1, 2, 3]}
    def first_loads(ns):
        r = [f"buffer_load_dwordx4 {vr(aQ1,4)}, v{vD}, s[{SWS}:{SWS+3}], s32 offen {LDF}",
             f"buffer_load_dwordx4 {vr(aQ1+4,4)}, v{vD}, s[{SWS}:{SWS+3}], s32 offen offset:1024 {LDF}",
             f"buffer_load_dwordx4 {vr(aK2,4)}, v12, s[{SWS}:{SWS+3}], s33 offen {LDF}"]
        if ns == 1:
            ld = lambda i: f"buffer_load_dwordx4 v{vD}, s[{SWS}:{SWS+3}], s37 offen offset:{1024*i} {LDF} lds"
            r = ["s_mov_b32 m0, s35", "s_add_u32 s37, s35, s36"] + [ld(i) for i in range(4)] + ["s_add_u32 m0, s35, 4096", "s_add_u32 s37, s37, 4096", ld(0)] + r
        return r
    def p2_main(ns):
        stamp(a, "p2_start")
        vm = VM()
        for st in (11, 12, 13): vm.add(f"s{st}", 4)
        vm.add("st", STE)
        lq = LQ()
        for st in range(2):
            rd = p2_reads(ns, st)
            for e in range(ns): lq.rd(rd[2*e:2*e+2], (st, e))
        fa = list(fillA); fb = list(fillB); PKS = [int(x) for x in cfg.get("pks", "11,12").split(",")]
        pkl = pk_ld()[::-1] if cfg.get("pke", "2") == "2" else []; assert FR or (PKS[0] >= 4 and PKS[1] >= 7)
        PKB = int(cfg.get("pkb", CHK1))
        if FR:
            assert pkl and PKB in (22, 30, CHK1)
            pkl = ["\n".join(["s_lshl_b32 m0, s24, 10", f"s_add_u32 m0, m0, {PKL + 8192*i}", "s_nop 0", f"buffer_load_dwordx4 v{vPS+i}, s[{r}:{r+3}], 0 offen lds"]) for i, r in ((1, SWO), (0, SW2))]
        xw = cfg.get("x_pkw")
        a(f"s_mov_b64 s[{SW2}:{SW2+1}], s[{'12:13' if xw else '46:47'}]"); a(f"s_mov_b32 s{SW2+2}, {1536*1280}")
        a(f"s_mov_b64 s[{SWO}:{SWO+1}], s[{'12:13' if xw else '48:49'}]"); a(f"s_mov_b32 s{SWO+2}, {640*1280}")
        for step in range(40):
            D, rem = divmod(step, 8)
            rd = p2_reads(ns, step+2) if step < 38 else []
            for e in range(ns):
                lq.wait((step, e))
                a(mf(ACC+16*e, WBS[step % 3]+4*e, X+4*step, step == 0))
                bar = rem == 6 and D < 4
                if e == 0 and (bar or step == SIG):
                    need = ([f"s{11+D}"] if bar else []) + (["st"] if step == SIG else []) + (["pk"] if FR and step == PKB != CHK1 else [])
                    stamp(a, f"p2_p{D}" if bar else "p2_ps")
                    a(f"s_waitcnt vmcnt({vm.after(*need)})" + (" lgkmcnt(0)" if (D == 0 and not NOLG) else ""))
                    a("s_barrier")
                    stamp(a, f"p2_b{D}" if bar else "p2_bs")
                lq.rd(rd[2*e:2*e+2], (step+2, e))
                if FR and e == 0 and PKB < step <= PKB+2 and PKB != CHK1:
                    i = step-PKB-1
                    assert not any(f"v{vPT+i}," in l for l in fa)
                    lq.rd([f"ds_read_b64_tr_b16 {vr(PKW[i]+2*u,2)}, v{vPT+i} offset:{1280*u}" for u in range(2)], "pk")
                if e == 0 and step == 6:
                    for g in dma_groups(14):
                        for l in g: a(l)
                    vm.add("s14", 4)
                if e == 0 and step == SIG and ns == 1:
                    assert not any(f"s{sF1}," in l for l in fa)
                    for l in flag_store([sF1], 8): a(l)
                    vm.add("flag")
                if e == ns-1 and step in STS[ns][:4-STE]:
                    a(qst(STE + STS[ns].index(step)))
                    vm.add("st")
                poll = "\n".join(poll_ld(vP1, 4, vEP))
                if e == 0 and step == POLL1 and ns == 1:
                    assert not (fa + fb)[:1] or "cselect" not in (fa + fb)[0]
                    a("s_cmp_eq_u32 s24, 4"); a("s_cbranch_scc0 L_p1s")
                    for i in (0, 2): a(f"v_mov_b32 v{vEP+i}, 0")
                    a(poll)
                    a.label("L_p1s")
                if POLLB and e == 0 and step == POLLB and ns == 1:
                    assert not (fa + fb)[:1] or "cselect" not in (fa + fb)[0]
                    a("s_cmp_eq_u32 s24, 4"); a("s_cbranch_scc0 L_pbs")
                    for l in poll_ld(vP1, 4, vPB): a(l)
                    a.label("L_pbs")
                if e == 0 and step == CHK1:
                    assert not fa and CHK1 >= 31
                    a(f"v_mov_b32 v14, {139264}")
                    if ns == 1:
                        a("s_cmp_eq_u32 s24, 4"); a("s_cbranch_scc0 " + ("L_c1o" if FR and PKB == CHK1 else "L_c1s"))
                        if FR and PKB == CHK1: a(f"s_waitcnt vmcnt({2 if POLLB else 1})")
                        if cfg.get("blk"): a("s_waitcnt vmcnt(0)")
                        for l in flag_test(vEP, 4, 46, MA): a(l)
                        a("s_or_b32 s14, vcc_lo, vcc_hi")
                        a("v_mov_b32 v13, s14")
                        a("s_mov_b64 exec, 1")
                        a("ds_write_b32 v14, v13")
                        a("s_mov_b64 exec, -1")
                        a(poll)
                        a("s_waitcnt lgkmcnt(0)")
                        if FR and PKB == CHK1:
                            a("s_branch L_c1s"); a.label("L_c1o"); a("s_waitcnt vmcnt(0)")
                        a.label("L_c1s")
                    elif FR and PKB == CHK1: a("s_waitcnt vmcnt(0)")
                    a("s_barrier")
                    lq.rd(["ds_read_b32 v13, v14"], "chk")
                    if FR and PKB == CHK1:
                        lq.rd([f"ds_read_b64_tr_b16 {vr(PKW[i]+2*u,2)}, v{vPT+i} offset:{1280*u}" for i in range(2) for u in range(2)], "pk")
                if e == 0 and step == CHK1+1:
                    lq.wait("chk")
                    a("v_readfirstlane_b32 s14, v13")
                    stamp(a, "chk"); stamp(a, "val_s14")
                    a("s_cmp_eq_u32 s14, 0")
                    a(f"s_cbranch_scc0 L_early{ns}")
                    for l in first_loads(ns): a(l)
                    a.label(f"L_early{ns}")
                while e == 0 and pkl and step == PKS[2-len(pkl)]:
                    assert any(f"v{vKA}," in l for l in fa) and not (FR and "cselect" in fa[0])
                    a(pkl.pop(0)); vm.add("pk")
                if step >= 7:
                    for _ in range(8 // ns):
                        if fa: a(fa.pop(0))
                        elif fb and step > max(STS[2]): a(fb.pop(0))
        assert not fa and not fb and not pkl, (fa, fb)
        stamp(a, "p2_end")
        def latecheck():
            a("s_cmp_eq_u32 s14, 0")
            a(f"s_cbranch_scc0 L_late{ns}")
            a.label(f"L_late{ns}_ret")
        if POLLB: latecheck()
        a(f"v_bfe_u32 v{aS}, v{vD}, 4, 5")
        a(f"v_mov_b32 v{aS+1}, 0x3f803f80")
        a(f"v_cmp_eq_u32 vcc, 20, v{aS}")
        for i in range(32): a(f"v_mov_b32 v{aO+i}, 0")
        a(f"v_mov_b32 v{aIDX}, 0xdddddddd")
        for i in range(8): a(f"v_cndmask_b32 v{aV+i}, 0, v{aS+1}, vcc")
        for e in range(ns):
            for s in range(2):
                d = HPK + 8*e + 4*s
                for c in range(4):
                    r = ACC + 16*e + 8*s + 2*c
                    a(f"v_max_f32 v{r}, 0, v{r}")
                    a(f"v_max_f32 v{r+1}, 0, v{r+1}")
                    a(f"v_cvt_pk_bf16_f32 v{d+c}, v{r}, v{r+1}")
        a(f"v_mov_b32 v{HPK+16}, " + (f"v{vD}" if ns == 2 else f"0x{OOB:x}"))
        a(f"v_lshrrev_b32 v2, 2, v12")
        a(f"v_and_b32 v3, 64, v2")
        a(f"v_add_u32 v{aG}, v2, v3")
        a(f"v_bfe_u32 v2, v{vD}, 8, 1")
        a(f"v_mul_u32_u24 v2, {32768-256}, v2")
        a(f"v_add_u32 v{aOA}, v2, v{vD}")
        a("s_lshr_b32 s31, s24, 1")
        for j in range(5):
            if j < 4: a(f"s_xor_b32 s13, s31, {j}"); a(f"s_lshl_b32 s13, s13, {10 if FR else 5}")
            a(f"v_add_u32 v{vRA+j}, {'s13' if j < 4 else 4096 if FR else 128}, v{vR4}")
            a(f"v_add_u32 v{vRA7+j}, {7*10240}, v{vRA+j}")
        a("s_lshl_b32 s31, s24, 6")
        a(f"v_lshrrev_b32 v2, 4, v{vD}")
        a(f"v_add_u32 v2, s31, v2")
        a(f"v_lshlrev_b32 v3, 7, v2")
        a(f"s_mul_i32 s31, s26, {100*128}"); a(f"s_add_u32 s31, s31, s1")
        a(f"v_cmp_gt_u32 vcc, 100, v2")
        a(f"v_add_u32 v3, s31, v3")
        a(f"v_mov_b32 v2, 0x{OOB:x}")
        for i in range(4): a(f"v_mov_b32 v{vSENT+i}, -1")
        a(f"v_cndmask_b32 v{vWARM}, v2, v3, vcc")
        stamp(a, "at_init")
        if not POLLB: latecheck()
        def lateload(a):
            a.label(f"L_late{ns}")
            if ns == 1:
                a("s_cmp_eq_u32 s24, 4")
                a("s_cbranch_scc0 L_w1_ret")
                if POLLB:
                    a("s_waitcnt vmcnt(1)")
                    for l in flag_test(vPB, 4, 46, MA): a(l)
                    a("s_cbranch_vccz L_w1_ret")
                a("s_waitcnt vmcnt(0)")
                for l in flag_test(vEP, 4, 46, MA): a(l)
                a("s_cbranch_vccnz L_w1")
                a.label("L_w1_ret")
            a("s_barrier")
            stamp(a, "chk")
            for l in first_loads(ns): a(l)
            a(f"s_branch L_late{ns}_ret")
            if ns == 1: spin(a, "L_w1", vP1, 4, vEP, 31, 46, MA)
        late.append(lateload)
    a("s_cmp_eq_u32 s34, 0")
    a("s_cbranch_scc0 L_p2_1")
    p2_main(2)
    def p2one(a2):
        a.label("L_p2_1")
        p2_main(1)
        a("s_branch L_p2_done")
    late.insert(0, p2one)
    a.label("L_p2_done")

def setup_later(cfg, vL):
    t0, t1, t2, t3, t4, t5, t6 = range(7)
    A = Asm(); B = Asm()
    a = A
    a(f"v_lshlrev_b32 v{vD}, 4, v{vL}")
    a(f"v_and_b32 v12, 0x1ff, v{vD}")
    a("s_lshl_b32 s31, s25, 2"); a("s_add_u32 s31, s31, s35"); a("s_mul_i32 s31, s31, 98304"); a("s_mul_i32 s32, s26, 3")
    a("s_lshl_b32 s33, s34, 1"); a("s_add_u32 s32, s32, s33"); a("s_lshl_b32 s32, s32, 11"); a("s_add_u32 s31, s31, s32")
    a(f"s_add_u32 s{sHE}, s31, {WS_H}")
    a(f"s_lshl_b32 s39, s25, {FS+4}"); a(f"s_lshl_b32 s40, s26, {FS}"); a("s_add_u32 s39, s39, s40"); a(f"s_add_u32 s39, s39, {FL2}")
    a("s_cmp_eq_u32 s24, 0"); a(f"s_cselect_b32 s{sF2}, s39, 0x{OOB:x}")
    a(f"s_lshl_b32 s39, s26, {FS+4}"); a(f"s_lshl_b32 s40, s25, {FS}"); a("s_add_u32 s39, s39, s40"); a(f"s_add_u32 s39, s39, {FL1}")
    a("s_cmp_eq_u32 s24, 4"); a(f"s_cselect_b32 s{sF1}, s39, 0x{OOB:x}")
    a("s_mov_b32 s27, s34"); a("s_mov_b32 s28, s35")
    a("s_mul_i32 s0, s27, 81920")
    a("s_and_b32 s3, s24, 1"); a("s_sub_u32 s32, 3, s27"); a("s_mul_i32 s32, s32, s3"); a("s_mul_i32 s33, s27, 6"); a("s_add_u32 s12, s32, s33")
    a("s_bfe_u32 s13, s24, 0x10001"); a("s_mul_i32 s32, s13, 81920"); a("s_lshl_b32 s12, s12, 10"); a(f"s_add_u32 s{sM4}, s32, s12")
    a("s_mul_i32 s35, s3, 5120"); a("s_add_u32 s35, s35, s32")
    a("s_mul_i32 s32, s13, 10240"); a("s_add_u32 s12, s12, s32")
    a("s_and_b32 s31, s2, 7"); a("s_lshr_b32 s33, s2, 6"); a("s_bfe_u32 s26, s2, 0x30003")
    a("s_lshl_b32 s25, s31, 2"); a("s_add_u32 s25, s25, s33")
    a("s_mov_b32 s48, 0x11111111"); a("s_lshl_b32 s49, 0x101, s26")
    a(f"s_lshl_b32 s39, s26, {FS+5}"); a(f"s_lshl_b32 s40, s25, {FS}"); a("s_add_u32 s39, s39, s40"); a(f"s_add_u32 s39, s39, {FL3}")
    a("s_cmp_eq_u32 s24, 0"); a(f"s_cselect_b32 s{sF3}, s39, 0x{OOB:x}")
    a(f"v_lshrrev_b32 v{t0}, 4, v{vL}")
    a(f"v_add_u32 v{t0}, 1, v{t0}")
    a(f"v_mul_u32_u24 v{t1}, 640, v{t0}")
    a(f"v_cmp_eq_u32 vcc, 3, v{t0}")
    a(f"s_mul_i32 s39, s25, 20")
    a(f"v_bfe_u32 v{t3}, v{vL}, 3, 1")
    a(f"v_cndmask_b32 v{t1}, v{t1}, 0, vcc")
    a(f"v_mul_u32_u24 v{t3}, 19, v{t3}")
    a(f"v_add3_u32 v{t1}, v{t1}, v{t3}, s39")
    a(f"v_min_u32 v{t1}, 1919, v{t1}")
    a(f"v_lshrrev_b32 v{t1}, 5, v{t1}")
    a(f"v_lshrrev_b32 v{t3}, 2, v{t1}")
    a(f"v_subrev_u32 v{t4}, 12, v{t1}")
    a(f"v_mul_u32_u24 v{t4}, 43, v{t4}")
    a(f"v_lshrrev_b32 v{t4}, 7, v{t4}")
    a(f"v_cmp_le_u32 vcc, 48, v{t1}")
    a(f"v_and_b32 v{t0}, 7, v{vL}")
    a(f"v_lshlrev_b32 v{t0}, {FS+1}, v{t0}")
    a(f"v_cndmask_b32 v{t3}, v{t3}, v{t4}, vcc")
    a(f"v_lshl_add_u32 v{t3}, v{t3}, {FS+4}, v{t0}")
    a(f"v_add_u32 v{vP1}, {FL1}, v{t3}")
    a("s_lshr_b32 s39, s31, 1"); a("s_lshl_b32 s39, s39, 3"); a("s_add_u32 s39, s39, s26")
    a("s_and_b32 s40, s31, 1"); a("s_lshl_b32 s40, s40, 2"); a("s_add_u32 s40, s40, s33")
    a("s_mul_i32 s36, s26, 3"); a("s_lshr_b32 s36, s36, 1"); a("s_mul_i32 s33, s33, 3"); a("s_add_u32 s36, s36, s33")
    a("s_cmp_ge_u32 s36, 12"); a("s_cselect_b32 s33, 12, 0"); a("s_sub_u32 s36, s36, s33")
    a("s_lshr_b32 s33, s24, 1"); a("s_lshl_b32 s31, s33, 11")
    a(f"s_mul_i32 s{sHB}, s39, {2*98304}"); a(f"s_add_u32 s{sHB}, s{sHB}, s31"); a(f"s_add_u32 s{sHB}, s{sHB}, {WS_H}")
    a(f"s_add_u32 s{sHL}, s{sHB}, 98304"); a(f"s_lshl_b32 s{sKH}, s36, 13"); a(f"s_add_u32 s{sKH}, s{sKH}, s{sHB}")
    a(f"s_lshl_b32 s{sOB}, s39, 16"); a(f"s_add_u32 s{sOB}, s{sOB}, s31"); a(f"s_add_u32 s{sOB}, s{sOB}, {WS_O}")
    a(f"s_lshl_b32 s{sOR}, s39, 2"); a(f"s_add_u32 s{sOR}, s{sOR}, s33"); a(f"s_lshl_b32 s{sOR}, s{sOR}, 12"); a(f"s_add_u32 s{sOR}, s{sOR}, {WS_OR}")
    a("s_lshl_b32 s31, s39, 2"); a("s_add_u32 s31, s31, s3")
    a(f"s_lshl_b32 s{sG4}, s31, 6"); a(f"s_add_u32 s{sG4}, s{sG4}, {WS_G}")
    a(f"s_mul_i32 s{sOUTB}, s31, 20480"); a("s_mul_i32 s41, s40, 160"); a(f"s_add_u32 s{sOUTB}, s{sOUTB}, s41")
    a("s_mul_i32 s1, s40, 348160"); a(f"s_add_u32 s1, s1, {WS_WP}")
    a(f"s_add_u32 s{sW2B}, s1, s12"); a(f"s_add_u32 s{sWOB}, s{sW2B}, {12*20480}")
    a(f"s_mul_i32 s{sKW}, s36, 20480"); a(f"s_add_u32 s{sKW}, s{sKW}, s{sW2B}")
    a("s_lshl_b32 s31, s24, 6")
    a(f"v_add_u32 v{t0}, s31, v{vL}")
    a(f"v_mov_b32 v{t5}, 0x{OOB:x}")
    if cfg.get("fr", "1") == "1":
        a(f"v_mul_u32_u24 v{t1}, 205, v{t0}")
        a(f"v_lshrrev_b32 v{t1}, 15, v{t1}")
        a(f"v_lshrrev_b32 v{t2}, 5, v{t0}")
        a(f"v_bfe_u32 v{t3}, v{vL}, 2, 3")
        a(f"v_mul_u32_u24 v{t3}, 160, v{t3}")
        a(f"v_and_b32 v{t4}, 3, v{vL}")
        a(f"v_lshl_add_u32 v{t3}, v{t4}, 3, v{t3}")
        a(f"v_lshl_add_u32 v{t4}, v{t2}, 5, v{t3}")
        a(f"v_add_u32 v{vPT+1}, {PKL + 8192}, v{t4}")
        a(f"v_mul_u32_u24 v{t6}, 2400, v{t1}")
        a(f"v_add_u32 v{t4}, {PKL}, v{t4}")
        a(f"v_add_u32 v{vPT}, v{t4}, v{t6}")
        a(f"v_and_b32 v{t4}, 0x1ff, v{vD}")
        a(f"v_lshl_add_u32 v{t2}, v{t2}, 10, v{t4}")
        a("s_mul_i32 s32, s39, 3")
        a(f"v_add_u32 v{t4}, s32, v{t1}")
        a(f"v_lshrrev_b32 v{t6}, 1, v{t4}")
        a(f"v_sub_u32 v{t6}, v{t6}, v{t1}")
        a(f"v_mul_u32_u24 v{t6}, 5120, v{t6}")
        a(f"v_and_b32 v{t4}, 1, v{t4}")
        a(f"v_lshl_add_u32 v{t4}, v{t4}, 9, v{t2}")
        a(f"v_cmp_gt_u32 vcc, 480, v{t0}")
        a(f"v_add3_u32 v{t4}, v{t4}, v{t6}, s1")
        a(f"s_add_u32 s1, s1, {12*20480}")
        a(f"v_cndmask_b32 v{vPD}, v{t5}, v{t4}, vcc")
        a("s_lshr_b32 s32, s39, 1"); a("s_mul_i32 s32, s32, 5120"); a("s_and_b32 s33, s39, 1"); a("s_lshl_b32 s33, s33, 9")
        a("s_add_u32 s32, s32, s33"); a("s_add_u32 s32, s32, s1")
        a(f"v_add_u32 v{t2}, s32, v{t2}")
        a("s_lshr_b32 s32, s39, 3"); a("s_mul_i32 s32, s32, 5120"); a("s_bfe_u32 s33, s39, 0x20001"); a("s_lshl_b32 s33, s33, 8")
        a("s_add_u32 s32, s32, s33"); a(f"s_add_u32 s32, s32, {4*20480 - 10*1024}"); a("s_add_u32 s32, s32, s1")
        a(f"v_lshrrev_b32 v{t1}, 4, v{t0}")
        a(f"v_and_b32 v{t4}, 0xff, v{vD}")
        a(f"v_lshl_add_u32 v{t4}, v{t1}, 10, v{t4}")
        a(f"v_add_u32 v{t4}, s32, v{t4}")
        a(f"v_bfe_u32 v{t6}, v{vL}, 4, 1")
        a(f"v_mul_u32_u24 v{t6}, 640, v{t6}")
        a(f"v_sub_u32 v{t3}, v{t3}, v{t6}")
        a(f"v_lshl_add_u32 v{t3}, v{t1}, 5, v{t3}")
        a(f"v_cmp_gt_u32 vcc, 160, v{t0}")
        a(f"v_add_u32 v{t3}, {PKL + 8192 + 2560 - 320}, v{t3}")
        a("s_and_b32 s33, s39, 1"); a("s_mul_i32 s33, s33, 80"); a("s_sub_u32 s33, 240, s33")
        a(f"v_cndmask_b32 v{t4}, v{t4}, v{t2}, vcc")
        a(f"v_cndmask_b32 v{vPT+1}, v{t3}, v{vPT+1}, vcc")
        a(f"v_cmp_gt_u32 vcc, s33, v{t0}")
        a("s_nop 1")
        a(f"v_cndmask_b32 v{vPD+1}, v{t5}, v{t4}, vcc")
    else:
        a(f"s_mul_i32 s32, s39, {48*160}"); a("s_add_u32 s32, s32, s1")
        a(f"v_cmp_gt_u32 vcc, 480, v{t0}")
        a(f"v_lshl_add_u32 v{t4}, v{t0}, 4, s32")
        a(f"s_mul_i32 s32, s39, {16*160}"); a(f"s_add_u32 s1, s1, {1536*160}"); a("s_add_u32 s32, s32, s1")
        a(f"v_cndmask_b32 v{vPD}, v{t5}, v{t4}, vcc")
        a("s_and_b32 s33, s39, 28"); a("s_bfe_u32 s36, s39, 0x10001"); a("s_add_u32 s33, s33, s36"); a("s_and_b32 s36, s39, 1"); a("s_lshl_b32 s36, s36, 1")
        a("s_add_u32 s33, s33, s36"); a("s_mul_i32 s33, s33, 640"); a(f"s_add_u32 s33, s33, {(512-16)*160}"); a("s_add_u32 s33, s33, s1")
        a(f"v_mov_b32 v{t3}, s32")
        a(f"v_mov_b32 v{t4}, s33")
        a(f"v_cmp_gt_u32 vcc, 160, v{t0}")
        a("s_nop 1")
        a(f"v_cndmask_b32 v{t3}, v{t4}, v{t3}, vcc")
        a(f"v_cmp_gt_u32 vcc, 200, v{t0}")
        a(f"v_lshl_add_u32 v{t3}, v{t0}, 4, v{t3}")
        a("s_nop 0")
        a(f"v_cndmask_b32 v{vPD+1}, v{t5}, v{t3}, vcc")
    a("s_lshl_b32 s31, s40, 8"); a(f"s_add_u32 s31, s31, {FL4}"); a("s_lshl_b32 s32, s39, 3"); a("s_add_u32 s32, s32, s31")
    a("s_cmp_eq_u32 s24, 0"); a(f"s_cselect_b32 s{sF4}, s32, 0x{OOB:x}")
    a("s_lshr_b32 s32, s39, 1"); a("s_lshl_b32 s32, s32, 7"); a(f"s_add_u32 s32, s32, {FL2}")
    a("s_lshr_b32 s33, s39, 2"); a("s_lshl_b32 s33, s33, 8"); a(f"s_add_u32 s33, s33, {FL3}")
    a(f"v_and_b32 v{t0}, 15, v{vL}")
    a(f"v_and_b32 v{t1}, 7, v{vL}")
    a(f"v_lshl_add_u32 v{t3}, v{t0}, 4, s33")
    a(f"v_lshl_add_u32 v{t4}, v{t1}, 4, s32")
    a(f"v_cmp_gt_u32 vcc, 16, v{vL}")
    a(f"v_lshl_add_u32 v{t0}, v{t0}, 4, s31")
    a("s_nop 0")
    a(f"v_cndmask_b32 v{t3}, v{t4}, v{t3}, vcc")
    a(f"v_cmp_gt_u32 vcc, 32, v{vL}")
    a("s_nop 1")
    a(f"v_cndmask_b32 v{vP2}, v{t0}, v{t3}, vcc")
    a("s_mul_i32 s31, s25, 81920"); a("s_lshl_b32 s32, s26, 1"); a("s_lshr_b32 s33, s28, 1"); a("s_add_u32 s32, s32, s33")
    a("s_mul_i32 s32, s32, 5120"); a("s_add_u32 s31, s31, s32"); a("s_and_b32 s33, s28, 1"); a("s_lshl_b32 s32, s33, 11")
    a("s_add_u32 s32, s32, s31")
    a("s_lshl_b32 s33, s33, 9"); a("s_add_u32 s33, s33, s31"); a("s_add_u32 s33, s33, 4096")
    a("s_lshl_b32 s31, s26, 3"); a("s_lshl_b32 s29, s28, 1"); a("s_add_u32 s29, s31, s29")
    a("s_lshl_b32 s30, s29, 7"); a("s_lshl_b32 s31, s27, 6"); a("s_add_u32 s30, s30, s31"); a(f"s_add_u32 s30, s30, {WS_G}")
    a("s_mul_i32 s36, s25, 163840"); a(f"s_add_u32 s36, s36, {WS_KV}"); a(f"s_add_u32 s34, s36, s{sM4}")
    a("s_mov_b32 s38, 0x000fffff"); a("s_mov_b32 s39, 0x000fffff")
    a(f"s_mov_b64 s[{SOUT}:{SOUT+1}], s[50:51]"); a(f"s_mov_b32 s{SOUT+2}, {2048*1280}")
    a(f"v_lshrrev_b32 v{t2}, 5, v{vL}")
    a(f"v_add_u32 v{vKA}, s0, v{vD}")
    a(f"v_and_b32 v{t0}, 31, v{vL}")
    a(f"v_mul_u32_u24 v{t3}, 320, v{t2}")
    a(f"v_lshl_add_u32 v{t3}, v{t0}, 4, v{t3}")
    a(f"v_add_u32 v{t3}, 5120, v{t3}")
    a(f"v_add_u32 v{vVA}, s0, v{t3}")
    a = B
    a(f"v_and_b32 v{t0}, 15, v{vL}")
    a("s_mul_i32 s31, s13, 5120")
    a("s_add_u32 s31, s31, s0")
    if cfg.get("fr", "1") == "1": a(f"v_add_u32 v{vR4}, s31, v{vD}")
    else:
        a(f"v_mul_u32_u24 v{t3}, 2560, v{t2}")
        a(f"v_bfe_u32 v{t1}, v{vL}, 2, 3")
        a(f"v_mul_u32_u24 v{t1}, 160, v{t1}")
        a(f"v_and_b32 v{t4}, 3, v{vL}")
        a(f"v_lshl_add_u32 v{t1}, v{t4}, 3, v{t1}")
        a(f"v_add3_u32 v{vR4}, v{t3}, v{t1}, s31")
    a(f"v_lshrrev_b32 v{t3}, 4, v{vL}")
    a(f"v_lshlrev_b32 v{t0}, 4, v{t0}")
    a(f"v_lshl_add_u32 v{vA4}, v{t3}, 9, v{t0}")
    a("s_lshl_b32 s31, s3, 8")
    a(f"v_add_u32 v{vA4}, s31, v{vA4}")
    a(f"v_add_u32 v{vA4B}, 98304, v{vA4}")
    return A.lines, B.lines

def phase3(a, cfg, late):
    stamp = cfg["stamp"]
    S, O, Q1, Q2, K1, K2, V, vIDX, vG = aS, aO, aQ1, aQ2, aK1, aK2, aV, aIDX, aG
    PKE = int(cfg.get("pke", "2"))
    pk_st = [f"buffer_store_dwordx4 {vr(PKW[i],4)}, v{vPD+i}, s[{SWS}:{SWS+3}], 0 offen {ST}" for i in range(2)]
    if PKE == 1:
        for l in pk_ld(): a(l)
    a(f"s_waitcnt vmcnt({2 if PKE == 1 else 0})" + (" lgkmcnt(0)" if cfg.get("fr", "1") == "1" else ""))
    stamp(a, "at_q")
    if cfg.get("two") == "2":
        for l in ["s_cmp_eq_u32 s24, 4", "s_cbranch_scc0 L_w3_ret"] + flag_test(220, 4, 46) + ["s_cbranch_vccnz L_w3", "L_w3_ret:"]: a(l)
        late.append(lambda a: spin(a, "L_w3", vP1, 4, 220, 31, 46))
    for c in range(2): a(f"v_mov_b32 v{Q2+c}, v{K2+c}")
    a("s_mov_b32 exec_lo, 0")
    for c in range(2): a(f"v_mov_b32 v{Q2+c}, v{K2+2+c}")
    a("s_mov_b64 exec, -1")
    bump = {"k": 0}
    def koff(g, off): return g*10240 + off - bump["k"]
    def rd_k1(T):
        g, tt = divmod(T, 4)
        return f"ds_read_b128 {vr(K1,4)}, v{vKA} offset:{koff(g, tt*1024)}"
    def rd_k2(g):
        return f"ds_read_b128 {vr(K2,4)}, v{vKA} offset:{koff(g, 4096)}"
    def rd_v(T, s):
        g, tt = divmod(T, 4)
        return f"ds_read_b128 {vr(V+4*s,4)}, v{vVA} offset:{koff(g, tt*1280+640*s)}"
    def sreg(T, q): return S + 32*(T % 2) + 16*q
    def b2(T):
        tt = T % 4
        return f"v_mfma_f32_32x32x4_2b_bf16 {vr(sreg(T,0),32)}, {vr(K2+2*(tt&1),2)}, {vr(Q2,2)}, 0 cbsz:1 abid:{tt>>1}"
    def qk(T, q):
        return f"v_mfma_f32_32x32x16_bf16 {vr(sreg(T,q),16)}, {vr(K1,4)}, {vr(Q1+4*q,4)}, {vr(sreg(T,q),16)}"
    def pv(T, q, h):
        return f"v_smfmac_f32_32x32x32_bf16 {vr(O+16*q,16)}, {vr(V+4*h,4)}, {vr(sreg(T,q)+8*h,8)}, v{vIDX}"
    a("s_barrier")
    stamp(a, "at_first")
    a(rd_k2(0)); a(rd_k1(0))
    a("s_lshl_b32 s31, s29, 15"); a("s_lshl_b32 s32, s25, 10"); a("s_add_u32 s32, s32, s31")
    a("s_lshl_b32 s13, s27, 8"); a(f"s_add_u32 s31, s13, {WS_O}"); a("s_add_u32 s32, s32, s31")
    a("s_lshl_b32 s31, s29, 13"); a("s_lshl_b32 s33, s25, 9"); a("s_add_u32 s33, s33, s31")
    a(f"s_add_u32 s31, s13, {WS_OR}"); a("s_add_u32 s33, s33, s31")
    a("s_waitcnt lgkmcnt(1)")
    a(b2(0))
    for l in SETZ: a(l)
    for g in kv_dma(1):
        for l in g: a(l)
    a("s_waitcnt lgkmcnt(0)")
    a("s_nop 7"); a("s_nop 2")
    a(qk(0, 0)); a(qk(0, 1))
    a("s_nop 7")
    vm = VM(); cfg["vm"] = vm
    extra = {u: [] for u in range(64)}
    TWO = cfg.get("two", "0") == "1"
    gld = [f"buffer_load_dword v{aG}, v{aG}, s[{SWS}:{SWS+3}], s30 offen {LDF}"]
    hst = [[f"buffer_store_dwordx4 {vr(HPK+4*i,4)}, v{vD if i < 2 else HPK+16}, s[{SWS}:{SWS+3}], s{sHE} offen offset:{1024*i} {ST}"] for i in range(4)]
    sst = [[f"buffer_store_dwordx4 {vr(vSENT,4)}, v{aOA}, s[{SWS}:{SWS+3}], s32 offen {ST}"],
           ["s_mov_b64 exec, 0xffff", f"buffer_store_dwordx4 {vr(vSENT,4)}, v{vD}, s[{SWS}:{SWS+3}], s33 offen {ST}", "s_mov_b64 exec, -1"]]
    kvs = [g for k in range(2, 8) for g in kv_dma(k)]
    FLU = 22
    sync = {6: ["s_waitcnt vmcnt(8)", "s_barrier"],
            14: ["s_waitcnt vmcnt(17)", "s_barrier"],
            22: ["s_waitcnt vmcnt(0)", "s_barrier"],
            56: ["s_waitcnt vmcnt(0)", "s_barrier"]}
    if not TWO:
        for i, g in enumerate(kvs): extra[i//2].append(g)
        pk = pk_st if PKE in (1, 2) else pk_ld()
        extra[9].append(gld + [pk[0]])
        extra[9].append([pk[1]])
        for i in range(4): extra[10+i].append(hst[i])
        extra[14].append(sst[0]); extra[15].append(sst[1])
        if not PKE:
            extra[17].append(["s_waitcnt vmcnt(6)", pk_st[0]])
            extra[17].append([pk_st[1]])
    else:
        assert PKE == 2
        vEP = 220; FLU = int(cfg.get("flu", 14))
        sts = hst + [[x] for x in pk_st] + sst
        ne = int(cfg.get("ne", 8))
        extra[0].append(["s_cmp_eq_u32 s24, 4", "s_cbranch_scc0 L_p3s"] + poll_ld(vP1, 4, vEP) + ["L_p3s:"])
        u0 = int(cfg.get("stu", 1))
        for i in range(ne): extra[u0 + (i*(6-u0))//ne].append(sts[i])
        sync[6] = [f"s_waitcnt vmcnt({ne})", "s_cmp_eq_u32 s24, 4", "s_cbranch_scc0 L_w3_ret"] + flag_test(vEP, 4, 46) + \
                  ["s_cbranch_vccnz L_w3", "L_w3_ret:"] + SETZ + ["s_barrier"]
        late.append(lambda a: spin(a, "L_w3", vP1, 4, vEP, 31, 46))
        seq = [(g, i % 3 < 2) for i, g in enumerate(kvs[:6])] + [(g, 1) for g in sts[ne:]] + [(g, i % 3 < 2) for i, g in enumerate(kvs[6:])] + [(gld, 1)]
        for i, (g, n) in enumerate(seq): extra[6 + i//2].append(g)
        sync[14] = [f"s_waitcnt vmcnt({sum(n for g, n in seq[3:16])})", "s_barrier"]
        assert FLU == 22 or ne == 8
    POL2 = int(cfg.get("pol2", 31)); CHK2 = int(cfg.get("chk2", 34))
    sync[CHK2] = ["s_waitcnt vmcnt(0)"] + flag_test(HP, 4) + ["s_cbranch_vccnz L_w2", "L_w2_ret:"] + SETZ
    g4 = [f"v_bfe_u32 v{aG4}, v{vD}, 4, 4", f"v_lshlrev_b32 v{aG4}, 2, v{aG4}",
          f"buffer_load_dword v{aG4+1}, v{aG4}, s[{SWS}:{SWS+3}], s{sG4} offen offset:128 {LDF}",
          f"buffer_load_dword v{aG4}, v{aG4}, s[{SWS}:{SWS+3}], s{sG4} offen {LDF}"]
    wrm = [f"buffer_load_dword v{vWARM}, v{vWARM}, s[{SWS}:{SWS+3}], 0 offen {LDF}"]
    extra[CHK2].append(g4)
    if PKE < 3:
        late.append(lambda a: spin(a, "L_w2", vP2, 4, HP, 31))
        extra[FLU].insert(0, flag_store([sF2, sF3, sF4], HP+4) + (extra[FLU].pop(0) if len(extra[FLU]) == 2 else []))
        extra[POL2].append(poll_ld(vP2, 4, HP))
        seq = [g for t in range(2) for g in w4_dma(t)] + [wrm]
        seq += [g for t in range(12) for g in act_ld(t)]
        for i, g in enumerate(seq): extra[CHK2 + 1 + (i*5)//9].append(g)
        for i, g in enumerate(g for t in (2, 3, 4, 5) for g in w4_dma(t)): extra[56 + i//2].append(g)
        for t in (2, 3, 4, 5): vm.add(f"w{t}", 2)
    else:
        lo = lambda ls: ["s_mov_b32 exec_hi, 0"] + ls + ["s_mov_b32 exec_hi, -1"]
        hi = lambda ls: ["s_mov_b32 exec_lo, 0"] + ls + ["s_mov_b32 exec_lo, -1"]
        PT = PKW[1]; P4U = int(cfg.get("p4u", 47)); C4U = int(cfg.get("c4u", 50))
        late.append(lambda a: (spin(a, "L_w2", vP2, 4, HP, 31), spin(a, "L_w4", vP2, 4, PT, 31)))
        extra[22].append(flag_store([sF2, sF3], HP+4))
        for i in range(2): extra[23].append([pk_st[i]])
        extra[31].append(lo(poll_ld(vP2, 4, HP)))
        sync[34] = ["s_waitcnt vmcnt(0)", "s_mov_b32 exec_hi, 0"] + flag_test(HP, 4) + ["s_cbranch_vccnz L_w2", "L_w2_ret:", "s_mov_b32 exec_hi, -1", "s_barrier"]
        extra[34].append(flag_store([sF4], PKW[0]))
        seq = [g for t in range(12) for g in act_ld(t)]
        n = 0
        for u in range(35, 64):
            if u == P4U: extra[u].append(hi(poll_ld(vP2, 4, PT)))
            while seq and len(extra[u]) < 2:
                extra[u].append(seq.pop(0))
                if P4U <= u < C4U: n += 1
                assert u < C4U
        sync[C4U] = [f"s_waitcnt vmcnt({n})", "s_mov_b32 exec_lo, 0"] + flag_test(PT, 4) + ["s_cbranch_vccnz L_w4", "L_w4_ret:", "s_mov_b32 exec_lo, -1"] + SETZ
        sync[56] = ["s_barrier"]
        seq = [wrm] + [g for t in range(4) for g in w4_dma(t)]
        for i, g in enumerate(seq): extra[C4U + i//2].append(g)
        u = max(56, C4U + (len(seq)+1)//2)
        for i, g in enumerate(g for t in (4, 5) for g in w4_dma(t)): extra[u + i//2].append(g)
        for t in range(6): vm.add(f"w{t}", 2)
    if cfg.get("x_noextra"):
        keep = cfg["x_noextra"]
        for k in extra:
            if keep == "lo" and k < 23: continue
            if keep == "hi" and k >= 23: continue
            extra[k] = []
        sync[34] = ["L_w2_ret:"]
        if cfg.get("x_nobar"): sync = {34: sync[34]}
    def E(s, i, j):
        for k in range(i, j): a(f"v_exp_f32 v{s+k}, v{s+k}")
    XF = [int(x) for x in cfg.get("x_ffn", "0,0,0,1").split(",")]
    XP = cfg.get("x_pos", "a")
    pend = []
    def sm(n=1):
        for _ in range(n):
            if pend: a(pend.pop(0))
    for T in range(32):
        g, tt = divmod(T, 4); u = 2*T
        s0, s1 = sreg(T, 0), sreg(T, 1)
        ex0 = list(extra[u]); ex1 = list(extra[u+1])
        def side(ex):
            if ex:
                for l in ex.pop(0): a(l)
        stamp(a, f"u{u}")
        if T > 0: a(pv(T-1, 1, 0))
        for l in sync.get(u, []): a(l)
        if T == 16:
            a(f"v_add_u32 v{vKA}, {4*10240}, v{vKA}"); a(f"v_add_u32 v{vVA}, {4*10240}, v{vVA}")
            bump["k"] = 4*10240
        if tt == 3 and g < 7: a(rd_k2(g+1))
        if T < 31: a(rd_k1(T+1))
        side(ex0)
        E(s0, 0, 4)
        if XP == "a": sm()
        if T > 0: a(pv(T-1, 1, 1))
        side(ex0)
        E(s0, 4, 8)
        sm(9)
        if T < 31:
            if tt == 3: a("s_waitcnt lgkmcnt(1)")
            a(b2(T+1))
        for l in ["s_mov_b64 exec, s[38:39]", rd_v(T, 0), rd_v(T, 1), "s_mov_b64 exec, -1"]: a(l)
        nf = ((T-XF[0]+1)*XF[2])//XF[3] - ((T-XF[0])*XF[2])//XF[3] if XF[0] <= T < XF[1] else 0
        for f in range(nf):
            for uu in range(2): a(f"ds_read_b64_tr_b16 {vr(236+4*f+2*uu,2)}, v{vRA+f} offset:{10240*6 + 1280*uu}")
        E(s0, 8, 16)
        a(f"s_waitcnt lgkmcnt({2*nf})")
        a(pv(T, 0, 0))
        E(s1, 0, 4)
        if nf:
            pend += [f"v_mfma_f32_16x16x32_bf16 {vr(244,4)}, {vr(236+4*(f%2),4)}, {vr(Q1+4*w,4)}, {vr(244,4)}" for f in range(nf) for w in range(2)]
            a("s_waitcnt lgkmcnt(0)")
        if XP == "a": sm()
        if T < 31: a(qk(T+1, 0))
        if XP == "b": sm()
        side(ex1)
        E(s1, 4, 8)
        if XP == "a": sm()
        a(pv(T, 0, 1))
        if XP == "b": sm()
        side(ex1)
        E(s1, 8, 12)
        if XP == "a": sm()
        if T < 31: a(qk(T+1, 1))
        if XP == "b": sm()
        E(s1, 12, 16)
        if XP == "a": sm()
        assert not ex0 and not ex1
    sm(9)
    a(pv(31, 1, 0)); a("s_nop 0"); a(pv(31, 1, 1))
    stamp(a, "at_loopend")
    t0, t1, t2, t3 = K1, K1+1, K1+2, K1+3
    a("s_mul_i32 s31, s28, 2560")
    a(f"s_add_u32 s31, s31, {6*10240 - 4*10240}")
    a(f"v_add_u32 v{t0}, s31, v{vKA}")
    a("s_and_b32 s13, s28, 1"); a("s_lshl_b32 s13, s13, 9"); a("s_lshr_b32 s12, s28, 1"); a("s_lshl_b32 s12, s12, 12")
    a("s_add_u32 s13, s13, s12"); a(f"s_add_u32 s13, s13, {3*10240 - 512}")
    a(f"v_add_u32 v{t2}, 2048, v{t0}")
    a("s_mov_b32 exec_lo, 0")
    a(f"v_add_u32 v{t2}, s13, v{vKA}")
    a("s_mov_b64 exec, -1")
    a("s_mul_i32 s31, s27, 163840")
    a("s_sub_u32 s31, 81920, s31")
    a("s_cmp_eq_u32 s27, 0")
    a(f"v_add_u32 v{t1}, s31, v{t0}")
    a(f"v_add_u32 v{t3}, s31, v{t2}")
    a("s_cbranch_scc0 L_at_z1")
    for c in range(3): a(f"ds_write_b128 v{t0 if c < 2 else t2}, {vr(O+16+4*c,4)} offset:{1024*c if c < 2 else 0}")
    a.label("L_at_zj")
    def z1(a):
        a.label("L_at_z1")
        for c in range(3): a(f"ds_write_b128 v{t0 if c < 2 else t2}, {vr(O+4*c,4)} offset:{1024*c if c < 2 else 0}")
        for c in range(12): a(f"v_mov_b32 v{O+c}, v{O+16+c}")
        a("s_branch L_at_zj")
    late.insert(0, z1)
    a((f"s_waitcnt vmcnt({vm.after('w0')}) " if PKE == 3 else "s_waitcnt ") + "lgkmcnt(0)")
    a("s_barrier")
    for c in range(3): a(f"ds_read_b128 {vr(S+4*c,4)}, v{t1 if c < 2 else t3} offset:{1024*c if c < 2 else 0}")
    a("s_waitcnt lgkmcnt(0)")
    for c in range(12): a(f"v_add_f32 v{O+c}, v{O+c}, v{S+c}")
    a(f"v_mov_b32 v{t2}, v{O+8}")
    a(f"v_mov_b32 v{t3}, v{O+8}")
    a(f"v_add_f32 v{t0}, abs(v{O}), abs(v{O+1})")
    a(f"v_add_f32 v{t0}, v{t0}, abs(v{O+2})")
    a(f"v_permlane32_swap_b32 v{t3}, v{t2}")
    for c in range(3, 12): a(f"v_add_f32 v{t0}, v{t0}, abs(v{O+c})")
    a(f"v_rcp_f32 v{t1}, v{t2}")
    a(f"v_cmp_nle_f32 vcc, 0x{f32bits(2.0**-40):x}, v{t2}")
    a(f"s_mov_b64 s[40:41], vcc")
    a(f"v_cmp_nge_f32 vcc, 0x{f32bits(2.0**100):x}, v{t2}")
    a(f"s_or_b64 s[40:41], s[40:41], vcc")
    a(f"v_cmp_nge_f32 vcc, 0x{f32bits(2.0**126):x}, v{t0}")
    a(f"s_or_b64 s[40:41], s[40:41], vcc")
    if cfg.get("force_fallback"): a("s_mov_b64 s[40:41], -1")
    a("s_cmp_lg_u64 s[40:41], 0")
    a("s_cbranch_scc1 L_at_slow")
    a.label("L_at_store")
    a(f"v_mul_f32 v{t1}, v{t1}, v{vG}")
    for c in range(12): a(f"v_mul_f32 v{O+c}, v{O+c}, v{t1}")
    for c in (4, 5, 0, 1, 2, 3): a(f"v_cvt_pk_bf16_f32 v{S+c}, v{O+2*c}, v{O+2*c+1}")
    for c in (4, 5, 0, 1, 2, 3): a(f"v_min_u32 v{S+c}, -2, v{S+c}")
    a(f"v_permlane16_swap_b32 v{S+4}, v{S+6}")
    a(f"v_permlane16_swap_b32 v{S+5}, v{S+7}")
    a(f"buffer_store_dwordx4 {vr(S,4)}, v{aOA}, s[{SWS}:{SWS+3}], s32 offen {ST}")
    a("s_mov_b64 exec, 0xffff")
    a(f"buffer_store_dwordx4 {vr(S+4,4)}, v{vD}, s[{SWS}:{SWS+3}], s33 offen {ST}")
    a("s_mov_b64 exec, -1")
    vm.add("ost", 2)
    stamp(a, "o_stored")

    def slow(a):
        a.label("L_at_slow")
        NM = 16; QZ = 32
        KA = 44; vV2 = 52; mx = 53
        def qz(qt, tt): return QZ + 4*(tt >> 1) + (2 if (tt & 1) == 0 else 0)
        for c in range(2): a(f"v_mov_b32 v{KA+c}, v{Q2+c}")
        for i in range(10): a(f"v_mov_b32 v{QZ+i}, 0")
        for c in range(2): a(f"v_permlane32_swap_b32 v{Q2+c}, v{KA+c}")
        a("s_cmp_eq_u32 s27, 0")
        a("s_cbranch_scc1 L_slow_z0")
        a("s_nop 0")
        for c in range(2): a(f"v_mov_b32 v{Q2+c}, v{KA+c}")
        for c in range(4): a(f"v_mov_b32 v{Q1+c}, v{Q1+4+c}")
        a.label("L_slow_z0")
        a("s_mov_b32 exec_hi, 0")
        for c in range(2): a(f"v_mov_b32 v{QZ+2+c}, v{Q2+c}")
        a("s_mov_b64 exec, -1")
        a("s_mov_b32 exec_lo, 0")
        for c in range(2): a(f"v_mov_b32 v{QZ+6+c}, v{Q2+c}")
        a("s_mov_b64 exec, -1")
        a("s_mul_i32 s34, s27, 81920")
        a(f"s_add_u32 s34, s34, {4*10240 + 5120}")
        a(f"v_subrev_u32 v{vV2}, s34, v{vVA}")
        a(f"v_mov_b32 v{mx}, 0xff7fffff")
        for i in range(16): a(f"v_mov_b32 v{NM+i}, 0")
        for i in range(16): a(f"v_mov_b32 v{O+i}, 0")
        for ps in range(2):
            a("s_mul_i32 s34, s25, 163840")
            a(f"s_add_u32 s34, s34, {WS_KV}")
            a("s_mov_b32 s35, 16")
            a.label(f"L_slow_loop{ps}")
            a(f"s_add_u32 s36, s34, 4096")
            a(f"buffer_load_dwordx4 {vr(K2,4)}, v{vD}, s[{SWS}:{SWS+3}], s36 offen {LDF}")
            for tt in range(4):
                a(f"buffer_load_dwordx4 {vr(KA,4)}, v{vD}, s[{SWS}:{SWS+3}], s34 offen offset:{1024*tt} {LDF}")
                if ps == 1:
                    a(f"s_add_u32 s36, s34, {5120+1280*tt}")
                    a("s_mov_b64 exec, s[38:39]")
                    a(f"buffer_load_dwordx4 {vr(V,4)}, v{vV2}, s[{SWS}:{SWS+3}], s36 offen {LDF}")
                    a(f"buffer_load_dwordx4 {vr(V+4,4)}, v{vV2}, s[{SWS}:{SWS+3}], s36 offen offset:640 {LDF}")
                    a("s_mov_b64 exec, -1")
                a("s_waitcnt vmcnt(0)")
                a(f"v_mfma_f32_32x32x16_bf16 {vr(S,16)}, {vr(KA,4)}, {vr(Q1,4)}, {vr(NM,16)}")
                a(f"v_mfma_f32_32x32x16_bf16 {vr(S,16)}, {vr(K2,4)}, {vr(qz(0,tt),4)}, {vr(S,16)}")
                a("s_nop 11")
                if ps == 0:
                    for i in range(0, 16, 2): a(f"v_max3_f32 v{mx}, v{mx}, v{S+i}, v{S+i+1}")
                else:
                    for i in range(16): a(f"v_exp_f32 v{S+i}, v{S+i}")
                    a("s_nop 1")
                    for h in range(2):
                        a(f"v_smfmac_f32_32x32x32_bf16 {vr(O,16)}, {vr(V+4*h,4)}, {vr(S+8*h,8)}, v{vIDX}")
                    a("s_nop 3")
            a("s_add_u32 s34, s34, 10240")
            a("s_sub_u32 s35, s35, 1")
            a("s_cmp_lg_u32 s35, 0")
            a(f"s_cbranch_scc1 L_slow_loop{ps}")
            if ps == 0:
                a(f"v_mov_b32 v{t3}, v{mx}")
                a(f"v_mov_b32 v{t1}, v{mx}")
                a("s_nop 1")
                a(f"v_permlane32_swap_b32 v{t3}, v{t1}")
                a("s_nop 1")
                a(f"v_max_f32 v{mx}, v{t3}, v{t1}")
                for i in range(16): a(f"v_sub_f32 v{NM+i}, 0, v{mx}")
        a("s_nop 11")
        a(f"v_mov_b32 v{t2}, v{O+8}")
        a(f"v_mov_b32 v{t3}, v{O+8}")
        a("s_nop 1")
        a(f"v_permlane32_swap_b32 v{t3}, v{t2}")
        a("s_nop 1")
        a(f"v_rcp_f32 v{t1}, v{t2}")
        a("s_nop 0")
        a("s_branch L_at_store")
    late.append(slow)

def phase45(a, cfg, late):
    stamp = cfg["stamp"]; vm = cfg["vm"]
    OA = 0; ACC = 40; WB = 80; NB = 10
    vREM, vMX, vG1, vOUT, vOUT2, vRD, vO2, vPR = 120, 121, 122, 126, 127, 234, 240, 241
    NS = 17; MG = int(cfg.get("mg", 14))
    OS = dict(zip(range(12, 17), [int(x) for x in cfg.get("os", "7,8,9,10,10").split(",")]))
    KB = int(cfg.get("kb", 7))
    BAR = [int(x) for x in cfg.get("bar", "0,2,4,6,8,10,13").split(",")]
    WI = dict(zip(range(6, 17), [int(x) for x in cfg.get("wi", "0,1,2,3,4,5,6,7,8,9,10").split(",")]))
    vis = lambda tt: max(b for b in BAR if b < tt)
    assert BAR[0] == 0 and BAR[-1] == MG-1 and all(any(tt-7 <= b <= WI[tt] for b in BAR) and WI[tt] < vis(tt) for tt in WI)
    F = [(t, j) for t in range(MG) for j in range(5)] + [(t, j) for j in (1, 2, 3, 4, 0) for t in range(MG, NS)]
    FR = cfg.get("fr", "1") == "1"; RK = [int(x) for x in cfg.get("rk", "0,2,4,6,8").split(",")]; LW = cfg.get("lw", "0") == "1"
    def reads(i):
        t, j = F[i]; slot = SLOTP[t % 8]
        if FR: return [(f"ds_read_b128 {vr(WB+4*(i%NB),4)}, v{(vRA7 if slot == 7 else vRA)+j} offset:{0 if slot == 7 else slot*10240}", i)]
        return [(f"ds_read_b64_tr_b16 {vr(WB+4*(i%NB)+2*u,2)}, v{(vRA7 if slot == 7 else vRA)+j} offset:{(0 if slot == 7 else slot*10240) + u*1280}", i)
                for u in range(2)]
    lq = []
    def rd(x): a(x[0]); lq.append(x[1])
    def lwait(tag):
        n = len(lq) - 1 - max(i for i, x in enumerate(lq) if x == tag)
        a(f"s_waitcnt lgkmcnt({min(n, 15)})")
    rq = [x for i in range(len(F)) for x in reads(i)]
    for _ in range(5 if FR else 10): rd(rq.pop(0))
    def oloads(t0): return [l for tt in range(t0, 17) for g in act_ld(tt, vREM, vO2) for l in g]
    def check(t0, t1):
        r = list(range(act_reg(t0), act_reg(t1-1)+8))
        return [f"v_max3_u32 v{vMX}, v{r[0]}, v{r[1]}, v{r[2]}"] + [f"v_max3_u32 v{vMX}, v{vMX}, v{r[i]}, v{r[min(i+1,len(r)-1)]}" for i in range(3, len(r), 2)]
    CKS = {11: (12, MG), MG-1: (MG, 17)}
    if cfg.get("ck"):
        c = [tuple(int(y) for y in x.split(":")) for x in cfg["ck"].split(",")]
        CKS = {t: (o, c[i+1][1] if i+1 < len(c) else 17) for i, (t, o) in enumerate(c)}
    assert all(t < o0 and t < MG and all(OS[o] < t for o in range(o0, o1)) for t, (o0, o1) in CKS.items())
    fill = {t: [] for t in range(NS)}
    fill[0] = [f"v_add_u32 v{vO2}, 32768, v{vA4}", f"v_and_b32 v{vREM}, 0x600, v{vA4}", f"v_add_u32 v{vREM}, v{vREM}, v{vA4}",
               f"v_bfe_u32 v{vMX}, v{vD}, 4, 4", f"v_mul_u32_u24 v{vMX}, 1280, v{vMX}",
               f"v_bfe_u32 v{vOUT}, v{vD}, 8, 1", f"v_mul_u32_u24 v{vOUT}, {32*1280}, v{vOUT}", f"v_lshrrev_b32 v{vOUT2}, 9, v{vD}",
               f"v_lshl_add_u32 v{vOUT}, v{vOUT2}, 4, v{vOUT}", f"v_add_u32 v{vOUT}, v{vOUT}, v{vMX}",
               f"v_lshrrev_b32 v{vOUT2}, 8, v{vD}", f"v_lshl_add_u32 v{vOUT2}, v{vOUT2}, 3, v{vMX}"]
    fill[1] = [l for w in range(2) for l in (f"v_sub_f32 v{vG1+w}, 1.0, v{aG4+w}", f"v_cvt_pk_bf16_f32 v{vG1+w}, v{vG1+w}, v{vG1+w}",
                                            f"v_and_b32 v{vG1+w}, 0xffff0000, v{vG1+w}")]
    fill[2] = ["s_lshr_b32 s12, s24, 1", "s_mul_i32 s13, s3, 81920", "s_add_u32 s13, s13, 10240", f"v_add_u32 v{vRD}, s13, v{vD}",
               "s_lshl_b32 s31, s12, 10", f"s_add_u32 s31, s31, {24*1024}", f"v_add_u32 v{vRD+4}, s31, v{vRD}"]
    for j in (1, 2, 3):
        fill[3] += [f"s_xor_b32 s31, s12, {j}", "s_mul_i32 s31, s31, 6144", f"v_add_u32 v{vRD+j}, s31, v{vRD}"]
    fill[3] += ["s_mul_i32 s31, s12, 6144", f"v_add_u32 v{vRD+5}, s31, v{vRD}"]
    def scale(j, w): return [f"v_mul_f32 v{ACC+20*w+4*j+i}, v{ACC+20*w+4*j+i}, v{vG1+w}" for i in range(4)]
    def site(t, z):
        ws = [tt for tt in WI if WI[tt] == t]
        os_ = [tt for tt in OS if OS[tt] == t]
        if not ws and not os_: return
        a(f"s_cmp_eq_u32 s27, {z}")
        a(f"s_cbranch_scc0 L_s4_{t}_{z}")
        for kind in ("wo" if cfg.get("wf") else "ow"):
            for tt in (os_ if kind == "o" else ws):
                for l in ([l for g in act_ld(tt, vREM, vO2) for l in g] if kind == "o" else w4_dma(tt, z)):
                    if not (cfg.get("x_noo" if kind == "o" else "x_now4") and l.startswith("buffer_load")): a(l)
                if z == 1: vm.add(f"{kind}{tt}", 2)
        a.label(f"L_s4_{t}_{z}")
    wr = []
    fl = []
    for i, (t, j) in enumerate(F):
        plain = t < MG
        if plain and j == 0: fl = list(fill[t])
        for w in range(2):
            k = 2*j + w
            acc = ACC + 20*w + 4*j
            if t == 12:
                if k == 0:
                    for l in scale(0, 0): a(l)
                if k < 9:
                    for l in scale(*divmod(k+1, 2)): a(l)
            if w == 0 and not (LW and plain): lwait(i)
            if LW and plain and k == 0: lwait(i+4)
            a(f"v_mfma_f32_16x16x32_bf16 {vr(acc,4)}, {vr(WB+4*(i%NB),4)}, {vr(act_reg(t)+4*w,4)}, " + ("0" if t == 0 else vr(acc,4)))
            if plain and k == 0 and t not in BAR: stamp(a, f"p4_b{t}")
            if plain and k == 0 and t in BAR:
                stamp(a, f"p4_p{t}")
                need = [f"w{tt}" for tt in range(1, NS) if vis(tt) == t and f"w{tt}" in vm.q]
                if need: a(f"s_waitcnt vmcnt({vm.after(*need)})")
                a("s_barrier")
                stamp(a, f"p4_b{t}")
            for _ in range((RK.count(k) if plain else w == 0) if FR else 2 if (plain and k == 0) else 0 if (plain and k == 9) else 1):
                if rq: rd(rq.pop(0))
            if plain and k == 0: site(t, 0)
            if plain and k == KB: site(t, 1)
            if plain and t in CKS and k == 2:
                a(f"s_waitcnt vmcnt({vm.after(*[f'o{tt}' for tt in range(*CKS[t])])})")
                stamp(a, f"p4_og{t}")
                fl += check(*CKS[t])
            if plain:
                for _ in range(-(-len(fl) // (10-k))): a(fl.pop(0))
            else:
                are = [x for x in wr if x[1] <= 2*i + w]
                if are: a(are[0][0]); wr.remove(are[0])
                if t == NS-1 and j:
                    wr.append((f"ds_write_b128 v{vRD+j}, {vr(acc,4)} offset:{(3*w + j-1)*1024 if j < 4 else 4096*w}", 2*i + w + (4 if j < 4 else 6)))
        if plain and j == 4 and t in CKS:
            a(f"v_cmp_eq_u32 vcc, -1, v{vMX}")
            a("s_nop 0")
            a(f"s_cbranch_vccnz L_or{t}")
            a.label(f"L_or{t}_ret")
            stamp(a, f"p4_ok{t}")
            if CKS[t][1] == 17:
                a(f"v_swap_b32 v{OA+34}, v{OA+36}"); a(f"v_swap_b32 v{OA+35}, v{OA+37}")
        if t == 11 and j == 4: stamp(a, "p4_end")
    def retry(a):
        for t in CKS:
            a.label(f"L_or{t}")
            a(f"s_mov_b32 s31, {SPIN}")
            a(f"v_bfe_u32 v{vPR}, v{vD}, 4, 5")
            a(f"v_lshlrev_b32 v{vPR}, 9, v{vPR}")
            a("s_lshl_b32 s13, s3, 8")
            a(f"s_and_b32 s41, s{sOR}, 0xffffc000")
            a("s_add_u32 s13, s13, s41")
            a.label(f"L_or{t}_l")
            a("s_sub_u32 s31, s31, 1")
            a("s_cmp_eq_u32 s31, 0")
            a(f"s_cbranch_scc1 L_or{t}_ret")
            a(f"buffer_load_dword v{vMX}, v{vPR}, s[{SWS}:{SWS+3}], s13 offen {LDF}")
            a("s_waitcnt vmcnt(0)")
            a(f"v_cmp_eq_u32 vcc, -1, v{vMX}")
            a("s_nop 0")
            a(f"s_cbranch_vccnz L_or{t}_l")
            for l in oloads(CKS[t][0]): a(l)
            a("s_waitcnt vmcnt(0)")
            for l in check(*CKS[t]): a(l)
            a(f"v_cmp_eq_u32 vcc, -1, v{vMX}")
            a("s_nop 0")
            a(f"s_cbranch_vccnz L_or{t}_l")
            a(f"s_branch L_or{t}_ret")
    late.append(retry)
    for l, _ in wr: a(l)
    stamp(a, "p5_end")
    R = 128
    OF = "".join(" " + x for x in cfg.get("of", "").split(",") if x)
    a("s_lshl_b32 s31, s12, 5")
    a(f"s_add_u32 s31, s31, s{sOUTB}")
    a("s_waitcnt lgkmcnt(0)")
    a("s_barrier")
    for w in range(2):
        for i in range(3): a(f"ds_read_b128 {vr(R+12*w+4*i,4)}, v{vRD+5} offset:{(3*w+i)*1024}")
    a("s_cmp_lt_u32 s12, 2")
    a("s_cbranch_scc0 L_p5_a")
    a("s_lshl_b32 s13, s12, 12")
    a(f"v_add_u32 v{vRD}, s13, v{vRD}")
    a(f"s_mul_i32 s13, s12, {32*1280}")
    a(f"s_add_u32 s13, s13, s{sOUTB}")
    for i in range(4): a(f"ds_read_b128 {vr(R+24+4*i,4)}, v{vRD} offset:{(24+i)*1024}")
    a.label("L_p5_a")
    for w in range(2):
        acc = ACC + 20*w
        a(f"s_waitcnt lgkmcnt({3-3*w})")
        for i in range(4): a(f"v_add_f32 v{R+12*w+i}, v{R+12*w+i}, v{R+12*w+4+i}")
        for i in range(4): a(f"v_add_f32 v{acc+i}, v{acc+i}, v{R+12*w+8+i}")
        for i in range(4): a(f"v_add_f32 v{acc+i}, v{acc+i}, v{R+12*w+i}")
        a(f"v_cvt_pk_bf16_f32 v{OA+2*w}, v{acc}, v{acc+1}")
        a(f"v_cvt_pk_bf16_f32 v{OA+2*w+1}, v{acc+2}, v{acc+3}")
    a("s_nop 1")
    a(f"v_permlane16_swap_b32 v{OA}, v{OA+2}")
    a(f"v_permlane16_swap_b32 v{OA+1}, v{OA+3}")
    a(f"buffer_store_dwordx4 {vr(OA,4)}, v{vOUT}, s[{SOUT}:{SOUT+3}], s31 offen{OF}")
    a("s_cmp_lt_u32 s12, 2")
    a("s_cbranch_scc0 L_p5_end")
    for i in range(4): a(f"v_add_f32 v{R+24+i}, v{R+24+i}, v{R+28+i}")
    for i in range(4): a(f"v_add_f32 v{R+32+i}, v{R+32+i}, v{R+36+i}")
    for i in range(4): a(f"v_add_f32 v{R+24+i}, v{R+24+i}, v{R+32+i}")
    a(f"v_cvt_pk_bf16_f32 v{R+24}, v{R+24}, v{R+25}")
    a(f"v_cvt_pk_bf16_f32 v{R+25}, v{R+26}, v{R+27}")
    a(f"buffer_store_dwordx2 {vr(R+24,2)}, v{vOUT2}, s[{SOUT}:{SOUT+3}], s13 offen offset:128{OF}")
    a.label("L_p5_end")

HEADER = open("cdna_kernels/" + NAME + ".s.ref").read().split("; Override launch")[0]

def kd(name, vgpr, sgpr=100):
    return f""".section .rodata,"a"
.p2align 6
.amdhsa_kernel {name}
  .amdhsa_next_free_vgpr {vgpr}
  .amdhsa_next_free_sgpr {sgpr}
  .amdhsa_accum_offset {(vgpr+3)//4*4}
  .amdhsa_group_segment_fixed_size 0
  .amdhsa_kernarg_size 80
  .amdhsa_user_sgpr_count 2
  .amdhsa_user_sgpr_kernarg_segment_ptr 1
  .amdhsa_system_sgpr_workgroup_id_x 1
.end_amdhsa_kernel
"""

def gen(opts):
    a = Asm()
    k = NAME + "_kernel"
    a(".text"); a(f".globl {k}"); a(".p2align 8"); a(f".type {k},@function"); a.label(k)
    a("s_cmp_ge_u32 s2, 256"); a("s_cbranch_scc1 L_end")
    a(f"s_load_dwordx2 s[{SX}:{SX+1}], s[0:1], 0")
    a(f"s_load_dwordx2 s[{SW}:{SW+1}], s[0:1], 8")
    a(f"s_load_dwordx2 s[{SW1}:{SW1+1}], s[0:1], 32")
    a(f"s_load_dwordx2 s[{SG}:{SG+1}], s[0:1], 48")
    a(f"s_load_dwordx2 s[{SWS}:{SWS+1}], s[0:1], 72")
    a(f"s_load_dwordx2 s[{SDBG}:{SDBG+1}], s[0:1], 64")
    a(f"s_load_dwordx2 s[46:47], s[0:1], 40")
    a(f"s_load_dwordx2 s[48:49], s[0:1], 16")
    a(f"s_load_dwordx2 s[50:51], s[0:1], 56")
    st = Stamps(opts.get("stamps")); st.cyc = opts.get("cyc"); st.dbg = opts.get("dbg"); st(a, "start")
    cfg = dict(opts, stamp=st); late = []
    phase12(a, cfg, late)
    phase3(a, cfg, late)
    phase45(a, cfg, late)
    if st.on: a("s_waitcnt vmcnt(0)")
    st(a, "end"); st.flush(a)
    a.label("L_end"); a("s_endpgm")
    while late: late.pop(0)(a)
    a.label("L_code_end")
    errs = check_linear(a.lines)
    head = HEADER + ("; @launch grid=(256,1,1) block=(512,1,1) lds=163840\n"
                     '.amdgcn_target "amdgcn-amd-amdhsa--gfx950"\n')
    return head + a.text() + kd(k, 256), errs

if __name__ == "__main__":
    out = sys.argv[1] if len(sys.argv) > 1 else "cdna_kernels/" + NAME + ".s"
    opts = {}
    for o in sys.argv[2:]:
        k, _, v = o.partition("=")
        opts[k] = v or True
    txt, errs = gen(opts)
    open(out, "w").write(txt)
    print("written", out, "hazards:", errs, "bytes:", len(txt))
```

```python
import sys, math, struct
from dsl import *

NAME = "gated_mix__mha_block__dense_activation_relu__prompt"
WS_Q  = 0x0
WS_KV = 0x280000
WS_H  = 0x780000
WS_O  = 0xD80000
WS_OR = 0xF80000
WS_G  = 0x1000000
FS = 3
FL1   = 0x1002000
FL2   = 0x100A000
FL3   = 0x1012000
FL4   = 0x101A000
WS_WP = 0x1200000
WS_END = WS_WP + 8*348160
OOB = 0x80000000
SPIN = 1 << 15
def f32bits(x): return struct.unpack("<I", struct.pack("<f", x))[0]
QSCALE = f32bits(math.log2(math.e) / math.sqrt(20.0))
ST = "sc1"; LDF = "sc1"

SX, SW, SW1, SWS, SG, SDBG = 4, 8, 12, 16, 20, 52
SW2, SWO, SOUT = SX, SW, SG
sF1, sHE, sNON = 42, 43, 44
sKW, sKH, sHB, sOB, sW2B, sWOB, sHL, sOUTB, sG4, sM4, sF2, sF3 = range(56, 68)
sF4 = 100
PKW = (216, 244)
PKL = 143360; vPT = 20
vPS, vPD, vA4B, vA4, vR4, vP2, vKA, vVA, vP1, vD = 252, 242, 248, 249, 250, 251, 252, 253, 254, 255
vRA, vRA7, vWARM, vSENT = 224, 229, 234, 236
sOR = 15

def srd_tail(a, base, nbytes):
    a(f"s_mov_b32 s{base+2}, {nbytes}")
    a(f"s_mov_b32 s{base+3}, 0x00020000")

STAMP_BASE = 0x1100000
class Stamps:
    DEF = "start,p1_first,p1_end,p2_end,at_first,at_loopend,o_stored,p4_b1,p4_b4,p4_b8,p4_ok11,p4_ok13,p5_end,end"
    def __init__(self, on):
        self.on = on; self.names = []
        self.sel = set((self.DEF if on is True else "start," + str(on)).split(","))
    def __call__(self, a, name):
        if not self.on or name not in self.sel: return
        if name in self.names: i = self.names.index(name)
        else:
            i = len(self.names); self.names.append(name)
        assert i < 10
        if name.startswith("val_"): a(f"s_mov_b32 s{68+2*i}, {name[4:]}"); return
        a(f"{'s_memtime' if self.cyc else 's_memrealtime'} s[{68+2*i}:{69+2*i}]")
    def flush(self, a):
        if not self.on: return
        a("s_waitcnt lgkmcnt(0)")
        if self.dbg is not None:
            n = len(self.names); assert n <= 13
            a("s_mov_b64 exec, 1")
            a(f"s_sub_u32 s31, s68, s{sNON}"); a("s_add_u32 s31, s31, 1000"); a("v_mov_b32 v0, s31")
            a(f"buffer_atomic_umax v0, off, s[{SDBG}:{SDBG+3}], 0 offset:56 sc1")
            a(f"s_sub_u32 s31, s{68+2*(n-1)}, s{sNON}"); a("v_mov_b32 v1, s31")
            a(f"buffer_atomic_umax v1, off, s[{SDBG}:{SDBG+3}], 0 offset:60 sc1")
            a(f"s_cmp_eq_u32 s2, {self.dbg}"); a("s_cbranch_scc0 L_end")
            a("s_cmp_eq_u32 s24, 0"); a("s_cbranch_scc0 L_end")
            for i in range(1, n):
                a(f"s_sub_u32 s31, s{68+2*i}, s{sNON}"); a(f"v_mov_b32 v{2+i}, s31")
                a(f"buffer_store_dword v{2+i}, off, s[{SDBG}:{SDBG+3}], 0 offset:{4+4*i} sc1")
            a("; stamps " + ",".join(self.names))
            return
        a("s_lshl_b32 s31, s2, 3")
        a("s_add_u32 s31, s31, s24")
        a("s_lshl_b32 s31, s31, 6")
        a(f"s_add_u32 s31, s31, {STAMP_BASE}")
        a(f"s_mov_b32 s{SWS+2}, 0x2000000")
        a("v_mov_b32 v2, 0")
        for i in range(len(self.names)):
            a(f"v_mov_b32 v0, s{68+2*i}")
            a(f"buffer_store_dword v0, v2, s[{SWS}:{SWS+3}], s31 offen offset:{4*i}")
            a("s_nop 1")
        a("; stamps " + ",".join(self.names))

class VM:
    def __init__(self): self.q = []
    def add(self, tag, n=1): self.q += [tag]*n
    def after(self, *tags):
        last = max(i for i, t in enumerate(self.q) if t in tags)
        assert all(t in self.q for t in tags), tags
        n = len(self.q) - 1 - last
        assert n <= 63
        return n

def flag_store(sregs, tmp):
    return [f"v_mov_b32 v{tmp+2}, s{sregs[0]}", f"v_mov_b32 v{tmp}, s{sNON}", f"v_mov_b32 v{tmp+1}, s{sNON+1}"] + \
           [f"v_writelane_b32 v{tmp+2}, s{r}, {i+1}" for i, r in enumerate(sregs[1:])] + [
            f"s_mov_b64 exec, {(1 << len(sregs)) - 1}",
            f"buffer_store_dwordx2 v[{tmp}:{tmp+1}], v{tmp+2}, s[{SWS}:{SWS+3}], 0 offen {ST}",
            "s_mov_b64 exec, -1"]

UID = [0]
def pieces(soff, pre, post, z):
    ld = [f"buffer_load_dwordx4 v{vD}, s[{SWS}:{SWS+3}], {soff} offen offset:{1024*i} {LDF} lds" for i in range(3)]
    if z is not None: return pre + ld[:3-z] + post
    UID[0] += 1
    return [pre + ld[:1], ld[1:2], [f"s_cbranch_vccnz L_pc{UID[0]}", ld[2], f"L_pc{UID[0]}:"] + post]
SETZ = ["s_cmp_eq_u32 s27, 0", "s_cselect_b64 vcc, 0, -1"]
def kv_dma(i):
    return pieces("s34", [f"s_add_u32 m0, s{sM4}, {i*10240}", "s_add_u32 s34, s34, 10240"], [], None)

aS, aO, aQ1, aK1, aK2, aV, aQ2 = 0, 64, 96, 104, 108, 112, 120
aIDX, aG, aG4, aOA, HP = 122, 123, 124, 126, 128
HPK = 192

SLOTP = [0, 1, 2, 3, 4, 5, 7, 6]
def w4_dma(t, z=None):
    m0 = f"s_add_u32 m0, s{sM4}, {SLOTP[t % 8]*10240}"
    if t < 12:
        return pieces(f"s{sKW}", [m0, "s_nop 0"], [f"s_add_u32 s{sKW}, s{sKW}, 20480", f"s_cmp_eq_u32 s{sKW}, s{sWOB}", f"s_cselect_b32 s{sKW}, s{sW2B}, s{sKW}"], z)
    return pieces("s40", [m0, f"s_add_u32 s40, s{sWOB}, {(t-12)*20480}"], [], z)
def pk_ld(): return [f"buffer_load_dwordx4 {vr(PKW[0],4)}, v{vPS}, s[{SW2}:{SW2+3}], 0 offen", f"buffer_load_dwordx4 {vr(PKW[1],4)}, v{vPS+1}, s[{SWO}:{SWO+3}], 0 offen"]
def act_reg(t):
    return HP + 8*t if t < 12 else 8*(t-12)
def act_ld(t, vrem=None, vo2=None):
    r = act_reg(t)
    ld = lambda r, v, so, off=0: f"buffer_load_dwordx4 {vr(r,4)}, v{v}, s[{SWS}:{SWS+3}], {so} offen offset:{off} {LDF}"
    if t < 12:
        return [[ld(r, vA4, f"s{sKH}")],
                [ld(r+4, vA4B, f"s{sKH}"), f"s_add_u32 s{sKH}, s{sKH}, 8192", f"s_cmp_eq_u32 s{sKH}, s{sHL}", f"s_cselect_b32 s{sKH}, s{sHB}, s{sKH}"]]
    if t < 16:
        return [[f"s_add_u32 s41, s{sOB}, {(t-12)*8192}", ld(r, vA4, "s41")], [ld(r+4, vo2, "s41")]]
    return [[ld(r, vrem, f"s{sOR}")], [ld(r+4, vrem, f"s{sOR}", 512)]]

def poll_ld(addr, width, tmp):
    if FS == 3: return [f"buffer_load_dwordx{width} {vr(tmp,width)}, v{addr}, s[{SWS}:{SWS+3}], 0 offen {LDF}"]
    return [f"buffer_load_dwordx2 {vr(tmp+2*i,2)}, v{addr}, s[{SWS}:{SWS+3}], 0 offen offset:{i << FS} {LDF}" for i in range(width//2)]
def spin(a, name, addr, width, tmp, sc, sp=40, mask=None):
    a.label(name)
    a(f"s_mov_b32 s{sc}, {SPIN}")
    a.label(name + "_l")
    for l in poll_ld(addr, width, tmp): a(l)
    a(f"s_sub_u32 s{sc}, s{sc}, 1")
    a(f"s_cmp_eq_u32 s{sc}, 0")
    a(f"s_cbranch_scc1 {name}_ret")
    a("s_waitcnt vmcnt(0)")
    for l in flag_test(tmp, width, sp, mask): a(l)
    a(f"s_cbranch_vccnz {name}_l")
    a(f"s_branch {name}_ret")
def flag_test(tmp, width, sp=40, mask=None):
    r = [f"v_cmp_ne_u64 vcc, s[{sNON}:{sNON+1}], {vr(tmp,2)}"]
    if width == 4:
        r += [f"v_cmp_ne_u64 s[{sp}:{sp+1}], s[{sNON}:{sNON+1}], {vr(tmp+2,2)}", "s_nop 0", f"s_or_b64 vcc, vcc, s[{sp}:{sp+1}]"]
    else:
        r += ["s_nop 0"]
    if mask: r += [f"s_and_b64 vcc, vcc, s[{mask}:{mask+1}]"]
    return r

def phase12(a, cfg, late):
    stamp = cfg["stamp"]
    sK, sM0, sT0, sT1, sT2 = 27, 30, 31, 32, 33
    X = 0; ACC = 160; WB = 192
    vXR = 208; vWR = 212; vWR2 = 214; vXS = 216; vWS = 218; vW1S = 219; vEP = 220
    vT = 228; vL = 236; vGR = 237; vNON = 238
    WBS = [192, 200, 228]
    PK = [224, 240, 244, 248]
    t0, t1, t2, t3, t4, t5, t6 = range(vT, vT+7)
    a(f"v_and_b32 v{vL}, 63, v0")
    a(f"v_lshrrev_b32 v{t0}, 6, v0")
    a("s_and_b32 s31, s2, 7")
    a(f"v_readfirstlane_b32 s24, v{t0}")
    a("s_lshr_b32 s32, s2, 3")
    a("s_and_b32 s33, s32, 7")
    a("s_lshr_b32 s32, s32, 3")
    a("s_and_b32 s25, s31, 1")
    a("s_lshl_b32 s25, s25, 3")
    a("s_add_u32 s25, s25, s33")
    a("s_lshr_b32 s26, s31, 1")
    a("s_lshl_b32 s26, s26, 2")
    a("s_add_u32 s26, s26, s32")
    PF = cfg.get("pf"); CW = cfg.get("cw", "1") == "1"; vCW = 251; assert not PF
    if cfg.get("norot") or (PF and not cfg.get("rot2") and not cfg.get("rot4")): a("s_mov_b32 s27, 0")
    elif cfg.get("rot2"):
        a("s_add_u32 s27, s33, s32")
        a("s_and_b32 s27, s27, 1")
        a("s_mul_i32 s27, s27, 5")
    elif cfg.get("rot4"):
        a("s_add_u32 s27, s33, s32")
        a("s_and_b32 s27, s27, 3")
        a("s_mul_i32 s27, s27, 5")
        a("s_lshr_b32 s27, s27, 1")
    else:
        a("s_mul_i32 s33, s33, 5")
        a("s_mul_i32 s32, s32, 10")
        a("s_add_u32 s27, s33, s32")
        a("s_lshr_b32 s27, s27, 2")
        a("s_cmp_ge_u32 s27, 10")
        a("s_cselect_b32 s31, 10, 0")
        a("s_sub_u32 s27, s27, s31")
    a("s_lshl_b32 s31, s26, 2")
    a("s_mul_i32 s28, s26, 3")
    a("s_add_u32 s28, s28, 12")
    a("s_min_u32 s28, s28, s31")
    a("s_lshl_b32 s30, s24, 11")
    a(f"s_lshl_b32 s31, s25, 7")
    a(f"s_lshl_b32 s32, s24, 4")
    a(f"s_add_u32 s31, s31, s32")
    a(f"v_lshrrev_b32 v{t0}, 3, v{vL}")
    a(f"v_lshrrev_b32 v{t1}, 4, v{vL}")
    a(f"v_and_b32 v{t2}, 7, v{vL}")
    a(f"v_xor_b32 v{t2}, v{t2}, v{t1}")
    a(f"v_add_u32 v{t0}, s31, v{t0}")
    a(f"v_mul_u32_u24 v{t0}, 1280, v{t0}")
    a(f"v_lshl_add_u32 v{vXS}, v{t2}, 4, v{t0}")
    a(f"v_xor_b32 v{vXS+1}, 64, v{vXS}")
    a(f"v_add_u32 v{vXS+1}, {8*1280}, v{vXS+1}")
    a(f"v_bfe_u32 v{t4}, v{vL}, 2, 2")
    a(f"v_xor_b32 v{t4}, v{t4}, v{t1}")
    a(f"v_and_b32 v{t2}, 3, v{vL}")
    a(f"v_lshlrev_b32 v{t2}, 4, v{t2}")
    a(f"v_lshl_add_u32 v{t2}, v{t4}, 6, v{t2}")
    a(f"s_lshl_b32 s31, s24, 3")
    a(f"v_add_u32 v{t0}, s31, v{t1}")
    a(f"v_mul_u32_u24 v{t3}, 3840, v{t0}")
    a(f"s_lshl_b32 s31, s28, 6")
    a(f"v_add3_u32 v{vWS}, v{t3}, v{t2}, s31")
    a(f"v_cmp_eq_u32 vcc, 3, v{t4}")
    a(f"v_mov_b32 v{t5}, 0x{OOB:x}")
    a(f"s_cmp_ge_u32 s26, 12")
    a(f"s_cselect_b64 s[36:37], vcc, 0")
    a(f"s_lshr_b32 s34, s24, 2")
    a(f"v_cndmask_b32 v{vWS}, v{vWS}, v{t5}, s[36:37]")
    a("s_waitcnt lgkmcnt(0)")
    srd_tail(a, SX, 2048*1280); srd_tail(a, SW, 640*3840)

    def adv_k():
        return [f"s_add_u32 s{sK}, s{sK}, 1", f"s_cmp_eq_u32 s{sK}, 10", f"s_cselect_b32 s{sK}, 0, s{sK}"]
    def dma_groups(t):
        slot = t % 4
        g = []
        if t < 10:
            g.append([f"s_lshl_b32 s{sT0}, s{sK}, 7", f"s_add_u32 m0, s{sM0}, {slot*16384}", f"s_mul_i32 s{sT1}, s{sK}, {64*3840}",
                      f"buffer_load_dwordx4 v{vXS}, s[{SX}:{SX+3}], s{sT0} offen lds"])
            g.append([f"s_add_u32 m0, s{sM0}, {slot*16384+1024}", f"s_add_u32 s{sT2}, s{sT1}, {4*3840}",
                      f"buffer_load_dwordx4 v{vXS+1}, s[{SX}:{SX+3}], s{sT0} offen lds"])
            g.append([f"s_add_u32 m0, s{sM0}, {65536+slot*16384}", adv_k()[0],
                      f"buffer_load_dwordx4 v{vWS}, s[{SW}:{SW+3}], s{sT1} offen lds"])
            g.append([f"s_add_u32 m0, s{sM0}, {65536+slot*16384+1024}"] + adv_k()[1:] + [
                      f"buffer_load_dwordx4 v{vWS}, s[{SW}:{SW+3}], s{sT2} offen lds"])
        elif t < 15:
            for half in range(2):
                base = (65536 if half == 0 else 0) + slot*16384
                g.append([f"s_mul_i32 s{sT1}, s{sK}, {64*3072}", f"s_add_u32 m0, s{sM0}, {base}", f"s_add_u32 s{sT2}, s{sT1}, {4*3072}",
                          f"buffer_load_dwordx4 v{vW1S}, s[{SW1}:{SW1+3}], s{sT1} offen lds"])
                g.append([f"s_add_u32 m0, s{sM0}, {base+1024}"] + adv_k() + [
                          f"buffer_load_dwordx4 v{vW1S}, s[{SW1}:{SW1+3}], s{sT2} offen lds"])
        return g
    a("s_mov_b32 s29, s27")
    stamp(a, "karg")
    for g in dma_groups(0):
        for l in g: a(l)
    a("s_and_b32 s35, s24, 3")
    a("s_cmp_ge_u32 s26, 12")
    a("s_cselect_b32 s38, s34, 0")
    srd_tail(a, SG, 1280)
    a("s_cmp_eq_u32 s38, 1")
    a("s_cbranch_scc1 L_gate")
    a.label("L_gate_ret")
    def gate(a):
        u0, u1, u2 = vEP, vEP+1, vEP+2
        a.label("L_gate")
        a(f"s_lshl_b32 s31, s29, 3")
        for i in range(2):
            a(f"v_add_u32 v{u0}, {64*i}, v{vL}")
            a(f"v_add_u32 v{u1}, s31, v{u0}")
            a(f"v_subrev_u32 v{u2}, 80, v{u1}")
            a(f"v_cmp_le_u32 vcc, 80, v{u1}")
            a(f"s_lshl_b32 s32, s35, 11")
            a(f"s_add_u32 m0, s32, {131072 + 1024*i}")
            a(f"v_cndmask_b32 v{u1}, v{u1}, v{u2}, vcc")
            a(f"v_lshlrev_b32 v{u1}, 4, v{u1}")
            a(f"v_cmp_le_u32 vcc, 80, v{u0}")
            a("s_nop 1")
            a(f"v_cndmask_b32 v{u1}, v{u1}, v{t5}, vcc")
            a(f"buffer_load_dwordx4 v{u1}, s[{SG}:{SG+3}], 0 offen lds")
        a("s_branch L_gate_ret")
    late.append(gate)
    a("s_barrier")
    for g in dma_groups(1):
        for l in g: a(l)
    stamp(a, "dma1")
    srd_tail(a, SW1, 640*3072); srd_tail(a, SWS, WS_END); srd_tail(a, SDBG, 256)
    a("s_or_b32 s31, s2, s24")
    a("s_cmp_eq_u32 s31, 0")
    a("s_cbranch_scc1 L_tag")
    a.label("L_tag_ret")
    def tag(a):
        a.label("L_tag")
        a(f"s_memrealtime s[{sNON}:{sNON+1}]")
        a(f"v_mov_b32 v{vEP+2}, 0")
        a("s_waitcnt lgkmcnt(0)")
        a(f"s_or_b32 s31, s{sNON}, 1")
        a(f"v_mov_b32 v{vEP}, s31")
        a(f"v_mov_b32 v{vEP+1}, s{sNON+1}")
        a("s_mov_b64 exec, 1")
        a(f"buffer_store_dwordx2 v[{vEP}:{vEP+1}], v{vEP+2}, s[{SDBG}:{SDBG+3}], 0 offen {ST}")
        a("s_mov_b64 exec, -1")
        a("s_branch L_tag_ret")
    late.append(tag)
    a(f"v_mul_u32_u24 v{t3}, 3072, v{t0}")
    a(f"s_mul_i32 s31, s26, 192")
    a(f"v_add3_u32 v{vW1S}, v{t3}, v{t2}, s31")
    a(f"v_cmp_eq_u32 vcc, 3, v{t4}")
    a(f"v_and_b32 v{t0}, 31, v{vL}")
    a(f"s_lshl_b32 s31, s35, 5")
    a(f"v_cndmask_b32 v{vW1S}, v{vW1S}, v{t5}, vcc")
    a(f"v_mul_u32_u24 v{t1}, 43, v0")
    a(f"v_lshrrev_b32 v{t1}, 8, v{t1}")
    a(f"v_mul_u32_u24 v{t2}, {3072-6*128}, v{t1}")
    a(f"v_lshl_add_u32 v{t2}, v0, 7, v{t2}")
    a("s_lshr_b32 s32, s2, 3"); a(f"s_mul_i32 s32, s32, {20*3072}")
    a("s_bfe_u32 s33, s2, 0x20001"); a("s_mul_i32 s33, s33, 768"); a("s_add_u32 s32, s32, s33")
    a(f"v_cmp_gt_u32 vcc, 120, v0")
    a(f"v_add_u32 v{t2}, s32, v{t2}")
    a("s_nop 0")
    a(f"v_cndmask_b32 v{vP1}, v{t5}, v{t2}, vcc")
    if CW:
        a("s_getpc_b64 s[98:99]")
        a.label("L_pc")
        a(f"s_sub_u32 s98, s98, L_pc-{NAME}_kernel"); a("s_subb_u32 s99, s99, 0")
        n = f"((L_code_end-{NAME}_kernel+2047)/2048)"
        a("s_lshr_b32 s32, s2, 3"); a(f"s_mul_i32 s32, s32, {n}")
        a(f"v_min_u32 v{t1}, {n}-1, v0")
        a(f"v_add_u32 v{t1}, s32, v{t1}")
        a(f"v_lshlrev_b32 v{t1}, 6, v{t1}")
        a(f"v_min_u32 v{vCW}, L_code_end-{NAME}_kernel-4, v{t1}")
    if cfg.get("tlb"):
        a(f"v_and_b32 v{t1}, 31, v{vL}")
        a(f"v_min_u32 v{t1}, 24, v{t1}")
        a(f"v_lshlrev_b32 v{t1}, 15, v{t1}")
        a(f"v_min_u32 v{t2}, 29, v{vL}")
        a(f"v_lshlrev_b32 v{t2}, 16, v{t2}")
        a(f"v_cmp_gt_u32 vcc, 32, v{vL}")
        a(f"v_mov_b32 v{t3}, s48"); a(f"v_mov_b32 v{t4}, s46")
        a(f"v_cndmask_b32 v{t1}, v{t1}, v{t2}, vcc")
        a(f"v_cndmask_b32 v{t3}, v{t3}, v{t4}, vcc")
        a(f"v_mov_b32 v{t2}, s49"); a(f"v_mov_b32 v{t4}, s47")
        a(f"v_cndmask_b32 v{t2}, v{t2}, v{t4}, vcc")
        a(f"v_add_co_u32 v{vNON}, vcc, v{t1}, v{t3}")
        a("s_nop 1")
        a(f"v_addc_co_u32 v{vNON+1}, vcc, 0, v{t2}, vcc")
    a(f"v_add_u32 v{t0}, s31, v{t0}")
    a(f"v_bfe_u32 v{t1}, v{t0}, 1, 3")
    a(f"v_lshrrev_b32 v{t2}, 5, v{vL}")
    a(f"v_xor_b32 v{t1}, v{t1}, v{t2}")
    a(f"v_lshlrev_b32 v{t1}, 4, v{t1}")
    a(f"v_lshl_add_u32 v{vXR}, v{t0}, 7, v{t1}")
    for ks in range(1, 4):
        a(f"v_xor_b32 v{vXR+ks}, {ks<<5}, v{vXR}")
    a(f"v_bfe_u32 v{t0}, v{vL}, 2, 2")
    a(f"v_lshl_add_u32 v{t1}, v{t2}, 3, v{t0}")
    a(f"v_lshlrev_b32 v{t1}, 8, v{t1}")
    a(f"v_bfe_u32 v{t3}, v{vL}, 4, 1")
    a(f"v_lshl_add_u32 v{t1}, v{t3}, 5, v{t1}")
    a(f"v_and_b32 v{t3}, 3, v{vL}")
    a(f"v_lshl_add_u32 v{t1}, v{t3}, 3, v{t1}")
    for e in range(2):
        a(f"s_lshl_b32 s31, s34, 1")
        a(f"s_add_u32 s31, s31, {e}")
        a(f"v_xor_b32 v{t3}, s31, v{t0}")
        a(f"v_lshl_add_u32 v{vWR2+e}, v{t3}, 6, v{t1}")
        a(f"v_add_u32 v{vWR+e}, 0x10000, v{vWR2+e}")
    a(f"s_lshl_b32 s31, s35, 11")
    a(f"s_add_u32 s31, s31, 131072")
    a(f"v_lshl_add_u32 v{vGR}, v{t2}, 4, s31")
    if PF:
        vPF = 250
        a("s_lshr_b32 s32, s2, 3")
        a(f"s_add_u32 s33, s24, {PF}")
        a("s_and_b32 s31, s2, 1"); a("s_lshl_b32 s31, s31, 5"); a("s_add_u32 s31, s31, s32"); a(f"s_mul_i32 s31, s31, {32*1280}")
        a("s_lshl_b32 s39, s33, 7"); a("s_add_u32 s31, s31, s39")
        a(f"v_mul_u32_u24 v{t1}, 1280, v{vL}")
        a(f"v_add_u32 v{t1}, s31, v{t1}")
        a("s_lshl_b32 s31, s33, 5"); a("s_add_u32 s31, s31, s32"); a(f"s_mul_i32 s31, s31, {2*3840}")
        a("s_bfe_u32 s39, s2, 0x20001"); a("s_lshl_b32 s39, s39, 10"); a("s_add_u32 s31, s31, s39")
        a(f"v_lshrrev_b32 v{t3}, 3, v{vL}")
        a(f"v_mul_u32_u24 v{t3}, {3840-1024}, v{t3}")
        a(f"v_lshl_add_u32 v{t3}, v{vL}, 7, v{t3}")
        a(f"v_add_u32 v{t3}, s31, v{t3}")
        a("s_cmp_lt_u32 s33, 10"); a("s_cselect_b32 s31, 32, 0"); a("s_cselect_b32 s32, 16, 0")
        a(f"v_cmp_gt_u32 vcc, s31, v{vL}")
        a("s_nop 1")
        a(f"v_cndmask_b32 v{vPF}, v{t5}, v{t1}, vcc")
        a(f"v_cmp_gt_u32 vcc, s32, v{vL}")
        a("s_nop 1")
        a(f"v_cndmask_b32 v{vPF+1}, v{t5}, v{t3}, vcc")
    a("s_and_b32 s31, s2, 7"); a("s_lshr_b32 s33, s2, 6"); a("s_bfe_u32 s32, s2, 0x30003")
    a("s_lshr_b32 s39, s31, 1"); a("s_lshl_b32 s39, s39, 3"); a("s_add_u32 s39, s39, s32")
    a("s_and_b32 s40, s31, 1"); a("s_lshl_b32 s40, s40, 2"); a("s_add_u32 s40, s40, s33")
    a("s_mul_i32 s41, s40, 160")
    a(f"v_mul_u32_u24 v{t1}, 205, v0")
    a(f"v_lshrrev_b32 v{t1}, 11, v{t1}")
    FR = cfg.get("fr", "1") == "1"
    if FR:
        a(f"v_mul_u32_u24 v{t2}, 43, v{t1}")
        a(f"v_lshrrev_b32 v{t2}, 10, v{t2}")
        a(f"v_mul_u32_u24 v{t6}, {12*1280}, v{t2}")
    a(f"v_mul_u32_u24 v{t1}, {1280-160}, v{t1}")
    a(f"v_lshl_add_u32 v{t1}, v0, 4, v{t1}")
    a(f"s_mul_i32 s31, s39, {48*1280}"); a("s_add_u32 s31, s31, s41"); a(f"s_mul_i32 s32, s39, {20*1280}"); a("s_add_u32 s32, s32, s41")
    a(f"v_cmp_gt_u32 vcc, 480, v0")
    a(f"v_add_u32 v{t3}, s31, v{t1}")
    a(f"v_add3_u32 v{t4}, s32, v{t1}, v{t6}" if FR else f"v_add_u32 v{t4}, s32, v{t1}")
    a(f"v_cndmask_b32 v{vPS}, v{t5}, v{t3}, vcc")
    a(f"v_cmp_gt_u32 vcc, {280 if FR else 200}, v0")
    a("s_nop 1")
    a(f"v_cndmask_b32 v{vPS+1}, v{t5}, v{t4}, vcc")
    if FR: a(f"v_lshrrev_b32 v{t2}, 5, v{vL}")
    a("s_cmp_ge_u32 s26, 10")
    a("s_cbranch_scc1 L_p1_v")
    a("s_cmp_ge_u32 s26, 5")
    a(f"s_cselect_b32 s31, 1, 0")
    a(f"s_lshl_b32 s39, 81920, s31")
    a(f"s_lshl_b32 s40, 5120, s31")
    a("s_cmp_ge_u32 s26, 5")
    a(f"s_cselect_b32 s41, {WS_KV}, {WS_Q}")
    a(f"s_cselect_b32 s42, 20, 0")
    a("s_mul_i32 s40, s40, s25")
    a("s_add_u32 s40, s40, s41")
    a("s_sub_u32 s42, s28, s42")
    a("s_lshl_b32 s31, s34, 1")
    a("s_add_u32 s42, s42, s31")
    a("s_lshl_b32 s42, s42, 2")
    a("s_and_b32 s31, s35, 1")
    a("s_lshl_b32 s31, s31, 8")
    a("s_add_u32 s40, s40, s31")
    a("s_lshr_b32 s31, s35, 1")
    a("s_lshl_b32 s41, s31, 11")
    a("s_lshl_b32 s31, s31, 9")
    a("s_add_u32 s33, s31, 4096")
    a(f"v_and_b32 v{t0}, 15, v{vL}")
    a(f"v_lshl_add_u32 v{t0}, v{t0}, 4, s40")
    a(f"v_add_u32 v{t2}, s42, v{t2}")
    a(f"v_bfe_u32 v{t5}, v{vL}, 4, 1")
    a(f"v_lshl_add_u32 v{t6}, v{t5}, 10, s41")
    a(f"v_mov_b32 v{vGR}, s33")
    QM = [36, 40, 42, 0]
    for i in range(4):
        u0 = vT+7
        a(f"v_add_u32 v{t1}, {2*i}, v{t2}")
        a(f"v_mul_u32_u24 v{t3}, 205, v{t1}")
        a(f"v_lshrrev_b32 v{t3}, 10, v{t3}")
        a(f"v_mul_u32_u24 v{t4}, 5, v{t3}")
        a(f"v_sub_u32 v{t1}, v{t1}, v{t4}")
        a(f"v_cmp_le_u32 vcc, 3, v{t1}")
        a(f"v_cmp_eq_u32 s[{QM[i]}:{QM[i]+1}], 2, v{t1}")
        a(f"v_subrev_u32 v{u0}, 3, v{t1}")
        a(f"v_cndmask_b32 v{t4}, 0, 1, vcc")
        a(f"v_cndmask_b32 v{t1}, v{t1}, v{u0}, vcc")
        a(f"v_cndmask_b32 v{t4}, v{t4}, v{t5}, s[{QM[i]}:{QM[i]+1}]")
        a(f"v_lshl_add_u32 v{t3}, v{t3}, 1, v{t4}")
        a(f"v_mul_lo_u32 v{t3}, v{t3}, s39")
        a(f"v_lshl_add_u32 v{t1}, v{t1}, 9, v{t6}")
        a(f"v_cndmask_b32 v{t1}, v{t1}, v{vGR}, s[{QM[i]}:{QM[i]+1}]")
        a(f"v_add3_u32 v{vEP+i}, v{t0}, v{t3}, v{t1}")
    a(f"v_lshrrev_b32 v{t1}, 1, v{vL}")
    a(f"v_xor_b32 v{t1}, v{t1}, v{vL}")
    a(f"v_and_b32 v{t1}, 1, v{t1}")
    a(f"v_mul_u32_u24 v{vGR}, 24, v{t1}")
    for e in range(2): a(f"v_xor_b32 v{vWR+e}, v{vWR+e}, v{vGR}")
    def ep_v():
        a("s_sub_u32 s42, s28, 40")
        a("s_lshl_b32 s31, s34, 1")
        a("s_add_u32 s42, s42, s31")
        a("s_lshl_b32 s42, s42, 5")
        a("s_mul_i32 s40, s25, 10240")
        a("s_lshr_b32 s31, s35, 1")
        a("s_mul_i32 s31, s31, 2560")
        a("s_add_u32 s40, s40, s31")
        a("s_and_b32 s31, s35, 1")
        a("s_mul_i32 s31, s31, 640")
        a("s_add_u32 s40, s40, s31")
        a(f"s_add_u32 s40, s40, {WS_KV + 5120}")
        a(f"s_mov_b32 s39, 163840")
        a(f"v_and_b32 v{t0}, 31, v{vL}")
        a(f"v_mul_u32_u24 v{t2}, 320, v{t2}")
        a(f"v_add_u32 v{t2}, s40, v{t2}")
        for e in range(2):
            a(f"v_add_u32 v{t1}, s42, v{t0}")
            if e: a(f"v_add_u32 v{t1}, 32, v{t1}")
            a(f"v_mul_u32_u24 v{t3}, 3277, v{t1}")
            a(f"v_lshrrev_b32 v{t3}, 16, v{t3}")
            a(f"v_mul_u32_u24 v{t4}, 20, v{t3}")
            a(f"v_sub_u32 v{t1}, v{t1}, v{t4}")
            a(f"v_mul_lo_u32 v{t3}, v{t3}, s39")
            a(f"v_lshl_add_u32 v{t1}, v{t1}, 4, v{t2}")
            a(f"v_add_u32 v{vEP+2*e}, v{t1}, v{t3}")
            a(f"v_add_u32 v{vEP+2*e+1}, 1280, v{vEP+2*e}")

    def p1_reads(variant, step):
        t, ks = divmod(step, 4)
        slot = t % 4; wb = WBS[step % 3]
        r = [f"ds_read_b128 {vr(X+4*step,4)}, v{vXR+ks} offset:{slot*16384}"]
        for e in range(2):
            if variant == "VG" and e == 1:
                r.append(f"ds_read_b128 {vr(wb+4,4)}, v{vGR} offset:{t*128+ks*32}")
            else:
                for u in range(2):
                    r.append(f"ds_read_b64_tr_b16 {vr(wb+4*e+2*u,2)}, v{vWR+e} offset:{slot*16384+ks*4096+u*1024}")
        return r
    def mf(acc, A, B, first):
        return f"v_mfma_f32_32x32x16_bf16 {vr(acc,16)}, {vr(A,4)}, {vr(B,4)}, " + ("0" if first else vr(acc,16))
    class LQ:
        def __init__(self, p1=False): self.q = []; self.p1 = p1
        def rd(self, lines, tag):
            for l in lines:
                if cfg.get("x_nox") and "b128" in l: l = "s_nop 0"
                elif cfg.get("x_now") and "_tr_" in l and "offset" in l and self.p1: l = "s_nop 0"
                else: self.q.append(tag)
                a(l)
        def wait(self, tag):
            if tag not in self.q: return
            n = len(self.q) - 1 - max(i for i, x in enumerate(self.q) if x == tag)
            a(f"s_waitcnt lgkmcnt({min(n, 15)})")
    uid = [0]
    P1S = int(cfg.get("p1s", 1))
    def site(stage, sg, extra=None, sel=range(4)):
        uid[0] += 1
        if sg is not None:
            a(f"s_cmp_eq_u32 s34, {sg}")
            a(f"s_cbranch_scc0 L_site{uid[0]}")
        for g in [dma_groups(stage)[i] for i in sel]:
            for l in g:
                if cfg.get("x_nodma") and stage < 10 and l.startswith("buffer_load"): l = l.replace(f"v{vXS},", f"v{vNON},").replace(f"v{vXS+1},", f"v{vNON},").replace(f"v{vWS},", f"v{vNON},")
                if cfg.get("x_skipdma") and stage < 10 and l.startswith("buffer_load"): continue
                a(l)
        for l in extra or []: a(l)
        a.label(f"L_site{uid[0]}")
    TAGT = int(cfg.get("tagt", 5)); assert TAGT <= 6
    DEF = [int(x) for x in cfg.get("dfr", "2").split(",") if x]
    DEF = dict(zip(range(14-len(DEF), 14), DEF)); assert int(cfg.get("wt", 2)) + 4 not in DEF
    NOLG = cfg.get("nolg")
    def p1_main(variant):
        for g in dma_groups(2):
            for l in g: a(l)
        xl = {TAGT: ([f"buffer_load_dwordx2 v[{vNON}:{vNON+1}], off, s[{SDBG}:{SDBG+3}], 0"], 2)}
        WT = int(cfg.get("wt", 2)); W1T = int(cfg.get("w1t", 4)); assert WT <= 5 and len({WT, W1T, TAGT}) == 3
        if CW: xl[WT] = ([f"global_load_dword v{vCW}, v{vCW}, s[98:99]"], 3 if WT >= 0 else 2)
        if WT < 0: a(xl[WT][0][0])
        if cfg.get("warm", "1") != "0": xl[W1T] = ([f"buffer_load_dword v{vP1}, v{vP1}, s[{SW1}:{SW1+3}], 0 offen"], 3); assert W1T < TAGT
        if PF:
            a(f"buffer_load_dword v{vPF}, v{vPF}, s[{SX}:{SX+3}], 0 offen")
            a(f"buffer_load_dword v{vPF+1}, v{vPF+1}, s[{SW}:{SW+3}], 0 offen")
        stamp(a, "p1_pre")
        a(f"s_waitcnt vmcnt({(10 if PF else 8) + (-1 in xl)})")
        a("s_barrier")
        stamp(a, "p1_first")
        if cfg.get("x_nodma"): a(f"v_mov_b32 v{vNON}, 0x{OOB:x}")
        lq = LQ(True)
        for st in range(2):
            rd = p1_reads(variant, st); lq.rd(rd[:3], (st, 0)); lq.rd(rd[3:], (st, 1))
        def spread(step, e):
            t, i = divmod(step+2, 4); st = t+3
            if st in DEF or st > 13: return
            x = xl.get(st-4, [None])[0] if st > 3 else None
            if P1S == 1 and e == 0: site(st, None, x if i == 3 else None, [i])
            if P1S == 2 and e == 0 and not (variant == "VG" and i % 2 == 0): site(st, i % 2, x if i >= 2 else None, [0, 1] if i < 2 else [2, 3])
            if P1S == 3 and not (variant == "VG" and e == 0): site(st, e, x if i == 3 else None, [i])
        if P1S:
            for st in (-2, -1):
                for e in range(2): spread(st, e)
        elif variant != "VG": site(3, 0)
        for step in range(40):
            t, ks = divmod(step, 4)
            rd = p1_reads(variant, step+2) if step < 38 else []
            for e in range(2):
                w = WBS[step % 3]+4*e; x = X+4*step
                swap = (variant == "VV") or (variant == "VG" and e == 0)
                lq.wait((step, e))
                a(mf(ACC+16*e, x if swap else w, w if swap else x, step == 0))
                if ks == 2 and e == 0:
                    if t+3 not in DEF and not P1S: site(t+3, 1, xl.get(t-1, [None])[0] if t else None)
                    stamp(a, f"p1_p{t}")
                    a(f"s_waitcnt vmcnt({4*sum(x not in DEF for x in (t+2, t+3)) + (2 if PF and t < 2 else 0) + sum(x < t <= x+n for x, (_, n) in xl.items())})" + ("" if NOLG else " lgkmcnt(0)"))
                    a("s_barrier")
                    stamp(a, f"p1_b{t}")
                lq.rd(rd[:3] if e == 0 else rd[3:], (step+2, e))
                if ks == 2 and e == 0 and variant != "VG" and t+4 not in DEF and not P1S:
                    site(t+4, 0, xl.get(t, [None])[0])
                if P1S: spread(step, e)
        if 13 not in DEF: assert not P1S; site(13, 1)
        stamp(a, "p1_end")
    def v_epilogue(e):
        for s in range(2):
            d = PK[2*e+s]
            for c in range(4):
                r = ACC + 16*e + 8*s + 2*c
                a(f"v_cvt_pk_bf16_f32 v{d+c}, v{r}, v{r+1}")
            a("s_nop 1")
            a(f"v_permlane32_swap_b32 v{d}, v{d+2}")
            a(f"v_permlane32_swap_b32 v{d+1}, v{d+3}")
            if 2*e+s < STE: a(qst(2*e+s))

    STE = int(cfg.get("ste", 3))
    qst = lambda i: f"buffer_store_dwordx4 {vr(PK[i],4)}, v{vEP+i}, s[{SWS}:{SWS+3}], 0 offen {ST}"
    p1_main("QK")
    a("s_cmp_ge_u32 s26, 5")
    a(f"s_cselect_b32 s31, 1.0, 0x{QSCALE:x}")
    PKM = cfg.get("pkm", "1") == "1"
    if PKM: a("s_mov_b32 s32, s31"); a("s_mov_b32 s33, s31")
    for e in range(2): a(f"v_xor_b32 v{vWR+e}, v{vWR+e}, v{vGR}")
    a("s_nop 5")
    for i in range(4):
        r = ACC + 8*i; d = PK[i]
        if PKM:
            for c in range(0, 8, 2): a(f"v_pk_mul_f32 {vr(r+c,2)}, {vr(r+c,2)}, s[32:33]")
        else:
            for c in range(8): a(f"v_mul_f32 v{r+c}, s31, v{r+c}")
        for c in range(4): a(f"v_cvt_pk_bf16_f32 v{d+c}, v{r+2*c}, v{r+2*c+1}")
        a(f"s_mov_b64 exec, s[{QM[i]}:{QM[i]+1}]")
        a("s_nop 0")
        a(f"v_permlane16_swap_b32 v{d}, v{d+2}")
        a(f"v_permlane16_swap_b32 v{d+1}, v{d+3}")
        a("s_mov_b64 exec, -1")
        if i < STE: a(qst(i))
    def vpart(a2):
        assert a2 is a
        a.label("L_p1_v")
        ep_v()
        a("s_cmp_eq_u32 s38, 1")
        a("s_cbranch_scc1 L_p1_vg")
        p1_main("VV")
        a("s_nop 7"); a("s_nop 1")
        v_epilogue(0); v_epilogue(1)
        a("s_branch L_p2")
        a.label("L_p1_vg")
        for i in (2, 3): a(f"v_mov_b32 v{vEP+i}, 0x{OOB:x}")
        p1_main("VG")
        a("s_nop 7"); a("s_nop 1")
        v_epilogue(0)
        for i in range(2, STE): a(qst(i))
        z = ACC + 16
        a(f"v_cvt_pk_bf16_f32 v{z}, v{z}, v{z}")
        a(f"v_and_b32 v{z}, 0xffff0000, v{z}")
        a(f"v_mul_f32 v{z}, 0x{f32bits(-math.log2(math.e)):x}, v{z}")
        a(f"v_exp_f32 v{z}, v{z}")
        a("s_nop 0")
        a(f"v_add_f32 v{z}, 1.0, v{z}")
        a(f"v_rcp_f32 v{z}, v{z}")
        a(f"s_lshl_b32 s31, s25, 9")
        a(f"s_lshl_b32 s32, s35, 7")
        a(f"v_cvt_pk_bf16_f32 v{z}, v{z}, v{z}")
        a(f"v_and_b32 v{z}, 0xffff0000, v{z}")
        a(f"s_add_u32 s31, s31, s32")
        a(f"s_add_u32 s31, s31, {WS_G}")
        a(f"v_and_b32 v{z+1}, 31, v{vL}")
        a(f"v_lshlrev_b32 v{z+1}, 2, v{z+1}")
        a("s_cmp_eq_u32 s26, 15")
        a("s_cbranch_scc0 L_p2")
        a(f"buffer_store_dword v{z}, v{z+1}, s[{SWS}:{SWS+3}], s31 offen {ST}")
        a("s_branch L_p2")
    late.insert(0, vpart)
    a.label("L_p2")
    a(f"v_readfirstlane_b32 s{sNON}, v{vNON}")
    a(f"v_readfirstlane_b32 s{sNON+1}, v{vNON+1}")
    a("s_nop 0")
    a(f"s_cmp_eq_u32 s{sNON}, 0")
    a("s_cbranch_scc1 L_tagw")
    a.label("L_tagw_ret")
    def tagw(a):
        a.label("L_tagw")
        a(f"s_mov_b32 s31, {SPIN}")
        a.label("L_tagw_l")
        a(f"buffer_load_dwordx2 v[{vNON}:{vNON+1}], off, s[{SDBG}:{SDBG+3}], 0 {LDF}")
        a("s_sub_u32 s31, s31, 1")
        a("s_cmp_eq_u32 s31, 0")
        a("s_cbranch_scc1 L_tagw_ret")
        a("s_waitcnt vmcnt(0)")
        a(f"v_readfirstlane_b32 s{sNON}, v{vNON}")
        a(f"v_readfirstlane_b32 s{sNON+1}, v{vNON+1}")
        a("s_nop 0")
        a(f"s_cmp_eq_u32 s{sNON}, 0")
        a("s_cbranch_scc1 L_tagw_l")
        a("s_branch L_tagw_ret")
    late.append(tagw)
    def p2_reads(ns, step):
        D, rem = divmod(step, 8); half, ks = divmod(rem, 4)
        slot = (10 + D) % 4; wb = WBS[step % 3]
        base = vWR if half == 0 else vWR2
        return [f"ds_read_b64_tr_b16 {vr(wb+4*e+2*u,2)}, v{base+e} offset:{slot*16384+ks*4096+u*1024}" for e in range(ns) for u in range(2)]
    fillA, fillB = setup_later(cfg, vL)
    MA = 48 if cfg.get("two", "0") in "12" else None
    SIG = int(cfg.get("sig1", 12)); POLL1 = int(cfg.get("poll1", 32)); CHK1 = int(cfg.get("chk1", 38))
    POLLB = int(cfg.get("pollb", 36)); vPB = 16; assert not POLLB or POLL1 < POLLB < CHK1
    STS = {2: [int(x) for x in cfg.get("sts", "0").split(",")], 1: [0, 1, 2, 3]}
    def first_loads(ns):
        r = [f"buffer_load_dwordx4 {vr(aQ1,4)}, v{vD}, s[{SWS}:{SWS+3}], s32 offen {LDF}",
             f"buffer_load_dwordx4 {vr(aQ1+4,4)}, v{vD}, s[{SWS}:{SWS+3}], s32 offen offset:1024 {LDF}",
             f"buffer_load_dwordx4 {vr(aK2,4)}, v12, s[{SWS}:{SWS+3}], s33 offen {LDF}"]
        if ns == 1:
            ld = lambda i: f"buffer_load_dwordx4 v{vD}, s[{SWS}:{SWS+3}], s37 offen offset:{1024*i} {LDF} lds"
            r = ["s_mov_b32 m0, s35", "s_add_u32 s37, s35, s36"] + [ld(i) for i in range(4)] + ["s_add_u32 m0, s35, 4096", "s_add_u32 s37, s37, 4096", ld(0)] + r
        return r
    def p2_main(ns):
        stamp(a, "p2_start")
        vm = VM()
        for st in (11, 12, 13):
            if st not in DEF: vm.add(f"s{st}", 4)
            if CW and int(cfg.get("wt", 2)) == st-4: vm.add("cw")
        vm.add("st", STE)
        lq = LQ()
        for st in range(2):
            rd = p2_reads(ns, st)
            for e in range(ns): lq.rd(rd[2*e:2*e+2], (st, e))
        fa = list(fillA); fb = list(fillB); PKS = [int(x) for x in cfg.get("pks", "18,19").split(",")]
        pkl = pk_ld()[::-1] if cfg.get("pke", "2") == "2" else []; assert FR or (PKS[0] >= 4 and PKS[1] >= 7)
        PKB = int(cfg.get("pkb", CHK1))
        sq = []; VST = int(cfg.get("vst", 2)); VOF = int(cfg.get("vof", 1))
        D14 = int(cfg.get("d14", 10)); LATE = D14 > 6; assert D14 >= 6 and (not LATE or (list(DEF) == [13] and 0 < DEF[13] < D14 and FR))
        if FR:
            assert pkl and PKB in (22, 30, CHK1)
            pkl = ["\n".join(["s_lshl_b32 m0, s24, 10", f"s_add_u32 m0, m0, {PKL + 8192*i}", "s_nop 0", f"buffer_load_dwordx4 v{vPS+i}, s[{r}:{r+3}], 0 offen lds"]) for i, r in ((1, SWO), (0, SW2))]
        xw = cfg.get("x_pkw")
        a(f"s_mov_b64 s[{SW2}:{SW2+1}], s[{'12:13' if xw else '46:47'}]"); a(f"s_mov_b32 s{SW2+2}, {1536*1280}")
        a(f"s_mov_b64 s[{SWO}:{SWO+1}], s[{'12:13' if xw else '48:49'}]"); a(f"s_mov_b32 s{SWO+2}, {640*1280}")
        for step in range(40):
            D, rem = divmod(step, 8)
            rd = p2_reads(ns, step+2) if step < 38 else []
            for e in range(ns):
                lq.wait((step, e))
                a(mf(ACC+16*e, WBS[step % 3]+4*e, X+4*step, step == 0))
                bar = rem == 6 and D < 4
                if e == 0 and (bar or step == SIG):
                    need = ([f"s{11+D}"] if bar else []) + (["st"] if step == SIG else []) + (["pk"] if FR and step == PKB != CHK1 else [])
                    if step == SIG: assert any(f"v{vP2}," in l for l in fa)
                    assert not any(x[1] in need for x in sq)
                    stamp(a, f"p2_p{D}" if bar else "p2_ps")
                    a(f"s_waitcnt vmcnt({vm.after(*need)})" + (" lgkmcnt(0)" if (D == 0 and not NOLG) else ""))
                    a("s_barrier")
                    stamp(a, f"p2_b{D}" if bar else "p2_bs")
                lq.rd(rd[2*e:2*e+2], (step+2, e))
                if FR and e == 0 and PKB < step <= PKB+2 and PKB != CHK1:
                    i = step-PKB-1
                    assert not any(f"v{vPT+i}," in l for l in fa)
                    lq.rd([f"ds_read_b64_tr_b16 {vr(PKW[i]+2*u,2)}, v{vPT+i} offset:{1280*u}" for u in range(2)], "pk")
                for st in list(DEF) + [14]:
                    if e == 0 and step == (DEF[st] if st < 14 else D14):
                        if LATE and st >= 13:
                            for i in range(4):
                                sq.append((step + VST*i + (VOF if ns == 1 else 0), f"s{st}", [
                                    f"s_add_u32 m0, s96, {(65536 if i < 2 else 0) + (st % 4)*16384 + (i & 1)*1024}", "s_nop 0",
                                    f"buffer_load_dwordx4 v{vW1S - (i & 1)}, s[88:91], s{92 + 2*(st-13) + (i >> 1)} offen lds"]))
                            continue
                        else:
                            assert step <= 6
                            for g in dma_groups(st):
                                for l in g: a(l)
                        vm.add(f"s{st}", 4)
                while e == 0 and sq and sq[0][0] <= step:
                    while fa and "cselect" in fa[0]: a(fa.pop(0))
                    _, tg, ls = sq.pop(0)
                    for l in ls: a(l)
                    vm.add(tg)
                if LATE and e == 0 and step == 0:
                    a(f"s_mov_b32 s96, s{sM0}"); a(f"v_add_u32 v{vW1S-1}, {4*3072}, v{vW1S}")
                    a(f"s_mov_b64 s[88:89], s[{SW1}:{SW1+1}]"); a(f"s_mov_b64 s[90:91], s[{SW1+2}:{SW1+3}]")
                    for i in range(4):
                        a(f"s_mul_i32 s{92+i}, s{sK}, {64*3072}")
                        for l in adv_k(): a(l)
                if e == 0 and step == SIG and ns == 1:
                    assert not any(f"s{sF1}," in l for l in fa)
                    for l in flag_store([sF1], 8): a(l)
                    vm.add("flag")
                if ns == 1 and VOF and STS[1][0] == STS[2][0]: STS[1] = [x + VOF for x in STS[2]]
                if e == ns-1 and step in STS[ns][:4-STE]:
                    a(qst(STE + STS[ns].index(step)))
                    vm.add("st")
                poll = "\n".join(poll_ld(vP1, 4, vEP))
                if e == 0 and step == POLL1 and ns == 1:
                    assert not (fa + fb)[:1] or "cselect" not in (fa + fb)[0]
                    a("s_cmp_eq_u32 s24, 4"); a("s_cbranch_scc0 L_p1s")
                    for i in (0, 2): a(f"v_mov_b32 v{vEP+i}, 0")
                    a(poll)
                    a.label("L_p1s")
                if POLLB and e == 0 and step == POLLB and ns == 1:
                    assert not (fa + fb)[:1] or "cselect" not in (fa + fb)[0]
                    a("s_cmp_eq_u32 s24, 4"); a("s_cbranch_scc0 L_pbs")
                    for l in poll_ld(vP1, 4, vPB): a(l)
                    a.label("L_pbs")
                if e == 0 and step == CHK1:
                    assert not fa and CHK1 >= 31
                    a(f"v_mov_b32 v14, {139264}")
                    if ns == 1:
                        a("s_cmp_eq_u32 s24, 4"); a("s_cbranch_scc0 " + ("L_c1o" if FR and PKB == CHK1 else "L_c1s"))
                        if FR and PKB == CHK1: a(f"s_waitcnt vmcnt({2 if POLLB else 1})")
                        if cfg.get("blk"): a("s_waitcnt vmcnt(0)")
                        for l in flag_test(vEP, 4, 46, MA): a(l)
                        a("s_or_b32 s14, vcc_lo, vcc_hi")
                        a("v_mov_b32 v13, s14")
                        a("s_mov_b64 exec, 1")
                        a("ds_write_b32 v14, v13")
                        a("s_mov_b64 exec, -1")
                        a(poll)
                        a("s_waitcnt lgkmcnt(0)")
                        if FR and PKB == CHK1:
                            a("s_branch L_c1s"); a.label("L_c1o"); a("s_waitcnt vmcnt(0)")
                        a.label("L_c1s")
                    elif FR and PKB == CHK1: a("s_waitcnt vmcnt(0)")
                    a("s_barrier")
                    lq.rd(["ds_read_b32 v13, v14"], "chk")
                    if FR and PKB == CHK1:
                        lq.rd([f"ds_read_b64_tr_b16 {vr(PKW[i]+2*u,2)}, v{vPT+i} offset:{1280*u}" for i in range(2) for u in range(2)], "pk")
                if e == 0 and step == CHK1+1:
                    lq.wait("chk")
                    a("v_readfirstlane_b32 s14, v13")
                    stamp(a, "chk"); stamp(a, "val_s14")
                    a("s_cmp_eq_u32 s14, 0")
                    a(f"s_cbranch_scc0 L_early{ns}")
                    for l in first_loads(ns): a(l)
                    a.label(f"L_early{ns}")
                while e == 0 and pkl and step == PKS[2-len(pkl)] + (VOF if ns == 1 else 0):
                    while FR and "cselect" in fa[0]: a(fa.pop(0))
                    assert any(f"v{vKA}," in l for l in fa) and not sq
                    a(pkl.pop(0)); vm.add("pk")
                if step >= 7:
                    for _ in range(8 // ns):
                        if fa: a(fa.pop(0))
                        elif fb and step > max(STS[2]): a(fb.pop(0))
        assert not fa and not fb and not pkl, (fa, fb)
        stamp(a, "p2_end")
        def latecheck():
            a("s_cmp_eq_u32 s14, 0")
            a(f"s_cbranch_scc0 L_late{ns}")
            a.label(f"L_late{ns}_ret")
        if POLLB: latecheck()
        a(f"v_bfe_u32 v{aS}, v{vD}, 4, 5")
        a(f"v_mov_b32 v{aS+1}, 0x3f803f80")
        a(f"v_cmp_eq_u32 vcc, 20, v{aS}")
        for i in range(32): a(f"v_mov_b32 v{aO+i}, 0")
        a(f"v_mov_b32 v{aIDX}, 0xdddddddd")
        for i in range(8): a(f"v_cndmask_b32 v{aV+i}, 0, v{aS+1}, vcc")
        for e in range(ns):
            for s in range(2):
                d = HPK + 8*e + 4*s
                for c in range(4):
                    r = ACC + 16*e + 8*s + 2*c
                    a(f"v_max_f32 v{r}, 0, v{r}")
                    a(f"v_max_f32 v{r+1}, 0, v{r+1}")
                    a(f"v_cvt_pk_bf16_f32 v{d+c}, v{r}, v{r+1}")
        a(f"v_mov_b32 v{HPK+16}, " + (f"v{vD}" if ns == 2 else f"0x{OOB:x}"))
        a(f"v_lshrrev_b32 v2, 2, v12")
        a(f"v_and_b32 v3, 64, v2")
        a(f"v_add_u32 v{aG}, v2, v3")
        a(f"v_bfe_u32 v2, v{vD}, 8, 1")
        a(f"v_mul_u32_u24 v2, {32768-256}, v2")
        a(f"v_add_u32 v{aOA}, v2, v{vD}")
        a("s_lshr_b32 s31, s24, 1")
        for j in range(5):
            if j < 4: a(f"s_xor_b32 s13, s31, {j}"); a(f"s_lshl_b32 s13, s13, {10 if FR else 5}")
            a(f"v_add_u32 v{vRA+j}, {'s13' if j < 4 else 4096 if FR else 128}, v{vR4}")
            a(f"v_add_u32 v{vRA7+j}, {7*10240}, v{vRA+j}")
        a("s_lshl_b32 s31, s24, 6")
        a(f"v_lshrrev_b32 v2, 4, v{vD}")
        a(f"v_add_u32 v2, s31, v2")
        a(f"v_lshlrev_b32 v3, 7, v2")
        a(f"s_mul_i32 s31, s26, {100*128}"); a(f"s_add_u32 s31, s31, s1")
        a(f"v_cmp_gt_u32 vcc, 100, v2")
        a(f"v_add_u32 v3, s31, v3")
        a(f"v_mov_b32 v2, 0x{OOB:x}")
        for i in range(4): a(f"v_mov_b32 v{vSENT+i}, -1")
        a(f"v_cndmask_b32 v{vWARM}, v2, v3, vcc")
        stamp(a, "at_init")
        if not POLLB: latecheck()
        def lateload(a):
            a.label(f"L_late{ns}")
            if ns == 1:
                a("s_cmp_eq_u32 s24, 4")
                a("s_cbranch_scc0 L_w1_ret")
                if POLLB:
                    a("s_waitcnt vmcnt(1)")
                    for l in flag_test(vPB, 4, 46, MA): a(l)
                    a("s_cbranch_vccz L_w1_ret")
                a("s_waitcnt vmcnt(0)")
                for l in flag_test(vEP, 4, 46, MA): a(l)
                a("s_cbranch_vccnz L_w1")
                a.label("L_w1_ret")
            a("s_barrier")
            stamp(a, "chk")
            for l in first_loads(ns): a(l)
            a(f"s_branch L_late{ns}_ret")
            if ns == 1: spin(a, "L_w1", vP1, 4, vEP, 31, 46, MA)
        late.append(lateload)
    a("s_cmp_eq_u32 s34, 0")
    a("s_cbranch_scc0 L_p2_1")
    p2_main(2)
    def p2one(a2):
        a.label("L_p2_1")
        p2_main(1)
        a("s_branch L_p2_done")
    late.insert(0, p2one)
    a.label("L_p2_done")

def setup_later(cfg, vL):
    t0, t1, t2, t3, t4, t5, t6 = range(7)
    A = Asm(); B = Asm()
    a = A
    a(f"v_lshlrev_b32 v{vD}, 4, v{vL}")
    a(f"v_and_b32 v12, 0x1ff, v{vD}")
    a("s_lshl_b32 s31, s25, 2"); a("s_add_u32 s31, s31, s35"); a("s_mul_i32 s31, s31, 98304"); a("s_mul_i32 s32, s26, 3")
    a("s_lshl_b32 s33, s34, 1"); a("s_add_u32 s32, s32, s33"); a("s_lshl_b32 s32, s32, 11"); a("s_add_u32 s31, s31, s32")
    a(f"s_add_u32 s{sHE}, s31, {WS_H}")
    a(f"s_lshl_b32 s39, s25, {FS+4}"); a(f"s_lshl_b32 s40, s26, {FS}"); a("s_add_u32 s39, s39, s40"); a(f"s_add_u32 s39, s39, {FL2}")
    a("s_cmp_eq_u32 s24, 0"); a(f"s_cselect_b32 s{sF2}, s39, 0x{OOB:x}")
    a(f"s_lshl_b32 s39, s26, {FS+4}"); a(f"s_lshl_b32 s40, s25, {FS}"); a("s_add_u32 s39, s39, s40"); a(f"s_add_u32 s39, s39, {FL1}")
    a("s_cmp_eq_u32 s24, 4"); a(f"s_cselect_b32 s{sF1}, s39, 0x{OOB:x}")
    a("s_mov_b32 s27, s34"); a("s_mov_b32 s28, s35")
    a("s_mul_i32 s0, s27, 81920")
    a("s_and_b32 s3, s24, 1"); a("s_sub_u32 s32, 3, s27"); a("s_mul_i32 s32, s32, s3"); a("s_mul_i32 s33, s27, 6"); a("s_add_u32 s12, s32, s33")
    a("s_bfe_u32 s13, s24, 0x10001"); a("s_mul_i32 s32, s13, 81920"); a("s_lshl_b32 s12, s12, 10"); a(f"s_add_u32 s{sM4}, s32, s12")
    a("s_mul_i32 s35, s3, 5120"); a("s_add_u32 s35, s35, s32")
    a("s_mul_i32 s32, s13, 10240"); a("s_add_u32 s12, s12, s32")
    a("s_and_b32 s31, s2, 7"); a("s_lshr_b32 s33, s2, 6"); a("s_bfe_u32 s26, s2, 0x30003")
    a("s_lshl_b32 s25, s31, 2"); a("s_add_u32 s25, s25, s33")
    a("s_mov_b32 s48, 0x11111111"); a("s_lshl_b32 s49, 0x101, s26")
    a(f"s_lshl_b32 s39, s26, {FS+5}"); a(f"s_lshl_b32 s40, s25, {FS}"); a("s_add_u32 s39, s39, s40"); a(f"s_add_u32 s39, s39, {FL3}")
    a("s_cmp_eq_u32 s24, 0"); a(f"s_cselect_b32 s{sF3}, s39, 0x{OOB:x}")
    a(f"v_lshrrev_b32 v{t0}, 4, v{vL}")
    a(f"v_add_u32 v{t0}, 1, v{t0}")
    a(f"v_mul_u32_u24 v{t1}, 640, v{t0}")
    a(f"v_cmp_eq_u32 vcc, 3, v{t0}")
    a(f"s_mul_i32 s39, s25, 20")
    a(f"v_bfe_u32 v{t3}, v{vL}, 3, 1")
    a(f"v_cndmask_b32 v{t1}, v{t1}, 0, vcc")
    a(f"v_mul_u32_u24 v{t3}, 19, v{t3}")
    a(f"v_add3_u32 v{t1}, v{t1}, v{t3}, s39")
    a(f"v_min_u32 v{t1}, 1919, v{t1}")
    a(f"v_lshrrev_b32 v{t1}, 5, v{t1}")
    a(f"v_lshrrev_b32 v{t3}, 2, v{t1}")
    a(f"v_subrev_u32 v{t4}, 12, v{t1}")
    a(f"v_mul_u32_u24 v{t4}, 43, v{t4}")
    a(f"v_lshrrev_b32 v{t4}, 7, v{t4}")
    a(f"v_cmp_le_u32 vcc, 48, v{t1}")
    a(f"v_and_b32 v{t0}, 7, v{vL}")
    a(f"v_lshlrev_b32 v{t0}, {FS+1}, v{t0}")
    a(f"v_cndmask_b32 v{t3}, v{t3}, v{t4}, vcc")
    a(f"v_lshl_add_u32 v{t3}, v{t3}, {FS+4}, v{t0}")
    a(f"v_add_u32 v{vP1}, {FL1}, v{t3}")
    a("s_lshr_b32 s39, s31, 1"); a("s_lshl_b32 s39, s39, 3"); a("s_add_u32 s39, s39, s26")
    a("s_and_b32 s40, s31, 1"); a("s_lshl_b32 s40, s40, 2"); a("s_add_u32 s40, s40, s33")
    a("s_mul_i32 s36, s26, 3"); a("s_lshr_b32 s36, s36, 1"); a("s_mul_i32 s33, s33, 3"); a("s_add_u32 s36, s36, s33")
    a("s_cmp_ge_u32 s36, 12"); a("s_cselect_b32 s33, 12, 0"); a("s_sub_u32 s36, s36, s33")
    a("s_lshr_b32 s33, s24, 1"); a("s_lshl_b32 s31, s33, 11")
    a(f"s_mul_i32 s{sHB}, s39, {2*98304}"); a(f"s_add_u32 s{sHB}, s{sHB}, s31"); a(f"s_add_u32 s{sHB}, s{sHB}, {WS_H}")
    a(f"s_add_u32 s{sHL}, s{sHB}, 98304"); a(f"s_lshl_b32 s{sKH}, s36, 13"); a(f"s_add_u32 s{sKH}, s{sKH}, s{sHB}")
    a(f"s_lshl_b32 s{sOB}, s39, 16"); a(f"s_add_u32 s{sOB}, s{sOB}, s31"); a(f"s_add_u32 s{sOB}, s{sOB}, {WS_O}")
    a(f"s_lshl_b32 s{sOR}, s39, 2"); a(f"s_add_u32 s{sOR}, s{sOR}, s33"); a(f"s_lshl_b32 s{sOR}, s{sOR}, 12"); a(f"s_add_u32 s{sOR}, s{sOR}, {WS_OR}")
    a("s_lshl_b32 s31, s39, 2"); a("s_add_u32 s31, s31, s3")
    a(f"s_lshl_b32 s{sG4}, s31, 6"); a(f"s_add_u32 s{sG4}, s{sG4}, {WS_G}")
    a(f"s_mul_i32 s{sOUTB}, s31, 20480"); a("s_mul_i32 s41, s40, 160"); a(f"s_add_u32 s{sOUTB}, s{sOUTB}, s41")
    a("s_mul_i32 s1, s40, 348160"); a(f"s_add_u32 s1, s1, {WS_WP}")
    a(f"s_add_u32 s{sW2B}, s1, s12"); a(f"s_add_u32 s{sWOB}, s{sW2B}, {12*20480}")
    a(f"s_mul_i32 s{sKW}, s36, 20480"); a(f"s_add_u32 s{sKW}, s{sKW}, s{sW2B}")
    a("s_lshl_b32 s31, s24, 6")
    a(f"v_add_u32 v{t0}, s31, v{vL}")
    a(f"v_mov_b32 v{t5}, 0x{OOB:x}")
    if cfg.get("fr", "1") == "1":
        a(f"v_mul_u32_u24 v{t1}, 205, v{t0}")
        a(f"v_lshrrev_b32 v{t1}, 15, v{t1}")
        a(f"v_lshrrev_b32 v{t2}, 5, v{t0}")
        a(f"v_bfe_u32 v{t3}, v{vL}, 2, 3")
        a(f"v_mul_u32_u24 v{t3}, 160, v{t3}")
        a(f"v_and_b32 v{t4}, 3, v{vL}")
        a(f"v_lshl_add_u32 v{t3}, v{t4}, 3, v{t3}")
        a(f"v_lshl_add_u32 v{t4}, v{t2}, 5, v{t3}")
        a(f"v_add_u32 v{vPT+1}, {PKL + 8192}, v{t4}")
        a(f"v_mul_u32_u24 v{t6}, 2400, v{t1}")
        a(f"v_add_u32 v{t4}, {PKL}, v{t4}")
        a(f"v_add_u32 v{vPT}, v{t4}, v{t6}")
        a(f"v_and_b32 v{t4}, 0x1ff, v{vD}")
        a(f"v_lshl_add_u32 v{t2}, v{t2}, 10, v{t4}")
        a("s_mul_i32 s32, s39, 3")
        a(f"v_add_u32 v{t4}, s32, v{t1}")
        a(f"v_lshrrev_b32 v{t6}, 1, v{t4}")
        a(f"v_sub_u32 v{t6}, v{t6}, v{t1}")
        a(f"v_mul_u32_u24 v{t6}, 5120, v{t6}")
        a(f"v_and_b32 v{t4}, 1, v{t4}")
        a(f"v_lshl_add_u32 v{t4}, v{t4}, 9, v{t2}")
        a(f"v_cmp_gt_u32 vcc, 480, v{t0}")
        a(f"v_add3_u32 v{t4}, v{t4}, v{t6}, s1")
        a(f"s_add_u32 s1, s1, {12*20480}")
        a(f"v_cndmask_b32 v{vPD}, v{t5}, v{t4}, vcc")
        a("s_lshr_b32 s32, s39, 1"); a("s_mul_i32 s32, s32, 5120"); a("s_and_b32 s33, s39, 1"); a("s_lshl_b32 s33, s33, 9")
        a("s_add_u32 s32, s32, s33"); a("s_add_u32 s32, s32, s1")
        a(f"v_add_u32 v{t2}, s32, v{t2}")
        a("s_lshr_b32 s32, s39, 3"); a("s_mul_i32 s32, s32, 5120"); a("s_bfe_u32 s33, s39, 0x20001"); a("s_lshl_b32 s33, s33, 8")
        a("s_add_u32 s32, s32, s33"); a(f"s_add_u32 s32, s32, {4*20480 - 10*1024}"); a("s_add_u32 s32, s32, s1")
        a(f"v_lshrrev_b32 v{t1}, 4, v{t0}")
        a(f"v_and_b32 v{t4}, 0xff, v{vD}")
        a(f"v_lshl_add_u32 v{t4}, v{t1}, 10, v{t4}")
        a(f"v_add_u32 v{t4}, s32, v{t4}")
        a(f"v_bfe_u32 v{t6}, v{vL}, 4, 1")
        a(f"v_mul_u32_u24 v{t6}, 640, v{t6}")
        a(f"v_sub_u32 v{t3}, v{t3}, v{t6}")
        a(f"v_lshl_add_u32 v{t3}, v{t1}, 5, v{t3}")
        a(f"v_cmp_gt_u32 vcc, 160, v{t0}")
        a(f"v_add_u32 v{t3}, {PKL + 8192 + 2560 - 320}, v{t3}")
        a("s_and_b32 s33, s39, 1"); a("s_mul_i32 s33, s33, 80"); a("s_sub_u32 s33, 240, s33")
        a(f"v_cndmask_b32 v{t4}, v{t4}, v{t2}, vcc")
        a(f"v_cndmask_b32 v{vPT+1}, v{t3}, v{vPT+1}, vcc")
        a(f"v_cmp_gt_u32 vcc, s33, v{t0}")
        a("s_nop 1")
        a(f"v_cndmask_b32 v{vPD+1}, v{t5}, v{t4}, vcc")
    else:
        a(f"s_mul_i32 s32, s39, {48*160}"); a("s_add_u32 s32, s32, s1")
        a(f"v_cmp_gt_u32 vcc, 480, v{t0}")
        a(f"v_lshl_add_u32 v{t4}, v{t0}, 4, s32")
        a(f"s_mul_i32 s32, s39, {16*160}"); a(f"s_add_u32 s1, s1, {1536*160}"); a("s_add_u32 s32, s32, s1")
        a(f"v_cndmask_b32 v{vPD}, v{t5}, v{t4}, vcc")
        a("s_and_b32 s33, s39, 28"); a("s_bfe_u32 s36, s39, 0x10001"); a("s_add_u32 s33, s33, s36"); a("s_and_b32 s36, s39, 1"); a("s_lshl_b32 s36, s36, 1")
        a("s_add_u32 s33, s33, s36"); a("s_mul_i32 s33, s33, 640"); a(f"s_add_u32 s33, s33, {(512-16)*160}"); a("s_add_u32 s33, s33, s1")
        a(f"v_mov_b32 v{t3}, s32")
        a(f"v_mov_b32 v{t4}, s33")
        a(f"v_cmp_gt_u32 vcc, 160, v{t0}")
        a("s_nop 1")
        a(f"v_cndmask_b32 v{t3}, v{t4}, v{t3}, vcc")
        a(f"v_cmp_gt_u32 vcc, 200, v{t0}")
        a(f"v_lshl_add_u32 v{t3}, v{t0}, 4, v{t3}")
        a("s_nop 0")
        a(f"v_cndmask_b32 v{vPD+1}, v{t5}, v{t3}, vcc")
    a("s_lshl_b32 s31, s40, 8"); a(f"s_add_u32 s31, s31, {FL4}"); a("s_lshl_b32 s32, s39, 3"); a("s_add_u32 s32, s32, s31")
    a("s_cmp_eq_u32 s24, 0"); a(f"s_cselect_b32 s{sF4}, s32, 0x{OOB:x}")
    a("s_lshr_b32 s32, s39, 1"); a("s_lshl_b32 s32, s32, 7"); a(f"s_add_u32 s32, s32, {FL2}")
    a("s_lshr_b32 s33, s39, 2"); a("s_lshl_b32 s33, s33, 8"); a(f"s_add_u32 s33, s33, {FL3}")
    a(f"v_and_b32 v{t0}, 15, v{vL}")
    a(f"v_and_b32 v{t1}, 7, v{vL}")
    a(f"v_lshl_add_u32 v{t3}, v{t0}, 4, s33")
    a(f"v_lshl_add_u32 v{t4}, v{t1}, 4, s32")
    a(f"v_cmp_gt_u32 vcc, 16, v{vL}")
    a(f"v_lshl_add_u32 v{t0}, v{t0}, 4, s31")
    a("s_nop 0")
    a(f"v_cndmask_b32 v{t3}, v{t4}, v{t3}, vcc")
    a(f"v_cmp_gt_u32 vcc, 32, v{vL}")
    a("s_nop 1")
    a(f"v_cndmask_b32 v{vP2}, v{t0}, v{t3}, vcc")
    a("s_mul_i32 s31, s25, 81920"); a("s_lshl_b32 s32, s26, 1"); a("s_lshr_b32 s33, s28, 1"); a("s_add_u32 s32, s32, s33")
    a("s_mul_i32 s32, s32, 5120"); a("s_add_u32 s31, s31, s32"); a("s_and_b32 s33, s28, 1"); a("s_lshl_b32 s32, s33, 11")
    a("s_add_u32 s32, s32, s31")
    a("s_lshl_b32 s33, s33, 9"); a("s_add_u32 s33, s33, s31"); a("s_add_u32 s33, s33, 4096")
    a("s_lshl_b32 s31, s26, 3"); a("s_lshl_b32 s29, s28, 1"); a("s_add_u32 s29, s31, s29")
    a("s_lshl_b32 s30, s29, 7"); a("s_lshl_b32 s31, s27, 6"); a("s_add_u32 s30, s30, s31"); a(f"s_add_u32 s30, s30, {WS_G}")
    a("s_mul_i32 s36, s25, 163840"); a(f"s_add_u32 s36, s36, {WS_KV}"); a(f"s_add_u32 s34, s36, s{sM4}")
    a("s_mov_b32 s38, 0x000fffff"); a("s_mov_b32 s39, 0x000fffff")
    a(f"s_mov_b64 s[{SOUT}:{SOUT+1}], s[50:51]"); a(f"s_mov_b32 s{SOUT+2}, {2048*1280}")
    a(f"v_lshrrev_b32 v{t2}, 5, v{vL}")
    a(f"v_add_u32 v{vKA}, s0, v{vD}")
    a(f"v_and_b32 v{t0}, 31, v{vL}")
    a(f"v_mul_u32_u24 v{t3}, 320, v{t2}")
    a(f"v_lshl_add_u32 v{t3}, v{t0}, 4, v{t3}")
    a(f"v_add_u32 v{t3}, 5120, v{t3}")
    a(f"v_add_u32 v{vVA}, s0, v{t3}")
    a = B
    a(f"v_and_b32 v{t0}, 15, v{vL}")
    a("s_mul_i32 s31, s13, 5120")
    a("s_add_u32 s31, s31, s0")
    if cfg.get("fr", "1") == "1": a(f"v_add_u32 v{vR4}, s31, v{vD}")
    else:
        a(f"v_mul_u32_u24 v{t3}, 2560, v{t2}")
        a(f"v_bfe_u32 v{t1}, v{vL}, 2, 3")
        a(f"v_mul_u32_u24 v{t1}, 160, v{t1}")
        a(f"v_and_b32 v{t4}, 3, v{vL}")
        a(f"v_lshl_add_u32 v{t1}, v{t4}, 3, v{t1}")
        a(f"v_add3_u32 v{vR4}, v{t3}, v{t1}, s31")
    a(f"v_lshrrev_b32 v{t3}, 4, v{vL}")
    a(f"v_lshlrev_b32 v{t0}, 4, v{t0}")
    a(f"v_lshl_add_u32 v{vA4}, v{t3}, 9, v{t0}")
    a("s_lshl_b32 s31, s3, 8")
    a(f"v_add_u32 v{vA4}, s31, v{vA4}")
    a(f"v_add_u32 v{vA4B}, 98304, v{vA4}")
    return A.lines, B.lines

def phase3(a, cfg, late):
    stamp = cfg["stamp"]
    S, O, Q1, Q2, K1, K2, V, vIDX, vG = aS, aO, aQ1, aQ2, aK1, aK2, aV, aIDX, aG
    PKE = int(cfg.get("pke", "2"))
    pk_st = [f"buffer_store_dwordx4 {vr(PKW[i],4)}, v{vPD+i}, s[{SWS}:{SWS+3}], 0 offen {ST}" for i in range(2)]
    if PKE == 1:
        for l in pk_ld(): a(l)
    a(f"s_waitcnt vmcnt({2 if PKE == 1 else 0})" + (" lgkmcnt(0)" if cfg.get("fr", "1") == "1" else ""))
    stamp(a, "at_q")
    if cfg.get("two") == "2":
        for l in ["s_cmp_eq_u32 s24, 4", "s_cbranch_scc0 L_w3_ret"] + flag_test(220, 4, 46) + ["s_cbranch_vccnz L_w3", "L_w3_ret:"]: a(l)
        late.append(lambda a: spin(a, "L_w3", vP1, 4, 220, 31, 46))
    for c in range(2): a(f"v_mov_b32 v{Q2+c}, v{K2+c}")
    a("s_mov_b32 exec_lo, 0")
    for c in range(2): a(f"v_mov_b32 v{Q2+c}, v{K2+2+c}")
    a("s_mov_b64 exec, -1")
    bump = {"k": 0}
    def koff(g, off): return g*10240 + off - bump["k"]
    def rd_k1(T):
        g, tt = divmod(T, 4)
        return f"ds_read_b128 {vr(K1,4)}, v{vKA} offset:{koff(g, tt*1024)}"
    def rd_k2(g):
        return f"ds_read_b128 {vr(K2,4)}, v{vKA} offset:{koff(g, 4096)}"
    def rd_v(T, s):
        g, tt = divmod(T, 4)
        return f"ds_read_b128 {vr(V+4*s,4)}, v{vVA} offset:{koff(g, tt*1280+640*s)}"
    def sreg(T, q): return S + 32*(T % 2) + 16*q
    def b2(T):
        tt = T % 4
        return f"v_mfma_f32_32x32x4_2b_bf16 {vr(sreg(T,0),32)}, {vr(K2+2*(tt&1),2)}, {vr(Q2,2)}, 0 cbsz:1 abid:{tt>>1}"
    def qk(T, q):
        return f"v_mfma_f32_32x32x16_bf16 {vr(sreg(T,q),16)}, {vr(K1,4)}, {vr(Q1+4*q,4)}, {vr(sreg(T,q),16)}"
    def pv(T, q, h):
        return f"v_smfmac_f32_32x32x32_bf16 {vr(O+16*q,16)}, {vr(V+4*h,4)}, {vr(sreg(T,q)+8*h,8)}, v{vIDX}"
    if cfg.get("al"):
        p, n = [int(x) for x in cfg["al"].split(",")]
        a("s_branch L_al"); a(f".p2align {p}")
        for _ in range(n): a("s_nop 0")
        a.label("L_al")
    a("s_barrier")
    stamp(a, "at_first")
    a(rd_k2(0)); a(rd_k1(0))
    a("s_lshl_b32 s31, s29, 15"); a("s_lshl_b32 s32, s25, 10"); a("s_add_u32 s32, s32, s31")
    a("s_lshl_b32 s13, s27, 8"); a(f"s_add_u32 s31, s13, {WS_O}"); a("s_add_u32 s32, s32, s31")
    a("s_lshl_b32 s31, s29, 13"); a("s_lshl_b32 s33, s25, 9"); a("s_add_u32 s33, s33, s31")
    a(f"s_add_u32 s31, s13, {WS_OR}"); a("s_add_u32 s33, s33, s31")
    a("s_waitcnt lgkmcnt(1)")
    a(b2(0))
    for l in SETZ: a(l)
    for g in kv_dma(1):
        for l in g: a(l)
    a("s_waitcnt lgkmcnt(0)")
    a("s_nop 7"); a("s_nop 2")
    a(qk(0, 0)); a(qk(0, 1))
    a("s_nop 7")
    vm = VM(); cfg["vm"] = vm
    extra = {u: [] for u in range(64)}
    TWO = cfg.get("two", "0") == "1"
    gld = [f"buffer_load_dword v{aG}, v{aG}, s[{SWS}:{SWS+3}], s30 offen {LDF}"]
    hst = [[f"buffer_store_dwordx4 {vr(HPK+4*i,4)}, v{vD if i < 2 else HPK+16}, s[{SWS}:{SWS+3}], s{sHE} offen offset:{1024*i} {ST}"] for i in range(4)]
    sst = [[f"buffer_store_dwordx4 {vr(vSENT,4)}, v{aOA}, s[{SWS}:{SWS+3}], s32 offen {ST}"],
           ["s_mov_b64 exec, 0xffff", f"buffer_store_dwordx4 {vr(vSENT,4)}, v{vD}, s[{SWS}:{SWS+3}], s33 offen {ST}", "s_mov_b64 exec, -1"]]
    kvs = [g for k in range(2, 8) for g in kv_dma(k)]
    FLU = 22
    sync = {6: ["s_waitcnt vmcnt(8)", "s_barrier"],
            14: ["s_waitcnt vmcnt(17)", "s_barrier"],
            22: ["s_waitcnt vmcnt(0)", "s_barrier"],
            56: ["s_waitcnt vmcnt(0)", "s_barrier"]}
    if not TWO:
        for i, g in enumerate(kvs): extra[i//2].append(g)
        pk = pk_st if PKE in (1, 2) else pk_ld()
        extra[9].append(gld + [pk[0]])
        extra[9].append([pk[1]])
        for i in range(4): extra[10+i].append(hst[i])
        extra[14].append(sst[0]); extra[15].append(sst[1])
        if not PKE:
            extra[17].append(["s_waitcnt vmcnt(6)", pk_st[0]])
            extra[17].append([pk_st[1]])
    else:
        assert PKE == 2
        vEP = 220; FLU = int(cfg.get("flu", 14))
        sts = hst + [[x] for x in pk_st] + sst
        ne = int(cfg.get("ne", 8))
        extra[0].append(["s_cmp_eq_u32 s24, 4", "s_cbranch_scc0 L_p3s"] + poll_ld(vP1, 4, vEP) + ["L_p3s:"])
        u0 = int(cfg.get("stu", 1))
        for i in range(ne): extra[u0 + (i*(6-u0))//ne].append(sts[i])
        sync[6] = [f"s_waitcnt vmcnt({ne})", "s_cmp_eq_u32 s24, 4", "s_cbranch_scc0 L_w3_ret"] + flag_test(vEP, 4, 46) + \
                  ["s_cbranch_vccnz L_w3", "L_w3_ret:"] + SETZ + ["s_barrier"]
        late.append(lambda a: spin(a, "L_w3", vP1, 4, vEP, 31, 46))
        seq = [(g, i % 3 < 2) for i, g in enumerate(kvs[:6])] + [(g, 1) for g in sts[ne:]] + [(g, i % 3 < 2) for i, g in enumerate(kvs[6:])] + [(gld, 1)]
        for i, (g, n) in enumerate(seq): extra[6 + i//2].append(g)
        sync[14] = [f"s_waitcnt vmcnt({sum(n for g, n in seq[3:16])})", "s_barrier"]
        assert FLU == 22 or ne == 8
    POL2 = int(cfg.get("pol2", 31)); CHK2 = int(cfg.get("chk2", 34))
    sync[CHK2] = ["s_waitcnt vmcnt(0)"] + flag_test(HP, 4) + ["s_cbranch_vccnz L_w2", "L_w2_ret:"] + SETZ
    g4 = [f"v_bfe_u32 v{aG4}, v{vD}, 4, 4", f"v_lshlrev_b32 v{aG4}, 2, v{aG4}",
          f"buffer_load_dword v{aG4+1}, v{aG4}, s[{SWS}:{SWS+3}], s{sG4} offen offset:128 {LDF}",
          f"buffer_load_dword v{aG4}, v{aG4}, s[{SWS}:{SWS+3}], s{sG4} offen {LDF}"]
    wrm = [f"buffer_load_dword v{vWARM}, v{vWARM}, s[{SWS}:{SWS+3}], 0 offen {LDF}"]
    extra[CHK2].append(g4)
    if PKE < 3:
        late.append(lambda a: spin(a, "L_w2", vP2, 4, HP, 31))
        extra[FLU].insert(0, flag_store([sF2, sF3, sF4], HP+4) + (extra[FLU].pop(0) if len(extra[FLU]) == 2 else []))
        extra[POL2].append(poll_ld(vP2, 4, HP))
        seq = [g for t in range(2) for g in w4_dma(t)] + [wrm]
        seq += [g for t in range(12) for g in act_ld(t)]
        for i, g in enumerate(seq): extra[CHK2 + 1 + (i*5)//9].append(g)
        for i, g in enumerate(g for t in (2, 3, 4, 5) for g in w4_dma(t)): extra[56 + i//2].append(g)
        for t in (2, 3, 4, 5): vm.add(f"w{t}", 2)
    else:
        lo = lambda ls: ["s_mov_b32 exec_hi, 0"] + ls + ["s_mov_b32 exec_hi, -1"]
        hi = lambda ls: ["s_mov_b32 exec_lo, 0"] + ls + ["s_mov_b32 exec_lo, -1"]
        PT = PKW[1]; P4U = int(cfg.get("p4u", 47)); C4U = int(cfg.get("c4u", 50))
        late.append(lambda a: (spin(a, "L_w2", vP2, 4, HP, 31), spin(a, "L_w4", vP2, 4, PT, 31)))
        extra[22].append(flag_store([sF2, sF3], HP+4))
        for i in range(2): extra[23].append([pk_st[i]])
        extra[31].append(lo(poll_ld(vP2, 4, HP)))
        sync[34] = ["s_waitcnt vmcnt(0)", "s_mov_b32 exec_hi, 0"] + flag_test(HP, 4) + ["s_cbranch_vccnz L_w2", "L_w2_ret:", "s_mov_b32 exec_hi, -1", "s_barrier"]
        extra[34].append(flag_store([sF4], PKW[0]))
        seq = [g for t in range(12) for g in act_ld(t)]
        n = 0
        for u in range(35, 64):
            if u == P4U: extra[u].append(hi(poll_ld(vP2, 4, PT)))
            while seq and len(extra[u]) < 2:
                extra[u].append(seq.pop(0))
                if P4U <= u < C4U: n += 1
                assert u < C4U
        sync[C4U] = [f"s_waitcnt vmcnt({n})", "s_mov_b32 exec_lo, 0"] + flag_test(PT, 4) + ["s_cbranch_vccnz L_w4", "L_w4_ret:", "s_mov_b32 exec_lo, -1"] + SETZ
        sync[56] = ["s_barrier"]
        seq = [wrm] + [g for t in range(4) for g in w4_dma(t)]
        for i, g in enumerate(seq): extra[C4U + i//2].append(g)
        u = max(56, C4U + (len(seq)+1)//2)
        for i, g in enumerate(g for t in (4, 5) for g in w4_dma(t)): extra[u + i//2].append(g)
        for t in range(6): vm.add(f"w{t}", 2)
    if cfg.get("x_noextra"):
        keep = cfg["x_noextra"]
        for k in extra:
            if keep == "lo" and k < 23: continue
            if keep == "hi" and k >= 23: continue
            extra[k] = []
        sync[34] = ["L_w2_ret:"]
        if cfg.get("x_nobar"): sync = {34: sync[34]}
    def E(s, i, j):
        for k in range(i, j): a(f"v_exp_f32 v{s+k}, v{s+k}")
    XF = [int(x) for x in cfg.get("x_ffn", "0,0,0,1").split(",")]
    XP = cfg.get("x_pos", "a")
    pend = []
    def sm(n=1):
        for _ in range(n):
            if pend: a(pend.pop(0))
    for T in range(32):
        g, tt = divmod(T, 4); u = 2*T
        s0, s1 = sreg(T, 0), sreg(T, 1)
        ex0 = list(extra[u]); ex1 = list(extra[u+1])
        def side(ex):
            if ex:
                for l in ex.pop(0): a(l)
        stamp(a, f"u{u}")
        if T > 0: a(pv(T-1, 1, 0))
        for l in sync.get(u, []): a(l)
        if T == 16:
            a(f"v_add_u32 v{vKA}, {4*10240}, v{vKA}"); a(f"v_add_u32 v{vVA}, {4*10240}, v{vVA}")
            bump["k"] = 4*10240
        if tt == 3 and g < 7: a(rd_k2(g+1))
        if T < 31: a(rd_k1(T+1))
        side(ex0)
        E(s0, 0, 4)
        if XP == "a": sm()
        if T > 0: a(pv(T-1, 1, 1))
        side(ex0)
        E(s0, 4, 8)
        sm(9)
        if T < 31:
            if tt == 3: a("s_waitcnt lgkmcnt(1)")
            a(b2(T+1))
        for l in ["s_mov_b64 exec, s[38:39]", rd_v(T, 0), rd_v(T, 1), "s_mov_b64 exec, -1"]: a(l)
        nf = ((T-XF[0]+1)*XF[2])//XF[3] - ((T-XF[0])*XF[2])//XF[3] if XF[0] <= T < XF[1] else 0
        for f in range(nf):
            for uu in range(2): a(f"ds_read_b64_tr_b16 {vr(236+4*f+2*uu,2)}, v{vRA+f} offset:{10240*6 + 1280*uu}")
        E(s0, 8, 16)
        a(f"s_waitcnt lgkmcnt({2*nf})")
        a(pv(T, 0, 0))
        E(s1, 0, 4)
        if nf:
            pend += [f"v_mfma_f32_16x16x32_bf16 {vr(244,4)}, {vr(236+4*(f%2),4)}, {vr(Q1+4*w,4)}, {vr(244,4)}" for f in range(nf) for w in range(2)]
            a("s_waitcnt lgkmcnt(0)")
        if XP == "a": sm()
        if T < 31: a(qk(T+1, 0))
        if XP == "b": sm()
        side(ex1)
        E(s1, 4, 8)
        if XP == "a": sm()
        a(pv(T, 0, 1))
        if XP == "b": sm()
        side(ex1)
        E(s1, 8, 12)
        if XP == "a": sm()
        if T < 31: a(qk(T+1, 1))
        if XP == "b": sm()
        E(s1, 12, 16)
        if XP == "a": sm()
        assert not ex0 and not ex1
    sm(9)
    a(pv(31, 1, 0)); a("s_nop 0"); a(pv(31, 1, 1))
    stamp(a, "at_loopend")
    t0, t1, t2, t3 = K1, K1+1, K1+2, K1+3
    a("s_mul_i32 s31, s28, 2560")
    a(f"s_add_u32 s31, s31, {6*10240 - 4*10240}")
    a(f"v_add_u32 v{t0}, s31, v{vKA}")
    a("s_and_b32 s13, s28, 1"); a("s_lshl_b32 s13, s13, 9"); a("s_lshr_b32 s12, s28, 1"); a("s_lshl_b32 s12, s12, 12")
    a("s_add_u32 s13, s13, s12"); a(f"s_add_u32 s13, s13, {3*10240 - 512}")
    a(f"v_add_u32 v{t2}, 2048, v{t0}")
    a("s_mov_b32 exec_lo, 0")
    a(f"v_add_u32 v{t2}, s13, v{vKA}")
    a("s_mov_b64 exec, -1")
    a("s_mul_i32 s31, s27, 163840")
    a("s_sub_u32 s31, 81920, s31")
    a("s_cmp_eq_u32 s27, 0")
    a(f"v_add_u32 v{t1}, s31, v{t0}")
    a(f"v_add_u32 v{t3}, s31, v{t2}")
    a("s_cbranch_scc0 L_at_z1")
    for c in range(3): a(f"ds_write_b128 v{t0 if c < 2 else t2}, {vr(O+16+4*c,4)} offset:{1024*c if c < 2 else 0}")
    a.label("L_at_zj")
    def z1(a):
        a.label("L_at_z1")
        for c in range(3): a(f"ds_write_b128 v{t0 if c < 2 else t2}, {vr(O+4*c,4)} offset:{1024*c if c < 2 else 0}")
        for c in range(12): a(f"v_mov_b32 v{O+c}, v{O+16+c}")
        a("s_branch L_at_zj")
    late.insert(0, z1)
    a((f"s_waitcnt vmcnt({vm.after('w0')}) " if PKE == 3 else "s_waitcnt ") + "lgkmcnt(0)")
    a("s_barrier")
    for c in range(3): a(f"ds_read_b128 {vr(S+4*c,4)}, v{t1 if c < 2 else t3} offset:{1024*c if c < 2 else 0}")
    a("s_waitcnt lgkmcnt(0)")
    for c in range(12): a(f"v_add_f32 v{O+c}, v{O+c}, v{S+c}")
    a(f"v_mov_b32 v{t2}, v{O+8}")
    a(f"v_mov_b32 v{t3}, v{O+8}")
    a(f"v_add_f32 v{t0}, abs(v{O}), abs(v{O+1})")
    a(f"v_add_f32 v{t0}, v{t0}, abs(v{O+2})")
    a(f"v_permlane32_swap_b32 v{t3}, v{t2}")
    for c in range(3, 12): a(f"v_add_f32 v{t0}, v{t0}, abs(v{O+c})")
    a(f"v_rcp_f32 v{t1}, v{t2}")
    a(f"v_cmp_nle_f32 vcc, 0x{f32bits(2.0**-40):x}, v{t2}")
    a(f"s_mov_b64 s[40:41], vcc")
    a(f"v_cmp_nge_f32 vcc, 0x{f32bits(2.0**100):x}, v{t2}")
    a(f"s_or_b64 s[40:41], s[40:41], vcc")
    a(f"v_cmp_nge_f32 vcc, 0x{f32bits(2.0**126):x}, v{t0}")
    a(f"s_or_b64 s[40:41], s[40:41], vcc")
    if cfg.get("force_fallback"): a("s_mov_b64 s[40:41], -1")
    a("s_cmp_lg_u64 s[40:41], 0")
    a("s_cbranch_scc1 L_at_slow")
    a.label("L_at_store")
    a(f"v_mul_f32 v{t1}, v{t1}, v{vG}")
    for c in range(12): a(f"v_mul_f32 v{O+c}, v{O+c}, v{t1}")
    for c in (4, 5, 0, 1, 2, 3): a(f"v_cvt_pk_bf16_f32 v{S+c}, v{O+2*c}, v{O+2*c+1}")
    for c in (4, 5, 0, 1, 2, 3): a(f"v_min_u32 v{S+c}, -2, v{S+c}")
    a(f"v_permlane16_swap_b32 v{S+4}, v{S+6}")
    a(f"v_permlane16_swap_b32 v{S+5}, v{S+7}")
    a(f"buffer_store_dwordx4 {vr(S,4)}, v{aOA}, s[{SWS}:{SWS+3}], s32 offen {ST}")
    a("s_mov_b64 exec, 0xffff")
    a(f"buffer_store_dwordx4 {vr(S+4,4)}, v{vD}, s[{SWS}:{SWS+3}], s33 offen {ST}")
    a("s_mov_b64 exec, -1")
    vm.add("ost", 2)
    stamp(a, "o_stored")

    def slow(a):
        a.label("L_at_slow")
        NM = 16; QZ = 32
        KA = 44; vV2 = 52; mx = 53
        def qz(qt, tt): return QZ + 4*(tt >> 1) + (2 if (tt & 1) == 0 else 0)
        for c in range(2): a(f"v_mov_b32 v{KA+c}, v{Q2+c}")
        for i in range(10): a(f"v_mov_b32 v{QZ+i}, 0")
        for c in range(2): a(f"v_permlane32_swap_b32 v{Q2+c}, v{KA+c}")
        a("s_cmp_eq_u32 s27, 0")
        a("s_cbranch_scc1 L_slow_z0")
        a("s_nop 0")
        for c in range(2): a(f"v_mov_b32 v{Q2+c}, v{KA+c}")
        for c in range(4): a(f"v_mov_b32 v{Q1+c}, v{Q1+4+c}")
        a.label("L_slow_z0")
        a("s_mov_b32 exec_hi, 0")
        for c in range(2): a(f"v_mov_b32 v{QZ+2+c}, v{Q2+c}")
        a("s_mov_b64 exec, -1")
        a("s_mov_b32 exec_lo, 0")
        for c in range(2): a(f"v_mov_b32 v{QZ+6+c}, v{Q2+c}")
        a("s_mov_b64 exec, -1")
        a("s_mul_i32 s34, s27, 81920")
        a(f"s_add_u32 s34, s34, {4*10240 + 5120}")
        a(f"v_subrev_u32 v{vV2}, s34, v{vVA}")
        a(f"v_mov_b32 v{mx}, 0xff7fffff")
        for i in range(16): a(f"v_mov_b32 v{NM+i}, 0")
        for i in range(16): a(f"v_mov_b32 v{O+i}, 0")
        for ps in range(2):
            a("s_mul_i32 s34, s25, 163840")
            a(f"s_add_u32 s34, s34, {WS_KV}")
            a("s_mov_b32 s35, 16")
            a.label(f"L_slow_loop{ps}")
            a(f"s_add_u32 s36, s34, 4096")
            a(f"buffer_load_dwordx4 {vr(K2,4)}, v{vD}, s[{SWS}:{SWS+3}], s36 offen {LDF}")
            for tt in range(4):
                a(f"buffer_load_dwordx4 {vr(KA,4)}, v{vD}, s[{SWS}:{SWS+3}], s34 offen offset:{1024*tt} {LDF}")
                if ps == 1:
                    a(f"s_add_u32 s36, s34, {5120+1280*tt}")
                    a("s_mov_b64 exec, s[38:39]")
                    a(f"buffer_load_dwordx4 {vr(V,4)}, v{vV2}, s[{SWS}:{SWS+3}], s36 offen {LDF}")
                    a(f"buffer_load_dwordx4 {vr(V+4,4)}, v{vV2}, s[{SWS}:{SWS+3}], s36 offen offset:640 {LDF}")
                    a("s_mov_b64 exec, -1")
                a("s_waitcnt vmcnt(0)")
                a(f"v_mfma_f32_32x32x16_bf16 {vr(S,16)}, {vr(KA,4)}, {vr(Q1,4)}, {vr(NM,16)}")
                a(f"v_mfma_f32_32x32x16_bf16 {vr(S,16)}, {vr(K2,4)}, {vr(qz(0,tt),4)}, {vr(S,16)}")
                a("s_nop 11")
                if ps == 0:
                    for i in range(0, 16, 2): a(f"v_max3_f32 v{mx}, v{mx}, v{S+i}, v{S+i+1}")
                else:
                    for i in range(16): a(f"v_exp_f32 v{S+i}, v{S+i}")
                    a("s_nop 1")
                    for h in range(2):
                        a(f"v_smfmac_f32_32x32x32_bf16 {vr(O,16)}, {vr(V+4*h,4)}, {vr(S+8*h,8)}, v{vIDX}")
                    a("s_nop 3")
            a("s_add_u32 s34, s34, 10240")
            a("s_sub_u32 s35, s35, 1")
            a("s_cmp_lg_u32 s35, 0")
            a(f"s_cbranch_scc1 L_slow_loop{ps}")
            if ps == 0:
                a(f"v_mov_b32 v{t3}, v{mx}")
                a(f"v_mov_b32 v{t1}, v{mx}")
                a("s_nop 1")
                a(f"v_permlane32_swap_b32 v{t3}, v{t1}")
                a("s_nop 1")
                a(f"v_max_f32 v{mx}, v{t3}, v{t1}")
                for i in range(16): a(f"v_sub_f32 v{NM+i}, 0, v{mx}")
        a("s_nop 11")
        a(f"v_mov_b32 v{t2}, v{O+8}")
        a(f"v_mov_b32 v{t3}, v{O+8}")
        a("s_nop 1")
        a(f"v_permlane32_swap_b32 v{t3}, v{t2}")
        a("s_nop 1")
        a(f"v_rcp_f32 v{t1}, v{t2}")
        a("s_nop 0")
        a("s_branch L_at_store")
    late.append(slow)

def phase45(a, cfg, late):
    stamp = cfg["stamp"]; vm = cfg["vm"]
    OA = 0; ACC = 40; WB = 80; NB = 10
    vREM, vMX, vG1, vOUT, vOUT2, vRD, vO2, vPR = 120, 121, 122, 126, 127, 234, 240, 241
    NS = 17; MG = int(cfg.get("mg", 15))
    OS = dict(zip(range(12, 17), [int(x) for x in cfg.get("os", "7,8,9,9,10").split(",")]))
    KB = int(cfg.get("kb", 7))
    BAR = [int(x) for x in cfg.get("bar", "0,2,4,6,8,10,13,14").split(",")]
    WI = dict(zip(range(6, 17), [int(x) for x in cfg.get("wi", "0,1,2,3,4,5,6,7,11,12,12").split(",")]))
    vis = lambda tt: max(b for b in BAR if b < tt)
    assert BAR[0] == 0 and BAR[-1] == MG-1 and all(any(tt-7 <= b <= WI[tt] for b in BAR) and WI[tt] < vis(tt) for tt in WI)
    F = [(t, j) for t in range(MG) for j in range(5)] + [(t, j) for j in (1, 2, 3, 4, 0) for t in range(MG, NS)]
    FR = cfg.get("fr", "1") == "1"; RK = [int(x) for x in cfg.get("rk", "0,2,4,6,8").split(",")]; LW = cfg.get("lw", "0") == "1"
    def reads(i):
        t, j = F[i]; slot = SLOTP[t % 8]
        if FR: return [(f"ds_read_b128 {vr(WB+4*(i%NB),4)}, v{(vRA7 if slot == 7 else vRA)+j} offset:{0 if slot == 7 else slot*10240}", i)]
        return [(f"ds_read_b64_tr_b16 {vr(WB+4*(i%NB)+2*u,2)}, v{(vRA7 if slot == 7 else vRA)+j} offset:{(0 if slot == 7 else slot*10240) + u*1280}", i)
                for u in range(2)]
    lq = []
    def rd(x): a(x[0]); lq.append(x[1])
    def lwait(tag):
        n = len(lq) - 1 - max(i for i, x in enumerate(lq) if x == tag)
        a(f"s_waitcnt lgkmcnt({min(n, 15)})")
    rq = [x for i in range(len(F)) for x in reads(i)]
    for _ in range(5 if FR else 10): rd(rq.pop(0))
    def oloads(t0): return [l for tt in range(t0, 17) for g in act_ld(tt, vREM, vO2) for l in g]
    def check(t0, t1):
        r = list(range(act_reg(t0), act_reg(t1-1)+8))
        return [f"v_max3_u32 v{vMX}, v{r[0]}, v{r[1]}, v{r[2]}"] + [f"v_max3_u32 v{vMX}, v{vMX}, v{r[i]}, v{r[min(i+1,len(r)-1)]}" for i in range(3, len(r), 2)]
    CKS = {11: (12, MG), MG-1: (MG, 17)}
    if cfg.get("ck", True):
        c = [tuple(int(y) for y in x.split(":")) for x in cfg.get("ck", "11:12,12:13,13:14,14:15").split(",")]
        CKS = {t: (o, c[i+1][1] if i+1 < len(c) else 17) for i, (t, o) in enumerate(c)}
    assert all(t < o0 and t < MG and all(OS[o] < t for o in range(o0, o1)) for t, (o0, o1) in CKS.items())
    fill = {t: [] for t in range(NS)}
    fill[0] = [f"v_add_u32 v{vO2}, 32768, v{vA4}", f"v_and_b32 v{vREM}, 0x600, v{vA4}", f"v_add_u32 v{vREM}, v{vREM}, v{vA4}",
               f"v_bfe_u32 v{vMX}, v{vD}, 4, 4", f"v_mul_u32_u24 v{vMX}, 1280, v{vMX}",
               f"v_bfe_u32 v{vOUT}, v{vD}, 8, 1", f"v_mul_u32_u24 v{vOUT}, {32*1280}, v{vOUT}", f"v_lshrrev_b32 v{vOUT2}, 9, v{vD}",
               f"v_lshl_add_u32 v{vOUT}, v{vOUT2}, 4, v{vOUT}", f"v_add_u32 v{vOUT}, v{vOUT}, v{vMX}",
               f"v_lshrrev_b32 v{vOUT2}, 8, v{vD}", f"v_lshl_add_u32 v{vOUT2}, v{vOUT2}, 3, v{vMX}"]
    fill[1] = [l for w in range(2) for l in (f"v_sub_f32 v{vG1+w}, 1.0, v{aG4+w}", f"v_cvt_pk_bf16_f32 v{vG1+w}, v{vG1+w}, v{vG1+w}",
                                            f"v_and_b32 v{vG1+w}, 0xffff0000, v{vG1+w}")]
    fill[2] = ["s_lshr_b32 s12, s24, 1", "s_mul_i32 s13, s3, 81920", "s_add_u32 s13, s13, 10240", f"v_add_u32 v{vRD}, s13, v{vD}",
               "s_lshl_b32 s31, s12, 10", f"s_add_u32 s31, s31, {24*1024}", f"v_add_u32 v{vRD+4}, s31, v{vRD}"]
    for j in (1, 2, 3):
        fill[3] += [f"s_xor_b32 s31, s12, {j}", "s_mul_i32 s31, s31, 6144", f"v_add_u32 v{vRD+j}, s31, v{vRD}"]
    fill[3] += ["s_mul_i32 s31, s12, 6144", f"v_add_u32 v{vRD+5}, s31, v{vRD}"]
    def scale(j, w): return [f"v_mul_f32 v{ACC+20*w+4*j+i}, v{ACC+20*w+4*j+i}, v{vG1+w}" for i in range(4)]
    def site(t, z):
        ws = [tt for tt in WI if WI[tt] == t]
        os_ = [tt for tt in OS if OS[tt] == t]
        if not ws and not os_: return
        a(f"s_cmp_eq_u32 s27, {z}")
        a(f"s_cbranch_scc0 L_s4_{t}_{z}")
        for kind in ("wo" if cfg.get("wf") else "ow"):
            for tt in (os_ if kind == "o" else ws):
                for l in ([l for g in act_ld(tt, vREM, vO2) for l in g] if kind == "o" else w4_dma(tt, z)):
                    if not (cfg.get("x_noo" if kind == "o" else "x_now4") and l.startswith("buffer_load")): a(l)
                if z == 1: vm.add(f"{kind}{tt}", 2)
        a.label(f"L_s4_{t}_{z}")
    TS = int(cfg.get("ts", 1)); K0, K1 = [int(x) for x in cfg.get("tk", "1,9").split(",")]
    def singles(t):
        w = [(g, f"w{tt}" if n < 2 else None) for tt in WI if WI[tt] == t for n, g in enumerate(w4_dma(tt))]
        o = [(g, f"o{tt}") for tt in OS if OS[tt] == t for g in act_ld(tt, vREM, vO2)]
        seq = []
        while w or o:
            if len(o) >= len(w): seq.append(o.pop(0))
            else: seq.append(w.pop(0))
        r = {}
        for n, x in enumerate(seq): r.setdefault(K0 + (n*(K1-K0+1))//len(seq), []).append(x)
        return r
    if TS:
        for l in SETZ: a(l)
    wr = []
    fl = []
    for i, (t, j) in enumerate(F):
        plain = t < MG
        if plain and j == 0: fl = list(fill[t])
        for w in range(2):
            k = 2*j + w
            acc = ACC + 20*w + 4*j
            if t == 12:
                if k == 0:
                    for l in scale(0, 0): a(l)
                if k < 9:
                    for l in scale(*divmod(k+1, 2)): a(l)
            if w == 0 and not (LW and plain): lwait(i)
            if LW and plain and k == 0: lwait(i+4)
            a(f"v_mfma_f32_16x16x32_bf16 {vr(acc,4)}, {vr(WB+4*(i%NB),4)}, {vr(act_reg(t)+4*w,4)}, " + ("0" if t == 0 else vr(acc,4)))
            if plain and k == 0 and t not in BAR: stamp(a, f"p4_b{t}")
            if plain and k == 0 and t in BAR:
                stamp(a, f"p4_p{t}")
                need = [f"w{tt}" for tt in range(1, NS) if vis(tt) == t and f"w{tt}" in vm.q]
                if need: a(f"s_waitcnt vmcnt({vm.after(*need)})")
                a("s_barrier")
                stamp(a, f"p4_b{t}")
            for _ in range((RK.count(k) if plain else w == 0) if FR else 2 if (plain and k == 0) else 0 if (plain and k == 9) else 1):
                if rq: rd(rq.pop(0))
            if plain and k == 0 and not TS: site(t, 0)
            if plain and k == KB and not TS: site(t, 1)
            if plain and TS:
                if k == 0: sg = singles(t)
                for g, tg in sg.get(k, []):
                    for l in g: a(l)
                    if tg: vm.add(tg)
            if plain and t in CKS and k == 2:
                a(f"s_waitcnt vmcnt({vm.after(*[f'o{tt}' for tt in range(*CKS[t])])})")
                stamp(a, f"p4_og{t}")
                fl += check(*CKS[t])
            if plain:
                for _ in range(-(-len(fl) // (10-k))): a(fl.pop(0))
            else:
                are = [x for x in wr if x[1] <= 2*i + w]
                if are: a(are[0][0]); wr.remove(are[0])
                if t == NS-1 and j:
                    wr.append((f"ds_write_b128 v{vRD+j}, {vr(acc,4)} offset:{(3*w + j-1)*1024 if j < 4 else 4096*w}", 2*i + w + (4 if j < 4 else 6) + (2 if MG == 16 else 0)))
        if plain and j == 4 and t in CKS:
            a(f"v_cmp_eq_u32 vcc, -1, v{vMX}")
            a("s_nop 0")
            a(f"s_cbranch_vccnz L_or{t}")
            a.label(f"L_or{t}_ret")
            if TS and max(WI.values()) > t:
                for l in SETZ: a(l)
            stamp(a, f"p4_ok{t}")
            if CKS[t][1] == 17:
                a(f"v_swap_b32 v{OA+34}, v{OA+36}"); a(f"v_swap_b32 v{OA+35}, v{OA+37}")
                if MG == 16: a("s_nop 0")
        if t == 11 and j == 4: stamp(a, "p4_end")
    def retry(a):
        for t in CKS:
            a.label(f"L_or{t}")
            a(f"s_mov_b32 s31, {SPIN}")
            a(f"v_bfe_u32 v{vPR}, v{vD}, 4, 5")
            a(f"v_lshlrev_b32 v{vPR}, 9, v{vPR}")
            a("s_lshl_b32 s13, s3, 8")
            a(f"s_and_b32 s41, s{sOR}, 0xffffc000")
            a("s_add_u32 s13, s13, s41")
            a.label(f"L_or{t}_l")
            a("s_sub_u32 s31, s31, 1")
            a("s_cmp_eq_u32 s31, 0")
            a(f"s_cbranch_scc1 L_or{t}_ret")
            a(f"buffer_load_dword v{vMX}, v{vPR}, s[{SWS}:{SWS+3}], s13 offen {LDF}")
            a("s_waitcnt vmcnt(0)")
            a(f"v_cmp_eq_u32 vcc, -1, v{vMX}")
            a("s_nop 0")
            a(f"s_cbranch_vccnz L_or{t}_l")
            for l in oloads(CKS[t][0]): a(l)
            a("s_waitcnt vmcnt(0)")
            for l in check(*CKS[t]): a(l)
            a(f"v_cmp_eq_u32 vcc, -1, v{vMX}")
            a("s_nop 0")
            a(f"s_cbranch_vccnz L_or{t}_l")
            a(f"s_branch L_or{t}_ret")
    late.append(retry)
    for l, _ in wr: a(l)
    stamp(a, "p5_end")
    R = 128
    OF = "".join(" " + x for x in cfg.get("of", "").split(",") if x)
    a("s_lshl_b32 s31, s12, 5")
    a(f"s_add_u32 s31, s31, s{sOUTB}")
    a("s_waitcnt lgkmcnt(0)")
    a("s_barrier")
    for w in range(2):
        for i in range(3): a(f"ds_read_b128 {vr(R+12*w+4*i,4)}, v{vRD+5} offset:{(3*w+i)*1024}")
    a("s_cmp_lt_u32 s12, 2")
    a("s_cbranch_scc0 L_p5_a")
    a("s_lshl_b32 s13, s12, 12")
    a(f"v_add_u32 v{vRD}, s13, v{vRD}")
    a(f"s_mul_i32 s13, s12, {32*1280}")
    a(f"s_add_u32 s13, s13, s{sOUTB}")
    for i in range(4): a(f"ds_read_b128 {vr(R+24+4*i,4)}, v{vRD} offset:{(24+i)*1024}")
    a.label("L_p5_a")
    for w in range(2):
        acc = ACC + 20*w
        a(f"s_waitcnt lgkmcnt({3-3*w})")
        for i in range(4): a(f"v_add_f32 v{R+12*w+i}, v{R+12*w+i}, v{R+12*w+4+i}")
        for i in range(4): a(f"v_add_f32 v{acc+i}, v{acc+i}, v{R+12*w+8+i}")
        for i in range(4): a(f"v_add_f32 v{acc+i}, v{acc+i}, v{R+12*w+i}")
        a(f"v_cvt_pk_bf16_f32 v{OA+2*w}, v{acc}, v{acc+1}")
        a(f"v_cvt_pk_bf16_f32 v{OA+2*w+1}, v{acc+2}, v{acc+3}")
    a("s_nop 1")
    a(f"v_permlane16_swap_b32 v{OA}, v{OA+2}")
    a(f"v_permlane16_swap_b32 v{OA+1}, v{OA+3}")
    a(f"buffer_store_dwordx4 {vr(OA,4)}, v{vOUT}, s[{SOUT}:{SOUT+3}], s31 offen{OF}")
    a("s_cmp_lt_u32 s12, 2")
    a("s_cbranch_scc0 L_p5_end")
    for i in range(4): a(f"v_add_f32 v{R+24+i}, v{R+24+i}, v{R+28+i}")
    for i in range(4): a(f"v_add_f32 v{R+32+i}, v{R+32+i}, v{R+36+i}")
    for i in range(4): a(f"v_add_f32 v{R+24+i}, v{R+24+i}, v{R+32+i}")
    a(f"v_cvt_pk_bf16_f32 v{R+24}, v{R+24}, v{R+25}")
    a(f"v_cvt_pk_bf16_f32 v{R+25}, v{R+26}, v{R+27}")
    a(f"buffer_store_dwordx2 {vr(R+24,2)}, v{vOUT2}, s[{SOUT}:{SOUT+3}], s13 offen offset:128{OF}")
    a.label("L_p5_end")

HEADER = open("cdna_kernels/" + NAME + ".s.ref").read().split("; Override launch")[0]

def kd(name, vgpr, sgpr=100):
    return f""".section .rodata,"a"
.p2align 6
.amdhsa_kernel {name}
  .amdhsa_next_free_vgpr {vgpr}
  .amdhsa_next_free_sgpr {sgpr}
  .amdhsa_accum_offset {(vgpr+3)//4*4}
  .amdhsa_group_segment_fixed_size 0
  .amdhsa_kernarg_size 80
  .amdhsa_user_sgpr_count 2
  .amdhsa_user_sgpr_kernarg_segment_ptr 1
  .amdhsa_system_sgpr_workgroup_id_x 1
.end_amdhsa_kernel
"""

def gen(opts):
    a = Asm()
    k = NAME + "_kernel"
    a(".text"); a(f".globl {k}"); a(".p2align 8"); a(f".type {k},@function"); a.label(k)
    a("s_cmp_ge_u32 s2, 256"); a("s_cbranch_scc1 L_end")
    a(f"s_load_dwordx2 s[{SX}:{SX+1}], s[0:1], 0")
    a(f"s_load_dwordx2 s[{SW}:{SW+1}], s[0:1], 8")
    a(f"s_load_dwordx2 s[{SW1}:{SW1+1}], s[0:1], 32")
    a(f"s_load_dwordx2 s[{SG}:{SG+1}], s[0:1], 48")
    a(f"s_load_dwordx2 s[{SWS}:{SWS+1}], s[0:1], 72")
    a(f"s_load_dwordx2 s[{SDBG}:{SDBG+1}], s[0:1], 64")
    a(f"s_load_dwordx2 s[46:47], s[0:1], 40")
    a(f"s_load_dwordx2 s[48:49], s[0:1], 16")
    a(f"s_load_dwordx2 s[50:51], s[0:1], 56")
    st = Stamps(opts.get("stamps")); st.cyc = opts.get("cyc"); st.dbg = opts.get("dbg"); st(a, "start")
    cfg = dict(opts, stamp=st); late = []
    phase12(a, cfg, late)
    phase3(a, cfg, late)
    phase45(a, cfg, late)
    if st.on: a("s_waitcnt vmcnt(0)")
    st(a, "end"); st.flush(a)
    a.label("L_end"); a("s_endpgm")
    while late: late.pop(0)(a)
    a.label("L_code_end")
    errs = check_linear(a.lines)
    head = HEADER + ("; @launch grid=(256,1,1) block=(512,1,1) lds=163840\n"
                     '.amdgcn_target "amdgcn-amd-amdhsa--gfx950"\n')
    return head + a.text() + kd(k, 256), errs

if __name__ == "__main__":
    out = sys.argv[1] if len(sys.argv) > 1 else "cdna_kernels/" + NAME + ".s"
    opts = {}
    for o in sys.argv[2:]:
        k, _, v = o.partition("=")
        opts[k] = v or True
    txt, errs = gen(opts)
    open(out, "w").write(txt)
    print("written", out, "hazards:", errs, "bytes:", len(txt))
```
